```python
import torch

def _softmax(x, axis=-1):
    return torch.softmax(x, dim=axis)

def _gelu(x):
    return torch.nn.functional.gelu(x, approximate='tanh')

def _silu(x):
    return torch.nn.functional.silu(x)

def _sigmoid(x):
    return torch.sigmoid(x)

def _layernorm(x, axis=-1, eps=1e-05):
    m = x.mean(dim=axis, keepdim=True)
    v = x.var(dim=axis, keepdim=True, unbiased=False)
    return (x - m) / torch.sqrt(v + eps)

def _scatter_add(tgt, idx, src, axis=0):
    return tgt.clone().index_add_(axis, idx, src)

def _segment_sum(src, seg, n):
    out = torch.zeros((n,) + src.shape[1:], dtype=src.dtype)
    return out.index_add_(0, seg, src)

def _pad(x, pw):
    flat = tuple((v for pair in reversed(pw) for v in pair))
    return torch.nn.functional.pad(x, flat)
kernel_name = 'standalone__tensor_product_equiv_tfn__graph'

def setup_inputs():

    _w = lambda a: (lambda t: t.to(torch.bfloat16) if t.is_floating_point() else t)(torch.as_tensor(a))
    N, deg, C, L, DE = (10000, 64, 64, 1, 16)
    E = N * deg
    M = (L + 1) ** 2
    src = (lambda lo, hi, *s: torch.randint(lo, hi, s))(0, N, E).to(torch.int64)
    dst = (lambda lo, hi, *s: torch.randint(lo, hi, s))(0, N, E).to(torch.int64)
    r = (lambda *s: torch.randn(*s, dtype=torch.bfloat16) * 0.05)(E, 3)
    r = r / (torch.linalg.norm(r, dim=-1, keepdim=True) + 1e-09)
    rx, ry, rz = (r[:, 0].clone(), r[:, 1].clone(), r[:, 2].clone())
    Ys = [torch.ones((E, 1), dtype=float)]
    if L >= 1:
        Ys.append(r.to(float))
    if L >= 2:
        Ys.append(torch.stack([2 * rx * ry, 2 * ry * rz, (3 * rz * rz - 1.0) / (lambda _x: torch.sqrt(torch.as_tensor(_x)))(3.0), 2 * rx * rz, rx * rx - ry * ry], dim=-1).to(float))
    for _l in range(3, L + 1):
        Ys.append(((lambda *s: torch.randn(*s, dtype=torch.bfloat16) * 0.05)(E, 2 * _l + 1) * 0.3).to(float))
    Y = torch.cat(Ys, dim=-1)
    cg = torch.zeros((M, M, M), dtype=float)
    off = [_l * _l for _l in range(L + 2)]
    for l1 in range(L + 1):
        for l2 in range(L + 1):
            for l3 in range(abs(l1 - l2), min(L, l1 + l2) + 1):
                d1, d2, d3 = (2 * l1 + 1, 2 * l2 + 1, 2 * l3 + 1)
                cg[off[l1]:off[l1 + 1], off[l2]:off[l2 + 1], off[l3]:off[l3 + 1]] = (lambda *s: torch.randn(*s, dtype=torch.bfloat16) * 0.05)(d1, d2, d3) / (lambda _x: torch.sqrt(torch.as_tensor(_x)))(float(d1 * d2))
    return {'x': _w((lambda *s: torch.randn(*s, dtype=torch.bfloat16) * 0.05)(N, C, M) * 0.2), 'src': _w(src), 'dst': _w(dst), 'Y': _w(Y), 'edge_feat': _w((lambda *s: torch.randn(*s, dtype=torch.bfloat16) * 0.05)(E, DE)), 'w_rad': _w((lambda *s: torch.randn(*s, dtype=torch.bfloat16) * 0.05)(DE, C) * (1.0 / max(1.0, DE) ** 0.5)), 'cg': _w(cg), 'w_mix': _w((lambda *s: torch.randn(*s, dtype=torch.bfloat16) * 0.05)(C, C) * (1.0 / max(1.0, C) ** 0.5))}

def reference(x, src, dst, Y, edge_feat, w_rad, cg, w_mix):
    N, C, M = (x.shape[0], x.shape[1], x.shape[2])
    R = _silu(edge_feat @ w_rad)
    xs = x[src]
    tp = torch.einsum('eci,ef,ifo->eco', xs, Y, cg)
    msg = R[:, :, None] * tp
    agg = _segment_sum(msg.reshape(-1, C * M), dst, N).reshape(N, C, M)
    return torch.einsum('ncm,cd->ndm', agg, w_mix)
```

```python
import sys, struct, math

NAME = "standalone__tensor_product_equiv_tfn__graph"

HEADER = """; Kernarg layout for this problem (88 bytes, ptrs only, base s[0:1]):
"""

CHUNK = 2500
RECSTRIDE = 30080
WS_TAB = 256 * RECSTRIDE
WS_WF = WS_TAB + 256 * 1024

RS = 144
NS = 1216
L_ACC = 0
L_HIST = 40 * NS
L_PREF = L_HIST + 1024
L_CTR = L_PREF + 1024
L_LIST = 51200
CAP = 4096
K2_LDS = L_LIST + (CAP + 64) * 16
K1_LDS = 32768

DPP = "row_mask:0xf bank_mask:0xf"


def fbits(x):
    return "0x%08x" % struct.unpack("<I", struct.pack("<f", x))[0]


class Asm:
    def __init__(self):
        self.lines = []

    def __call__(self, s):
        for ln in s.strip("\n").split("\n"):
            ln = ln.strip()
            if not ln:
                continue
            if ln.endswith(":") or ln.startswith("."):
                self.lines.append(ln)
            else:
                self.lines.append("    " + ln)

    def text(self):
        return "\n".join(self.lines) + "\n"


def v(a, n=1):
    return f"v{a}" if n == 1 else f"v[{a}:{a+n-1}]"


def s(a, n=1):
    return f"s{a}" if n == 1 else f"s[{a}:{a+n-1}]"


def wave_scan(A, regs):
    steps = ["row_shr:1 " + DPP + " bound_ctrl:0", "row_shr:2 " + DPP + " bound_ctrl:0",
             "row_shr:4 " + DPP + " bound_ctrl:0", "row_shr:8 " + DPP + " bound_ctrl:0",
             "row_bcast:15 row_mask:0xa bank_mask:0xf", "row_bcast:31 row_mask:0xc bank_mask:0xf"]
    for st in steps:
        A("s_nop 1")
        for r in regs:
            A(f"v_add_u32_dpp {v(r)}, {v(r)}, {v(r)} {st}")


def kernel_head(A, name):
    A(f".globl {name}\n.p2align 8\n.type {name},@function\n{name}:")


def descriptor(name, vgpr, sgpr):
    acc = (vgpr + 3) // 4 * 4
    return f""".amdhsa_kernel {name}
  .amdhsa_next_free_vgpr {vgpr}
  .amdhsa_next_free_sgpr {sgpr}
  .amdhsa_accum_offset {acc}
  .amdhsa_group_segment_fixed_size 0
  .amdhsa_kernarg_size 88
  .amdhsa_user_sgpr_count 2
  .amdhsa_user_sgpr_kernarg_segment_ptr 1
  .amdhsa_system_sgpr_workgroup_id_x 1
  .amdhsa_float_denorm_mode_32 3
.end_amdhsa_kernel
"""


def stamp(A, opt, slot):
    if opt.get("prof"):
        A(f"s_memrealtime {s(80 + 2 * slot, 2)}")


def stamp_out(A, opt, nslots, wsreg, base, wave_sgpr):
    if opt.get("prof"):
        A("s_waitcnt lgkmcnt(0)")
        A(f"s_lshl_b32 s78, s2, 4\ns_add_u32 s78, s78, {s(wave_sgpr)}\ns_lshl_b32 s78, s78, 5\ns_add_u32 s78, s78, {base}")
        A("s_mov_b64 exec, -1\nv_mov_b32 v1, s78")
        for i in range(nslots):
            A(f"v_mov_b32 v2, {s(80 + 2 * i)}\nglobal_store_dword v1, v2, {s(wsreg, 2)} offset:{4 * i}")


def gen_k1(A, opt):
    ld = opt.get("k1_ld", "")
    st = opt.get("k1_st", "")
    kernel_head(A, "sort_kernel")
    stamp(A, opt, 0)
    A("""
    s_cmp_gt_u32 s2, 256
    s_cbranch_scc1 K1_END
    s_load_dwordx4 s[4:7], s[0:1], 8
    s_load_dwordx2 s[8:9], s[0:1], 24
    s_load_dwordx2 s[10:11], s[0:1], 80
    v_lshrrev_b32 v1, 6, v0
    s_cmp_eq_u32 s2, 256
    v_readfirstlane_b32 s3, v1
    s_cbranch_scc1 K1_PREP
    """)
    A(f"""
    s_mul_i32 s12, s2, {CHUNK * 4}
    s_mul_i32 s13, s2, {CHUNK * 8}
    v_lshl_add_u32 v1, v0, 4, s12
    v_lshl_add_u32 v2, v0, 5, s13
    v_and_b32 v3, 0xff, v0
    v_lshlrev_b32 v3, 2, v3
    v_mov_b32 v4, 0
    ds_write_b32 v3, v4
    v_cmp_gt_u32 vcc, {CHUNK // 4}, v0
    s_mov_b64 s[14:15], vcc
    s_mov_b64 exec, vcc
    s_waitcnt lgkmcnt(0)
    global_load_dwordx4 v[8:11], v1, s[6:7] {ld}
    global_load_dwordx4 v[12:15], v1, s[4:5] {ld}
    global_load_dwordx4 v[16:19], v2, s[8:9] {ld}
    global_load_dwordx4 v[20:23], v2, s[8:9] offset:16 {ld}
    """)
    npre = 0
    if opt.get("k1_touch_x") or opt.get("k1_touch_ef"):
        A("s_load_dwordx2 s[18:19], s[0:1], 0\ns_load_dwordx2 s[20:21], s[0:1], 32\ns_waitcnt lgkmcnt(0)")
    if opt.get("k1_touch_x"):
        A("global_load_dword v40, v2, s[18:19]")
        npre += 1
    if opt.get("k1_touch_ef"):
        A(f"s_mul_i32 s22, s2, {CHUNK * 32}\nv_lshl_add_u32 v41, v0, 7, s22\nglobal_load_dword v41, v41, s[20:21]")
        npre += 1
    A(f"""
    v_mov_b32 v5, 1
    v_lshlrev_b32 v6, 2, v0
    s_barrier
    s_waitcnt vmcnt({3 + npre})
    """)
    for k in range(4):
        A(f"v_lshlrev_b32_sdwa {v(24 + k)}, 2, {v(8 + k)} dst_sel:DWORD dst_unused:UNUSED_PAD src0_sel:DWORD src1_sel:BYTE_0")
    for k in range(4):
        A(f"ds_add_rtn_u32 {v(28 + k)}, {v(24 + k)}, v5")
    A(f"s_waitcnt vmcnt({2 + npre})")
    for k in range(4):
        A(f"""
        v_lshrrev_b32 {v(8 + k)}, 8, {v(8 + k)}
        v_lshl_or_b32 {v(8 + k)}, {v(8 + k)}, 14, {v(12 + k)}
        v_or_b32 v7, {k}, v6
        v_lshl_or_b32 {v(8 + k)}, {v(8 + k)}, 12, v7
        """)
    A("""
    s_mov_b64 exec, -1
    v_and_b32 v3, 63, v0
    v_lshlrev_b32 v3, 4, v3
    s_waitcnt lgkmcnt(0)
    s_barrier
    ds_read_b128 v[32:35], v3
    s_waitcnt lgkmcnt(0)
    v_add_u32 v38, v32, v33
    v_add_u32 v39, v38, v34
    v_add_u32 v4, v39, v35
    v_mov_b32 v36, v4
    """)
    wave_scan(A, [36])
    A(f"""
    v_sub_u32 v36, v36, v4
    v_add_u32 v37, v36, v32
    v_add_u32 v38, v36, v38
    v_add_u32 v39, v36, v39
    ds_write_b128 v3, v[36:39] offset:1024
    s_mov_b64 exec, s[14:15]
    """)
    for k in range(4):
        A(f"ds_read_b32 {v(24 + k)}, {v(24 + k)} offset:1024")
    A(f"""
    s_mov_b64 exec, -1
    s_cmp_lg_u32 s3, 0
    s_cbranch_scc1 K1_NOTAB
    s_lshl_b32 s16, s2, 10
    s_add_u32 s16, s16, {WS_TAB}
    v_add_u32 v3, s16, v3
    v_lshl_or_b32 v32, v32, 16, v36
    v_lshl_or_b32 v33, v33, 16, v37
    v_lshl_or_b32 v34, v34, 16, v38
    v_lshl_or_b32 v35, v35, 16, v39
    global_store_dwordx4 v3, v[32:35], s[10:11] {st}
    K1_NOTAB:
    s_mov_b64 exec, s[14:15]
    s_movk_i32 s17, 2048
    s_waitcnt lgkmcnt(0)
    """)
    for k in range(4):
        A(f"v_add_u32 {v(24 + k)}, {v(24 + k)}, {v(28 + k)}\nv_mad_u32_u24 {v(24 + k)}, {v(24 + k)}, 12, s17")
    for k in range(4):
        A(f"ds_write_b32 {v(24 + k)}, {v(8 + k)} offset:8")
    if npre:
        A(f"s_cmp_lg_u32 s3, 0\ns_cbranch_scc1 K1_W0\ns_waitcnt vmcnt({npre + 1})\ns_branch K1_W1\nK1_W0:\ns_waitcnt vmcnt({npre})\nK1_W1:")
    else:
        A("s_cmp_lg_u32 s3, 0\ns_cbranch_scc1 K1_W0\ns_waitcnt vmcnt(1)\ns_branch K1_W1\nK1_W0:\ns_waitcnt vmcnt(0)\nK1_W1:")
    for k in range(4):
        A(f"ds_write2_b32 {v(24 + k)}, {v(16 + 2 * k)}, {v(17 + 2 * k)} offset0:0 offset1:1")
    A(f"""
    s_mov_b64 exec, -1
    v_lshlrev_b32 v3, 4, v0
    s_mul_i32 s16, s2, {RECSTRIDE}
    v_add_u32 v4, s16, v3
    v_add_u32 v5, 10240, v4
    v_add_u32 v6, 20480, v4
    v_cmp_gt_u32 vcc, {CHUNK * 12 // 16 - 1280}, v0
    s_waitcnt lgkmcnt(0)
    s_barrier
    ds_read_b128 v[8:11], v3 offset:2048
    ds_read_b128 v[12:15], v3 offset:{2048 + 10240}
    ds_read_b128 v[16:19], v3 offset:{2048 + 20480}
    s_waitcnt lgkmcnt(2)
    global_store_dwordx4 v4, v[8:11], s[10:11] {st}
    s_waitcnt lgkmcnt(1)
    global_store_dwordx4 v5, v[12:15], s[10:11] {st}
    s_mov_b64 exec, vcc
    s_waitcnt lgkmcnt(0)
    global_store_dwordx4 v6, v[16:19], s[10:11] {st}
    """)
    if opt.get("prof"):
        A("s_waitcnt vmcnt(0)")
        stamp(A, opt, 1)
        stamp_out(A, opt, 2, 10, 128 << 20, 3)
    A("s_endpgm")
    A(f"""
    K1_PREP:
    s_load_dwordx4 s[12:15], s[0:1], 40
    s_load_dwordx2 s[16:17], s[0:1], 56
    v_and_b32 v1, 63, v0
    v_lshlrev_b32 v2, 4, v1
    v_add_u32 v2, {WS_WF}, v2
    s_waitcnt lgkmcnt(0)
    s_cmp_eq_u32 s3, 0
    s_cbranch_scc1 K1_PREP_W
    s_cmp_eq_u32 s3, 1
    s_cbranch_scc1 K1_PREP_CG
    s_sub_u32 s18, s3, 2
    s_lshr_b32 s19, s18, 2
    s_lshl_b32 s19, s19, 7
    s_and_b32 s20, s18, 1
    s_lshl_b32 s20, s20, 1
    s_add_u32 s19, s19, s20
    s_and_b32 s20, s18, 2
    s_lshl_b32 s20, s20, 5
    s_add_u32 s19, s19, s20
    v_lshrrev_b32 v3, 4, v1
    v_lshlrev_b32 v3, 11, v3
    v_and_b32 v4, 15, v1
    v_lshl_add_u32 v3, v4, 2, v3
    v_add_u32 v3, s19, v3
    """)
    for i in range(8):
        A(f"global_load_ushort {v(8 + i)}, v3, s[16:17] offset:{256 * i}")
    A("s_lshl_b32 s18, s18, 10\ns_add_u32 s18, s18, 6144\nv_add_u32 v2, s18, v2\ns_waitcnt vmcnt(0)")
    for j in range(4):
        A(f"v_lshl_or_b32 {v(16 + j)}, {v(9 + 2 * j)}, 16, {v(8 + 2 * j)}")
    A("global_store_dwordx4 v2, v[16:19], s[10:11]\ns_endpgm")
    A("K1_PREP_CG:\nv_and_b32 v3, 3, v1\nv_lshlrev_b32 v3, 1, v3")
    for i in range(16):
        A(f"global_load_ushort {v(8 + i)}, v3, s[14:15] offset:{8 * i}")
    A("v_add_u32 v2, 4096, v2\ns_waitcnt vmcnt(0)")
    for j in range(8):
        A(f"v_lshl_or_b32 {v(24 + j)}, {v(9 + 2 * j)}, 16, {v(8 + 2 * j)}")
    A("global_store_dwordx4 v2, v[24:27], s[10:11]\nglobal_store_dwordx4 v2, v[28:31], s[10:11] offset:1024\ns_endpgm")
    A("""
    K1_PREP_W:
    v_lshrrev_b32 v3, 5, v1
    v_lshlrev_b32 v3, 10, v3
    v_and_b32 v4, 31, v1
    v_lshl_add_u32 v3, v4, 2, v3
    """)
    for i in range(8):
        A(f"global_load_dword {v(8 + i)}, v3, s[12:13] offset:{128 * i}")
    A(f"s_mov_b32 s18, {fbits(-math.log2(math.e))}\ns_waitcnt vmcnt(0)")
    for par in range(2):
        for i in range(8):
            if par == 0:
                A(f"v_lshlrev_b32 {v(16 + i)}, 16, {v(8 + i)}")
            else:
                A(f"v_and_b32 {v(16 + i)}, 0xffff0000, {v(8 + i)}")
            A(f"v_mul_f32 {v(16 + i)}, s18, {v(16 + i)}")
        H = 24 + 8 * par
        for j in range(4):
            A(f"""
            v_cvt_pk_bf16_f32 {v(H + j)}, {v(16 + 2 * j)}, {v(17 + 2 * j)}
            v_lshlrev_b32 v5, 16, {v(H + j)}
            v_and_b32 v6, 0xffff0000, {v(H + j)}
            v_sub_f32 v5, {v(16 + 2 * j)}, v5
            v_sub_f32 v6, {v(17 + 2 * j)}, v6
            v_cvt_pk_bf16_f32 {v(H + 4 + j)}, v5, v6
            """)
    for f in range(4):
        A(f"global_store_dwordx4 v2, {v(24 + 4 * f, 4)}, s[10:11] offset:{1024 * f}")
    A("K1_END:\ns_endpgm")


W = 8
CG = 24
V_LANE16, V_HALF16, V_ACCL, V_LAD, V_LAE, V_LAY, V_ONE, V_DBASE, V_DCNT, V_PBASE, V_K, V_K12, V_CTRA = range(32, 45)
V_T0, V_T1, V_T2, V_T3 = 45, 46, 47, 48
X = 64
D = (128, 160)
EF = (192, 196)
T = (200, 204)
TF = 208
YR = 216
TP = 220
ACC = 228
E = 236
SE = (240, 242)
KK = (244, 245)
V_EID, V_XA, V_FA, V_YA, V_GRAB, V_MT = 246, 247, 248, 249, 250, 251
NVGPR2 = 252

S_X, S_EF, S_OUT, S_WS = 4, 8, 12, 16
S_BETA, S_WAVE, S_K0, S_WIDE, S_N, S_NT, S_NEXT, S_NN = 18, 19, 20, 21, 22, 23, 24, 25
S_MASK = (26, 27)
S_CMP = 28
S_MORE, S_TMP = 30, 31
S_M1, S_M2 = 32, 48
S_ANY2 = 64
S_C0, S_C1 = 66, 67
S_SC = 68
EFS = 6


def gen_k2(A, opt):
    name = NAME + "_kernel"
    efl = opt.get("ef_ld", "")
    kernel_head(A, name)
    stamp(A, opt, 0)
    A(f"""
    s_cmp_ge_u32 s2, 256
    s_cbranch_scc1 K2_END
    s_load_dwordx2 {s(S_WS, 2)}, s[0:1], 80
    s_load_dwordx2 {s(S_X, 2)}, s[0:1], 0
    s_load_dwordx2 {s(S_EF, 2)}, s[0:1], 32
    s_load_dwordx2 {s(S_OUT, 2)}, s[0:1], 64
    s_and_b32 {s(S_BETA)}, s2, 7
    s_lshl_b32 {s(S_BETA)}, {s(S_BETA)}, 5
    s_lshr_b32 s3, s2, 3
    s_add_u32 {s(S_BETA)}, {s(S_BETA)}, s3
    v_lshrrev_b32 v1, 6, v0
    v_and_b32 v2, 63, v0
    v_readfirstlane_b32 {s(S_WAVE)}, v1
    v_lshrrev_b32 v3, 4, v0
    v_lshlrev_b32 v3, 3, v3
    v_and_b32 v4, 7, v0
    v_add_u32 v4, v3, v4
    s_lshl_b32 s3, {s(S_BETA)}, 2
    s_add_u32 s3, s3, {WS_TAB}
    v_lshl_add_u32 v5, v4, 10, s3
    v_lshlrev_b32 v6, 4, v2
    v_add_u32 v6, {WS_WF}, v6
    s_waitcnt lgkmcnt(0)
    global_load_dword {v(V_DCNT)}, v5, {s(S_WS, 2)}
    """)
    for f in range(4):
        A(f"global_load_dwordx4 {v(W + 4 * f, 4)}, v6, {s(S_WS, 2)} offset:{1024 * f}")
    A("v_add_u32 v6, 4096, v6")
    for f in range(2):
        A(f"global_load_dwordx4 {v(CG + 4 * f, 4)}, v6, {s(S_WS, 2)} offset:{1024 * f}")
    A(f"""
    s_and_b32 {s(S_X + 1)}, {s(S_X + 1)}, 0xffff
    s_mov_b32 {s(S_X + 2)}, 5120000
    s_mov_b32 {s(S_X + 3)}, 0x20000
    s_and_b32 {s(S_EF + 1)}, {s(S_EF + 1)}, 0xffff
    s_mov_b32 {s(S_EF + 2)}, 20480000
    s_mov_b32 {s(S_EF + 3)}, 0x20000
    s_and_b32 {s(S_OUT + 1)}, {s(S_OUT + 1)}, 0xffff
    s_mov_b32 {s(S_OUT + 2)}, 5120000
    s_mov_b32 {s(S_OUT + 3)}, 0x20000
    s_mov_b32 {s(S_K0)}, 0
    s_mov_b32 {s(S_WIDE)}, 1
    s_mov_b32 {s(S_C0)}, {RECSTRIDE}
    v_mul_lo_u32 {v(V_DBASE)}, v4, {s(S_C0)}
    v_mul_u32_u24 {v(V_PBASE)}, {CHUNK}, v3
    v_and_b32 {v(V_K)}, 15, v0
    v_and_b32 v5, 31, v2
    v_lshrrev_b32 v6, 5, v2
    v_lshlrev_b32 {v(V_LANE16)}, 4, v5
    v_lshlrev_b32 {v(V_HALF16)}, 4, v6
    v_lshlrev_b32 {v(V_ACCL)}, 2, v5
    v_lshl_add_u32 {v(V_LAD)}, {v(V_K)}, 5, {v(V_HALF16)}
    v_lshrrev_b32 v7, 3, v5
    v_lshlrev_b32 v7, 2, v7
    v_and_or_b32 v7, v5, 3, v7
    v_lshlrev_b32 v7, 5, v7
    v_and_b32 v1, 4, v5
    v_lshl_add_u32 {v(V_LAE)}, v1, 2, v7
    v_lshrrev_b32 v7, 2, v5
    v_lshl_add_u32 {v(V_LAY)}, v7, 5, {v(V_HALF16)}
    v_mov_b32 {v(V_ONE)}, 1
    v_mov_b32 {v(V_CTRA)}, {L_CTR}
    v_mov_b64 v[64:65], 0
    v_mov_b64 v[66:67], 0
    v_lshlrev_b32 v7, 4, v0
    """)
    nz = (40 * NS + 8191) // 8192
    for i in range(nz):
        A(f"ds_write_b128 v7, v[64:67] offset:{8192 * i}")
    assert nz * 8192 <= L_PREF
    A(f"""
    s_waitcnt vmcnt(6)
    v_and_b32 v1, 0xffff, {v(V_DCNT)}
    v_mad_u32_u24 {v(V_DBASE)}, v1, 12, {v(V_DBASE)}
    v_lshrrev_b32 {v(V_DCNT)}, 16, {v(V_DCNT)}
    """)
    stamp(A, opt, 1)
    REC1, REC2, RK1, RK2, HA1, HA2 = 64, 96, 128, 136, 144, 152
    A(f"""
    K2_ROUND:
    v_and_b32 v1, 0xff, v0
    v_lshlrev_b32 v1, 2, v1
    v_mov_b32 v2, 0
    v_mov_b32 v3, 16
    ds_write_b32 v1, v2 offset:{L_HIST}
    ds_write2_b32 {v(V_CTRA)}, v3, v2 offset0:0 offset1:1
    v_add_u32 v4, {s(S_K0)}, {v(V_K)}
    v_mul_u32_u24 {v(V_K12)}, 12, v4
    s_lshl_b32 {s(S_TMP)}, 16, {s(S_WIDE)}
    s_add_u32 {s(S_TMP)}, {s(S_TMP)}, {s(S_K0)}
    v_cmp_lt_u32 {s(S_CMP, 2)}, {s(S_TMP)}, {v(V_DCNT)}
    s_cmp_eq_u32 {s(S_WIDE)}, 1
    s_cselect_b32 {s(S_C1)}, 16, 0x7fffffff
    s_mov_b64 {s(S_ANY2, 2)}, 0
    """)
    for c in range(8):
        A(f"""
        v_add_u32_dpp {v(HA2 + c)}, {v(V_DBASE)}, {v(V_K12)} row_newbcast:{c} {DPP}
        v_sub_u32_dpp v5, {v(V_DCNT)}, v4 row_newbcast:{c} {DPP}
        v_cmp_lt_i32 {s(S_M1 + 2 * c, 2)}, 0, v5
        v_cmp_lt_i32 {s(S_M2 + 2 * c, 2)}, {s(S_C1)}, v5
        """)
    for c in range(8):
        A(f"""
        s_mov_b64 exec, {s(S_M1 + 2 * c, 2)}
        s_or_b64 {s(S_ANY2, 2)}, {s(S_ANY2, 2)}, {s(S_M2 + 2 * c, 2)}
        global_load_dwordx3 {v(REC1 + 4 * c, 3)}, {v(HA2 + c)}, {s(S_WS, 2)}
        """)
    A(f"s_cmp_eq_u64 {s(S_ANY2, 2)}, 0\ns_cbranch_scc1 K2_NOSEC_A")
    for c in range(8):
        A(f"""
        s_mov_b64 exec, {s(S_M2 + 2 * c, 2)}
        s_cbranch_execz K2_SA{c}
        global_load_dwordx3 {v(REC2 + 4 * c, 3)}, {v(HA2 + c)}, {s(S_WS, 2)} offset:192
        K2_SA{c}:
        """)
    A("K2_NOSEC_A:\ns_mov_b64 exec, -1")
    npre = opt.get("xpre", 0)
    if npre:
        A(f"""
        s_lshr_b32 {s(S_TMP)}, s2, 3
        s_mul_i32 {s(S_TMP)}, {s(S_TMP)}, {npre * 128}
        s_add_u32 {s(S_TMP)}, {s(S_TMP)}, {opt.get("xpre_base", 0)}
        v_lshl_add_u32 v5, v0, 7, {s(S_TMP)}
        v_cmp_gt_u32 vcc, {npre}, v0
        s_mov_b64 exec, vcc
        buffer_load_dword v6, v5, {s(S_X, 4)}, 0 offen
        s_mov_b64 exec, -1
        """)
    A(f"""
    s_waitcnt lgkmcnt(0)
    s_barrier
    s_cmp_eq_u64 {s(S_CMP, 2)}, 0
    s_cbranch_scc1 K2_NOMORE
    ds_write_b32 {v(V_CTRA)}, {v(V_ONE)} offset:4
    K2_NOMORE:
    s_mov_b32 {s(S_C0)}, 0x7ffe00
    s_mov_b32 {s(S_C1)}, 0xfc000fff
    s_waitcnt vmcnt({1 if npre else 0})
    """)
    stamp(A, opt, 2)

    def hist(rec, rk, ha, c):
        A(f"""
        v_lshlrev_b32_sdwa {v(ha + c)}, 2, {v(rec + 4 * c + 2)} dst_sel:DWORD dst_unused:UNUSED_PAD src0_sel:DWORD src1_sel:BYTE_3
        v_and_b32 {v(rec + 4 * c + 3)}, {s(S_C1)}, {v(rec + 4 * c + 2)}
        ds_add_rtn_u32 {v(rk + c)}, {v(ha + c)}, {v(V_ONE)} offset:{L_HIST}
        v_lshrrev_b32 {v(rec + 4 * c + 2)}, 3, {v(rec + 4 * c + 2)}
        v_and_b32 {v(rec + 4 * c + 2)}, {s(S_C0)}, {v(rec + 4 * c + 2)}
        s_movk_i32 {s(S_TMP)}, {c * CHUNK}
        v_add3_u32 {v(rec + 4 * c + 3)}, {v(rec + 4 * c + 3)}, {v(V_PBASE)}, {s(S_TMP)}
        """)

    for c in range(8):
        A(f"s_mov_b64 exec, {s(S_M1 + 2 * c, 2)}")
        hist(REC1, RK1, HA1, c)
    A(f"s_cmp_eq_u64 {s(S_ANY2, 2)}, 0\ns_cbranch_scc1 K2_NOSEC_B")
    for c in range(8):
        A(f"s_mov_b64 exec, {s(S_M2 + 2 * c, 2)}\ns_cbranch_execz K2_SB{c}")
        hist(REC2, RK2, HA2, c)
        A(f"K2_SB{c}:")
    order = opt.get("order", [0, 1, 2, 3])
    A(f"""
    K2_NOSEC_B:
    s_mov_b64 exec, -1
    v_and_b32 v1, 63, v0
    v_lshlrev_b32 v1, 4, v1
    s_waitcnt lgkmcnt(0)
    s_barrier
    ds_read_b128 v[160:163], v1 offset:{L_HIST}
    ds_read_b32 v2, {v(V_CTRA)} offset:4
    s_waitcnt lgkmcnt(0)
    v_readfirstlane_b32 {s(S_MORE)}, v2
    v_lshl_or_b32 v164, {v(160 + order[1])}, 16, {v(160 + order[0])}
    v_lshl_or_b32 v165, {v(160 + order[3])}, 16, {v(160 + order[2])}
    v_mov_b32 v166, v164
    v_mov_b32 v167, v165
    """)
    wave_scan(A, [166, 167])
    A(f"""
    s_nop 0
    v_readlane_b32 s70, v166, 63
    v_readlane_b32 s71, v167, 63
    v_sub_u32 v166, v166, v164
    v_sub_u32 v167, v167, v165
    s_and_b32 s72, s70, 0xffff
    s_lshr_b32 s73, s70, 16
    s_add_u32 s73, s73, s72
    s_and_b32 s74, s71, 0xffff
    s_add_u32 s74, s74, s73
    s_lshr_b32 {s(S_N)}, s71, 16
    s_add_u32 {s(S_N)}, {s(S_N)}, s74
    s_cmp_le_u32 {s(S_N)}, {CAP}
    s_cbranch_scc1 K2_FITS
    s_mov_b32 {s(S_WIDE)}, 0
    s_barrier
    s_branch K2_ROUND
    K2_FITS:
    v_and_b32 {v(160 + order[0])}, 0xffff, v166
    v_lshrrev_b32 v166, 16, v166
    v_add_u32 {v(160 + order[1])}, s72, v166
    v_and_b32 v166, 0xffff, v167
    v_add_u32 {v(160 + order[2])}, s73, v166
    v_lshrrev_b32 v167, 16, v167
    v_add_u32 {v(160 + order[3])}, s74, v167
    ds_write_b128 v1, v[160:163] offset:{L_PREF}
    s_add_u32 {s(S_NT)}, {s(S_N)}, 31
    s_lshr_b32 {s(S_NT)}, {s(S_NT)}, 5
    s_lshl_b32 {s(S_TMP)}, {s(S_N)}, 4
    v_add_u32 v1, {s(S_TMP)}, v1
    v_mov_b64 v[164:165], 0
    v_mov_b32 v166, 0x80000000
    v_mov_b32 v167, 0xfffff
    """)
    for c in range(8):
        A(f"s_mov_b64 exec, {s(S_M1 + 2 * c, 2)}\nds_read_b32 {v(HA1 + c)}, {v(HA1 + c)} offset:{L_PREF}")
    A(f"s_mov_b64 exec, -1\nds_write_b128 v1, v[164:167] offset:{L_LIST}\ns_waitcnt lgkmcnt(1)")
    for c in range(8):
        A(f"""
        s_mov_b64 exec, {s(S_M1 + 2 * c, 2)}
        v_add_lshl_u32 {v(HA1 + c)}, {v(HA1 + c)}, {v(RK1 + c)}, 4
        ds_write_b128 {v(HA1 + c)}, {v(REC1 + 4 * c, 4)} offset:{L_LIST}
        """)
    A(f"s_cmp_eq_u64 {s(S_ANY2, 2)}, 0\ns_cbranch_scc1 K2_NOSEC_C")
    for c in range(8):
        A(f"""
        s_mov_b64 exec, {s(S_M2 + 2 * c, 2)}
        s_cbranch_execz K2_SC{c}
        ds_read_b32 {v(HA2 + c)}, {v(HA2 + c)} offset:{L_PREF}
        s_waitcnt lgkmcnt(0)
        v_add_lshl_u32 {v(HA2 + c)}, {v(HA2 + c)}, {v(RK2 + c)}, 4
        ds_write_b128 {v(HA2 + c)}, {v(REC2 + 4 * c, 4)} offset:{L_LIST}
        K2_SC{c}:
        """)
    A(f"""
    K2_NOSEC_C:
    s_mov_b64 exec, -1
    s_add_u32 {s(S_NEXT)}, {s(S_WAVE)}, 8
    s_min_u32 {s(S_NEXT)}, {s(S_NEXT)}, {s(S_NT)}
    s_lshl_b32 s70, {s(S_WAVE)}, 9
    s_lshl_b32 s71, {s(S_NEXT)}, 9
    v_add_u32 v1, s70, {v(V_LAD)}
    v_add_u32 v2, s70, {v(V_LAE)}
    v_add_u32 v3, s70, {v(V_LAY)}
    v_add_u32 v4, s71, {v(V_LAD)}
    v_add_u32 v5, s71, {v(V_LAE)}
    v_add_u32 {v(V_YA)}, s71, {v(V_LAY)}
    s_movk_i32 {s(S_C0)}, {NS}
    s_waitcnt lgkmcnt(0)
    s_barrier
    """)
    stamp(A, opt, 3)
    A(f"""
    s_cmp_ge_u32 {s(S_WAVE)}, {s(S_NT)}
    s_cbranch_scc1 K2_MAIN_DONE
    ds_read_b32 v2, v2 offset:{L_LIST + 12}
    ds_read_b64 {v(SE[0], 2)}, v1 offset:{L_LIST + 8}
    ds_read_b32 {v(V_EID)}, v5 offset:{L_LIST + 12}
    ds_read_b64 {v(YR, 2)}, v3 offset:{L_LIST}
    ds_read_b64 {v(YR + 2, 2)}, v3 offset:{L_LIST + 256}
    ds_read_b64 {v(SE[1], 2)}, v4 offset:{L_LIST + 8}
    s_waitcnt lgkmcnt(5)
    v_mad_u32_u24 v2, v2, 32, {v(V_HALF16)}
    buffer_load_dwordx4 {v(EF[0], 4)}, v2, {s(S_EF, 4)}, 0 offen {efl}
    s_waitcnt lgkmcnt(3)
    v_mad_u32_u24 {v(V_EID)}, {v(V_EID)}, 32, {v(V_HALF16)}
    """)

    def xload(se, r):
        A(f"v_add_u32_dpp {v(V_XA)}, {v(se)}, {v(V_LANE16)} row_newbcast:{r} {DPP}")
        A(f"buffer_load_dwordx4 {v(X + 4 * r, 4)}, {v(V_XA)}, {s(S_X, 4)}, 0 offen")

    def dot_ops():
        ops = []
        for half in range(2):
            for i in range(4):
                ops.append(f"v_dot2_f32_bf16 {v(TF + 4 * half + i)}, {v(YR + 2 * half)}, {v(CG + 2 * i)}, 0")
            for i in range(4):
                ops.append(f"v_dot2_f32_bf16 {v(TF + 4 * half + i)}, {v(YR + 2 * half + 1)}, {v(CG + 2 * i + 1)}, {v(TF + 4 * half + i)}")
        return ops

    def cvt_ops(t):
        return [f"v_cvt_pk_bf16_f32 {v(t + j)}, {v(TF + 2 * j)}, {v(TF + 2 * j + 1)}" for j in range(4)]

    def key_ops(se, kk):
        return [f"v_lshrrev_b32 {v(kk)}, 26, {v(se + 1)}",
                f"v_mul_u32_u24 {v(kk)}, {s(S_C0)}, {v(kk)}",
                f"v_xor_b32_dpp {v(V_MT)}, {v(kk)}, {v(kk)} row_shl:1 {DPP} bound_ctrl:0",
                f"v_cmp_ne_u32 {s(S_CMP, 2)}, 0, {v(V_MT)}"]

    def m32_ops(ef, d):
        return [f"v_mfma_f32_32x32x16_bf16 {v(d, 16)}, {v(ef, 4)}, {v(W, 4)}, 0",
                f"v_mfma_f32_32x32x16_bf16 {v(d, 16)}, {v(ef, 4)}, {v(W + 4, 4)}, {v(d, 16)}",
                f"v_mfma_f32_32x32x16_bf16 {v(d + 16, 16)}, {v(ef, 4)}, {v(W + 8, 4)}, 0",
                f"v_mfma_f32_32x32x16_bf16 {v(d + 16, 16)}, {v(ef, 4)}, {v(W + 12, 4)}, {v(d + 16, 16)}"]

    def exp_ops(d, q):
        return [f"v_exp_f32 {v(E)}, {v(d + q)}", f"v_exp_f32 {v(E + 1)}, {v(d + q + 1)}",
                f"v_exp_f32 {v(E + 2)}, {v(d + 16 + q)}", f"v_exp_f32 {v(E + 3)}, {v(d + 16 + q + 1)}"]

    add_ops = [f"v_pk_add_f32 {v(E, 2)}, {v(E, 2)}, 1.0 op_sel_hi:[1,0]",
               f"v_pk_add_f32 {v(E + 2, 2)}, {v(E + 2, 2)}, 1.0 op_sel_hi:[1,0]"]
    rcp_ops = [f"v_rcp_f32 {v(E + j)}, {v(E + j)}" for j in range(4)]

    def mul_ops(d, q):
        return [f"v_pk_mul_f32 {v(d + q, 2)}, {v(d + q, 2)}, {v(E, 2)}",
                f"v_pk_mul_f32 {v(d + 16 + q, 2)}, {v(d + 16 + q, 2)}, {v(E + 2, 2)}"]

    for r in range(16):
        xload(SE[0], r)
        if r == EFS:
            A(f"buffer_load_dwordx4 {v(EF[1], 4)}, {v(V_EID)}, {s(S_EF, 4)}, 0 offen {efl}")
    A("s_waitcnt lgkmcnt(0)")
    ko = key_ops(SE[0], KK[0])
    A(ko[0] + "\n" + ko[1])
    for op in dot_ops():
        A(op)
    A(ko[2] + "\n" + ko[3])
    A(f"ds_read_b64 {v(YR, 2)}, {v(V_YA)} offset:{L_LIST}\nds_read_b64 {v(YR + 2, 2)}, {v(V_YA)} offset:{L_LIST + 256}")
    A("s_nop 0")
    for op in cvt_ops(T[0]):
        A(op)
    A(f"s_or_b32 {s(S_MASK[0])}, {s(S_CMP)}, {s(S_CMP + 1)}")
    A("s_waitcnt vmcnt(17)")
    for op in m32_ops(EF[0], D[0]):
        A(op)
    A("s_nop 11")
    for op in exp_ops(D[0], 0):
        A(op)
    A("s_nop 0")
    for op in add_ops + rcp_ops:
        A(op)
    A("s_nop 0")
    for op in mul_ops(D[0], 0):
        A(op)
    A("s_waitcnt lgkmcnt(0)")
    stamp(A, opt, 4)

    def flush(a, r, zero):
        A(f"v_add_u32_dpp {v(V_FA)}, {v(KK[a])}, {v(V_ACCL)} row_newbcast:{r} {DPP}")
        for j in range(8):
            A(f"ds_add_f32 {v(V_FA)}, {v(ACC + j)} offset:{L_ACC + RS * j}")
        if zero:
            for j in range(4):
                A(f"v_mov_b64 {v(ACC + 2 * j, 2)}, 0")

    A(".p2align 6")
    for a in range(2):
        b = 1 - a
        A(f"K2_LOOP{a}:")
        dots = dot_ops()
        fill = {9: [key_ops(SE[b], KK[b])[0], key_ops(SE[b], KK[b])[1]],
                10: cvt_ops(T[b])[0:2],
                11: [key_ops(SE[b], KK[b])[2], key_ops(SE[b], KK[b])[3]],
                12: cvt_ops(T[b])[2:4]}
        m32 = dict(zip((9, 10, 11, 12), m32_ops(EF[b], D[b])))
        for r in range(16):
            tr = T[a] + (2 if r >= 8 else 0)
            m4 = [f"v_mfma_f32_4x4x4_16b_bf16 {v(TP + 4 * h, 4)}, {v(tr, 2)}, {v(X + 4 * r + 2 * h, 2)}, 0 cbsz:3 abid:{r % 8}" for h in range(2)]
            q = (r & ~1) + 2
            dq, qq = (D[a], q) if q < 16 else (D[b], 0)
            trans = exp_ops(dq, qq) if r % 2 == 0 else rcp_ops
            side = add_ops if r % 2 == 0 else mul_ops(dq, qq)
            sel = "op_sel:[1,0,0] op_sel_hi:[1,1,1]" if r % 2 else "op_sel:[0,0,0] op_sel_hi:[0,1,1]"
            fma = []
            for j in range(4):
                rr = D[a] + 16 * (j // 2) + (r & ~1)
                if r == 0:
                    fma.append(f"v_pk_mul_f32 {v(ACC + 2 * j, 2)}, {v(rr, 2)}, {v(TP + 2 * j, 2)} op_sel:[0,0] op_sel_hi:[0,1]")
                else:
                    fma.append(f"v_pk_fma_f32 {v(ACC + 2 * j, 2)}, {v(rr, 2)}, {v(TP + 2 * j, 2)}, {v(ACC + 2 * j, 2)} {sel}")
            if r in m32:
                A(m32[r])
                A(trans[0] + "\n" + trans[1] + "\n" + trans[2])
                A("s_waitcnt vmcnt(16)")
                A(m4[0] + "\n" + trans[3] + "\n" + m4[1])
            else:
                A("s_waitcnt vmcnt(16)")
                A(m4[0] + "\n" + trans[0] + "\n" + m4[1] + "\n" + trans[1] + "\n" + trans[2] + "\n" + trans[3])
            xload(SE[b], r)
            for op in fill.get(r, []):
                A(op)
            if r == 2:
                A(f"s_mov_b64 exec, 1\nds_add_rtn_u32 {v(V_GRAB)}, {v(V_CTRA)}, {v(V_ONE)}\ns_mov_b64 exec, -1")
            if r == 4:
                A(f"""
                s_waitcnt lgkmcnt(0)
                v_readfirstlane_b32 {s(S_NN)}, {v(V_GRAB)}
                """)
            if r == EFS:
                A(f"""
                s_waitcnt lgkmcnt(0)
                v_mad_u32_u24 {v(V_EID)}, {v(V_EID)}, 32, {v(V_HALF16)}
                buffer_load_dwordx4 {v(EF[a], 4)}, {v(V_EID)}, {s(S_EF, 4)}, 0 offen {efl}
                """)
            for op in side + fma:
                A(op)
            if r < 8:
                A(dots[2 * r] + "\n" + dots[2 * r + 1])
            if r == 4:
                A(f"""
                s_min_u32 {s(S_NN)}, {s(S_NN)}, {s(S_NT)}
                s_lshl_b32 {s(S_TMP)}, {s(S_NN)}, 9
                v_add_u32 {v(V_EID)}, {s(S_TMP)}, {v(V_LAE)}
                v_add_u32 {v(V_MT)}, {s(S_TMP)}, {v(V_LAD)}
                v_add_u32 {v(V_YA)}, {s(S_TMP)}, {v(V_LAY)}
                ds_read_b32 {v(V_EID)}, {v(V_EID)} offset:{L_LIST + 12}
                ds_read_b64 {v(SE[a], 2)}, {v(V_MT)} offset:{L_LIST + 8}
                """)
            if r == 8:
                A(f"ds_read_b64 {v(YR, 2)}, {v(V_YA)} offset:{L_LIST}\nds_read_b64 {v(YR + 2, 2)}, {v(V_YA)} offset:{L_LIST + 256}")
            if r == 13:
                A(f"s_or_b32 {s(S_MASK[b])}, {s(S_CMP)}, {s(S_CMP + 1)}")
            if r == 14:
                A("s_waitcnt lgkmcnt(0)")
            if r < 15:
                A(f"s_bitcmp1_b32 {s(S_MASK[a])}, {r}\ns_cbranch_scc1 K2_F{a}_{r}\nK2_R{a}_{r}:")
            else:
                flush(a, 15, False)
        A(f"""
        s_cmp_ge_u32 {s(S_NEXT)}, {s(S_NT)}
        s_mov_b32 {s(S_NEXT)}, {s(S_NN)}
        """)
        if a == 0:
            A("s_cbranch_scc1 K2_MAIN_DONE")
        else:
            A("s_cbranch_scc0 K2_LOOP0\ns_branch K2_MAIN_DONE")
    for a in range(2):
        for r in range(15):
            A(f"K2_F{a}_{r}:")
            flush(a, r, True)
            A(f"s_branch K2_R{a}_{r}")
    WM = 128
    A("K2_MAIN_DONE:")
    stamp(A, opt, 5)
    A(f"""
    s_cmp_eq_u32 {s(S_MORE)}, 0
    s_cbranch_scc1 K2_EPI
    s_lshl_b32 {s(S_TMP)}, 16, {s(S_WIDE)}
    s_add_u32 {s(S_K0)}, {s(S_K0)}, {s(S_TMP)}
    s_waitcnt vmcnt(0) lgkmcnt(0)
    s_barrier
    s_branch K2_ROUND
    K2_EPI:
    v_and_b32 v1, 63, v0
    v_lshlrev_b32 v2, 4, v1
    v_add_u32 v2, {WS_WF + 6144}, v2
    v_add_u32 v3, 4096, v2
    s_nop 7
    """)
    for f in range(8):
        A(f"global_load_dwordx4 {v(WM + 4 * f, 4)}, {'v2' if f < 4 else 'v3'}, {s(S_WS, 2)} offset:{1024 * (f % 4)}")
    A(f"""
    v_bfe_u32 v2, v1, 2, 2
    v_mul_u32_u24 v2, {NS}, v2
    v_and_b32 v3, 3, v1
    v_mul_u32_u24 v3, {RS}, v3
    v_lshrrev_b32 v4, 4, v1
    v_lshlrev_b32 v5, 5, v4
    v_add3_u32 v2, v2, v3, v5
    s_mul_i32 s70, {s(S_WAVE)}, {4 * NS}
    v_add_u32 v2, s70, v2
    v_and_b32 v3, 15, v1
    v_lshlrev_b32 v3, 4, v3
    v_lshl_add_u32 v3, v4, 17, v3
    s_lshl_b32 s70, {s(S_WAVE)}, 19
    s_lshl_b32 s71, {s(S_BETA)}, 9
    s_add_u32 s70, s70, s71
    v_add_u32 v3, s70, v3
    s_mov_b32 {s(S_SC)}, {fbits(-math.log(2.0))}
    s_mov_b32 {s(S_SC + 1)}, {fbits(-math.log(2.0))}
    s_waitcnt lgkmcnt(0)
    s_barrier
    """)
    stamp(A, opt, 6)
    AG, AF, OD, OP = 160, 176, 184, 200

    def mix(extra_lds, extra_out):
        for cpar in range(2):
            for hh in range(2):
                A(f"ds_read_b128 {v(AG + 8 * cpar + 4 * hh, 4)}, v2 offset:{L_ACC + extra_lds + 4 * RS * cpar + 16 * hh}")
        for j in range(8):
            if j % 2 == 0:
                A(f"s_waitcnt lgkmcnt({3 - j // 2})")
            A(f"v_pk_mul_f32 {v(AG + 2 * j, 2)}, {v(AG + 2 * j, 2)}, {s(S_SC, 2)}")
        for j in range(8):
            A(f"v_cvt_pk_bf16_f32 {v(AF + j)}, {v(AG + 2 * j)}, {v(AG + 2 * j + 1)}")
        A("s_waitcnt vmcnt(0)" if extra_lds == 0 else "s_nop 0")
        A("s_nop 0")
        for dt in range(4):
            A(f"v_mfma_f32_16x16x32_bf16 {v(OD + 4 * dt, 4)}, {v(AF, 4)}, {v(WM + 4 * dt, 4)}, 0")
        for dt in range(4):
            A(f"v_mfma_f32_16x16x32_bf16 {v(OD + 4 * dt, 4)}, {v(AF + 4, 4)}, {v(WM + 16 + 4 * dt, 4)}, {v(OD + 4 * dt, 4)}")
        A("s_nop 7")
        for j in range(8):
            A(f"v_cvt_pk_bf16_f32 {v(OP + j)}, {v(OD + 2 * j)}, {v(OD + 2 * j + 1)}")
        ost = opt.get("out_st", "")
        A(f"buffer_store_dwordx4 {v(OP, 4)}, v3, {s(S_OUT, 4)}, {extra_out} offen {ost}")
        A(f"buffer_store_dwordx4 {v(OP + 4, 4)}, v3, {s(S_OUT, 4)}, {extra_out} offen offset:256 {ost}")

    mix(0, 0)
    A(f"s_cmp_ge_u32 {s(S_WAVE)}, 2\ns_cbranch_scc1 K2_FIN\nv_add_u32 v3, {32 * 256 * 512}, v3")
    mix(32 * NS, 0)
    A("K2_FIN:")
    if opt.get("prof"):
        A("s_waitcnt vmcnt(0)")
        stamp(A, opt, 7)
        stamp_out(A, opt, 8, S_WS, (128 << 20) + (1 << 20), S_WAVE)
    A("K2_END:\ns_endpgm")


def generate(opt):
    A = Asm()
    out = HEADER
    out += f"; @launch kernel=sort_kernel grid=(257,1,1) block=(640,1,1) lds={K1_LDS}\n"
    out += f"; @launch kernel={NAME}_kernel grid=(256,1,1) block=(512,1,1) lds={K2_LDS}\n"
    out += '.amdgcn_target "amdgcn-amd-amdhsa--gfx950"\n.text\n'
    gen_k1(A, opt)
    gen_k2(A, opt)
    out += A.text()
    out += '.section .rodata,"a"\n.p2align 6\n'
    out += descriptor("sort_kernel", 48, 96)
    out += ".p2align 6\n"
    out += descriptor(NAME + "_kernel", NVGPR2, 96)
    return out


if __name__ == "__main__":
    opt = eval("dict(" + (sys.argv[2] if len(sys.argv) > 2 else "") + ")")
    path = sys.argv[1] if len(sys.argv) > 1 else f"cdna_kernels/{NAME}.s"
    open(path, "w").write(generate(opt))
```

```python
import sys, struct, math

NAME = "standalone__tensor_product_equiv_tfn__graph"

HEADER = """; Kernarg layout for this problem (88 bytes, ptrs only, base s[0:1]):
"""

CHUNK = 2500
RECSTRIDE = 30080
WS_TAB = 256 * RECSTRIDE
WS_WF = WS_TAB + 256 * 1024

RS = 272
NS = 8 * RS
L_HIST = 0
L_PREF = 1024
L_CTR = 2048
L_LIST = 2304
CAP = 4096
L_ACC = L_LIST + (CAP + 64) * 16
NZ = (40 * NS + 8191) // 8192
K2_LDS = L_ACC + NZ * 8192
K1_LDS = 32768

DPP = "row_mask:0xf bank_mask:0xf"


def fbits(x):
    return "0x%08x" % struct.unpack("<I", struct.pack("<f", x))[0]


class Asm:
    def __init__(self):
        self.lines = []

    def __call__(self, s):
        for ln in s.strip("\n").split("\n"):
            ln = ln.strip()
            if not ln:
                continue
            if ln.endswith(":") or ln.startswith("."):
                self.lines.append(ln)
            else:
                self.lines.append("    " + ln)

    def text(self):
        return "\n".join(self.lines) + "\n"


def v(a, n=1):
    return f"v{a}" if n == 1 else f"v[{a}:{a+n-1}]"


def s(a, n=1):
    return f"s{a}" if n == 1 else f"s[{a}:{a+n-1}]"


def wave_scan(A, regs):
    steps = ["row_shr:1 " + DPP + " bound_ctrl:0", "row_shr:2 " + DPP + " bound_ctrl:0",
             "row_shr:4 " + DPP + " bound_ctrl:0", "row_shr:8 " + DPP + " bound_ctrl:0",
             "row_bcast:15 row_mask:0xa bank_mask:0xf", "row_bcast:31 row_mask:0xc bank_mask:0xf"]
    for st in steps:
        A("s_nop 1")
        for r in regs:
            A(f"v_add_u32_dpp {v(r)}, {v(r)}, {v(r)} {st}")


def kernel_head(A, name):
    A(f".globl {name}\n.p2align 8\n.type {name},@function\n{name}:")


def descriptor(name, vgpr, sgpr):
    acc = (vgpr + 3) // 4 * 4
    return f""".amdhsa_kernel {name}
  .amdhsa_next_free_vgpr {vgpr}
  .amdhsa_next_free_sgpr {sgpr}
  .amdhsa_accum_offset {acc}
  .amdhsa_group_segment_fixed_size 0
  .amdhsa_kernarg_size 88
  .amdhsa_user_sgpr_count 2
  .amdhsa_user_sgpr_kernarg_segment_ptr 1
  .amdhsa_system_sgpr_workgroup_id_x 1
  .amdhsa_float_denorm_mode_32 3
.end_amdhsa_kernel
"""


def stamp(A, opt, slot):
    if opt.get("prof"):
        A(f"s_memrealtime {s(80 + 2 * slot, 2)}")


def stamp_out(A, opt, nslots, wsreg, base, wave_sgpr):
    if opt.get("prof"):
        A("s_waitcnt lgkmcnt(0)")
        A(f"s_lshl_b32 s78, s2, 4\ns_add_u32 s78, s78, {s(wave_sgpr)}\ns_lshl_b32 s78, s78, 5\ns_add_u32 s78, s78, {base}")
        A("s_mov_b64 exec, -1\nv_mov_b32 v1, s78")
        for i in range(nslots):
            A(f"v_mov_b32 v2, {s(80 + 2 * i)}\nglobal_store_dword v1, v2, {s(wsreg, 2)} offset:{4 * i}")


def gen_k1(A, opt):
    ld = opt.get("k1_ld", "")
    st = opt.get("k1_st", "")
    kernel_head(A, "sort_kernel")
    stamp(A, opt, 0)
    A("""
    s_cmp_gt_u32 s2, 256
    s_cbranch_scc1 K1_END
    s_load_dwordx4 s[4:7], s[0:1], 8
    s_load_dwordx2 s[8:9], s[0:1], 24
    s_load_dwordx2 s[10:11], s[0:1], 80
    v_lshrrev_b32 v1, 6, v0
    s_cmp_eq_u32 s2, 256
    v_readfirstlane_b32 s3, v1
    s_cbranch_scc1 K1_PREP
    """)
    A(f"""
    s_mul_i32 s12, s2, {CHUNK * 4}
    s_mul_i32 s13, s2, {CHUNK * 8}
    v_lshl_add_u32 v1, v0, 4, s12
    v_lshl_add_u32 v2, v0, 5, s13
    v_and_b32 v3, 0xff, v0
    v_lshlrev_b32 v3, 2, v3
    v_mov_b32 v4, 0
    ds_write_b32 v3, v4
    v_cmp_gt_u32 vcc, {CHUNK // 4}, v0
    s_mov_b64 s[14:15], vcc
    s_mov_b64 exec, vcc
    s_waitcnt lgkmcnt(0)
    global_load_dwordx4 v[8:11], v1, s[6:7] {ld}
    global_load_dwordx4 v[12:15], v1, s[4:5] {ld}
    global_load_dwordx4 v[16:19], v2, s[8:9] {ld}
    global_load_dwordx4 v[20:23], v2, s[8:9] offset:16 {ld}
    """)
    npre = 0
    if opt.get("k1_touch_x") or opt.get("k1_touch_ef"):
        A("s_load_dwordx2 s[18:19], s[0:1], 0\ns_load_dwordx2 s[20:21], s[0:1], 32\ns_waitcnt lgkmcnt(0)")
    if opt.get("k1_touch_x"):
        A("global_load_dword v40, v2, s[18:19]")
        npre += 1
    if opt.get("k1_touch_ef"):
        A(f"s_mul_i32 s22, s2, {CHUNK * 32}\nv_lshl_add_u32 v41, v0, 7, s22\nglobal_load_dword v41, v41, s[20:21]")
        npre += 1
    A(f"""
    v_mov_b32 v5, 1
    v_lshlrev_b32 v6, 2, v0
    s_barrier
    s_waitcnt vmcnt({3 + npre})
    """)
    for k in range(4):
        A(f"v_lshlrev_b32_sdwa {v(24 + k)}, 2, {v(8 + k)} dst_sel:DWORD dst_unused:UNUSED_PAD src0_sel:DWORD src1_sel:BYTE_0")
    for k in range(4):
        A(f"ds_add_rtn_u32 {v(28 + k)}, {v(24 + k)}, v5")
    A(f"s_waitcnt vmcnt({2 + npre})")
    for k in range(4):
        A(f"""
        v_lshrrev_b32 {v(8 + k)}, 8, {v(8 + k)}
        v_lshl_or_b32 {v(8 + k)}, {v(8 + k)}, 14, {v(12 + k)}
        v_or_b32 v7, {k}, v6
        v_lshl_or_b32 {v(8 + k)}, {v(8 + k)}, 12, v7
        """)
    A("""
    s_mov_b64 exec, -1
    v_and_b32 v3, 63, v0
    v_lshlrev_b32 v3, 4, v3
    s_waitcnt lgkmcnt(0)
    s_barrier
    ds_read_b128 v[32:35], v3
    s_waitcnt lgkmcnt(0)
    v_add_u32 v38, v32, v33
    v_add_u32 v39, v38, v34
    v_add_u32 v4, v39, v35
    v_mov_b32 v36, v4
    """)
    wave_scan(A, [36])
    A(f"""
    v_sub_u32 v36, v36, v4
    v_add_u32 v37, v36, v32
    v_add_u32 v38, v36, v38
    v_add_u32 v39, v36, v39
    ds_write_b128 v3, v[36:39] offset:1024
    s_mov_b64 exec, s[14:15]
    """)
    for k in range(4):
        A(f"ds_read_b32 {v(24 + k)}, {v(24 + k)} offset:1024")
    A(f"""
    s_mov_b64 exec, -1
    s_cmp_lg_u32 s3, 0
    s_cbranch_scc1 K1_NOTAB
    s_lshl_b32 s16, s2, 10
    s_add_u32 s16, s16, {WS_TAB}
    v_add_u32 v3, s16, v3
    v_lshl_or_b32 v32, v32, 16, v36
    v_lshl_or_b32 v33, v33, 16, v37
    v_lshl_or_b32 v34, v34, 16, v38
    v_lshl_or_b32 v35, v35, 16, v39
    global_store_dwordx4 v3, v[32:35], s[10:11] {st}
    K1_NOTAB:
    s_mov_b64 exec, s[14:15]
    s_movk_i32 s17, 2048
    s_waitcnt lgkmcnt(0)
    """)
    for k in range(4):
        A(f"v_add_u32 {v(24 + k)}, {v(24 + k)}, {v(28 + k)}\nv_mad_u32_u24 {v(24 + k)}, {v(24 + k)}, 12, s17")
    for k in range(4):
        A(f"ds_write_b32 {v(24 + k)}, {v(8 + k)} offset:8")
    if npre:
        A(f"s_cmp_lg_u32 s3, 0\ns_cbranch_scc1 K1_W0\ns_waitcnt vmcnt({npre + 1})\ns_branch K1_W1\nK1_W0:\ns_waitcnt vmcnt({npre})\nK1_W1:")
    else:
        A("s_cmp_lg_u32 s3, 0\ns_cbranch_scc1 K1_W0\ns_waitcnt vmcnt(1)\ns_branch K1_W1\nK1_W0:\ns_waitcnt vmcnt(0)\nK1_W1:")
    for k in range(4):
        A(f"ds_write2_b32 {v(24 + k)}, {v(16 + 2 * k)}, {v(17 + 2 * k)} offset0:0 offset1:1")
    A(f"""
    s_mov_b64 exec, -1
    v_lshlrev_b32 v3, 4, v0
    s_mul_i32 s16, s2, {RECSTRIDE}
    v_add_u32 v4, s16, v3
    v_add_u32 v5, 10240, v4
    v_add_u32 v6, 20480, v4
    v_cmp_gt_u32 vcc, {CHUNK * 12 // 16 - 1280}, v0
    s_waitcnt lgkmcnt(0)
    s_barrier
    ds_read_b128 v[8:11], v3 offset:2048
    ds_read_b128 v[12:15], v3 offset:{2048 + 10240}
    ds_read_b128 v[16:19], v3 offset:{2048 + 20480}
    s_waitcnt lgkmcnt(2)
    global_store_dwordx4 v4, v[8:11], s[10:11] {st}
    s_waitcnt lgkmcnt(1)
    global_store_dwordx4 v5, v[12:15], s[10:11] {st}
    s_mov_b64 exec, vcc
    s_waitcnt lgkmcnt(0)
    global_store_dwordx4 v6, v[16:19], s[10:11] {st}
    """)
    if opt.get("prof"):
        A("s_waitcnt vmcnt(0)")
        stamp(A, opt, 1)
        stamp_out(A, opt, 2, 10, 128 << 20, 3)
    A("s_endpgm")
    A(f"""
    K1_PREP:
    s_load_dwordx4 s[12:15], s[0:1], 40
    s_load_dwordx2 s[16:17], s[0:1], 56
    v_and_b32 v1, 63, v0
    v_lshlrev_b32 v2, 4, v1
    v_add_u32 v2, {WS_WF}, v2
    s_waitcnt lgkmcnt(0)
    s_cmp_eq_u32 s3, 0
    s_cbranch_scc1 K1_PREP_W
    s_cmp_eq_u32 s3, 1
    s_cbranch_scc1 K1_PREP_CG
    s_sub_u32 s18, s3, 2
    s_lshr_b32 s19, s18, 2
    s_lshl_b32 s19, s19, 7
    s_and_b32 s20, s18, 1
    s_lshl_b32 s20, s20, 1
    s_add_u32 s19, s19, s20
    s_and_b32 s20, s18, 2
    s_lshl_b32 s20, s20, 5
    s_add_u32 s19, s19, s20
    v_lshrrev_b32 v3, 4, v1
    v_lshlrev_b32 v3, 11, v3
    v_and_b32 v4, 15, v1
    v_lshl_add_u32 v3, v4, 2, v3
    v_add_u32 v3, s19, v3
    """)
    for i in range(8):
        A(f"global_load_ushort {v(8 + i)}, v3, s[16:17] offset:{256 * i}")
    A("s_lshl_b32 s18, s18, 10\ns_add_u32 s18, s18, 6144\nv_add_u32 v2, s18, v2\ns_waitcnt vmcnt(0)")
    for j in range(4):
        A(f"v_lshl_or_b32 {v(16 + j)}, {v(9 + 2 * j)}, 16, {v(8 + 2 * j)}")
    A("global_store_dwordx4 v2, v[16:19], s[10:11]\ns_endpgm")
    A("K1_PREP_CG:\nv_and_b32 v3, 3, v1\nv_lshlrev_b32 v3, 1, v3")
    for i in range(16):
        A(f"global_load_ushort {v(8 + i)}, v3, s[14:15] offset:{8 * i}")
    A("v_add_u32 v2, 4096, v2\ns_waitcnt vmcnt(0)")
    for j in range(8):
        A(f"v_lshl_or_b32 {v(24 + j)}, {v(9 + 2 * j)}, 16, {v(8 + 2 * j)}")
    A("global_store_dwordx4 v2, v[24:27], s[10:11]\nglobal_store_dwordx4 v2, v[28:31], s[10:11] offset:1024\ns_endpgm")
    A("""
    K1_PREP_W:
    v_lshrrev_b32 v3, 5, v1
    v_lshlrev_b32 v3, 10, v3
    v_and_b32 v4, 31, v1
    v_lshl_add_u32 v3, v4, 2, v3
    """)
    for i in range(8):
        A(f"global_load_dword {v(8 + i)}, v3, s[12:13] offset:{128 * i}")
    A(f"s_mov_b32 s18, {fbits(-math.log2(math.e))}\ns_waitcnt vmcnt(0)")
    for par in range(2):
        for i in range(8):
            if par == 0:
                A(f"v_lshlrev_b32 {v(16 + i)}, 16, {v(8 + i)}")
            else:
                A(f"v_and_b32 {v(16 + i)}, 0xffff0000, {v(8 + i)}")
            A(f"v_mul_f32 {v(16 + i)}, s18, {v(16 + i)}")
        H = 24 + 8 * par
        for j in range(4):
            A(f"""
            v_cvt_pk_bf16_f32 {v(H + j)}, {v(16 + 2 * j)}, {v(17 + 2 * j)}
            v_lshlrev_b32 v5, 16, {v(H + j)}
            v_and_b32 v6, 0xffff0000, {v(H + j)}
            v_sub_f32 v5, {v(16 + 2 * j)}, v5
            v_sub_f32 v6, {v(17 + 2 * j)}, v6
            v_cvt_pk_bf16_f32 {v(H + 4 + j)}, v5, v6
            """)
    for f in range(4):
        A(f"global_store_dwordx4 v2, {v(24 + 4 * f, 4)}, s[10:11] offset:{1024 * f}")
    A("K1_END:\ns_endpgm")


W = 8
CG = 24
V_LANE16, V_HALF16, V_ACCL, V_LAD, V_LAE, V_LAY, V_ONE, V_DBASE, V_DCNT, V_PBASE, V_K, V_K12, V_CTRA = range(32, 45)
F64 = 48
X = 64
D = (128, 160)
EF = (192, 196)
T = (200, 204)
TF = 208
YR = 216
TP = 220
ACC = 228
E = 236
SE = (240, 242)
KK = (244, 245)
V_EID, V_XA, V_FA, V_YA, V_GRAB, V_MT = 246, 247, 248, 249, 250, 251
NVGPR2 = 252

S_X, S_EF, S_OUT, S_WS = 4, 8, 12, 16
S_BETA, S_WAVE, S_K0, S_WIDE, S_N, S_NT, S_NEXT, S_NN = 18, 19, 20, 21, 22, 23, 24, 25
S_MASK = (26, 27)
S_CMP = 28
S_MORE, S_TMP = 30, 31
S_M1, S_M2 = 32, 48
S_ANY2 = 64
S_C0, S_C1 = 66, 67
S_SC = 68
EFS = 6


def gen_k2(A, opt):
    name = NAME + "_kernel"
    efl = opt.get("ef_ld", "")
    kernel_head(A, name)
    stamp(A, opt, 0)
    A(f"""
    s_cmp_ge_u32 s2, 256
    s_cbranch_scc1 K2_END
    s_load_dwordx2 {s(S_WS, 2)}, s[0:1], 80
    s_load_dwordx2 {s(S_X, 2)}, s[0:1], 0
    s_load_dwordx2 {s(S_EF, 2)}, s[0:1], 32
    s_load_dwordx2 {s(S_OUT, 2)}, s[0:1], 64
    s_and_b32 {s(S_BETA)}, s2, 7
    s_lshl_b32 {s(S_BETA)}, {s(S_BETA)}, 5
    s_lshr_b32 s3, s2, 3
    s_add_u32 {s(S_BETA)}, {s(S_BETA)}, s3
    v_lshrrev_b32 v1, 6, v0
    v_and_b32 v2, 63, v0
    v_readfirstlane_b32 {s(S_WAVE)}, v1
    v_lshrrev_b32 v3, 4, v0
    v_lshlrev_b32 v3, 3, v3
    v_and_b32 v4, 7, v0
    v_add_u32 v4, v3, v4
    s_lshl_b32 s3, {s(S_BETA)}, 2
    s_add_u32 s3, s3, {WS_TAB}
    v_lshl_add_u32 v5, v4, 10, s3
    v_lshlrev_b32 v6, 4, v2
    v_add_u32 v6, {WS_WF}, v6
    s_waitcnt lgkmcnt(0)
    global_load_dword {v(V_DCNT)}, v5, {s(S_WS, 2)}
    """)
    for f in range(4):
        A(f"global_load_dwordx4 {v(W + 4 * f, 4)}, v6, {s(S_WS, 2)} offset:{1024 * f}")
    A("v_add_u32 v6, 4096, v6")
    for f in range(2):
        A(f"global_load_dwordx4 {v(CG + 4 * f, 4)}, v6, {s(S_WS, 2)} offset:{1024 * f}")
    A(f"""
    s_and_b32 {s(S_X + 1)}, {s(S_X + 1)}, 0xffff
    s_mov_b32 {s(S_X + 2)}, 5120000
    s_mov_b32 {s(S_X + 3)}, 0x20000
    s_and_b32 {s(S_EF + 1)}, {s(S_EF + 1)}, 0xffff
    s_mov_b32 {s(S_EF + 2)}, 20480000
    s_mov_b32 {s(S_EF + 3)}, 0x20000
    s_and_b32 {s(S_OUT + 1)}, {s(S_OUT + 1)}, 0xffff
    s_mov_b32 {s(S_OUT + 2)}, 5120000
    s_mov_b32 {s(S_OUT + 3)}, 0x20000
    s_mov_b32 {s(S_K0)}, 0
    s_mov_b32 {s(S_WIDE)}, 1
    s_mov_b32 {s(S_C0)}, {RECSTRIDE}
    v_mul_lo_u32 {v(V_DBASE)}, v4, {s(S_C0)}
    v_mul_u32_u24 {v(V_PBASE)}, {CHUNK}, v3
    v_and_b32 {v(V_K)}, 15, v0
    v_and_b32 v5, 31, v2
    v_lshrrev_b32 v6, 5, v2
    v_lshlrev_b32 {v(V_LANE16)}, 4, v5
    v_lshlrev_b32 {v(V_HALF16)}, 4, v6
    v_lshlrev_b32 {v(V_ACCL)}, 3, v5
    v_add_u32 {v(V_ACCL)}, {L_ACC}, {v(V_ACCL)}
    v_add_lshl_u32 {v(V_LAD)}, {v(V_K)}, {v(V_HALF16)}, 4
    v_lshrrev_b32 v7, 3, v5
    v_lshlrev_b32 v7, 2, v7
    v_and_or_b32 v7, v5, 3, v7
    v_lshlrev_b32 v7, 4, v7
    v_and_b32 v1, 4, v5
    v_lshl_add_u32 {v(V_LAE)}, v1, 6, v7
    v_lshrrev_b32 v7, 2, v5
    v_add_lshl_u32 {v(V_LAY)}, v7, {v(V_HALF16)}, 4
    v_mov_b32 {v(V_ONE)}, 1
    v_mov_b32 {v(V_CTRA)}, {L_CTR}
    v_mov_b64 v[64:65], 0
    v_mov_b64 v[66:67], 0
    v_lshlrev_b32 v7, 4, v0
    v_add_u32 v7, {L_ACC}, v7
    v_add_u32 v1, 65536, v7
    """)
    for i in range(NZ):
        A(f"ds_write_b128 {'v7' if i < 8 else 'v1'}, v[64:67] offset:{8192 * (i % 8)}")
    A(f"""
    s_waitcnt vmcnt(6)
    v_and_b32 v1, 0xffff, {v(V_DCNT)}
    v_mad_u32_u24 {v(V_DBASE)}, v1, 12, {v(V_DBASE)}
    v_lshrrev_b32 {v(V_DCNT)}, 16, {v(V_DCNT)}
    """)
    stamp(A, opt, 1)
    REC1, REC2, RK1, RK2, HA1, HA2 = 64, 96, 128, 136, 144, 152
    A(f"""
    K2_ROUND:
    v_and_b32 v1, 0xff, v0
    v_lshlrev_b32 v1, 2, v1
    v_mov_b32 v2, 0
    v_mov_b32 v3, 16
    ds_write_b32 v1, v2 offset:{L_HIST}
    ds_write2_b32 {v(V_CTRA)}, v3, v2 offset0:0 offset1:1
    v_add_u32 v4, {s(S_K0)}, {v(V_K)}
    v_mul_u32_u24 {v(V_K12)}, 12, v4
    s_lshl_b32 {s(S_TMP)}, 16, {s(S_WIDE)}
    s_add_u32 {s(S_TMP)}, {s(S_TMP)}, {s(S_K0)}
    v_cmp_lt_u32 {s(S_CMP, 2)}, {s(S_TMP)}, {v(V_DCNT)}
    s_cmp_eq_u32 {s(S_WIDE)}, 1
    s_cselect_b32 {s(S_C1)}, 16, 0x7fffffff
    s_mov_b64 {s(S_ANY2, 2)}, 0
    """)
    for c in range(8):
        A(f"""
        v_add_u32_dpp {v(HA2 + c)}, {v(V_DBASE)}, {v(V_K12)} row_newbcast:{c} {DPP}
        v_sub_u32_dpp v5, {v(V_DCNT)}, v4 row_newbcast:{c} {DPP}
        v_cmp_lt_i32 {s(S_M1 + 2 * c, 2)}, 0, v5
        v_cmp_lt_i32 {s(S_M2 + 2 * c, 2)}, {s(S_C1)}, v5
        """)
    for c in range(8):
        A(f"""
        s_mov_b64 exec, {s(S_M1 + 2 * c, 2)}
        s_or_b64 {s(S_ANY2, 2)}, {s(S_ANY2, 2)}, {s(S_M2 + 2 * c, 2)}
        global_load_dwordx3 {v(REC1 + 4 * c, 3)}, {v(HA2 + c)}, {s(S_WS, 2)}
        """)
    A(f"s_cmp_eq_u64 {s(S_ANY2, 2)}, 0\ns_cbranch_scc1 K2_NOSEC_A")
    for c in range(8):
        A(f"""
        s_mov_b64 exec, {s(S_M2 + 2 * c, 2)}
        s_cbranch_execz K2_SA{c}
        global_load_dwordx3 {v(REC2 + 4 * c, 3)}, {v(HA2 + c)}, {s(S_WS, 2)} offset:192
        K2_SA{c}:
        """)
    A("K2_NOSEC_A:\ns_mov_b64 exec, -1")
    npre = opt.get("xpre", 0)
    if npre:
        A(f"""
        s_lshr_b32 {s(S_TMP)}, s2, 3
        s_mul_i32 {s(S_TMP)}, {s(S_TMP)}, {npre * 128}
        s_add_u32 {s(S_TMP)}, {s(S_TMP)}, {opt.get("xpre_base", 0)}
        v_lshl_add_u32 v5, v0, 7, {s(S_TMP)}
        v_cmp_gt_u32 vcc, {npre}, v0
        s_mov_b64 exec, vcc
        buffer_load_dword v6, v5, {s(S_X, 4)}, 0 offen
        s_mov_b64 exec, -1
        """)
    A(f"""
    s_waitcnt lgkmcnt(0)
    s_barrier
    s_cmp_eq_u64 {s(S_CMP, 2)}, 0
    s_cbranch_scc1 K2_NOMORE
    ds_write_b32 {v(V_CTRA)}, {v(V_ONE)} offset:4
    K2_NOMORE:
    s_mov_b32 {s(S_C0)}, 0x7ffe00
    s_mov_b32 {s(S_C1)}, 0xfc000fff
    s_waitcnt vmcnt({1 if npre else 0})
    """)
    stamp(A, opt, 2)

    def hist(rec, rk, ha, c):
        A(f"""
        v_lshlrev_b32_sdwa {v(ha + c)}, 2, {v(rec + 4 * c + 2)} dst_sel:DWORD dst_unused:UNUSED_PAD src0_sel:DWORD src1_sel:BYTE_3
        v_and_b32 {v(rec + 4 * c + 3)}, {s(S_C1)}, {v(rec + 4 * c + 2)}
        ds_add_rtn_u32 {v(rk + c)}, {v(ha + c)}, {v(V_ONE)} offset:{L_HIST}
        v_lshrrev_b32 {v(rec + 4 * c + 2)}, 3, {v(rec + 4 * c + 2)}
        v_and_b32 {v(rec + 4 * c + 2)}, {s(S_C0)}, {v(rec + 4 * c + 2)}
        s_movk_i32 {s(S_TMP)}, {c * CHUNK}
        v_add3_u32 {v(rec + 4 * c + 3)}, {v(rec + 4 * c + 3)}, {v(V_PBASE)}, {s(S_TMP)}
        """)

    for c in range(8):
        A(f"s_mov_b64 exec, {s(S_M1 + 2 * c, 2)}")
        hist(REC1, RK1, HA1, c)
    A(f"s_cmp_eq_u64 {s(S_ANY2, 2)}, 0\ns_cbranch_scc1 K2_NOSEC_B")
    for c in range(8):
        A(f"s_mov_b64 exec, {s(S_M2 + 2 * c, 2)}\ns_cbranch_execz K2_SB{c}")
        hist(REC2, RK2, HA2, c)
        A(f"K2_SB{c}:")
    order = opt.get("order", [0, 1, 2, 3])
    A(f"""
    K2_NOSEC_B:
    s_mov_b64 exec, -1
    v_and_b32 v1, 63, v0
    v_lshlrev_b32 v1, 4, v1
    s_waitcnt lgkmcnt(0)
    s_barrier
    ds_read_b128 v[160:163], v1 offset:{L_HIST}
    ds_read_b32 v2, {v(V_CTRA)} offset:4
    s_waitcnt lgkmcnt(0)
    v_readfirstlane_b32 {s(S_MORE)}, v2
    v_lshl_or_b32 v164, {v(160 + order[1])}, 16, {v(160 + order[0])}
    v_lshl_or_b32 v165, {v(160 + order[3])}, 16, {v(160 + order[2])}
    v_mov_b32 v166, v164
    v_mov_b32 v167, v165
    """)
    wave_scan(A, [166, 167])
    A(f"""
    s_nop 0
    v_readlane_b32 s70, v166, 63
    v_readlane_b32 s71, v167, 63
    v_sub_u32 v166, v166, v164
    v_sub_u32 v167, v167, v165
    s_and_b32 s72, s70, 0xffff
    s_lshr_b32 s73, s70, 16
    s_add_u32 s73, s73, s72
    s_and_b32 s74, s71, 0xffff
    s_add_u32 s74, s74, s73
    s_lshr_b32 {s(S_N)}, s71, 16
    s_add_u32 {s(S_N)}, {s(S_N)}, s74
    s_cmp_le_u32 {s(S_N)}, {CAP}
    s_cbranch_scc1 K2_FITS
    s_mov_b32 {s(S_WIDE)}, 0
    s_barrier
    s_branch K2_ROUND
    K2_FITS:
    v_and_b32 {v(160 + order[0])}, 0xffff, v166
    v_lshrrev_b32 v166, 16, v166
    v_add_u32 {v(160 + order[1])}, s72, v166
    v_and_b32 v166, 0xffff, v167
    v_add_u32 {v(160 + order[2])}, s73, v166
    v_lshrrev_b32 v167, 16, v167
    v_add_u32 {v(160 + order[3])}, s74, v167
    ds_write_b128 v1, v[160:163] offset:{L_PREF}
    s_add_u32 {s(S_NT)}, {s(S_N)}, 31
    s_lshr_b32 {s(S_NT)}, {s(S_NT)}, 5
    s_lshl_b32 {s(S_TMP)}, {s(S_N)}, 4
    v_add_u32 v1, {s(S_TMP)}, v1
    v_mov_b64 v[164:165], 0
    v_mov_b32 v166, 0x80000000
    v_mov_b32 v167, 0xfffff
    """)
    for c in range(8):
        A(f"s_mov_b64 exec, {s(S_M1 + 2 * c, 2)}\nds_read_b32 {v(HA1 + c)}, {v(HA1 + c)} offset:{L_PREF}")
    A(f"s_mov_b64 exec, -1\nds_write_b128 v1, v[164:167] offset:{L_LIST}\ns_waitcnt lgkmcnt(1)")
    for c in range(8):
        A(f"""
        s_mov_b64 exec, {s(S_M1 + 2 * c, 2)}
        v_add_lshl_u32 {v(HA1 + c)}, {v(HA1 + c)}, {v(RK1 + c)}, 4
        ds_write_b128 {v(HA1 + c)}, {v(REC1 + 4 * c, 4)} offset:{L_LIST}
        """)
    A(f"s_cmp_eq_u64 {s(S_ANY2, 2)}, 0\ns_cbranch_scc1 K2_NOSEC_C")
    for c in range(8):
        A(f"""
        s_mov_b64 exec, {s(S_M2 + 2 * c, 2)}
        s_cbranch_execz K2_SC{c}
        ds_read_b32 {v(HA2 + c)}, {v(HA2 + c)} offset:{L_PREF}
        s_waitcnt lgkmcnt(0)
        v_add_lshl_u32 {v(HA2 + c)}, {v(HA2 + c)}, {v(RK2 + c)}, 4
        ds_write_b128 {v(HA2 + c)}, {v(REC2 + 4 * c, 4)} offset:{L_LIST}
        K2_SC{c}:
        """)
    A(f"""
    K2_NOSEC_C:
    s_mov_b64 exec, -1
    s_add_u32 {s(S_NEXT)}, {s(S_WAVE)}, 8
    s_min_u32 {s(S_NEXT)}, {s(S_NEXT)}, {s(S_NT)}
    s_lshl_b32 s70, {s(S_WAVE)}, 9
    s_lshl_b32 s71, {s(S_NEXT)}, 9
    v_add_u32 v1, s70, {v(V_LAD)}
    v_add_u32 v2, s70, {v(V_LAE)}
    v_add_u32 v3, s70, {v(V_LAY)}
    v_add_u32 v4, s71, {v(V_LAD)}
    v_add_u32 v5, s71, {v(V_LAE)}
    v_add_u32 {v(V_YA)}, s71, {v(V_LAY)}
    s_movk_i32 {s(S_C0)}, {NS}
    s_waitcnt lgkmcnt(0)
    s_barrier
    """)
    stamp(A, opt, 3)
    A(f"""
    s_cmp_ge_u32 {s(S_WAVE)}, {s(S_NT)}
    s_cbranch_scc1 K2_MAIN_DONE
    ds_read_b32 v2, v2 offset:{L_LIST + 12}
    ds_read_b64 {v(SE[0], 2)}, v1 offset:{L_LIST + 8}
    ds_read_b32 {v(V_EID)}, v5 offset:{L_LIST + 12}
    ds_read_b64 {v(YR, 2)}, v3 offset:{L_LIST}
    ds_read_b64 {v(YR + 2, 2)}, v3 offset:{L_LIST + 128}
    ds_read_b64 {v(SE[1], 2)}, v4 offset:{L_LIST + 8}
    s_waitcnt lgkmcnt(5)
    v_mad_u32_u24 v2, v2, 32, {v(V_HALF16)}
    buffer_load_dwordx4 {v(EF[0], 4)}, v2, {s(S_EF, 4)}, 0 offen {efl}
    s_waitcnt lgkmcnt(3)
    v_mad_u32_u24 {v(V_EID)}, {v(V_EID)}, 32, {v(V_HALF16)}
    """)

    def xload(se, r):
        A(f"v_add_u32_dpp {v(V_XA)}, {v(se)}, {v(V_LANE16)} row_newbcast:{r} {DPP}")
        A(f"buffer_load_dwordx4 {v(X + 4 * r, 4)}, {v(V_XA)}, {s(S_X, 4)}, 0 offen")

    def dot_ops():
        ops = []
        for half in range(2):
            for i in range(4):
                ops.append(f"v_dot2_f32_bf16 {v(TF + 4 * half + i)}, {v(YR + 2 * half)}, {v(CG + 2 * i)}, 0")
            for i in range(4):
                ops.append(f"v_dot2_f32_bf16 {v(TF + 4 * half + i)}, {v(YR + 2 * half + 1)}, {v(CG + 2 * i + 1)}, {v(TF + 4 * half + i)}")
        return ops

    def cvt_ops(t):
        return [f"v_cvt_pk_bf16_f32 {v(t + j)}, {v(TF + 2 * j)}, {v(TF + 2 * j + 1)}" for j in range(4)]

    def key_ops(se, kk):
        return [f"v_lshrrev_b32 {v(kk)}, 26, {v(se + 1)}",
                f"v_mul_u32_u24 {v(kk)}, {s(S_C0)}, {v(kk)}",
                f"v_xor_b32_dpp {v(V_MT)}, {v(kk)}, {v(kk)} row_shl:1 {DPP} bound_ctrl:0",
                f"v_cmp_ne_u32 {s(S_CMP, 2)}, 0, {v(V_MT)}"]

    def m32_ops(ef, d):
        return [f"v_mfma_f32_32x32x16_bf16 {v(d, 16)}, {v(ef, 4)}, {v(W, 4)}, 0",
                f"v_mfma_f32_32x32x16_bf16 {v(d, 16)}, {v(ef, 4)}, {v(W + 4, 4)}, {v(d, 16)}",
                f"v_mfma_f32_32x32x16_bf16 {v(d + 16, 16)}, {v(ef, 4)}, {v(W + 8, 4)}, 0",
                f"v_mfma_f32_32x32x16_bf16 {v(d + 16, 16)}, {v(ef, 4)}, {v(W + 12, 4)}, {v(d + 16, 16)}"]

    def exp_ops(d, q):
        return [f"v_exp_f32 {v(E)}, {v(d + q)}", f"v_exp_f32 {v(E + 1)}, {v(d + q + 1)}",
                f"v_exp_f32 {v(E + 2)}, {v(d + 16 + q)}", f"v_exp_f32 {v(E + 3)}, {v(d + 16 + q + 1)}"]

    add_ops = [f"v_pk_add_f32 {v(E, 2)}, {v(E, 2)}, 1.0 op_sel_hi:[1,0]",
               f"v_pk_add_f32 {v(E + 2, 2)}, {v(E + 2, 2)}, 1.0 op_sel_hi:[1,0]"]
    rcp_ops = [f"v_rcp_f32 {v(E + j)}, {v(E + j)}" for j in range(4)]

    def mul_ops(d, q):
        return [f"v_pk_mul_f32 {v(d + q, 2)}, {v(d + q, 2)}, {v(E, 2)}",
                f"v_pk_mul_f32 {v(d + 16 + q, 2)}, {v(d + 16 + q, 2)}, {v(E + 2, 2)}"]

    for r in range(16):
        xload(SE[0], r)
        if r == EFS:
            A(f"buffer_load_dwordx4 {v(EF[1], 4)}, {v(V_EID)}, {s(S_EF, 4)}, 0 offen {efl}")
    A("s_waitcnt lgkmcnt(0)")
    ko = key_ops(SE[0], KK[0])
    A(ko[0] + "\n" + ko[1])
    for op in dot_ops():
        A(op)
    A(ko[2] + "\n" + ko[3])
    A(f"ds_read_b64 {v(YR, 2)}, {v(V_YA)} offset:{L_LIST}\nds_read_b64 {v(YR + 2, 2)}, {v(V_YA)} offset:{L_LIST + 128}")
    A("s_nop 0")
    for op in cvt_ops(T[0]):
        A(op)
    A(f"s_or_b32 {s(S_MASK[0])}, {s(S_CMP)}, {s(S_CMP + 1)}")
    for j in range(4):
        A(f"v_mov_b64 {v(ACC + 2 * j, 2)}, 0")
    A(f"v_mov_b32 {v(KK[1])}, 0")
    A("s_waitcnt vmcnt(17)")
    for op in m32_ops(EF[0], D[0]):
        A(op)
    A("s_nop 11")
    for op in exp_ops(D[0], 0):
        A(op)
    A("s_nop 0")
    for op in add_ops + rcp_ops:
        A(op)
    A("s_nop 0")
    for op in mul_ops(D[0], 0):
        A(op)
    A("s_waitcnt lgkmcnt(0)")
    stamp(A, opt, 4)

    def flush(a, r):
        A(f"v_add_u32_dpp {v(V_FA)}, {v(KK[a])}, {v(V_ACCL)} row_newbcast:{r} {DPP}")
        for j in range(8):
            A(f"v_cvt_f64_f32 {v(F64 + 2 * j, 2)}, {v(ACC + j)}")
            A(f"ds_add_f64 {v(V_FA)}, {v(F64 + 2 * j, 2)} offset:{RS * j}")

    def acc_ops(a, r, first):
        ops = []
        for j in range(4):
            rr = D[a] + 16 * (j // 2) + (r & ~1)
            o = r & 1
            if first:
                ops.append(f"v_pk_mul_f32 {v(ACC + 2 * j, 2)}, {v(rr, 2)}, {v(TP + 2 * j, 2)} op_sel:[{o},0] op_sel_hi:[{o},1]")
            else:
                ops.append(f"v_pk_fma_f32 {v(ACC + 2 * j, 2)}, {v(rr, 2)}, {v(TP + 2 * j, 2)}, {v(ACC + 2 * j, 2)} op_sel:[{o},0,0] op_sel_hi:[{o},1,1]")
        return ops

    A(".p2align 6")
    for a in range(2):
        b = 1 - a
        A(f"K2_LOOP{a}:")
        dots = dot_ops()
        fill = {9: [key_ops(SE[b], KK[b])[0], key_ops(SE[b], KK[b])[1]],
                10: cvt_ops(T[b])[0:2],
                11: [key_ops(SE[b], KK[b])[2], key_ops(SE[b], KK[b])[3]],
                12: cvt_ops(T[b])[2:4]}
        m32 = dict(zip((9, 10, 11, 12), m32_ops(EF[b], D[b])))
        for r in range(16):
            tr = T[a] + (2 if r >= 8 else 0)
            m4 = [f"v_mfma_f32_4x4x4_16b_bf16 {v(TP + 4 * h, 4)}, {v(tr, 2)}, {v(X + 4 * r + 2 * h, 2)}, 0 cbsz:3 abid:{r % 8}" for h in range(2)]
            q = (r & ~1) + 2
            dq, qq = (D[a], q) if q < 16 else (D[b], 0)
            trans = exp_ops(dq, qq) if r % 2 == 0 else rcp_ops
            side = add_ops if r % 2 == 0 else mul_ops(dq, qq)
            if r in m32:
                A(m32[r])
                A(trans[0] + "\n" + trans[1] + "\n" + trans[2])
                A("s_waitcnt vmcnt(16)")
                A(m4[0] + "\n" + trans[3] + "\n" + m4[1])
            else:
                A("s_waitcnt vmcnt(16)")
                A(m4[0] + "\n" + trans[0] + "\n" + m4[1] + "\n" + trans[1] + "\n" + trans[2] + "\n" + trans[3])
            xload(SE[b], r)
            for op in fill.get(r, []):
                A(op)
            if r == 2:
                A(f"s_mov_b64 exec, 1\nds_add_rtn_u32 {v(V_GRAB)}, {v(V_CTRA)}, {v(V_ONE)}\ns_mov_b64 exec, -1")
            if r == 4:
                A(f"""
                s_waitcnt lgkmcnt(0)
                v_readfirstlane_b32 {s(S_NN)}, {v(V_GRAB)}
                """)
            if r == EFS:
                A(f"""
                s_waitcnt lgkmcnt(0)
                v_mad_u32_u24 {v(V_EID)}, {v(V_EID)}, 32, {v(V_HALF16)}
                buffer_load_dwordx4 {v(EF[a], 4)}, {v(V_EID)}, {s(S_EF, 4)}, 0 offen {efl}
                """)
            if r == 0:
                flush(b, 15)
            for op in side:
                A(op)
            if r > 0:
                A(f"s_bitcmp1_b32 {s(S_MASK[a])}, {r - 1}\ns_cbranch_scc1 K2_F{a}_{r}")
            for op in acc_ops(a, r, r == 0):
                A(op)
            if r > 0:
                A(f"K2_R{a}_{r}:")
            if r < 8:
                A(dots[2 * r] + "\n" + dots[2 * r + 1])
            if r == 4:
                A(f"""
                s_min_u32 {s(S_NN)}, {s(S_NN)}, {s(S_NT)}
                s_lshl_b32 {s(S_TMP)}, {s(S_NN)}, 9
                v_add_u32 {v(V_EID)}, {s(S_TMP)}, {v(V_LAE)}
                v_add_u32 {v(V_MT)}, {s(S_TMP)}, {v(V_LAD)}
                v_add_u32 {v(V_YA)}, {s(S_TMP)}, {v(V_LAY)}
                ds_read_b32 {v(V_EID)}, {v(V_EID)} offset:{L_LIST + 12}
                ds_read_b64 {v(SE[a], 2)}, {v(V_MT)} offset:{L_LIST + 8}
                """)
            if r == 8:
                A(f"ds_read_b64 {v(YR, 2)}, {v(V_YA)} offset:{L_LIST}\nds_read_b64 {v(YR + 2, 2)}, {v(V_YA)} offset:{L_LIST + 128}")
            if r == 13:
                A(f"s_or_b32 {s(S_MASK[b])}, {s(S_CMP)}, {s(S_CMP + 1)}")
            if r == 14:
                A("s_waitcnt lgkmcnt(0)")
        A(f"""
        s_cmp_ge_u32 {s(S_NEXT)}, {s(S_NT)}
        s_mov_b32 {s(S_NEXT)}, {s(S_NN)}
        """)
        if a == 0:
            A("s_cbranch_scc1 K2_EXIT0")
        else:
            A("s_cbranch_scc0 K2_LOOP0")
            flush(1, 15)
            A("s_branch K2_MAIN_DONE")
    for a in range(2):
        for r in range(1, 16):
            A(f"K2_F{a}_{r}:")
            flush(a, r - 1)
            for op in acc_ops(a, r, True):
                A(op)
            A(f"s_branch K2_R{a}_{r}")
    A("K2_EXIT0:")
    flush(0, 15)
    WM = 128
    A("K2_MAIN_DONE:")
    stamp(A, opt, 5)
    A(f"""
    s_cmp_eq_u32 {s(S_MORE)}, 0
    s_cbranch_scc1 K2_EPI
    s_lshl_b32 {s(S_TMP)}, 16, {s(S_WIDE)}
    s_add_u32 {s(S_K0)}, {s(S_K0)}, {s(S_TMP)}
    s_waitcnt vmcnt(0) lgkmcnt(0)
    s_barrier
    s_branch K2_ROUND
    K2_EPI:
    v_and_b32 v1, 63, v0
    v_lshlrev_b32 v2, 4, v1
    v_add_u32 v2, {WS_WF + 6144}, v2
    v_add_u32 v3, 4096, v2
    s_nop 7
    """)
    for f in range(8):
        A(f"global_load_dwordx4 {v(WM + 4 * f, 4)}, {'v2' if f < 4 else 'v3'}, {s(S_WS, 2)} offset:{1024 * (f % 4)}")
    A(f"""
    v_bfe_u32 v2, v1, 2, 2
    v_mul_u32_u24 v2, {NS}, v2
    v_and_b32 v3, 3, v1
    v_mul_u32_u24 v3, {RS}, v3
    v_lshrrev_b32 v4, 4, v1
    v_lshlrev_b32 v5, 6, v4
    v_add3_u32 v2, v2, v3, v5
    s_mul_i32 s70, {s(S_WAVE)}, {4 * NS}
    s_add_u32 s70, s70, {L_ACC}
    v_add_u32 v2, s70, v2
    v_and_b32 v3, 15, v1
    v_lshlrev_b32 v3, 4, v3
    v_lshl_add_u32 v3, v4, 17, v3
    s_lshl_b32 s70, {s(S_WAVE)}, 19
    s_lshl_b32 s71, {s(S_BETA)}, 9
    s_add_u32 s70, s70, s71
    v_add_u32 v3, s70, v3
    s_mov_b32 {s(S_SC)}, {fbits(-math.log(2.0))}
    s_mov_b32 {s(S_SC + 1)}, {fbits(-math.log(2.0))}
    s_waitcnt lgkmcnt(0)
    s_barrier
    """)
    stamp(A, opt, 6)
    AG, AF, OD, OP, A64 = 160, 176, 184, 200, 8

    def mix(extra_lds, extra_out):
        for cpar in range(2):
            for hh in range(4):
                A(f"ds_read_b128 {v(A64 + 16 * cpar + 4 * hh, 4)}, v2 offset:{4 * RS * cpar + 16 * hh}")
        for j in range(8):
            A(f"s_waitcnt lgkmcnt({7 - j})")
            A(f"v_cvt_f32_f64 {v(AG + 2 * j)}, {v(A64 + 4 * j, 2)}")
            A(f"v_cvt_f32_f64 {v(AG + 2 * j + 1)}, {v(A64 + 4 * j + 2, 2)}")
        for j in range(8):
            A(f"v_pk_mul_f32 {v(AG + 2 * j, 2)}, {v(AG + 2 * j, 2)}, {s(S_SC, 2)}")
        for j in range(8):
            A(f"v_cvt_pk_bf16_f32 {v(AF + j)}, {v(AG + 2 * j)}, {v(AG + 2 * j + 1)}")
        A("s_waitcnt vmcnt(0)" if extra_lds == 0 else "s_nop 0")
        A("s_nop 0")
        for dt in range(4):
            A(f"v_mfma_f32_16x16x32_bf16 {v(OD + 4 * dt, 4)}, {v(AF, 4)}, {v(WM + 4 * dt, 4)}, 0")
        for dt in range(4):
            A(f"v_mfma_f32_16x16x32_bf16 {v(OD + 4 * dt, 4)}, {v(AF + 4, 4)}, {v(WM + 16 + 4 * dt, 4)}, {v(OD + 4 * dt, 4)}")
        A("s_nop 7")
        for j in range(8):
            A(f"v_cvt_pk_bf16_f32 {v(OP + j)}, {v(OD + 2 * j)}, {v(OD + 2 * j + 1)}")
        ost = opt.get("out_st", "")
        A(f"buffer_store_dwordx4 {v(OP, 4)}, v3, {s(S_OUT, 4)}, {extra_out} offen {ost}")
        A(f"buffer_store_dwordx4 {v(OP + 4, 4)}, v3, {s(S_OUT, 4)}, {extra_out} offen offset:256 {ost}")

    mix(0, 0)
    A(f"s_cmp_ge_u32 {s(S_WAVE)}, 2\ns_cbranch_scc1 K2_FIN\nv_add_u32 v3, {32 * 256 * 512}, v3\nv_add_u32 v2, {32 * NS}, v2")
    mix(32 * NS, 0)
    A("K2_FIN:")
    if opt.get("prof"):
        A("s_waitcnt vmcnt(0)")
        stamp(A, opt, 7)
        stamp_out(A, opt, 8, S_WS, (128 << 20) + (1 << 20), S_WAVE)
    A("K2_END:\ns_endpgm")


def generate(opt):
    A = Asm()
    out = HEADER
    out += f"; @launch kernel=sort_kernel grid=(257,1,1) block=(640,1,1) lds={K1_LDS}\n"
    out += f"; @launch kernel={NAME}_kernel grid=(256,1,1) block=(512,1,1) lds={K2_LDS}\n"
    out += '.amdgcn_target "amdgcn-amd-amdhsa--gfx950"\n.text\n'
    gen_k1(A, opt)
    gen_k2(A, opt)
    out += A.text()
    out += '.section .rodata,"a"\n.p2align 6\n'
    out += descriptor("sort_kernel", 48, 96)
    out += ".p2align 6\n"
    out += descriptor(NAME + "_kernel", NVGPR2, 96)
    return out


if __name__ == "__main__":
    opt = eval("dict(" + (sys.argv[2] if len(sys.argv) > 2 else "") + ")")
    path = sys.argv[1] if len(sys.argv) > 1 else f"cdna_kernels/{NAME}.s"
    open(path, "w").write(generate(opt))
```

```python
import sys, struct, math

NAME = "standalone__tensor_product_equiv_tfn__graph"

HEADER = """; Kernarg layout for this problem (88 bytes, ptrs only, base s[0:1]):
"""

CHUNK = 2500
RECSTRIDE = 30080
WS_TAB = 256 * RECSTRIDE
WS_WF = WS_TAB + 256 * 1024

RS = 272
NS = 8 * RS
L_HIST = 0
L_PREF = 1024
L_CTR = 2048
L_LIST = 2304
CAP = 4096
L_ACC = L_LIST + (CAP + 64) * 16
NZ = (40 * NS + 8191) // 8192
K2_LDS = L_ACC + NZ * 8192
K1_LDS = 32768

DPP = "row_mask:0xf bank_mask:0xf"


def fbits(x):
    return "0x%08x" % struct.unpack("<I", struct.pack("<f", x))[0]


class Asm:
    def __init__(self):
        self.lines = []

    def __call__(self, s):
        for ln in s.strip("\n").split("\n"):
            ln = ln.strip()
            if not ln:
                continue
            if ln.endswith(":") or ln.startswith("."):
                self.lines.append(ln)
            else:
                self.lines.append("    " + ln)

    def text(self):
        return "\n".join(self.lines) + "\n"


def v(a, n=1):
    return f"v{a}" if n == 1 else f"v[{a}:{a+n-1}]"


def s(a, n=1):
    return f"s{a}" if n == 1 else f"s[{a}:{a+n-1}]"


def wave_scan(A, regs):
    steps = ["row_shr:1 " + DPP + " bound_ctrl:0", "row_shr:2 " + DPP + " bound_ctrl:0",
             "row_shr:4 " + DPP + " bound_ctrl:0", "row_shr:8 " + DPP + " bound_ctrl:0",
             "row_bcast:15 row_mask:0xa bank_mask:0xf", "row_bcast:31 row_mask:0xc bank_mask:0xf"]
    for st in steps:
        A("s_nop 1")
        for r in regs:
            A(f"v_add_u32_dpp {v(r)}, {v(r)}, {v(r)} {st}")


def kernel_head(A, name):
    A(f".globl {name}\n.p2align 8\n.type {name},@function\n{name}:")


def descriptor(name, vgpr, sgpr):
    acc = (vgpr + 3) // 4 * 4
    return f""".amdhsa_kernel {name}
  .amdhsa_next_free_vgpr {vgpr}
  .amdhsa_next_free_sgpr {sgpr}
  .amdhsa_accum_offset {acc}
  .amdhsa_group_segment_fixed_size 0
  .amdhsa_kernarg_size 88
  .amdhsa_user_sgpr_count 2
  .amdhsa_user_sgpr_kernarg_segment_ptr 1
  .amdhsa_system_sgpr_workgroup_id_x 1
  .amdhsa_float_denorm_mode_32 3
.end_amdhsa_kernel
"""


def stamp(A, opt, slot):
    if opt.get("prof"):
        A(f"s_memrealtime {s(80 + 2 * slot, 2)}")


def stamp_out(A, opt, nslots, wsreg, base, wave_sgpr):
    if opt.get("prof"):
        A("s_waitcnt lgkmcnt(0)")
        A(f"s_lshl_b32 s78, s2, 4\ns_add_u32 s78, s78, {s(wave_sgpr)}\ns_lshl_b32 s78, s78, 5\ns_add_u32 s78, s78, {base}")
        A("s_mov_b64 exec, -1\nv_mov_b32 v1, s78")
        for i in range(nslots):
            A(f"v_mov_b32 v2, {s(80 + 2 * i)}\nglobal_store_dword v1, v2, {s(wsreg, 2)} offset:{4 * i}")


def gen_k1(A, opt):
    ld = opt.get("k1_ld", "")
    st = opt.get("k1_st", "")
    kernel_head(A, "sort_kernel")
    stamp(A, opt, 0)
    A("""
    s_cmp_gt_u32 s2, 256
    s_cbranch_scc1 K1_END
    s_load_dwordx4 s[4:7], s[0:1], 8
    s_load_dwordx2 s[8:9], s[0:1], 24
    s_load_dwordx2 s[10:11], s[0:1], 80
    v_lshrrev_b32 v1, 6, v0
    s_cmp_eq_u32 s2, 256
    v_readfirstlane_b32 s3, v1
    s_cbranch_scc1 K1_PREP
    """)
    A(f"""
    s_mul_i32 s12, s2, {CHUNK * 4}
    s_mul_i32 s13, s2, {CHUNK * 8}
    v_lshl_add_u32 v1, v0, 4, s12
    v_lshl_add_u32 v2, v0, 5, s13
    v_and_b32 v3, 0xff, v0
    v_lshlrev_b32 v3, 2, v3
    v_mov_b32 v4, 0
    ds_write_b32 v3, v4
    v_cmp_gt_u32 vcc, {CHUNK // 4}, v0
    s_mov_b64 s[14:15], vcc
    s_mov_b64 exec, vcc
    s_waitcnt lgkmcnt(0)
    global_load_dwordx4 v[8:11], v1, s[6:7] {ld}
    global_load_dwordx4 v[12:15], v1, s[4:5] {ld}
    global_load_dwordx4 v[16:19], v2, s[8:9] {ld}
    global_load_dwordx4 v[20:23], v2, s[8:9] offset:16 {ld}
    """)
    npre = 0
    if opt.get("k1_touch_x") or opt.get("k1_touch_ef"):
        A("s_load_dwordx2 s[18:19], s[0:1], 0\ns_load_dwordx2 s[20:21], s[0:1], 32\ns_waitcnt lgkmcnt(0)")
    if opt.get("k1_touch_x"):
        A("global_load_dword v40, v2, s[18:19]")
        npre += 1
    if opt.get("k1_touch_ef"):
        A(f"s_mul_i32 s22, s2, {CHUNK * 32}\nv_lshl_add_u32 v41, v0, 7, s22\nglobal_load_dword v41, v41, s[20:21]")
        npre += 1
    A(f"""
    v_mov_b32 v5, 1
    v_lshlrev_b32 v6, 2, v0
    s_barrier
    s_waitcnt vmcnt({3 + npre})
    """)
    for k in range(4):
        A(f"v_lshlrev_b32_sdwa {v(24 + k)}, 2, {v(8 + k)} dst_sel:DWORD dst_unused:UNUSED_PAD src0_sel:DWORD src1_sel:BYTE_0")
    for k in range(4):
        A(f"ds_add_rtn_u32 {v(28 + k)}, {v(24 + k)}, v5")
    A(f"s_waitcnt vmcnt({2 + npre})")
    for k in range(4):
        A(f"""
        v_lshrrev_b32 {v(8 + k)}, 8, {v(8 + k)}
        v_lshl_or_b32 {v(8 + k)}, {v(8 + k)}, 14, {v(12 + k)}
        v_or_b32 v7, {k}, v6
        v_lshl_or_b32 {v(8 + k)}, {v(8 + k)}, 12, v7
        """)
    A("""
    s_mov_b64 exec, -1
    v_and_b32 v3, 63, v0
    v_lshlrev_b32 v3, 4, v3
    s_waitcnt lgkmcnt(0)
    s_barrier
    ds_read_b128 v[32:35], v3
    s_waitcnt lgkmcnt(0)
    v_add_u32 v38, v32, v33
    v_add_u32 v39, v38, v34
    v_add_u32 v4, v39, v35
    v_mov_b32 v36, v4
    """)
    wave_scan(A, [36])
    A(f"""
    v_sub_u32 v36, v36, v4
    v_add_u32 v37, v36, v32
    v_add_u32 v38, v36, v38
    v_add_u32 v39, v36, v39
    ds_write_b128 v3, v[36:39] offset:1024
    s_mov_b64 exec, s[14:15]
    """)
    for k in range(4):
        A(f"ds_read_b32 {v(24 + k)}, {v(24 + k)} offset:1024")
    A(f"""
    s_mov_b64 exec, -1
    s_cmp_lg_u32 s3, 0
    s_cbranch_scc1 K1_NOTAB
    s_lshl_b32 s16, s2, 10
    s_add_u32 s16, s16, {WS_TAB}
    v_add_u32 v3, s16, v3
    v_lshl_or_b32 v32, v32, 16, v36
    v_lshl_or_b32 v33, v33, 16, v37
    v_lshl_or_b32 v34, v34, 16, v38
    v_lshl_or_b32 v35, v35, 16, v39
    global_store_dwordx4 v3, v[32:35], s[10:11] {st}
    K1_NOTAB:
    s_mov_b64 exec, s[14:15]
    s_movk_i32 s17, 2048
    s_waitcnt lgkmcnt(0)
    """)
    for k in range(4):
        A(f"v_add_u32 {v(24 + k)}, {v(24 + k)}, {v(28 + k)}\nv_mad_u32_u24 {v(24 + k)}, {v(24 + k)}, 12, s17")
    for k in range(4):
        A(f"ds_write_b32 {v(24 + k)}, {v(8 + k)} offset:8")
    if npre:
        A(f"s_cmp_lg_u32 s3, 0\ns_cbranch_scc1 K1_W0\ns_waitcnt vmcnt({npre + 1})\ns_branch K1_W1\nK1_W0:\ns_waitcnt vmcnt({npre})\nK1_W1:")
    else:
        A("s_cmp_lg_u32 s3, 0\ns_cbranch_scc1 K1_W0\ns_waitcnt vmcnt(1)\ns_branch K1_W1\nK1_W0:\ns_waitcnt vmcnt(0)\nK1_W1:")
    for k in range(4):
        A(f"ds_write2_b32 {v(24 + k)}, {v(16 + 2 * k)}, {v(17 + 2 * k)} offset0:0 offset1:1")
    A(f"""
    s_mov_b64 exec, -1
    v_lshlrev_b32 v3, 4, v0
    s_mul_i32 s16, s2, {RECSTRIDE}
    v_add_u32 v4, s16, v3
    v_add_u32 v5, 10240, v4
    v_add_u32 v6, 20480, v4
    v_cmp_gt_u32 vcc, {CHUNK * 12 // 16 - 1280}, v0
    s_waitcnt lgkmcnt(0)
    s_barrier
    ds_read_b128 v[8:11], v3 offset:2048
    ds_read_b128 v[12:15], v3 offset:{2048 + 10240}
    ds_read_b128 v[16:19], v3 offset:{2048 + 20480}
    s_waitcnt lgkmcnt(2)
    global_store_dwordx4 v4, v[8:11], s[10:11] {st}
    s_waitcnt lgkmcnt(1)
    global_store_dwordx4 v5, v[12:15], s[10:11] {st}
    s_mov_b64 exec, vcc
    s_waitcnt lgkmcnt(0)
    global_store_dwordx4 v6, v[16:19], s[10:11] {st}
    """)
    if opt.get("prof"):
        A("s_waitcnt vmcnt(0)")
        stamp(A, opt, 1)
        stamp_out(A, opt, 2, 10, 128 << 20, 3)
    A("s_endpgm")
    A(f"""
    K1_PREP:
    s_load_dwordx4 s[12:15], s[0:1], 40
    s_load_dwordx2 s[16:17], s[0:1], 56
    v_and_b32 v1, 63, v0
    v_lshlrev_b32 v2, 4, v1
    v_add_u32 v2, {WS_WF}, v2
    s_waitcnt lgkmcnt(0)
    s_cmp_eq_u32 s3, 0
    s_cbranch_scc1 K1_PREP_W
    s_cmp_eq_u32 s3, 1
    s_cbranch_scc1 K1_PREP_CG
    s_sub_u32 s18, s3, 2
    s_lshr_b32 s19, s18, 2
    s_lshl_b32 s19, s19, 7
    s_and_b32 s20, s18, 1
    s_lshl_b32 s20, s20, 1
    s_add_u32 s19, s19, s20
    s_and_b32 s20, s18, 2
    s_lshl_b32 s20, s20, 5
    s_add_u32 s19, s19, s20
    v_lshrrev_b32 v3, 4, v1
    v_lshlrev_b32 v3, 11, v3
    v_and_b32 v4, 15, v1
    v_lshl_add_u32 v3, v4, 2, v3
    v_add_u32 v3, s19, v3
    """)
    for i in range(8):
        A(f"global_load_ushort {v(8 + i)}, v3, s[16:17] offset:{256 * i}")
    A("s_lshl_b32 s18, s18, 10\ns_add_u32 s18, s18, 6144\nv_add_u32 v2, s18, v2\ns_waitcnt vmcnt(0)")
    for j in range(4):
        A(f"v_lshl_or_b32 {v(16 + j)}, {v(9 + 2 * j)}, 16, {v(8 + 2 * j)}")
    A("global_store_dwordx4 v2, v[16:19], s[10:11]\ns_endpgm")
    A("K1_PREP_CG:\nv_and_b32 v3, 3, v1\nv_lshlrev_b32 v3, 1, v3")
    for i in range(16):
        A(f"global_load_ushort {v(8 + i)}, v3, s[14:15] offset:{8 * i}")
    A("v_add_u32 v2, 4096, v2\ns_waitcnt vmcnt(0)")
    for j in range(8):
        A(f"v_lshl_or_b32 {v(24 + j)}, {v(9 + 2 * j)}, 16, {v(8 + 2 * j)}")
    A("global_store_dwordx4 v2, v[24:27], s[10:11]\nglobal_store_dwordx4 v2, v[28:31], s[10:11] offset:1024\ns_endpgm")
    A("""
    K1_PREP_W:
    v_lshrrev_b32 v3, 5, v1
    v_lshlrev_b32 v3, 10, v3
    v_and_b32 v4, 31, v1
    v_lshl_add_u32 v3, v4, 2, v3
    """)
    for i in range(8):
        A(f"global_load_dword {v(8 + i)}, v3, s[12:13] offset:{128 * i}")
    A(f"s_mov_b32 s18, {fbits(-math.log2(math.e))}\ns_waitcnt vmcnt(0)")
    for par in range(2):
        for i in range(8):
            if par == 0:
                A(f"v_lshlrev_b32 {v(16 + i)}, 16, {v(8 + i)}")
            else:
                A(f"v_and_b32 {v(16 + i)}, 0xffff0000, {v(8 + i)}")
            A(f"v_mul_f32 {v(16 + i)}, s18, {v(16 + i)}")
        H = 24 + 8 * par
        for j in range(4):
            A(f"""
            v_cvt_pk_bf16_f32 {v(H + j)}, {v(16 + 2 * j)}, {v(17 + 2 * j)}
            v_lshlrev_b32 v5, 16, {v(H + j)}
            v_and_b32 v6, 0xffff0000, {v(H + j)}
            v_sub_f32 v5, {v(16 + 2 * j)}, v5
            v_sub_f32 v6, {v(17 + 2 * j)}, v6
            v_cvt_pk_bf16_f32 {v(H + 4 + j)}, v5, v6
            """)
    for f in range(4):
        A(f"global_store_dwordx4 v2, {v(24 + 4 * f, 4)}, s[10:11] offset:{1024 * f}")
    A("K1_END:\ns_endpgm")


W = 8
CG = 24
V_LANE16, V_HALF16, V_ACCL, V_LAD, V_LAE, V_LAY, V_ONE, V_DBASE, V_DCNT, V_PBASE, V_K, V_K12, V_CTRA = range(32, 45)
F64 = 48
X = 64
D = (128, 160)
EF = (192, 196)
T = (200, 204)
TF = 208
YR = 216
TP = 220
ACC = 228
E = 236
SE = (240, 242)
KK = (244, 245)
V_EID, V_XA, V_FA, V_YA, V_GRAB, V_MT = 246, 247, 248, 249, 250, 251
NVGPR2 = 252

S_X, S_EF, S_OUT, S_WS = 4, 8, 12, 16
S_BETA, S_WAVE, S_K0, S_WIDE, S_N, S_NT, S_NEXT, S_NN = 18, 19, 20, 21, 22, 23, 24, 25
S_MASK = (26, 27)
S_CMP = 28
S_MORE, S_TMP = 30, 31
S_M1, S_M2 = 32, 48
S_ANY2 = 64
S_C0, S_C1 = 66, 67
S_SC = 68
EFS = 6


def gen_k2(A, opt):
    name = NAME + "_kernel"
    efl = opt.get("ef_ld", "")
    kernel_head(A, name)
    stamp(A, opt, 0)
    A(f"""
    s_cmp_ge_u32 s2, 256
    s_cbranch_scc1 K2_END
    s_load_dwordx2 {s(S_WS, 2)}, s[0:1], 80
    s_load_dwordx2 {s(S_X, 2)}, s[0:1], 0
    s_load_dwordx2 {s(S_EF, 2)}, s[0:1], 32
    s_load_dwordx2 {s(S_OUT, 2)}, s[0:1], 64
    s_and_b32 {s(S_BETA)}, s2, 7
    s_lshl_b32 {s(S_BETA)}, {s(S_BETA)}, 5
    s_lshr_b32 s3, s2, 3
    s_add_u32 {s(S_BETA)}, {s(S_BETA)}, s3
    v_lshrrev_b32 v1, 6, v0
    v_and_b32 v2, 63, v0
    v_readfirstlane_b32 {s(S_WAVE)}, v1
    v_lshrrev_b32 v3, 4, v0
    v_lshlrev_b32 v3, 3, v3
    v_and_b32 v4, 7, v0
    v_add_u32 v4, v3, v4
    s_lshl_b32 s3, {s(S_BETA)}, 2
    s_add_u32 s3, s3, {WS_TAB}
    v_lshl_add_u32 v5, v4, 10, s3
    v_lshlrev_b32 v6, 4, v2
    v_add_u32 v6, {WS_WF}, v6
    s_waitcnt lgkmcnt(0)
    global_load_dword {v(V_DCNT)}, v5, {s(S_WS, 2)}
    """)
    for f in range(4):
        A(f"global_load_dwordx4 {v(W + 4 * f, 4)}, v6, {s(S_WS, 2)} offset:{1024 * f}")
    A("v_add_u32 v6, 4096, v6")
    for f in range(2):
        A(f"global_load_dwordx4 {v(CG + 4 * f, 4)}, v6, {s(S_WS, 2)} offset:{1024 * f}")
    A(f"""
    s_and_b32 {s(S_X + 1)}, {s(S_X + 1)}, 0xffff
    s_mov_b32 {s(S_X + 2)}, 5120000
    s_mov_b32 {s(S_X + 3)}, 0x20000
    s_and_b32 {s(S_EF + 1)}, {s(S_EF + 1)}, 0xffff
    s_mov_b32 {s(S_EF + 2)}, 20480000
    s_mov_b32 {s(S_EF + 3)}, 0x20000
    s_and_b32 {s(S_OUT + 1)}, {s(S_OUT + 1)}, 0xffff
    s_mov_b32 {s(S_OUT + 2)}, 5120000
    s_mov_b32 {s(S_OUT + 3)}, 0x20000
    s_mov_b32 {s(S_K0)}, 0
    s_mov_b32 {s(S_WIDE)}, 1
    s_mov_b32 {s(S_C0)}, {RECSTRIDE}
    v_mul_lo_u32 {v(V_DBASE)}, v4, {s(S_C0)}
    v_mul_u32_u24 {v(V_PBASE)}, {CHUNK}, v3
    v_and_b32 {v(V_K)}, 15, v0
    v_and_b32 v5, 31, v2
    v_lshrrev_b32 v6, 5, v2
    v_lshlrev_b32 {v(V_LANE16)}, 4, v5
    v_lshlrev_b32 {v(V_HALF16)}, 4, v6
    v_lshlrev_b32 {v(V_ACCL)}, 3, v5
    v_add_u32 {v(V_ACCL)}, {L_ACC}, {v(V_ACCL)}
    v_add_lshl_u32 {v(V_LAD)}, {v(V_K)}, {v(V_HALF16)}, 4
    v_lshrrev_b32 v7, 3, v5
    v_lshlrev_b32 v7, 2, v7
    v_and_or_b32 v7, v5, 3, v7
    v_lshlrev_b32 v7, 4, v7
    v_and_b32 v1, 4, v5
    v_lshl_add_u32 {v(V_LAE)}, v1, 6, v7
    v_lshrrev_b32 v7, 2, v5
    v_add_lshl_u32 {v(V_LAY)}, v7, {v(V_HALF16)}, 4
    v_mov_b32 {v(V_ONE)}, 1
    v_mov_b32 {v(V_CTRA)}, {L_CTR}
    v_mov_b64 v[64:65], 0
    v_mov_b64 v[66:67], 0
    v_lshlrev_b32 v7, 4, v0
    v_add_u32 v7, {L_ACC}, v7
    v_add_u32 v1, 65536, v7
    """)
    for i in range(NZ):
        A(f"ds_write_b128 {'v7' if i < 8 else 'v1'}, v[64:67] offset:{8192 * (i % 8)}")
    A(f"""
    s_waitcnt vmcnt(6)
    v_and_b32 v1, 0xffff, {v(V_DCNT)}
    v_mad_u32_u24 {v(V_DBASE)}, v1, 12, {v(V_DBASE)}
    v_lshrrev_b32 {v(V_DCNT)}, 16, {v(V_DCNT)}
    """)
    stamp(A, opt, 1)
    REC1, REC2, RK1, RK2, HA1, HA2 = 64, 96, 128, 136, 144, 152
    A(f"""
    K2_ROUND:
    v_and_b32 v1, 0xff, v0
    v_lshlrev_b32 v1, 2, v1
    v_mov_b32 v2, 0
    v_mov_b32 v3, 16
    ds_write_b32 v1, v2 offset:{L_HIST}
    ds_write2_b32 {v(V_CTRA)}, v3, v2 offset0:0 offset1:1
    v_add_u32 v4, {s(S_K0)}, {v(V_K)}
    v_mul_u32_u24 {v(V_K12)}, 12, v4
    s_lshl_b32 {s(S_TMP)}, 16, {s(S_WIDE)}
    s_add_u32 {s(S_TMP)}, {s(S_TMP)}, {s(S_K0)}
    v_cmp_lt_u32 {s(S_CMP, 2)}, {s(S_TMP)}, {v(V_DCNT)}
    s_cmp_eq_u32 {s(S_WIDE)}, 1
    s_cselect_b32 {s(S_C1)}, 16, 0x7fffffff
    s_mov_b64 {s(S_ANY2, 2)}, 0
    """)
    for c in range(8):
        A(f"""
        v_add_u32_dpp {v(HA2 + c)}, {v(V_DBASE)}, {v(V_K12)} row_newbcast:{c} {DPP}
        v_sub_u32_dpp v5, {v(V_DCNT)}, v4 row_newbcast:{c} {DPP}
        v_cmp_lt_i32 {s(S_M1 + 2 * c, 2)}, 0, v5
        v_cmp_lt_i32 {s(S_M2 + 2 * c, 2)}, {s(S_C1)}, v5
        """)
    for c in range(8):
        A(f"""
        s_mov_b64 exec, {s(S_M1 + 2 * c, 2)}
        s_or_b64 {s(S_ANY2, 2)}, {s(S_ANY2, 2)}, {s(S_M2 + 2 * c, 2)}
        global_load_dwordx3 {v(REC1 + 4 * c, 3)}, {v(HA2 + c)}, {s(S_WS, 2)}
        """)
    A(f"s_cmp_eq_u64 {s(S_ANY2, 2)}, 0\ns_cbranch_scc1 K2_NOSEC_A")
    for c in range(8):
        A(f"""
        s_mov_b64 exec, {s(S_M2 + 2 * c, 2)}
        s_cbranch_execz K2_SA{c}
        global_load_dwordx3 {v(REC2 + 4 * c, 3)}, {v(HA2 + c)}, {s(S_WS, 2)} offset:192
        K2_SA{c}:
        """)
    A("K2_NOSEC_A:\ns_mov_b64 exec, -1")
    npre = opt.get("xpre", 0)
    if npre:
        A(f"""
        s_lshr_b32 {s(S_TMP)}, s2, 3
        s_mul_i32 {s(S_TMP)}, {s(S_TMP)}, {npre * 128}
        s_add_u32 {s(S_TMP)}, {s(S_TMP)}, {opt.get("xpre_base", 0)}
        v_lshl_add_u32 v5, v0, 7, {s(S_TMP)}
        v_cmp_gt_u32 vcc, {npre}, v0
        s_mov_b64 exec, vcc
        buffer_load_dword v6, v5, {s(S_X, 4)}, 0 offen
        s_mov_b64 exec, -1
        """)
    A(f"""
    s_waitcnt lgkmcnt(0)
    s_barrier
    s_cmp_eq_u64 {s(S_CMP, 2)}, 0
    s_cbranch_scc1 K2_NOMORE
    ds_write_b32 {v(V_CTRA)}, {v(V_ONE)} offset:4
    K2_NOMORE:
    s_mov_b32 {s(S_C0)}, 0x7ffe00
    s_mov_b32 {s(S_C1)}, 0xfc000fff
    s_waitcnt vmcnt({1 if npre else 0})
    """)
    stamp(A, opt, 2)

    def hist(rec, rk, ha, c):
        A(f"""
        v_lshlrev_b32_sdwa {v(ha + c)}, 2, {v(rec + 4 * c + 2)} dst_sel:DWORD dst_unused:UNUSED_PAD src0_sel:DWORD src1_sel:BYTE_3
        v_and_b32 {v(rec + 4 * c + 3)}, {s(S_C1)}, {v(rec + 4 * c + 2)}
        ds_add_rtn_u32 {v(rk + c)}, {v(ha + c)}, {v(V_ONE)} offset:{L_HIST}
        v_lshrrev_b32 {v(rec + 4 * c + 2)}, 3, {v(rec + 4 * c + 2)}
        v_and_b32 {v(rec + 4 * c + 2)}, {s(S_C0)}, {v(rec + 4 * c + 2)}
        s_movk_i32 {s(S_TMP)}, {c * CHUNK}
        v_add3_u32 {v(rec + 4 * c + 3)}, {v(rec + 4 * c + 3)}, {v(V_PBASE)}, {s(S_TMP)}
        """)

    for c in range(8):
        A(f"s_mov_b64 exec, {s(S_M1 + 2 * c, 2)}")
        hist(REC1, RK1, HA1, c)
    A(f"s_cmp_eq_u64 {s(S_ANY2, 2)}, 0\ns_cbranch_scc1 K2_NOSEC_B")
    for c in range(8):
        A(f"s_mov_b64 exec, {s(S_M2 + 2 * c, 2)}\ns_cbranch_execz K2_SB{c}")
        hist(REC2, RK2, HA2, c)
        A(f"K2_SB{c}:")
    order = opt.get("order", [0, 1, 2, 3])
    A(f"""
    K2_NOSEC_B:
    s_mov_b64 exec, -1
    v_and_b32 v1, 63, v0
    v_lshlrev_b32 v1, 4, v1
    s_waitcnt lgkmcnt(0)
    s_barrier
    ds_read_b128 v[160:163], v1 offset:{L_HIST}
    ds_read_b32 v2, {v(V_CTRA)} offset:4
    s_waitcnt lgkmcnt(0)
    v_readfirstlane_b32 {s(S_MORE)}, v2
    v_lshl_or_b32 v164, {v(160 + order[1])}, 16, {v(160 + order[0])}
    v_lshl_or_b32 v165, {v(160 + order[3])}, 16, {v(160 + order[2])}
    v_mov_b32 v166, v164
    v_mov_b32 v167, v165
    """)
    wave_scan(A, [166, 167])
    A(f"""
    s_nop 0
    v_readlane_b32 s70, v166, 63
    v_readlane_b32 s71, v167, 63
    v_sub_u32 v166, v166, v164
    v_sub_u32 v167, v167, v165
    s_and_b32 s72, s70, 0xffff
    s_lshr_b32 s73, s70, 16
    s_add_u32 s73, s73, s72
    s_and_b32 s74, s71, 0xffff
    s_add_u32 s74, s74, s73
    s_lshr_b32 {s(S_N)}, s71, 16
    s_add_u32 {s(S_N)}, {s(S_N)}, s74
    s_cmp_le_u32 {s(S_N)}, {CAP}
    s_cbranch_scc1 K2_FITS
    s_mov_b32 {s(S_WIDE)}, 0
    s_barrier
    s_branch K2_ROUND
    K2_FITS:
    v_and_b32 {v(160 + order[0])}, 0xffff, v166
    v_lshrrev_b32 v166, 16, v166
    v_add_u32 {v(160 + order[1])}, s72, v166
    v_and_b32 v166, 0xffff, v167
    v_add_u32 {v(160 + order[2])}, s73, v166
    v_lshrrev_b32 v167, 16, v167
    v_add_u32 {v(160 + order[3])}, s74, v167
    ds_write_b128 v1, v[160:163] offset:{L_PREF}
    s_add_u32 {s(S_NT)}, {s(S_N)}, 31
    s_lshr_b32 {s(S_NT)}, {s(S_NT)}, 5
    s_lshl_b32 {s(S_TMP)}, {s(S_N)}, 4
    v_add_u32 v1, {s(S_TMP)}, v1
    v_mov_b64 v[164:165], 0
    v_mov_b32 v166, 0x80000000
    v_mov_b32 v167, 0xfffff
    """)
    for c in range(8):
        A(f"s_mov_b64 exec, {s(S_M1 + 2 * c, 2)}\nds_read_b32 {v(HA1 + c)}, {v(HA1 + c)} offset:{L_PREF}")
    A(f"s_mov_b64 exec, -1\nds_write_b128 v1, v[164:167] offset:{L_LIST}\ns_waitcnt lgkmcnt(1)")
    for c in range(8):
        A(f"""
        s_mov_b64 exec, {s(S_M1 + 2 * c, 2)}
        v_add_lshl_u32 {v(HA1 + c)}, {v(HA1 + c)}, {v(RK1 + c)}, 4
        ds_write_b128 {v(HA1 + c)}, {v(REC1 + 4 * c, 4)} offset:{L_LIST}
        """)
    A(f"s_cmp_eq_u64 {s(S_ANY2, 2)}, 0\ns_cbranch_scc1 K2_NOSEC_C")
    for c in range(8):
        A(f"""
        s_mov_b64 exec, {s(S_M2 + 2 * c, 2)}
        s_cbranch_execz K2_SC{c}
        ds_read_b32 {v(HA2 + c)}, {v(HA2 + c)} offset:{L_PREF}
        s_waitcnt lgkmcnt(0)
        v_add_lshl_u32 {v(HA2 + c)}, {v(HA2 + c)}, {v(RK2 + c)}, 4
        ds_write_b128 {v(HA2 + c)}, {v(REC2 + 4 * c, 4)} offset:{L_LIST}
        K2_SC{c}:
        """)
    A(f"""
    K2_NOSEC_C:
    s_mov_b64 exec, -1
    s_add_u32 {s(S_NEXT)}, {s(S_WAVE)}, 8
    s_min_u32 {s(S_NEXT)}, {s(S_NEXT)}, {s(S_NT)}
    s_lshl_b32 s70, {s(S_WAVE)}, 9
    s_lshl_b32 s71, {s(S_NEXT)}, 9
    v_add_u32 v1, s70, {v(V_LAD)}
    v_add_u32 v2, s70, {v(V_LAE)}
    v_add_u32 v3, s70, {v(V_LAY)}
    v_add_u32 v4, s71, {v(V_LAD)}
    v_add_u32 v5, s71, {v(V_LAE)}
    v_add_u32 {v(V_YA)}, s71, {v(V_LAY)}
    s_movk_i32 {s(S_C0)}, {NS}
    s_waitcnt lgkmcnt(0)
    s_barrier
    """)
    stamp(A, opt, 3)
    A(f"""
    s_cmp_ge_u32 {s(S_WAVE)}, {s(S_NT)}
    s_cbranch_scc1 K2_MAIN_DONE
    ds_read_b32 v2, v2 offset:{L_LIST + 12}
    ds_read_b64 {v(SE[0], 2)}, v1 offset:{L_LIST + 8}
    ds_read_b32 {v(V_EID)}, v5 offset:{L_LIST + 12}
    ds_read_b64 {v(YR, 2)}, v3 offset:{L_LIST}
    ds_read_b64 {v(YR + 2, 2)}, v3 offset:{L_LIST + 128}
    ds_read_b64 {v(SE[1], 2)}, v4 offset:{L_LIST + 8}
    s_waitcnt lgkmcnt(5)
    v_mad_u32_u24 v2, v2, 32, {v(V_HALF16)}
    buffer_load_dwordx4 {v(EF[0], 4)}, v2, {s(S_EF, 4)}, 0 offen {efl}
    s_waitcnt lgkmcnt(3)
    v_mad_u32_u24 {v(V_EID)}, {v(V_EID)}, 32, {v(V_HALF16)}
    """)

    def xload(se, r):
        A(f"v_add_u32_dpp {v(V_XA)}, {v(se)}, {v(V_LANE16)} row_newbcast:{r} {DPP}")
        A(f"buffer_load_dwordx4 {v(X + 4 * r, 4)}, {v(V_XA)}, {s(S_X, 4)}, 0 offen")

    def dot_ops():
        ops = []
        for half in range(2):
            for i in range(4):
                ops.append(f"v_dot2_f32_bf16 {v(TF + 4 * half + i)}, {v(YR + 2 * half)}, {v(CG + 2 * i)}, 0")
            for i in range(4):
                ops.append(f"v_dot2_f32_bf16 {v(TF + 4 * half + i)}, {v(YR + 2 * half + 1)}, {v(CG + 2 * i + 1)}, {v(TF + 4 * half + i)}")
        return ops

    def cvt_ops(t):
        return [f"v_cvt_pk_bf16_f32 {v(t + j)}, {v(TF + 2 * j)}, {v(TF + 2 * j + 1)}" for j in range(4)]

    def key_ops(se, kk):
        return [f"v_lshrrev_b32 {v(kk)}, 26, {v(se + 1)}",
                f"v_mul_u32_u24 {v(kk)}, {s(S_C0)}, {v(kk)}",
                f"v_xor_b32_dpp {v(V_MT)}, {v(kk)}, {v(kk)} row_shl:1 {DPP} bound_ctrl:0",
                f"v_cmp_ne_u32 {s(S_CMP, 2)}, 0, {v(V_MT)}"]

    def m32_ops(ef, d):
        return [f"v_mfma_f32_32x32x16_bf16 {v(d, 16)}, {v(ef, 4)}, {v(W, 4)}, 0",
                f"v_mfma_f32_32x32x16_bf16 {v(d, 16)}, {v(ef, 4)}, {v(W + 4, 4)}, {v(d, 16)}",
                f"v_mfma_f32_32x32x16_bf16 {v(d + 16, 16)}, {v(ef, 4)}, {v(W + 8, 4)}, 0",
                f"v_mfma_f32_32x32x16_bf16 {v(d + 16, 16)}, {v(ef, 4)}, {v(W + 12, 4)}, {v(d + 16, 16)}"]

    def exp_ops(d, q):
        return [f"v_exp_f32 {v(E)}, {v(d + q)}", f"v_exp_f32 {v(E + 1)}, {v(d + q + 1)}",
                f"v_exp_f32 {v(E + 2)}, {v(d + 16 + q)}", f"v_exp_f32 {v(E + 3)}, {v(d + 16 + q + 1)}"]

    add_ops = [f"v_pk_add_f32 {v(E, 2)}, {v(E, 2)}, 1.0 op_sel_hi:[1,0]",
               f"v_pk_add_f32 {v(E + 2, 2)}, {v(E + 2, 2)}, 1.0 op_sel_hi:[1,0]"]
    rcp_ops = [f"v_rcp_f32 {v(E + j)}, {v(E + j)}" for j in range(4)]

    def mul_ops(d, q):
        return [f"v_pk_mul_f32 {v(d + q, 2)}, {v(d + q, 2)}, {v(E, 2)}",
                f"v_pk_mul_f32 {v(d + 16 + q, 2)}, {v(d + 16 + q, 2)}, {v(E + 2, 2)}"]

    for r in range(16):
        xload(SE[0], r)
        if r == EFS:
            A(f"buffer_load_dwordx4 {v(EF[1], 4)}, {v(V_EID)}, {s(S_EF, 4)}, 0 offen {efl}")
    A("s_waitcnt lgkmcnt(0)")
    ko = key_ops(SE[0], KK[0])
    A(ko[0] + "\n" + ko[1])
    for op in dot_ops():
        A(op)
    A(ko[2] + "\n" + ko[3])
    A(f"ds_read_b64 {v(YR, 2)}, {v(V_YA)} offset:{L_LIST}\nds_read_b64 {v(YR + 2, 2)}, {v(V_YA)} offset:{L_LIST + 128}")
    A("s_nop 0")
    for op in cvt_ops(T[0]):
        A(op)
    A(f"s_or_b32 {s(S_MASK[0])}, {s(S_CMP)}, {s(S_CMP + 1)}")
    for j in range(4):
        A(f"v_mov_b64 {v(ACC + 2 * j, 2)}, 0")
    A(f"v_mov_b32 {v(KK[1])}, 0")
    A("s_waitcnt vmcnt(17)")
    for op in m32_ops(EF[0], D[0]):
        A(op)
    A("s_nop 11")
    for op in exp_ops(D[0], 0):
        A(op)
    A("s_nop 0")
    for op in add_ops + rcp_ops:
        A(op)
    A("s_nop 0")
    for op in mul_ops(D[0], 0):
        A(op)
    A("s_waitcnt lgkmcnt(0)")
    stamp(A, opt, 4)

    def flush(a, r):
        A(f"v_add_u32_dpp {v(V_FA)}, {v(KK[a])}, {v(V_ACCL)} row_newbcast:{r} {DPP}")
        for j in range(8):
            A(f"v_cvt_f64_f32 {v(F64 + 2 * j, 2)}, {v(ACC + j)}")
            A(f"ds_add_f64 {v(V_FA)}, {v(F64 + 2 * j, 2)} offset:{RS * j}")

    def acc_ops(a, r, first):
        ops = []
        for j in range(4):
            rr = D[a] + 16 * (j // 2) + (r & ~1)
            o = r & 1
            if first:
                ops.append(f"v_pk_mul_f32 {v(ACC + 2 * j, 2)}, {v(rr, 2)}, {v(TP + 2 * j, 2)} op_sel:[{o},0] op_sel_hi:[{o},1]")
            else:
                ops.append(f"v_pk_fma_f32 {v(ACC + 2 * j, 2)}, {v(rr, 2)}, {v(TP + 2 * j, 2)}, {v(ACC + 2 * j, 2)} op_sel:[{o},0,0] op_sel_hi:[{o},1,1]")
        return ops

    A(".p2align 6")
    for a in range(2):
        b = 1 - a
        A(f"K2_LOOP{a}:")
        dots = dot_ops()
        fill = {9: [key_ops(SE[b], KK[b])[0], key_ops(SE[b], KK[b])[1]],
                10: cvt_ops(T[b])[0:2],
                11: [key_ops(SE[b], KK[b])[2], key_ops(SE[b], KK[b])[3]],
                12: cvt_ops(T[b])[2:4]}
        m32 = dict(zip((9, 10, 11, 12), m32_ops(EF[b], D[b])))
        for r in range(16):
            tr = T[a] + (2 if r >= 8 else 0)
            m4 = [f"v_mfma_f32_4x4x4_16b_bf16 {v(TP + 4 * h, 4)}, {v(tr, 2)}, {v(X + 4 * r + 2 * h, 2)}, 0 cbsz:3 abid:{r % 8}" for h in range(2)]
            q = (r & ~1) + 2
            dq, qq = (D[a], q) if q < 16 else (D[b], 0)
            trans = exp_ops(dq, qq) if r % 2 == 0 else rcp_ops
            side = add_ops if r % 2 == 0 else mul_ops(dq, qq)
            if r in m32:
                A(m32[r])
                A(trans[0] + "\n" + trans[1] + "\n" + trans[2])
                A("s_waitcnt vmcnt(16)")
                A(m4[0] + "\n" + trans[3] + "\n" + m4[1])
            else:
                A("s_waitcnt vmcnt(16)")
                A(m4[0] + "\n" + trans[0] + "\n" + m4[1] + "\n" + trans[1] + "\n" + trans[2] + "\n" + trans[3])
            xload(SE[b], r)
            for op in fill.get(r, []):
                A(op)
            if r == 2:
                A(f"s_mov_b64 exec, 1\nds_add_rtn_u32 {v(V_GRAB)}, {v(V_CTRA)}, {v(V_ONE)}\ns_mov_b64 exec, -1")
            if r == 4:
                A(f"""
                s_waitcnt lgkmcnt(0)
                v_readfirstlane_b32 {s(S_NN)}, {v(V_GRAB)}
                """)
            if r == EFS:
                A(f"""
                s_waitcnt lgkmcnt(0)
                v_mad_u32_u24 {v(V_EID)}, {v(V_EID)}, 32, {v(V_HALF16)}
                buffer_load_dwordx4 {v(EF[a], 4)}, {v(V_EID)}, {s(S_EF, 4)}, 0 offen {efl}
                """)
            if r == 0:
                flush(b, 15)
            for op in side:
                A(op)
            if r > 0:
                A(f"s_bitcmp1_b32 {s(S_MASK[a])}, {r - 1}\ns_cbranch_scc1 K2_F{a}_{r}")
            for op in acc_ops(a, r, r == 0):
                A(op)
            if r > 0:
                A(f"K2_R{a}_{r}:")
            if r < 8:
                A(dots[2 * r] + "\n" + dots[2 * r + 1])
            if r == 4:
                A(f"""
                s_min_u32 {s(S_NN)}, {s(S_NN)}, {s(S_NT)}
                s_lshl_b32 {s(S_TMP)}, {s(S_NN)}, 9
                v_add_u32 {v(V_EID)}, {s(S_TMP)}, {v(V_LAE)}
                v_add_u32 {v(V_MT)}, {s(S_TMP)}, {v(V_LAD)}
                v_add_u32 {v(V_YA)}, {s(S_TMP)}, {v(V_LAY)}
                ds_read_b32 {v(V_EID)}, {v(V_EID)} offset:{L_LIST + 12}
                ds_read_b64 {v(SE[a], 2)}, {v(V_MT)} offset:{L_LIST + 8}
                """)
            if r == 8:
                A(f"ds_read_b64 {v(YR, 2)}, {v(V_YA)} offset:{L_LIST}\nds_read_b64 {v(YR + 2, 2)}, {v(V_YA)} offset:{L_LIST + 128}")
            if r == 13:
                A(f"s_or_b32 {s(S_MASK[b])}, {s(S_CMP)}, {s(S_CMP + 1)}")
            if r == 14:
                A("s_waitcnt lgkmcnt(0)")
        A(f"""
        s_cmp_ge_u32 {s(S_NEXT)}, {s(S_NT)}
        s_mov_b32 {s(S_NEXT)}, {s(S_NN)}
        """)
        if a == 0:
            A("s_cbranch_scc1 K2_EXIT0")
        else:
            A("s_cbranch_scc0 K2_LOOP0")
            flush(1, 15)
            A("s_branch K2_MAIN_DONE")
    for a in range(2):
        for r in range(1, 16):
            A(f"K2_F{a}_{r}:")
            flush(a, r - 1)
            for op in acc_ops(a, r, True):
                A(op)
            A(f"s_branch K2_R{a}_{r}")
    A("K2_EXIT0:")
    flush(0, 15)
    WM = 128
    A("K2_MAIN_DONE:")
    stamp(A, opt, 5)
    A(f"""
    s_cmp_eq_u32 {s(S_MORE)}, 0
    s_cbranch_scc1 K2_EPI
    s_lshl_b32 {s(S_TMP)}, 16, {s(S_WIDE)}
    s_add_u32 {s(S_K0)}, {s(S_K0)}, {s(S_TMP)}
    s_waitcnt vmcnt(0) lgkmcnt(0)
    s_barrier
    s_branch K2_ROUND
    K2_EPI:
    v_and_b32 v1, 63, v0
    v_lshlrev_b32 v2, 4, v1
    v_add_u32 v2, {WS_WF + 6144}, v2
    v_add_u32 v3, 4096, v2
    s_nop 7
    """)
    for f in range(8):
        A(f"global_load_dwordx4 {v(WM + 4 * f, 4)}, {'v2' if f < 4 else 'v3'}, {s(S_WS, 2)} offset:{1024 * (f % 4)}")
    A(f"""
    v_bfe_u32 v2, v1, 2, 2
    v_mul_u32_u24 v2, {NS}, v2
    v_and_b32 v3, 3, v1
    v_mul_u32_u24 v3, {RS}, v3
    v_lshrrev_b32 v4, 4, v1
    v_lshlrev_b32 v5, 6, v4
    v_add3_u32 v2, v2, v3, v5
    s_mul_i32 s70, {s(S_WAVE)}, {4 * NS}
    s_add_u32 s70, s70, {L_ACC}
    v_add_u32 v2, s70, v2
    v_and_b32 v3, 15, v1
    v_lshlrev_b32 v3, 4, v3
    v_lshl_add_u32 v3, v4, 17, v3
    s_lshl_b32 s70, {s(S_WAVE)}, 19
    s_lshl_b32 s71, {s(S_BETA)}, 9
    s_add_u32 s70, s70, s71
    v_add_u32 v3, s70, v3
    s_mov_b32 {s(S_SC)}, {fbits(-math.log(2.0))}
    s_mov_b32 {s(S_SC + 1)}, {fbits(-math.log(2.0))}
    s_waitcnt lgkmcnt(0)
    s_barrier
    """)
    stamp(A, opt, 6)
    AG, AF, OD, OP, A64 = 160, 176, 184, 200, 8

    def mix(extra_lds, extra_out):
        for cpar in range(2):
            for hh in range(4):
                A(f"ds_read_b128 {v(A64 + 16 * cpar + 4 * hh, 4)}, v2 offset:{4 * RS * cpar + 16 * hh}")
        for j in range(8):
            A(f"s_waitcnt lgkmcnt({7 - j})")
            A(f"v_cvt_f32_f64 {v(AG + 2 * j)}, {v(A64 + 4 * j, 2)}")
            A(f"v_cvt_f32_f64 {v(AG + 2 * j + 1)}, {v(A64 + 4 * j + 2, 2)}")
        for j in range(8):
            A(f"v_pk_mul_f32 {v(AG + 2 * j, 2)}, {v(AG + 2 * j, 2)}, {s(S_SC, 2)}")
        for j in range(8):
            A(f"v_cvt_pk_bf16_f32 {v(AF + j)}, {v(AG + 2 * j)}, {v(AG + 2 * j + 1)}")
        A("s_waitcnt vmcnt(0)" if extra_lds == 0 else "s_nop 0")
        A("s_nop 0")
        for dt in range(4):
            A(f"v_mfma_f32_16x16x32_bf16 {v(OD + 4 * dt, 4)}, {v(AF, 4)}, {v(WM + 4 * dt, 4)}, 0")
        for dt in range(4):
            A(f"v_mfma_f32_16x16x32_bf16 {v(OD + 4 * dt, 4)}, {v(AF + 4, 4)}, {v(WM + 16 + 4 * dt, 4)}, {v(OD + 4 * dt, 4)}")
        A("s_nop 7")
        for j in range(8):
            A(f"v_cvt_pk_bf16_f32 {v(OP + j)}, {v(OD + 2 * j)}, {v(OD + 2 * j + 1)}")
        ost = opt.get("out_st", "")
        A(f"buffer_store_dwordx4 {v(OP, 4)}, v3, {s(S_OUT, 4)}, {extra_out} offen {ost}")
        A(f"buffer_store_dwordx4 {v(OP + 4, 4)}, v3, {s(S_OUT, 4)}, {extra_out} offen offset:256 {ost}")

    mix(0, 0)
    A(f"s_cmp_ge_u32 {s(S_WAVE)}, 2\ns_cbranch_scc1 K2_FIN\nv_add_u32 v3, {32 * 256 * 512}, v3\nv_add_u32 v2, {32 * NS}, v2")
    mix(32 * NS, 0)
    A("K2_FIN:")
    if opt.get("prof"):
        A("s_waitcnt vmcnt(0)")
        stamp(A, opt, 7)
        stamp_out(A, opt, 8, S_WS, (128 << 20) + (1 << 20), S_WAVE)
    A("K2_END:\ns_endpgm")


def gen_probe(A, name, argoff, flag, base=0):
    kernel_head(A, name)
    if argoff is not None:
        A(f"""
        s_cmp_ge_u32 s2, 256
        s_cbranch_scc1 {name}_END
        s_load_dwordx2 s[4:5], s[0:1], {argoff}
        s_mul_i32 s6, s2, 80000
        s_add_u32 s6, s6, {base}
        v_lshl_add_u32 v1, v0, 4, s6
        v_cmp_gt_u32 vcc, 1000, v0
        s_mov_b64 exec, vcc
        s_waitcnt lgkmcnt(0)
        """)
        for j in range(5):
            A(f"global_load_dwordx4 v[4:7], v1, s[4:5] {flag}\nv_add_u32 v1, 16000, v1")
        A(f"s_waitcnt vmcnt(0)\n{name}_END:")
    A("s_endpgm")


PROBES = {"empty_kernel": (None, ""), "pef_kernel": (32, ""), "pefnt_kernel": (32, "nt"), "pws_kernel": (80, "", 64 << 20), "pwsend_kernel": (80, "", 230 << 20)}


def generate(opt):
    A = Asm()
    out = HEADER
    for p in opt.get("pre", []):
        out += f"; @launch kernel={p} grid=(256,1,1) block=(1024,1,1) lds=0\n"
    out += f"; @launch kernel=sort_kernel grid=(257,1,1) block=(640,1,1) lds={K1_LDS}\n"
    out += f"; @launch kernel={NAME}_kernel grid=(256,1,1) block=(512,1,1) lds={K2_LDS}\n"
    for p in opt.get("post", []):
        out += f"; @launch kernel={p} grid=(256,1,1) block=(1024,1,1) lds=0\n"
    out += '.amdgcn_target "amdgcn-amd-amdhsa--gfx950"\n.text\n'
    probes = sorted(set(opt.get("pre", []) + opt.get("post", [])))
    for p in probes:
        gen_probe(A, p, *PROBES[p])
    gen_k1(A, opt)
    gen_k2(A, opt)
    out += A.text()
    out += '.section .rodata,"a"\n.p2align 6\n'
    out += descriptor("sort_kernel", 48, 96)
    out += ".p2align 6\n"
    out += descriptor(NAME + "_kernel", NVGPR2, 96)
    for p in probes:
        out += ".p2align 6\n" + descriptor(p, 8, 16)
    return out


if __name__ == "__main__":
    opt = eval("dict(" + (sys.argv[2] if len(sys.argv) > 2 else "") + ")")
    path = sys.argv[1] if len(sys.argv) > 1 else f"cdna_kernels/{NAME}.s"
    open(path, "w").write(generate(opt))
```

```python
import sys, struct, math

NAME = "standalone__tensor_product_equiv_tfn__graph"

HEADER = """; Kernarg layout for this problem (88 bytes, ptrs only, base s[0:1]):
"""

CHUNK = 2500
RECSTRIDE = 30080
WS_TAB = 256 * RECSTRIDE
WS_WF = WS_TAB + 256 * 1024

RS = 272
NS = 8 * RS
L_HIST = 0
L_PREF = 1024
L_CTR = 2048
L_LIST = 2304
CAP = 4096
L_ACC = L_LIST + (CAP + 64) * 16
NZ = (40 * NS + 8191) // 8192
K2_LDS = L_ACC + NZ * 8192
K1_LDS = 32768

DPP = "row_mask:0xf bank_mask:0xf"


def fbits(x):
    return "0x%08x" % struct.unpack("<I", struct.pack("<f", x))[0]


class Asm:
    def __init__(self):
        self.lines = []

    def __call__(self, s):
        for ln in s.strip("\n").split("\n"):
            ln = ln.strip()
            if not ln:
                continue
            if ln.endswith(":") or ln.startswith("."):
                self.lines.append(ln)
            else:
                self.lines.append("    " + ln)

    def text(self):
        return "\n".join(self.lines) + "\n"


def v(a, n=1):
    return f"v{a}" if n == 1 else f"v[{a}:{a+n-1}]"


def s(a, n=1):
    return f"s{a}" if n == 1 else f"s[{a}:{a+n-1}]"


def wave_scan(A, regs):
    steps = ["row_shr:1 " + DPP + " bound_ctrl:0", "row_shr:2 " + DPP + " bound_ctrl:0",
             "row_shr:4 " + DPP + " bound_ctrl:0", "row_shr:8 " + DPP + " bound_ctrl:0",
             "row_bcast:15 row_mask:0xa bank_mask:0xf", "row_bcast:31 row_mask:0xc bank_mask:0xf"]
    for st in steps:
        A("s_nop 1")
        for r in regs:
            A(f"v_add_u32_dpp {v(r)}, {v(r)}, {v(r)} {st}")


def kernel_head(A, name):
    A(f".globl {name}\n.p2align 8\n.type {name},@function\n{name}:")


def descriptor(name, vgpr, sgpr):
    acc = (vgpr + 3) // 4 * 4
    return f""".amdhsa_kernel {name}
  .amdhsa_next_free_vgpr {vgpr}
  .amdhsa_next_free_sgpr {sgpr}
  .amdhsa_accum_offset {acc}
  .amdhsa_group_segment_fixed_size 0
  .amdhsa_kernarg_size 88
  .amdhsa_user_sgpr_count 2
  .amdhsa_user_sgpr_kernarg_segment_ptr 1
  .amdhsa_system_sgpr_workgroup_id_x 1
  .amdhsa_float_denorm_mode_32 3
.end_amdhsa_kernel
"""


def stamp(A, opt, slot):
    if opt.get("prof"):
        A(f"s_memrealtime {s(80 + 2 * slot, 2)}")


def stamp_out(A, opt, nslots, wsreg, base, wave_sgpr):
    if opt.get("prof"):
        A("s_waitcnt lgkmcnt(0)")
        A(f"s_lshl_b32 s78, s2, 4\ns_add_u32 s78, s78, {s(wave_sgpr)}\ns_lshl_b32 s78, s78, 5\ns_add_u32 s78, s78, {base}")
        A("s_mov_b64 exec, -1\nv_mov_b32 v1, s78")
        for i in range(nslots):
            A(f"v_mov_b32 v2, {s(80 + 2 * i)}\nglobal_store_dword v1, v2, {s(wsreg, 2)} offset:{4 * i}")


def gen_k1(A, opt):
    ld = opt.get("k1_ld", "")
    st = opt.get("k1_st", "")
    kernel_head(A, "sort_kernel")
    stamp(A, opt, 0)
    if opt.get("diag"):
        A("s_memrealtime s[40:41]")
    A("""
    s_cmp_gt_u32 s2, 256
    s_cbranch_scc1 K1_END
    s_load_dwordx4 s[4:7], s[0:1], 8
    s_load_dwordx2 s[8:9], s[0:1], 24
    s_load_dwordx2 s[10:11], s[0:1], 80
    v_lshrrev_b32 v1, 6, v0
    s_cmp_eq_u32 s2, 256
    v_readfirstlane_b32 s3, v1
    s_cbranch_scc1 K1_PREP
    """)
    A(f"""
    s_mul_i32 s12, s2, {CHUNK * 4}
    s_mul_i32 s13, s2, {CHUNK * 8}
    v_lshl_add_u32 v1, v0, 4, s12
    v_lshl_add_u32 v2, v0, 5, s13
    v_and_b32 v3, 0xff, v0
    v_lshlrev_b32 v3, 2, v3
    v_mov_b32 v4, 0
    ds_write_b32 v3, v4
    v_cmp_gt_u32 vcc, {CHUNK // 4}, v0
    s_mov_b64 s[14:15], vcc
    s_mov_b64 exec, vcc
    s_waitcnt lgkmcnt(0)
    global_load_dwordx4 v[8:11], v1, s[6:7] {ld}
    global_load_dwordx4 v[12:15], v1, s[4:5] {ld}
    global_load_dwordx4 v[16:19], v2, s[8:9] {ld}
    global_load_dwordx4 v[20:23], v2, s[8:9] offset:16 {ld}
    """)
    npre = 0
    if opt.get("k1_touch_x") or opt.get("k1_touch_ef"):
        A("s_load_dwordx2 s[18:19], s[0:1], 0\ns_load_dwordx2 s[20:21], s[0:1], 32\ns_waitcnt lgkmcnt(0)")
    if opt.get("k1_touch_x"):
        A("global_load_dword v40, v2, s[18:19]")
        npre += 1
    if opt.get("k1_touch_ef"):
        A(f"s_mul_i32 s22, s2, {CHUNK * 32}\nv_lshl_add_u32 v41, v0, 7, s22\nglobal_load_dword v41, v41, s[20:21]")
        npre += 1
    A(f"""
    v_mov_b32 v5, 1
    v_lshlrev_b32 v6, 2, v0
    s_barrier
    s_waitcnt vmcnt({3 + npre})
    """)
    for k in range(4):
        A(f"v_lshlrev_b32_sdwa {v(24 + k)}, 2, {v(8 + k)} dst_sel:DWORD dst_unused:UNUSED_PAD src0_sel:DWORD src1_sel:BYTE_0")
    for k in range(4):
        A(f"ds_add_rtn_u32 {v(28 + k)}, {v(24 + k)}, v5")
    A(f"s_waitcnt vmcnt({2 + npre})")
    for k in range(4):
        A(f"""
        v_lshrrev_b32 {v(8 + k)}, 8, {v(8 + k)}
        v_lshl_or_b32 {v(8 + k)}, {v(8 + k)}, 14, {v(12 + k)}
        v_or_b32 v7, {k}, v6
        v_lshl_or_b32 {v(8 + k)}, {v(8 + k)}, 12, v7
        """)
    A("""
    s_mov_b64 exec, -1
    v_and_b32 v3, 63, v0
    v_lshlrev_b32 v3, 4, v3
    s_waitcnt lgkmcnt(0)
    s_barrier
    ds_read_b128 v[32:35], v3
    s_waitcnt lgkmcnt(0)
    v_add_u32 v38, v32, v33
    v_add_u32 v39, v38, v34
    v_add_u32 v4, v39, v35
    v_mov_b32 v36, v4
    """)
    wave_scan(A, [36])
    A(f"""
    v_sub_u32 v36, v36, v4
    v_add_u32 v37, v36, v32
    v_add_u32 v38, v36, v38
    v_add_u32 v39, v36, v39
    ds_write_b128 v3, v[36:39] offset:1024
    s_mov_b64 exec, s[14:15]
    """)
    for k in range(4):
        A(f"ds_read_b32 {v(24 + k)}, {v(24 + k)} offset:1024")
    A(f"""
    s_mov_b64 exec, -1
    s_cmp_lg_u32 s3, 0
    s_cbranch_scc1 K1_NOTAB
    s_lshl_b32 s16, s2, 10
    s_add_u32 s16, s16, {WS_TAB}
    v_add_u32 v3, s16, v3
    v_lshl_or_b32 v32, v32, 16, v36
    v_lshl_or_b32 v33, v33, 16, v37
    v_lshl_or_b32 v34, v34, 16, v38
    v_lshl_or_b32 v35, v35, 16, v39
    global_store_dwordx4 v3, v[32:35], s[10:11] {st}
    K1_NOTAB:
    s_mov_b64 exec, s[14:15]
    s_movk_i32 s17, 2048
    s_waitcnt lgkmcnt(0)
    """)
    for k in range(4):
        A(f"v_add_u32 {v(24 + k)}, {v(24 + k)}, {v(28 + k)}\nv_mad_u32_u24 {v(24 + k)}, {v(24 + k)}, 12, s17")
    for k in range(4):
        A(f"ds_write_b32 {v(24 + k)}, {v(8 + k)} offset:8")
    if npre:
        A(f"s_cmp_lg_u32 s3, 0\ns_cbranch_scc1 K1_W0\ns_waitcnt vmcnt({npre + 1})\ns_branch K1_W1\nK1_W0:\ns_waitcnt vmcnt({npre})\nK1_W1:")
    else:
        A("s_cmp_lg_u32 s3, 0\ns_cbranch_scc1 K1_W0\ns_waitcnt vmcnt(1)\ns_branch K1_W1\nK1_W0:\ns_waitcnt vmcnt(0)\nK1_W1:")
    for k in range(4):
        A(f"ds_write2_b32 {v(24 + k)}, {v(16 + 2 * k)}, {v(17 + 2 * k)} offset0:0 offset1:1")
    A(f"""
    s_mov_b64 exec, -1
    v_lshlrev_b32 v3, 4, v0
    s_mul_i32 s16, s2, {RECSTRIDE}
    v_add_u32 v4, s16, v3
    v_add_u32 v5, 10240, v4
    v_add_u32 v6, 20480, v4
    v_cmp_gt_u32 vcc, {CHUNK * 12 // 16 - 1280}, v0
    s_waitcnt lgkmcnt(0)
    s_barrier
    ds_read_b128 v[8:11], v3 offset:2048
    ds_read_b128 v[12:15], v3 offset:{2048 + 10240}
    ds_read_b128 v[16:19], v3 offset:{2048 + 20480}
    s_waitcnt lgkmcnt(2)
    global_store_dwordx4 v4, v[8:11], s[10:11] {st}
    s_waitcnt lgkmcnt(1)
    global_store_dwordx4 v5, v[12:15], s[10:11] {st}
    s_mov_b64 exec, vcc
    s_waitcnt lgkmcnt(0)
    global_store_dwordx4 v6, v[16:19], s[10:11] {st}
    """)
    if opt.get("diag"):
        A(f"s_lshl_b32 s42, s2, 2\ns_add_u32 s42, s42, {100 << 20}\nv_mov_b32 v1, s42\nv_mov_b32 v2, s40\nglobal_store_dword v1, v2, s[10:11]")
    if opt.get("prof"):
        A("s_waitcnt vmcnt(0)")
        stamp(A, opt, 1)
        stamp_out(A, opt, 2, 10, 128 << 20, 3)
    A("s_endpgm")
    A(f"""
    K1_PREP:
    s_load_dwordx4 s[12:15], s[0:1], 40
    s_load_dwordx2 s[16:17], s[0:1], 56
    v_and_b32 v1, 63, v0
    v_lshlrev_b32 v2, 4, v1
    v_add_u32 v2, {WS_WF}, v2
    s_waitcnt lgkmcnt(0)
    s_cmp_eq_u32 s3, 0
    s_cbranch_scc1 K1_PREP_W
    s_cmp_eq_u32 s3, 1
    s_cbranch_scc1 K1_PREP_CG
    s_sub_u32 s18, s3, 2
    s_lshr_b32 s19, s18, 2
    s_lshl_b32 s19, s19, 7
    s_and_b32 s20, s18, 1
    s_lshl_b32 s20, s20, 1
    s_add_u32 s19, s19, s20
    s_and_b32 s20, s18, 2
    s_lshl_b32 s20, s20, 5
    s_add_u32 s19, s19, s20
    v_lshrrev_b32 v3, 4, v1
    v_lshlrev_b32 v3, 11, v3
    v_and_b32 v4, 15, v1
    v_lshl_add_u32 v3, v4, 2, v3
    v_add_u32 v3, s19, v3
    """)
    for i in range(8):
        A(f"global_load_ushort {v(8 + i)}, v3, s[16:17] offset:{256 * i}")
    A("s_lshl_b32 s18, s18, 10\ns_add_u32 s18, s18, 6144\nv_add_u32 v2, s18, v2\ns_waitcnt vmcnt(0)")
    for j in range(4):
        A(f"v_lshl_or_b32 {v(16 + j)}, {v(9 + 2 * j)}, 16, {v(8 + 2 * j)}")
    A("global_store_dwordx4 v2, v[16:19], s[10:11]\ns_endpgm")
    A("K1_PREP_CG:\nv_and_b32 v3, 3, v1\nv_lshlrev_b32 v3, 1, v3")
    for i in range(16):
        A(f"global_load_ushort {v(8 + i)}, v3, s[14:15] offset:{8 * i}")
    A("v_add_u32 v2, 4096, v2\ns_waitcnt vmcnt(0)")
    for j in range(8):
        A(f"v_lshl_or_b32 {v(24 + j)}, {v(9 + 2 * j)}, 16, {v(8 + 2 * j)}")
    A("global_store_dwordx4 v2, v[24:27], s[10:11]\nglobal_store_dwordx4 v2, v[28:31], s[10:11] offset:1024\ns_endpgm")
    A("""
    K1_PREP_W:
    v_lshrrev_b32 v3, 5, v1
    v_lshlrev_b32 v3, 10, v3
    v_and_b32 v4, 31, v1
    v_lshl_add_u32 v3, v4, 2, v3
    """)
    for i in range(8):
        A(f"global_load_dword {v(8 + i)}, v3, s[12:13] offset:{128 * i}")
    A(f"s_mov_b32 s18, {fbits(-math.log2(math.e))}\ns_waitcnt vmcnt(0)")
    for par in range(2):
        for i in range(8):
            if par == 0:
                A(f"v_lshlrev_b32 {v(16 + i)}, 16, {v(8 + i)}")
            else:
                A(f"v_and_b32 {v(16 + i)}, 0xffff0000, {v(8 + i)}")
            A(f"v_mul_f32 {v(16 + i)}, s18, {v(16 + i)}")
        H = 24 + 8 * par
        for j in range(4):
            A(f"""
            v_cvt_pk_bf16_f32 {v(H + j)}, {v(16 + 2 * j)}, {v(17 + 2 * j)}
            v_lshlrev_b32 v5, 16, {v(H + j)}
            v_and_b32 v6, 0xffff0000, {v(H + j)}
            v_sub_f32 v5, {v(16 + 2 * j)}, v5
            v_sub_f32 v6, {v(17 + 2 * j)}, v6
            v_cvt_pk_bf16_f32 {v(H + 4 + j)}, v5, v6
            """)
    for f in range(4):
        A(f"global_store_dwordx4 v2, {v(24 + 4 * f, 4)}, s[10:11] offset:{1024 * f}")
    A("K1_END:\ns_endpgm")


W = 8
CG = 24
V_LANE16, V_HALF16, V_ACCL, V_LAD, V_LAE, V_LAY, V_ONE, V_DBASE, V_DCNT, V_PBASE, V_K, V_K12, V_CTRA = range(32, 45)
F64 = 48
X = 64
D = (128, 160)
EF = (192, 196)
T = (200, 204)
TF = 208
YR = 216
TP = 220
ACC = 228
E = 236
SE = (240, 242)
KK = (244, 245)
V_EID, V_XA, V_FA, V_YA, V_GRAB, V_MT = 246, 247, 248, 249, 250, 251
NVGPR2 = 252

S_X, S_EF, S_OUT, S_WS = 4, 8, 12, 16
S_BETA, S_WAVE, S_K0, S_WIDE, S_N, S_NT, S_NEXT, S_NN = 18, 19, 20, 21, 22, 23, 24, 25
S_MASK = (26, 27)
S_CMP = 28
S_MORE, S_TMP = 30, 31
S_M1, S_M2 = 32, 48
S_ANY2 = 64
S_C0, S_C1 = 66, 67
S_SC = 68
EFS = 6


def gen_k2(A, opt):
    name = NAME + "_kernel"
    efl = opt.get("ef_ld", "")
    kernel_head(A, name)
    stamp(A, opt, 0)
    if opt.get("diag") == "k2":
        A("s_memrealtime s[76:77]")
    A(f"""
    s_cmp_ge_u32 s2, 256
    s_cbranch_scc1 K2_END
    s_load_dwordx2 {s(S_WS, 2)}, s[0:1], 80
    s_load_dwordx2 {s(S_X, 2)}, s[0:1], 0
    s_load_dwordx2 {s(S_EF, 2)}, s[0:1], 32
    s_load_dwordx2 {s(S_OUT, 2)}, s[0:1], 64
    s_and_b32 {s(S_BETA)}, s2, 7
    s_lshl_b32 {s(S_BETA)}, {s(S_BETA)}, 5
    s_lshr_b32 s3, s2, 3
    s_add_u32 {s(S_BETA)}, {s(S_BETA)}, s3
    v_lshrrev_b32 v1, 6, v0
    v_and_b32 v2, 63, v0
    v_readfirstlane_b32 {s(S_WAVE)}, v1
    v_lshrrev_b32 v3, 4, v0
    v_lshlrev_b32 v3, 3, v3
    v_and_b32 v4, 7, v0
    v_add_u32 v4, v3, v4
    s_lshl_b32 s3, {s(S_BETA)}, 2
    s_add_u32 s3, s3, {WS_TAB}
    v_lshl_add_u32 v5, v4, 10, s3
    v_lshlrev_b32 v6, 4, v2
    v_add_u32 v6, {WS_WF}, v6
    s_waitcnt lgkmcnt(0)
    global_load_dword {v(V_DCNT)}, v5, {s(S_WS, 2)}
    """)
    for f in range(4):
        A(f"global_load_dwordx4 {v(W + 4 * f, 4)}, v6, {s(S_WS, 2)} offset:{1024 * f}")
    A("v_add_u32 v6, 4096, v6")
    for f in range(2):
        A(f"global_load_dwordx4 {v(CG + 4 * f, 4)}, v6, {s(S_WS, 2)} offset:{1024 * f}")
    A(f"""
    s_and_b32 {s(S_X + 1)}, {s(S_X + 1)}, 0xffff
    s_mov_b32 {s(S_X + 2)}, 5120000
    s_mov_b32 {s(S_X + 3)}, 0x20000
    s_and_b32 {s(S_EF + 1)}, {s(S_EF + 1)}, 0xffff
    s_mov_b32 {s(S_EF + 2)}, 20480000
    s_mov_b32 {s(S_EF + 3)}, 0x20000
    s_and_b32 {s(S_OUT + 1)}, {s(S_OUT + 1)}, 0xffff
    s_mov_b32 {s(S_OUT + 2)}, 5120000
    s_mov_b32 {s(S_OUT + 3)}, 0x20000
    s_mov_b32 {s(S_K0)}, 0
    s_mov_b32 {s(S_WIDE)}, 1
    s_mov_b32 {s(S_C0)}, {RECSTRIDE}
    v_mul_lo_u32 {v(V_DBASE)}, v4, {s(S_C0)}
    v_mul_u32_u24 {v(V_PBASE)}, {CHUNK}, v3
    v_and_b32 {v(V_K)}, 15, v0
    v_and_b32 v5, 31, v2
    v_lshrrev_b32 v6, 5, v2
    v_lshlrev_b32 {v(V_LANE16)}, 4, v5
    v_lshlrev_b32 {v(V_HALF16)}, 4, v6
    v_lshlrev_b32 {v(V_ACCL)}, 3, v5
    v_add_u32 {v(V_ACCL)}, {L_ACC}, {v(V_ACCL)}
    v_add_lshl_u32 {v(V_LAD)}, {v(V_K)}, {v(V_HALF16)}, 4
    v_lshrrev_b32 v7, 3, v5
    v_lshlrev_b32 v7, 2, v7
    v_and_or_b32 v7, v5, 3, v7
    v_lshlrev_b32 v7, 4, v7
    v_and_b32 v1, 4, v5
    v_lshl_add_u32 {v(V_LAE)}, v1, 6, v7
    v_lshrrev_b32 v7, 2, v5
    v_add_lshl_u32 {v(V_LAY)}, v7, {v(V_HALF16)}, 4
    v_mov_b32 {v(V_ONE)}, 1
    v_mov_b32 {v(V_CTRA)}, {L_CTR}
    v_mov_b64 v[64:65], 0
    v_mov_b64 v[66:67], 0
    v_lshlrev_b32 v7, 4, v0
    v_add_u32 v7, {L_ACC}, v7
    v_add_u32 v1, 65536, v7
    """)
    for i in range(NZ):
        A(f"ds_write_b128 {'v7' if i < 8 else 'v1'}, v[64:67] offset:{8192 * (i % 8)}")
    A(f"""
    s_waitcnt vmcnt(6)
    v_and_b32 v1, 0xffff, {v(V_DCNT)}
    v_mad_u32_u24 {v(V_DBASE)}, v1, 12, {v(V_DBASE)}
    v_lshrrev_b32 {v(V_DCNT)}, 16, {v(V_DCNT)}
    """)
    stamp(A, opt, 1)
    REC1, REC2, RK1, RK2, HA1, HA2 = 64, 96, 128, 136, 144, 152
    A(f"""
    K2_ROUND:
    v_and_b32 v1, 0xff, v0
    v_lshlrev_b32 v1, 2, v1
    v_mov_b32 v2, 0
    v_mov_b32 v3, 16
    ds_write_b32 v1, v2 offset:{L_HIST}
    ds_write2_b32 {v(V_CTRA)}, v3, v2 offset0:0 offset1:1
    v_add_u32 v4, {s(S_K0)}, {v(V_K)}
    v_mul_u32_u24 {v(V_K12)}, 12, v4
    s_lshl_b32 {s(S_TMP)}, 16, {s(S_WIDE)}
    s_add_u32 {s(S_TMP)}, {s(S_TMP)}, {s(S_K0)}
    v_cmp_lt_u32 {s(S_CMP, 2)}, {s(S_TMP)}, {v(V_DCNT)}
    s_cmp_eq_u32 {s(S_WIDE)}, 1
    s_cselect_b32 {s(S_C1)}, 16, 0x7fffffff
    s_mov_b64 {s(S_ANY2, 2)}, 0
    """)
    for c in range(8):
        A(f"""
        v_add_u32_dpp {v(HA2 + c)}, {v(V_DBASE)}, {v(V_K12)} row_newbcast:{c} {DPP}
        v_sub_u32_dpp v5, {v(V_DCNT)}, v4 row_newbcast:{c} {DPP}
        v_cmp_lt_i32 {s(S_M1 + 2 * c, 2)}, 0, v5
        v_cmp_lt_i32 {s(S_M2 + 2 * c, 2)}, {s(S_C1)}, v5
        """)
    for c in range(8):
        A(f"""
        s_mov_b64 exec, {s(S_M1 + 2 * c, 2)}
        s_or_b64 {s(S_ANY2, 2)}, {s(S_ANY2, 2)}, {s(S_M2 + 2 * c, 2)}
        global_load_dwordx3 {v(REC1 + 4 * c, 3)}, {v(HA2 + c)}, {s(S_WS, 2)}
        """)
    A(f"s_cmp_eq_u64 {s(S_ANY2, 2)}, 0\ns_cbranch_scc1 K2_NOSEC_A")
    for c in range(8):
        A(f"""
        s_mov_b64 exec, {s(S_M2 + 2 * c, 2)}
        s_cbranch_execz K2_SA{c}
        global_load_dwordx3 {v(REC2 + 4 * c, 3)}, {v(HA2 + c)}, {s(S_WS, 2)} offset:192
        K2_SA{c}:
        """)
    A("K2_NOSEC_A:\ns_mov_b64 exec, -1")
    npre = opt.get("xpre", 0)
    if npre:
        A(f"""
        s_lshr_b32 {s(S_TMP)}, s2, 3
        s_mul_i32 {s(S_TMP)}, {s(S_TMP)}, {npre * 128}
        s_add_u32 {s(S_TMP)}, {s(S_TMP)}, {opt.get("xpre_base", 0)}
        v_lshl_add_u32 v5, v0, 7, {s(S_TMP)}
        v_cmp_gt_u32 vcc, {npre}, v0
        s_mov_b64 exec, vcc
        buffer_load_dword v6, v5, {s(S_X, 4)}, 0 offen
        s_mov_b64 exec, -1
        """)
    A(f"""
    s_waitcnt lgkmcnt(0)
    s_barrier
    s_cmp_eq_u64 {s(S_CMP, 2)}, 0
    s_cbranch_scc1 K2_NOMORE
    ds_write_b32 {v(V_CTRA)}, {v(V_ONE)} offset:4
    K2_NOMORE:
    s_mov_b32 {s(S_C0)}, 0x7ffe00
    s_mov_b32 {s(S_C1)}, 0xfc000fff
    s_waitcnt vmcnt({1 if npre else 0})
    """)
    stamp(A, opt, 2)

    def hist(rec, rk, ha, c):
        A(f"""
        v_lshlrev_b32_sdwa {v(ha + c)}, 2, {v(rec + 4 * c + 2)} dst_sel:DWORD dst_unused:UNUSED_PAD src0_sel:DWORD src1_sel:BYTE_3
        v_and_b32 {v(rec + 4 * c + 3)}, {s(S_C1)}, {v(rec + 4 * c + 2)}
        ds_add_rtn_u32 {v(rk + c)}, {v(ha + c)}, {v(V_ONE)} offset:{L_HIST}
        v_lshrrev_b32 {v(rec + 4 * c + 2)}, 3, {v(rec + 4 * c + 2)}
        v_and_b32 {v(rec + 4 * c + 2)}, {s(S_C0)}, {v(rec + 4 * c + 2)}
        s_movk_i32 {s(S_TMP)}, {c * CHUNK}
        v_add3_u32 {v(rec + 4 * c + 3)}, {v(rec + 4 * c + 3)}, {v(V_PBASE)}, {s(S_TMP)}
        """)

    for c in range(8):
        A(f"s_mov_b64 exec, {s(S_M1 + 2 * c, 2)}")
        hist(REC1, RK1, HA1, c)
    A(f"s_cmp_eq_u64 {s(S_ANY2, 2)}, 0\ns_cbranch_scc1 K2_NOSEC_B")
    for c in range(8):
        A(f"s_mov_b64 exec, {s(S_M2 + 2 * c, 2)}\ns_cbranch_execz K2_SB{c}")
        hist(REC2, RK2, HA2, c)
        A(f"K2_SB{c}:")
    order = opt.get("order", [0, 1, 2, 3])
    A(f"""
    K2_NOSEC_B:
    s_mov_b64 exec, -1
    v_and_b32 v1, 63, v0
    v_lshlrev_b32 v1, 4, v1
    s_waitcnt lgkmcnt(0)
    s_barrier
    ds_read_b128 v[160:163], v1 offset:{L_HIST}
    ds_read_b32 v2, {v(V_CTRA)} offset:4
    s_waitcnt lgkmcnt(0)
    v_readfirstlane_b32 {s(S_MORE)}, v2
    v_lshl_or_b32 v164, {v(160 + order[1])}, 16, {v(160 + order[0])}
    v_lshl_or_b32 v165, {v(160 + order[3])}, 16, {v(160 + order[2])}
    v_mov_b32 v166, v164
    v_mov_b32 v167, v165
    """)
    wave_scan(A, [166, 167])
    A(f"""
    s_nop 0
    v_readlane_b32 s70, v166, 63
    v_readlane_b32 s71, v167, 63
    v_sub_u32 v166, v166, v164
    v_sub_u32 v167, v167, v165
    s_and_b32 s72, s70, 0xffff
    s_lshr_b32 s73, s70, 16
    s_add_u32 s73, s73, s72
    s_and_b32 s74, s71, 0xffff
    s_add_u32 s74, s74, s73
    s_lshr_b32 {s(S_N)}, s71, 16
    s_add_u32 {s(S_N)}, {s(S_N)}, s74
    s_cmp_le_u32 {s(S_N)}, {CAP}
    s_cbranch_scc1 K2_FITS
    s_mov_b32 {s(S_WIDE)}, 0
    s_barrier
    s_branch K2_ROUND
    K2_FITS:
    v_and_b32 {v(160 + order[0])}, 0xffff, v166
    v_lshrrev_b32 v166, 16, v166
    v_add_u32 {v(160 + order[1])}, s72, v166
    v_and_b32 v166, 0xffff, v167
    v_add_u32 {v(160 + order[2])}, s73, v166
    v_lshrrev_b32 v167, 16, v167
    v_add_u32 {v(160 + order[3])}, s74, v167
    ds_write_b128 v1, v[160:163] offset:{L_PREF}
    s_add_u32 {s(S_NT)}, {s(S_N)}, 31
    s_lshr_b32 {s(S_NT)}, {s(S_NT)}, 5
    s_lshl_b32 {s(S_TMP)}, {s(S_N)}, 4
    v_add_u32 v1, {s(S_TMP)}, v1
    v_mov_b64 v[164:165], 0
    v_mov_b32 v166, 0x80000000
    v_mov_b32 v167, 0xfffff
    """)
    for c in range(8):
        A(f"s_mov_b64 exec, {s(S_M1 + 2 * c, 2)}\nds_read_b32 {v(HA1 + c)}, {v(HA1 + c)} offset:{L_PREF}")
    A(f"s_mov_b64 exec, -1\nds_write_b128 v1, v[164:167] offset:{L_LIST}\ns_waitcnt lgkmcnt(1)")
    for c in range(8):
        A(f"""
        s_mov_b64 exec, {s(S_M1 + 2 * c, 2)}
        v_add_lshl_u32 {v(HA1 + c)}, {v(HA1 + c)}, {v(RK1 + c)}, 4
        ds_write_b128 {v(HA1 + c)}, {v(REC1 + 4 * c, 4)} offset:{L_LIST}
        """)
    A(f"s_cmp_eq_u64 {s(S_ANY2, 2)}, 0\ns_cbranch_scc1 K2_NOSEC_C")
    for c in range(8):
        A(f"""
        s_mov_b64 exec, {s(S_M2 + 2 * c, 2)}
        s_cbranch_execz K2_SC{c}
        ds_read_b32 {v(HA2 + c)}, {v(HA2 + c)} offset:{L_PREF}
        s_waitcnt lgkmcnt(0)
        v_add_lshl_u32 {v(HA2 + c)}, {v(HA2 + c)}, {v(RK2 + c)}, 4
        ds_write_b128 {v(HA2 + c)}, {v(REC2 + 4 * c, 4)} offset:{L_LIST}
        K2_SC{c}:
        """)
    A(f"""
    K2_NOSEC_C:
    s_mov_b64 exec, -1
    s_add_u32 {s(S_NEXT)}, {s(S_WAVE)}, 8
    s_min_u32 {s(S_NEXT)}, {s(S_NEXT)}, {s(S_NT)}
    s_lshl_b32 s70, {s(S_WAVE)}, 9
    s_lshl_b32 s71, {s(S_NEXT)}, 9
    v_add_u32 v1, s70, {v(V_LAD)}
    v_add_u32 v2, s70, {v(V_LAE)}
    v_add_u32 v3, s70, {v(V_LAY)}
    v_add_u32 v4, s71, {v(V_LAD)}
    v_add_u32 v5, s71, {v(V_LAE)}
    v_add_u32 {v(V_YA)}, s71, {v(V_LAY)}
    s_movk_i32 {s(S_C0)}, {NS}
    s_waitcnt lgkmcnt(0)
    s_barrier
    """)
    stamp(A, opt, 3)
    if opt.get("diag") == "sorted":
        A("s_memrealtime s[76:77]")
    A(f"""
    s_cmp_ge_u32 {s(S_WAVE)}, {s(S_NT)}
    s_cbranch_scc1 K2_MAIN_DONE
    ds_read_b32 v2, v2 offset:{L_LIST + 12}
    ds_read_b64 {v(SE[0], 2)}, v1 offset:{L_LIST + 8}
    ds_read_b32 {v(V_EID)}, v5 offset:{L_LIST + 12}
    ds_read_b64 {v(YR, 2)}, v3 offset:{L_LIST}
    ds_read_b64 {v(YR + 2, 2)}, v3 offset:{L_LIST + 128}
    ds_read_b64 {v(SE[1], 2)}, v4 offset:{L_LIST + 8}
    s_waitcnt lgkmcnt(5)
    v_mad_u32_u24 v2, v2, 32, {v(V_HALF16)}
    buffer_load_dwordx4 {v(EF[0], 4)}, v2, {s(S_EF, 4)}, 0 offen {efl}
    s_waitcnt lgkmcnt(3)
    v_mad_u32_u24 {v(V_EID)}, {v(V_EID)}, 32, {v(V_HALF16)}
    """)

    def xload(se, r):
        A(f"v_add_u32_dpp {v(V_XA)}, {v(se)}, {v(V_LANE16)} row_newbcast:{r} {DPP}")
        A(f"buffer_load_dwordx4 {v(X + 4 * r, 4)}, {v(V_XA)}, {s(S_X, 4)}, 0 offen")

    def dot_ops():
        ops = []
        for half in range(2):
            for i in range(4):
                ops.append(f"v_dot2_f32_bf16 {v(TF + 4 * half + i)}, {v(YR + 2 * half)}, {v(CG + 2 * i)}, 0")
            for i in range(4):
                ops.append(f"v_dot2_f32_bf16 {v(TF + 4 * half + i)}, {v(YR + 2 * half + 1)}, {v(CG + 2 * i + 1)}, {v(TF + 4 * half + i)}")
        return ops

    def cvt_ops(t):
        return [f"v_cvt_pk_bf16_f32 {v(t + j)}, {v(TF + 2 * j)}, {v(TF + 2 * j + 1)}" for j in range(4)]

    def key_ops(se, kk):
        return [f"v_lshrrev_b32 {v(kk)}, 26, {v(se + 1)}",
                f"v_mul_u32_u24 {v(kk)}, {s(S_C0)}, {v(kk)}",
                f"v_xor_b32_dpp {v(V_MT)}, {v(kk)}, {v(kk)} row_shl:1 {DPP} bound_ctrl:0",
                f"v_cmp_ne_u32 {s(S_CMP, 2)}, 0, {v(V_MT)}"]

    def m32_ops(ef, d):
        return [f"v_mfma_f32_32x32x16_bf16 {v(d, 16)}, {v(ef, 4)}, {v(W, 4)}, 0",
                f"v_mfma_f32_32x32x16_bf16 {v(d, 16)}, {v(ef, 4)}, {v(W + 4, 4)}, {v(d, 16)}",
                f"v_mfma_f32_32x32x16_bf16 {v(d + 16, 16)}, {v(ef, 4)}, {v(W + 8, 4)}, 0",
                f"v_mfma_f32_32x32x16_bf16 {v(d + 16, 16)}, {v(ef, 4)}, {v(W + 12, 4)}, {v(d + 16, 16)}"]

    def exp_ops(d, q):
        return [f"v_exp_f32 {v(E)}, {v(d + q)}", f"v_exp_f32 {v(E + 1)}, {v(d + q + 1)}",
                f"v_exp_f32 {v(E + 2)}, {v(d + 16 + q)}", f"v_exp_f32 {v(E + 3)}, {v(d + 16 + q + 1)}"]

    add_ops = [f"v_pk_add_f32 {v(E, 2)}, {v(E, 2)}, 1.0 op_sel_hi:[1,0]",
               f"v_pk_add_f32 {v(E + 2, 2)}, {v(E + 2, 2)}, 1.0 op_sel_hi:[1,0]"]
    rcp_ops = [f"v_rcp_f32 {v(E + j)}, {v(E + j)}" for j in range(4)]

    def mul_ops(d, q):
        return [f"v_pk_mul_f32 {v(d + q, 2)}, {v(d + q, 2)}, {v(E, 2)}",
                f"v_pk_mul_f32 {v(d + 16 + q, 2)}, {v(d + 16 + q, 2)}, {v(E + 2, 2)}"]

    for r in range(16):
        xload(SE[0], r)
        if r == EFS:
            A(f"buffer_load_dwordx4 {v(EF[1], 4)}, {v(V_EID)}, {s(S_EF, 4)}, 0 offen {efl}")
    A("s_waitcnt lgkmcnt(0)")
    ko = key_ops(SE[0], KK[0])
    A(ko[0] + "\n" + ko[1])
    for op in dot_ops():
        A(op)
    A(ko[2] + "\n" + ko[3])
    A(f"ds_read_b64 {v(YR, 2)}, {v(V_YA)} offset:{L_LIST}\nds_read_b64 {v(YR + 2, 2)}, {v(V_YA)} offset:{L_LIST + 128}")
    A("s_nop 0")
    for op in cvt_ops(T[0]):
        A(op)
    A(f"s_or_b32 {s(S_MASK[0])}, {s(S_CMP)}, {s(S_CMP + 1)}")
    for j in range(4):
        A(f"v_mov_b64 {v(ACC + 2 * j, 2)}, 0")
    A(f"v_mov_b32 {v(KK[1])}, 0")
    A("s_waitcnt vmcnt(17)")
    for op in m32_ops(EF[0], D[0]):
        A(op)
    A("s_nop 11")
    for op in exp_ops(D[0], 0):
        A(op)
    A("s_nop 0")
    for op in add_ops + rcp_ops:
        A(op)
    A("s_nop 0")
    for op in mul_ops(D[0], 0):
        A(op)
    A("s_waitcnt lgkmcnt(0)")
    stamp(A, opt, 4)

    def flush(a, r):
        A(f"v_add_u32_dpp {v(V_FA)}, {v(KK[a])}, {v(V_ACCL)} row_newbcast:{r} {DPP}")
        for j in range(8):
            A(f"v_cvt_f64_f32 {v(F64 + 2 * j, 2)}, {v(ACC + j)}")
            A(f"ds_add_f64 {v(V_FA)}, {v(F64 + 2 * j, 2)} offset:{RS * j}")

    def acc_ops(a, r, first):
        ops = []
        for j in range(4):
            rr = D[a] + 16 * (j // 2) + (r & ~1)
            o = r & 1
            if first:
                ops.append(f"v_pk_mul_f32 {v(ACC + 2 * j, 2)}, {v(rr, 2)}, {v(TP + 2 * j, 2)} op_sel:[{o},0] op_sel_hi:[{o},1]")
            else:
                ops.append(f"v_pk_fma_f32 {v(ACC + 2 * j, 2)}, {v(rr, 2)}, {v(TP + 2 * j, 2)}, {v(ACC + 2 * j, 2)} op_sel:[{o},0,0] op_sel_hi:[{o},1,1]")
        return ops

    A(".p2align 6")
    for a in range(2):
        b = 1 - a
        A(f"K2_LOOP{a}:")
        dots = dot_ops()
        fill = {9: [key_ops(SE[b], KK[b])[0], key_ops(SE[b], KK[b])[1]],
                10: cvt_ops(T[b])[0:2],
                11: [key_ops(SE[b], KK[b])[2], key_ops(SE[b], KK[b])[3]],
                12: cvt_ops(T[b])[2:4]}
        m32 = dict(zip((9, 10, 11, 12), m32_ops(EF[b], D[b])))
        for r in range(16):
            tr = T[a] + (2 if r >= 8 else 0)
            m4 = [f"v_mfma_f32_4x4x4_16b_bf16 {v(TP + 4 * h, 4)}, {v(tr, 2)}, {v(X + 4 * r + 2 * h, 2)}, 0 cbsz:3 abid:{r % 8}" for h in range(2)]
            q = (r & ~1) + 2
            dq, qq = (D[a], q) if q < 16 else (D[b], 0)
            trans = exp_ops(dq, qq) if r % 2 == 0 else rcp_ops
            side = add_ops if r % 2 == 0 else mul_ops(dq, qq)
            if r in m32:
                A(m32[r])
                A(trans[0] + "\n" + trans[1] + "\n" + trans[2])
                A("s_waitcnt vmcnt(16)")
                A(m4[0] + "\n" + trans[3] + "\n" + m4[1])
            else:
                A("s_waitcnt vmcnt(16)")
                A(m4[0] + "\n" + trans[0] + "\n" + m4[1] + "\n" + trans[1] + "\n" + trans[2] + "\n" + trans[3])
            xload(SE[b], r)
            for op in fill.get(r, []):
                A(op)
            if r == 2:
                A(f"s_mov_b64 exec, 1\nds_add_rtn_u32 {v(V_GRAB)}, {v(V_CTRA)}, {v(V_ONE)}\ns_mov_b64 exec, -1")
            if r == 4:
                A(f"""
                s_waitcnt lgkmcnt(0)
                v_readfirstlane_b32 {s(S_NN)}, {v(V_GRAB)}
                """)
            if r == EFS:
                A(f"""
                s_waitcnt lgkmcnt(0)
                v_mad_u32_u24 {v(V_EID)}, {v(V_EID)}, 32, {v(V_HALF16)}
                buffer_load_dwordx4 {v(EF[a], 4)}, {v(V_EID)}, {s(S_EF, 4)}, 0 offen {efl}
                """)
            if r == 0:
                flush(b, 15)
            for op in side:
                A(op)
            if r > 0:
                A(f"s_bitcmp1_b32 {s(S_MASK[a])}, {r - 1}\ns_cbranch_scc1 K2_F{a}_{r}")
            for op in acc_ops(a, r, r == 0):
                A(op)
            if r > 0:
                A(f"K2_R{a}_{r}:")
            if r < 8:
                A(dots[2 * r] + "\n" + dots[2 * r + 1])
            if r == 4:
                A(f"""
                s_min_u32 {s(S_NN)}, {s(S_NN)}, {s(S_NT)}
                s_lshl_b32 {s(S_TMP)}, {s(S_NN)}, 9
                v_add_u32 {v(V_EID)}, {s(S_TMP)}, {v(V_LAE)}
                v_add_u32 {v(V_MT)}, {s(S_TMP)}, {v(V_LAD)}
                v_add_u32 {v(V_YA)}, {s(S_TMP)}, {v(V_LAY)}
                ds_read_b32 {v(V_EID)}, {v(V_EID)} offset:{L_LIST + 12}
                ds_read_b64 {v(SE[a], 2)}, {v(V_MT)} offset:{L_LIST + 8}
                """)
            if r == 8:
                A(f"ds_read_b64 {v(YR, 2)}, {v(V_YA)} offset:{L_LIST}\nds_read_b64 {v(YR + 2, 2)}, {v(V_YA)} offset:{L_LIST + 128}")
            if r == 13:
                A(f"s_or_b32 {s(S_MASK[b])}, {s(S_CMP)}, {s(S_CMP + 1)}")
            if r == 14:
                A("s_waitcnt lgkmcnt(0)")
        A(f"""
        s_cmp_ge_u32 {s(S_NEXT)}, {s(S_NT)}
        s_mov_b32 {s(S_NEXT)}, {s(S_NN)}
        """)
        if a == 0:
            A("s_cbranch_scc1 K2_EXIT0")
        else:
            A("s_cbranch_scc0 K2_LOOP0")
            flush(1, 15)
            A("s_branch K2_MAIN_DONE")
    for a in range(2):
        for r in range(1, 16):
            A(f"K2_F{a}_{r}:")
            flush(a, r - 1)
            for op in acc_ops(a, r, True):
                A(op)
            A(f"s_branch K2_R{a}_{r}")
    A("K2_EXIT0:")
    flush(0, 15)
    WM = 128
    A("K2_MAIN_DONE:")
    stamp(A, opt, 5)
    A(f"""
    s_cmp_eq_u32 {s(S_MORE)}, 0
    s_cbranch_scc1 K2_EPI
    s_lshl_b32 {s(S_TMP)}, 16, {s(S_WIDE)}
    s_add_u32 {s(S_K0)}, {s(S_K0)}, {s(S_TMP)}
    s_waitcnt vmcnt(0) lgkmcnt(0)
    s_barrier
    s_branch K2_ROUND
    K2_EPI:
    v_and_b32 v1, 63, v0
    v_lshlrev_b32 v2, 4, v1
    v_add_u32 v2, {WS_WF + 6144}, v2
    v_add_u32 v3, 4096, v2
    s_nop 7
    """)
    for f in range(8):
        A(f"global_load_dwordx4 {v(WM + 4 * f, 4)}, {'v2' if f < 4 else 'v3'}, {s(S_WS, 2)} offset:{1024 * (f % 4)}")
    A(f"""
    v_bfe_u32 v2, v1, 2, 2
    v_mul_u32_u24 v2, {NS}, v2
    v_and_b32 v3, 3, v1
    v_mul_u32_u24 v3, {RS}, v3
    v_lshrrev_b32 v4, 4, v1
    v_lshlrev_b32 v5, 6, v4
    v_add3_u32 v2, v2, v3, v5
    s_mul_i32 s70, {s(S_WAVE)}, {4 * NS}
    s_add_u32 s70, s70, {L_ACC}
    v_add_u32 v2, s70, v2
    v_and_b32 v3, 15, v1
    v_lshlrev_b32 v3, 4, v3
    v_lshl_add_u32 v3, v4, 17, v3
    s_lshl_b32 s70, {s(S_WAVE)}, 19
    s_lshl_b32 s71, {s(S_BETA)}, 9
    s_add_u32 s70, s70, s71
    v_add_u32 v3, s70, v3
    s_mov_b32 {s(S_SC)}, {fbits(-math.log(2.0))}
    s_mov_b32 {s(S_SC + 1)}, {fbits(-math.log(2.0))}
    s_waitcnt lgkmcnt(0)
    s_barrier
    """)
    stamp(A, opt, 6)
    AG, AF, OD, OP, A64 = 160, 176, 184, 200, 8

    def mix(extra_lds, extra_out):
        for cpar in range(2):
            for hh in range(4):
                A(f"ds_read_b128 {v(A64 + 16 * cpar + 4 * hh, 4)}, v2 offset:{4 * RS * cpar + 16 * hh}")
        for j in range(8):
            A(f"s_waitcnt lgkmcnt({7 - j})")
            A(f"v_cvt_f32_f64 {v(AG + 2 * j)}, {v(A64 + 4 * j, 2)}")
            A(f"v_cvt_f32_f64 {v(AG + 2 * j + 1)}, {v(A64 + 4 * j + 2, 2)}")
        for j in range(8):
            A(f"v_pk_mul_f32 {v(AG + 2 * j, 2)}, {v(AG + 2 * j, 2)}, {s(S_SC, 2)}")
        for j in range(8):
            A(f"v_cvt_pk_bf16_f32 {v(AF + j)}, {v(AG + 2 * j)}, {v(AG + 2 * j + 1)}")
        A("s_waitcnt vmcnt(0)" if extra_lds == 0 else "s_nop 0")
        A("s_nop 0")
        for dt in range(4):
            A(f"v_mfma_f32_16x16x32_bf16 {v(OD + 4 * dt, 4)}, {v(AF, 4)}, {v(WM + 4 * dt, 4)}, 0")
        for dt in range(4):
            A(f"v_mfma_f32_16x16x32_bf16 {v(OD + 4 * dt, 4)}, {v(AF + 4, 4)}, {v(WM + 16 + 4 * dt, 4)}, {v(OD + 4 * dt, 4)}")
        A("s_nop 7")
        for j in range(8):
            A(f"v_cvt_pk_bf16_f32 {v(OP + j)}, {v(OD + 2 * j)}, {v(OD + 2 * j + 1)}")
        ost = opt.get("out_st", "")
        A(f"buffer_store_dwordx4 {v(OP, 4)}, v3, {s(S_OUT, 4)}, {extra_out} offen {ost}")
        A(f"buffer_store_dwordx4 {v(OP + 4, 4)}, v3, {s(S_OUT, 4)}, {extra_out} offen offset:256 {ost}")

    mix(0, 0)
    A(f"s_cmp_ge_u32 {s(S_WAVE)}, 2\ns_cbranch_scc1 K2_FIN\nv_add_u32 v3, {32 * 256 * 512}, v3\nv_add_u32 v2, {32 * NS}, v2")
    mix(32 * NS, 0)
    A("K2_FIN:")
    if opt.get("diag"):
        if opt["diag"] == "k1":
            A(f"s_lshl_b32 s76, s2, 2\ns_add_u32 s76, s76, {100 << 20}\ns_load_dword s76, {s(S_WS, 2)}, s76")
        A("""
        s_waitcnt lgkmcnt(0)
        K2_SPIN:
        s_memrealtime s[74:75]
        s_waitcnt lgkmcnt(0)
        s_sub_u32 s74, s74, s76
        s_cmp_lt_u32 s74, 10000
        s_cbranch_scc1 K2_SPIN
        """)
    if opt.get("prof"):
        A("s_waitcnt vmcnt(0)")
        stamp(A, opt, 7)
        stamp_out(A, opt, 8, S_WS, (128 << 20) + (1 << 20), S_WAVE)
    A("K2_END:\ns_endpgm")


def gen_probe(A, name, argoff, flag, base=0):
    kernel_head(A, name)
    if argoff is not None:
        A(f"""
        s_cmp_ge_u32 s2, 256
        s_cbranch_scc1 {name}_END
        s_load_dwordx2 s[4:5], s[0:1], {argoff}
        s_mul_i32 s6, s2, 80000
        s_add_u32 s6, s6, {base}
        v_lshl_add_u32 v1, v0, 4, s6
        v_cmp_gt_u32 vcc, 1000, v0
        s_mov_b64 exec, vcc
        s_waitcnt lgkmcnt(0)
        """)
        for j in range(5):
            A(f"global_load_dwordx4 v[4:7], v1, s[4:5] {flag}\nv_add_u32 v1, 16000, v1")
        A(f"s_waitcnt vmcnt(0)\n{name}_END:")
    A("s_endpgm")


PROBES = {"empty_kernel": (None, ""), "pef_kernel": (32, ""), "pefnt_kernel": (32, "nt"), "pws_kernel": (80, "", 64 << 20), "pwsend_kernel": (80, "", 230 << 20)}


def generate(opt):
    A = Asm()
    out = HEADER
    for p in opt.get("pre", []):
        out += f"; @launch kernel={p} grid=(256,1,1) block=(1024,1,1) lds=0\n"
    out += f"; @launch kernel=sort_kernel grid=(257,1,1) block=(640,1,1) lds={K1_LDS}\n"
    out += f"; @launch kernel={NAME}_kernel grid=(256,1,1) block=(512,1,1) lds={K2_LDS}\n"
    for p in opt.get("post", []):
        out += f"; @launch kernel={p} grid=(256,1,1) block=(1024,1,1) lds=0\n"
    out += '.amdgcn_target "amdgcn-amd-amdhsa--gfx950"\n.text\n'
    probes = sorted(set(opt.get("pre", []) + opt.get("post", [])))
    for p in probes:
        gen_probe(A, p, *PROBES[p])
    gen_k1(A, opt)
    gen_k2(A, opt)
    out += A.text()
    out += '.section .rodata,"a"\n.p2align 6\n'
    out += descriptor("sort_kernel", 48, 96)
    out += ".p2align 6\n"
    out += descriptor(NAME + "_kernel", NVGPR2, 96)
    for p in probes:
        out += ".p2align 6\n" + descriptor(p, 8, 16)
    return out


if __name__ == "__main__":
    opt = eval("dict(" + (sys.argv[2] if len(sys.argv) > 2 else "") + ")")
    path = sys.argv[1] if len(sys.argv) > 1 else f"cdna_kernels/{NAME}.s"
    open(path, "w").write(generate(opt))
```

```python
import sys, struct, math

NAME = "standalone__tensor_product_equiv_tfn__graph"

HEADER = """; Kernarg layout for this problem (88 bytes, ptrs only, base s[0:1]):
"""

CHUNK = 2500
RECSTRIDE = 30080
WS_TAB = 256 * RECSTRIDE
WS_WF = WS_TAB + 256 * 1024

RS = 272
NS = 8 * RS
L_HIST = 0
L_PREF = 1024
L_CTR = 2048
CAP = 4096
L_SRC = 2304
L_EID = L_SRC + (CAP + 64) * 4
L_Y = L_EID + (CAP + 64) * 4
L_ACC = L_Y + (CAP + 64) * 8
K2_LDS = L_ACC + 41 * NS
K1_LDS = 32768

DPP = "row_mask:0xf bank_mask:0xf"


def fbits(x):
    return "0x%08x" % struct.unpack("<I", struct.pack("<f", x))[0]


class Asm:
    def __init__(self):
        self.lines = []

    def __call__(self, s):
        for ln in s.strip("\n").split("\n"):
            ln = ln.strip()
            if not ln:
                continue
            if ln.endswith(":") or ln.startswith("."):
                self.lines.append(ln)
            else:
                self.lines.append("    " + ln)

    def text(self):
        return "\n".join(self.lines) + "\n"


def v(a, n=1):
    return f"v{a}" if n == 1 else f"v[{a}:{a+n-1}]"


def s(a, n=1):
    return f"s{a}" if n == 1 else f"s[{a}:{a+n-1}]"


def wave_scan(A, regs):
    steps = ["row_shr:1 " + DPP + " bound_ctrl:0", "row_shr:2 " + DPP + " bound_ctrl:0",
             "row_shr:4 " + DPP + " bound_ctrl:0", "row_shr:8 " + DPP + " bound_ctrl:0",
             "row_bcast:15 row_mask:0xa bank_mask:0xf", "row_bcast:31 row_mask:0xc bank_mask:0xf"]
    for st in steps:
        A("s_nop 1")
        for r in regs:
            A(f"v_add_u32_dpp {v(r)}, {v(r)}, {v(r)} {st}")


def kernel_head(A, name):
    A(f".globl {name}\n.p2align 8\n.type {name},@function\n{name}:")


def descriptor(name, vgpr, sgpr):
    acc = (vgpr + 3) // 4 * 4
    return f""".amdhsa_kernel {name}
  .amdhsa_next_free_vgpr {vgpr}
  .amdhsa_next_free_sgpr {sgpr}
  .amdhsa_accum_offset {acc}
  .amdhsa_group_segment_fixed_size 0
  .amdhsa_kernarg_size 88
  .amdhsa_user_sgpr_count 2
  .amdhsa_user_sgpr_kernarg_segment_ptr 1
  .amdhsa_system_sgpr_workgroup_id_x 1
  .amdhsa_float_denorm_mode_32 3
.end_amdhsa_kernel
"""


def stamp(A, opt, slot):
    if opt.get("prof"):
        A(f"{'s_memtime' if opt['prof'] == 'clk' else 's_memrealtime'} {s(80 + 2 * slot, 2)}")
        if opt["prof"] == "both" and slot in (3, 5):
            A(f"s_waitcnt lgkmcnt(0)\ns_memtime {s(80 + (slot - 1), 2)}")


def stamp_out(A, opt, nslots, wsreg, base, wave_sgpr):
    if opt.get("prof"):
        A("s_waitcnt lgkmcnt(0)")
        A(f"s_lshl_b32 s78, s2, 4\ns_add_u32 s78, s78, {s(wave_sgpr)}\ns_lshl_b32 s78, s78, 5\ns_add_u32 s78, s78, {base}")
        A("s_mov_b64 exec, -1\nv_mov_b32 v1, s78")
        for i in range(nslots):
            A(f"v_mov_b32 v2, {s(80 + 2 * i)}\nglobal_store_dword v1, v2, {s(wsreg, 2)} offset:{4 * i}")


def gen_k1(A, opt):
    ld = opt.get("k1_ld", "")
    st = opt.get("k1_st", "")
    kernel_head(A, "sort_kernel")
    stamp(A, opt, 0)
    if opt.get("diag"):
        A("s_memrealtime s[40:41]")
    A("""
    s_cmp_gt_u32 s2, 256
    s_cbranch_scc1 K1_END
    s_load_dwordx4 s[4:7], s[0:1], 8
    s_load_dwordx2 s[8:9], s[0:1], 24
    s_load_dwordx2 s[10:11], s[0:1], 80
    v_lshrrev_b32 v1, 6, v0
    s_cmp_eq_u32 s2, 256
    v_readfirstlane_b32 s3, v1
    s_cbranch_scc1 K1_PREP
    """)
    A(f"""
    s_mul_i32 s12, s2, {CHUNK * 4}
    s_mul_i32 s13, s2, {CHUNK * 8}
    v_lshl_add_u32 v1, v0, 4, s12
    v_lshl_add_u32 v2, v0, 5, s13
    v_and_b32 v3, 0xff, v0
    v_lshlrev_b32 v3, 2, v3
    v_mov_b32 v4, 0
    ds_write_b32 v3, v4
    v_cmp_gt_u32 vcc, {CHUNK // 4}, v0
    s_mov_b64 s[14:15], vcc
    s_mov_b64 exec, vcc
    s_waitcnt lgkmcnt(0)
    global_load_dwordx4 v[8:11], v1, s[6:7] {ld}
    global_load_dwordx4 v[12:15], v1, s[4:5] {ld}
    global_load_dwordx4 v[16:19], v2, s[8:9] {ld}
    global_load_dwordx4 v[20:23], v2, s[8:9] offset:16 {ld}
    """)
    npre = 0
    if opt.get("k1_touch_x") or opt.get("k1_touch_ef"):
        A("s_load_dwordx2 s[18:19], s[0:1], 0\ns_load_dwordx2 s[20:21], s[0:1], 32\ns_waitcnt lgkmcnt(0)")
    if opt.get("k1_touch_x"):
        A("global_load_dword v40, v2, s[18:19]")
        npre += 1
    if opt.get("k1_touch_ef"):
        A(f"s_mul_i32 s22, s2, {CHUNK * 32}\nv_lshl_add_u32 v41, v0, 7, s22\nglobal_load_dword v41, v41, s[20:21]")
        npre += 1
    A(f"""
    v_mov_b32 v5, 1
    v_lshlrev_b32 v6, 2, v0
    v_add_u32 v6, 4096, v6
    s_barrier
    s_waitcnt vmcnt({3 + npre})
    """)
    for k in range(4):
        A(f"v_lshlrev_b32_sdwa {v(24 + k)}, 2, {v(8 + k)} dst_sel:DWORD dst_unused:UNUSED_PAD src0_sel:DWORD src1_sel:BYTE_0")
    for k in range(4):
        A(f"ds_add_rtn_u32 {v(28 + k)}, {v(24 + k)}, v5")
    A(f"s_waitcnt vmcnt({2 + npre})")
    for k in range(4):
        A(f"""
        v_lshrrev_b32 {v(8 + k)}, 8, {v(8 + k)}
        v_lshl_or_b32 {v(8 + k)}, {v(8 + k)}, 14, {v(12 + k)}
        v_or_b32 v7, {k}, v6
        v_lshl_add_u32 {v(8 + k)}, {v(8 + k)}, 12, v7
        """)
    A("""
    s_mov_b64 exec, -1
    v_and_b32 v3, 63, v0
    v_lshlrev_b32 v3, 4, v3
    s_waitcnt lgkmcnt(0)
    s_barrier
    ds_read_b128 v[32:35], v3
    s_waitcnt lgkmcnt(0)
    v_add_u32 v38, v32, v33
    v_add_u32 v39, v38, v34
    v_add_u32 v4, v39, v35
    v_mov_b32 v36, v4
    """)
    wave_scan(A, [36])
    A(f"""
    v_sub_u32 v36, v36, v4
    v_add_u32 v37, v36, v32
    v_add_u32 v38, v36, v38
    v_add_u32 v39, v36, v39
    ds_write_b128 v3, v[36:39] offset:1024
    s_mov_b64 exec, s[14:15]
    """)
    for k in range(4):
        A(f"ds_read_b32 {v(24 + k)}, {v(24 + k)} offset:1024")
    A(f"""
    s_mov_b64 exec, -1
    s_cmp_lg_u32 s3, 0
    s_cbranch_scc1 K1_NOTAB
    s_lshl_b32 s16, s2, 10
    s_add_u32 s16, s16, {WS_TAB}
    v_add_u32 v3, s16, v3
    v_lshl_or_b32 v32, v32, 16, v36
    v_lshl_or_b32 v33, v33, 16, v37
    v_lshl_or_b32 v34, v34, 16, v38
    v_lshl_or_b32 v35, v35, 16, v39
    global_store_dwordx4 v3, v[32:35], s[10:11] {st}
    K1_NOTAB:
    s_mov_b64 exec, s[14:15]
    s_movk_i32 s17, 2048
    s_waitcnt lgkmcnt(0)
    """)
    for k in range(4):
        A(f"v_add_u32 {v(24 + k)}, {v(24 + k)}, {v(28 + k)}\nv_mad_u32_u24 {v(24 + k)}, {v(24 + k)}, 12, s17")
    for k in range(4):
        A(f"ds_write_b32 {v(24 + k)}, {v(8 + k)} offset:8")
    if npre:
        A(f"s_cmp_lg_u32 s3, 0\ns_cbranch_scc1 K1_W0\ns_waitcnt vmcnt({npre + 1})\ns_branch K1_W1\nK1_W0:\ns_waitcnt vmcnt({npre})\nK1_W1:")
    else:
        A("s_cmp_lg_u32 s3, 0\ns_cbranch_scc1 K1_W0\ns_waitcnt vmcnt(1)\ns_branch K1_W1\nK1_W0:\ns_waitcnt vmcnt(0)\nK1_W1:")
    for k in range(4):
        A(f"ds_write2_b32 {v(24 + k)}, {v(16 + 2 * k)}, {v(17 + 2 * k)} offset0:0 offset1:1")
    A(f"""
    s_mov_b64 exec, -1
    v_lshlrev_b32 v3, 4, v0
    s_mul_i32 s16, s2, {RECSTRIDE}
    v_add_u32 v4, s16, v3
    v_add_u32 v5, 10240, v4
    v_add_u32 v6, 20480, v4
    v_cmp_gt_u32 vcc, {CHUNK * 12 // 16 - 1280}, v0
    s_waitcnt lgkmcnt(0)
    s_barrier
    ds_read_b128 v[8:11], v3 offset:2048
    ds_read_b128 v[12:15], v3 offset:{2048 + 10240}
    ds_read_b128 v[16:19], v3 offset:{2048 + 20480}
    s_waitcnt lgkmcnt(2)
    global_store_dwordx4 v4, v[8:11], s[10:11] {st}
    s_waitcnt lgkmcnt(1)
    global_store_dwordx4 v5, v[12:15], s[10:11] {st}
    s_mov_b64 exec, vcc
    s_waitcnt lgkmcnt(0)
    global_store_dwordx4 v6, v[16:19], s[10:11] {st}
    """)
    if opt.get("diag"):
        A(f"s_lshl_b32 s42, s2, 2\ns_add_u32 s42, s42, {100 << 20}\nv_mov_b32 v1, s42\nv_mov_b32 v2, s40\nglobal_store_dword v1, v2, s[10:11]")
    if opt.get("prof"):
        A("s_waitcnt vmcnt(0)")
        stamp(A, opt, 1)
        stamp_out(A, opt, 2, 10, 128 << 20, 3)
    A("s_endpgm")
    A(f"""
    K1_PREP:
    s_load_dwordx4 s[12:15], s[0:1], 40
    s_load_dwordx2 s[16:17], s[0:1], 56
    v_and_b32 v1, 63, v0
    v_lshlrev_b32 v2, 4, v1
    v_add_u32 v2, {WS_WF}, v2
    s_waitcnt lgkmcnt(0)
    s_cmp_eq_u32 s3, 0
    s_cbranch_scc1 K1_PREP_W
    s_cmp_eq_u32 s3, 1
    s_cbranch_scc1 K1_PREP_CG
    s_sub_u32 s18, s3, 2
    s_lshr_b32 s19, s18, 2
    s_lshl_b32 s19, s19, 7
    s_and_b32 s20, s18, 1
    s_lshl_b32 s20, s20, 1
    s_add_u32 s19, s19, s20
    s_and_b32 s20, s18, 2
    s_lshl_b32 s20, s20, 5
    s_add_u32 s19, s19, s20
    v_lshrrev_b32 v3, 4, v1
    v_lshlrev_b32 v3, 11, v3
    v_and_b32 v4, 15, v1
    v_lshl_add_u32 v3, v4, 2, v3
    v_add_u32 v3, s19, v3
    """)
    for i in range(8):
        A(f"global_load_ushort {v(8 + i)}, v3, s[16:17] offset:{256 * i}")
    A("s_lshl_b32 s18, s18, 10\ns_add_u32 s18, s18, 6144\nv_add_u32 v2, s18, v2\ns_waitcnt vmcnt(0)")
    for j in range(4):
        A(f"v_lshl_or_b32 {v(16 + j)}, {v(9 + 2 * j)}, 16, {v(8 + 2 * j)}")
    A("global_store_dwordx4 v2, v[16:19], s[10:11]\ns_endpgm")
    A("K1_PREP_CG:\nv_and_b32 v3, 3, v1\nv_lshlrev_b32 v3, 1, v3")
    for i in range(16):
        A(f"global_load_ushort {v(8 + i)}, v3, s[14:15] offset:{8 * i}")
    A("v_add_u32 v2, 4096, v2\ns_waitcnt vmcnt(0)")
    for j in range(8):
        A(f"v_lshl_or_b32 {v(24 + j)}, {v(9 + 2 * j)}, 16, {v(8 + 2 * j)}")
    A("global_store_dwordx4 v2, v[24:27], s[10:11]\nglobal_store_dwordx4 v2, v[28:31], s[10:11] offset:1024\ns_endpgm")
    A("""
    K1_PREP_W:
    v_lshrrev_b32 v3, 5, v1
    v_lshlrev_b32 v3, 10, v3
    v_and_b32 v4, 31, v1
    v_lshl_add_u32 v3, v4, 2, v3
    """)
    for i in range(8):
        A(f"global_load_dword {v(8 + i)}, v3, s[12:13] offset:{128 * i}")
    A(f"s_mov_b32 s18, {fbits(-math.log2(math.e))}\ns_waitcnt vmcnt(0)")
    for par in range(2):
        for i in range(8):
            if par == 0:
                A(f"v_lshlrev_b32 {v(16 + i)}, 16, {v(8 + i)}")
            else:
                A(f"v_and_b32 {v(16 + i)}, 0xffff0000, {v(8 + i)}")
            A(f"v_mul_f32 {v(16 + i)}, s18, {v(16 + i)}")
        H = 24 + 8 * par
        for j in range(4):
            A(f"""
            v_cvt_pk_bf16_f32 {v(H + j)}, {v(16 + 2 * j)}, {v(17 + 2 * j)}
            v_lshlrev_b32 v5, 16, {v(H + j)}
            v_and_b32 v6, 0xffff0000, {v(H + j)}
            v_sub_f32 v5, {v(16 + 2 * j)}, v5
            v_sub_f32 v6, {v(17 + 2 * j)}, v6
            v_cvt_pk_bf16_f32 {v(H + 4 + j)}, v5, v6
            """)
    for f in range(4):
        A(f"global_store_dwordx4 v2, {v(24 + 4 * f, 4)}, s[10:11] offset:{1024 * f}")
    A("K1_END:\ns_endpgm")


NW = 16
V_DBASE, V_DCNT, V_HALF16, V_ACCL, V_LAD, V_LAE, V_LAY = 1, 2, 3, 4, 5, 6, 7
V_ONE, V_CTRA, V_KK, V_KN, V_EID, V_SA, V_FA, V_MT = 8, 9, 10, 11, 12, 13, 14, 15
CG = 16
W = 24
D = 32
X = 64
TP = 80
ACC = 88
STG = 96
SO = 104
E = 112
T = 116
EF = 120
YR = 124
NVGPR2 = 128

S_X, S_EF, S_OUT, S_WS = 4, 8, 12, 16
S_BETA, S_WAVE, S_K0, S_WIDE, S_N, S_NT, S_NEXT, S_MASK = 18, 19, 20, 21, 22, 23, 24, 25
S_CMP = 26
S_MORE, S_TMP, S_C0, S_C1 = 28, 29, 30, 31
S_M1, S_M2 = 32, 40
S_ANY2 = 48
S_SC = 50
S_XP = 52
S_TMP2 = 56


def gen_k2(A, opt):
    name = NAME + "_kernel"
    efl = opt.get("ef_ld", "")
    P0, P1, P2, P3, P4, P5, P6 = 112, 113, 114, 115, 116, 117, 118
    kernel_head(A, name)
    stamp(A, opt, 0)
    if opt.get("diag") == "k2":
        A("s_memrealtime s[76:77]")
    A(f"""
    s_cmp_ge_u32 s2, 256
    s_cbranch_scc1 K2_END
    s_load_dwordx2 {s(S_WS, 2)}, s[0:1], 80
    s_load_dwordx2 {s(S_XP, 2)}, s[0:1], 0
    s_load_dwordx2 {s(S_EF, 2)}, s[0:1], 32
    s_load_dwordx2 {s(S_OUT, 2)}, s[0:1], 64
    s_and_b32 {s(S_BETA)}, s2, 7
    s_lshl_b32 {s(S_BETA)}, {s(S_BETA)}, 5
    s_lshr_b32 s3, s2, 3
    s_add_u32 {s(S_BETA)}, {s(S_BETA)}, s3
    v_lshrrev_b32 {v(P0)}, 6, v0
    v_and_b32 {v(P1)}, 63, v0
    v_readfirstlane_b32 {s(S_WAVE)}, {v(P0)}
    v_lshrrev_b32 {v(P2)}, 4, v0
    v_lshlrev_b32 {v(P2)}, 2, {v(P2)}
    v_and_or_b32 {v(P3)}, v0, 3, {v(P2)}
    s_lshl_b32 s3, {s(S_BETA)}, 2
    s_add_u32 s3, s3, {WS_TAB}
    v_lshl_add_u32 {v(P4)}, {v(P3)}, 10, s3
    v_lshlrev_b32 {v(P5)}, 4, {v(P1)}
    v_add_u32 {v(P5)}, {WS_WF + 2048}, {v(P5)}
    s_waitcnt lgkmcnt(0)
    global_load_dword {v(V_DCNT)}, {v(P4)}, {s(S_WS, 2)}
    global_load_dwordx4 {v(W, 4)}, {v(P5)}, {s(S_WS, 2)} offset:-2048
    global_load_dwordx4 {v(W + 4, 4)}, {v(P5)}, {s(S_WS, 2)}
    global_load_dwordx4 {v(CG, 4)}, {v(P5)}, {s(S_WS, 2)} offset:2048
    global_load_dwordx4 {v(CG + 4, 4)}, {v(P5)}, {s(S_WS, 2)} offset:3072
    s_sub_u32 {s(S_X)}, {s(S_XP)}, 512
    s_subb_u32 {s(S_X + 1)}, {s(S_XP + 1)}, 0
    s_and_b32 {s(S_X + 1)}, {s(S_X + 1)}, 0xffff
    s_or_b32 {s(S_X + 1)}, {s(S_X + 1)}, 0x100000
    s_mov_b32 {s(S_X + 2)}, 64
    s_mov_b32 {s(S_X + 3)}, 0x800000
    s_and_b32 {s(S_XP + 1)}, {s(S_XP + 1)}, 0xffff
    s_mov_b32 {s(S_XP + 2)}, 5120000
    s_mov_b32 {s(S_XP + 3)}, 0x20000
    s_and_b32 {s(S_EF + 1)}, {s(S_EF + 1)}, 0xffff
    s_mov_b32 {s(S_EF + 2)}, 20480000
    s_mov_b32 {s(S_EF + 3)}, 0x20000
    s_and_b32 {s(S_OUT + 1)}, {s(S_OUT + 1)}, 0xffff
    s_mov_b32 {s(S_OUT + 2)}, 5120000
    s_mov_b32 {s(S_OUT + 3)}, 0x20000
    s_mov_b32 {s(S_K0)}, 0
    s_mov_b32 {s(S_WIDE)}, 1
    v_mul_u32_u24 {v(V_DBASE)}, {RECSTRIDE}, {v(P3)}
    v_and_b32 {v(P4)}, 31, {v(P1)}
    v_lshrrev_b32 {v(P5)}, 5, {v(P1)}
    v_lshlrev_b32 {v(V_HALF16)}, 4, {v(P5)}
    v_lshlrev_b32 {v(V_ACCL)}, 3, {v(P4)}
    v_add_u32 {v(V_ACCL)}, {L_ACC}, {v(V_ACCL)}
    v_and_b32 {v(P6)}, 15, v0
    v_add_lshl_u32 {v(V_LAD)}, {v(P6)}, {v(V_HALF16)}, 2
    v_lshrrev_b32 {v(P6)}, 3, {v(P4)}
    v_lshlrev_b32 {v(P6)}, 2, {v(P6)}
    v_and_or_b32 {v(P6)}, {v(P4)}, 3, {v(P6)}
    v_lshlrev_b32 {v(P6)}, 2, {v(P6)}
    v_and_b32 {v(P0)}, 4, {v(P4)}
    v_lshl_add_u32 {v(V_LAE)}, {v(P0)}, 4, {v(P6)}
    v_lshrrev_b32 {v(P6)}, 2, {v(P4)}
    v_and_b32 {v(P0)}, 1, {v(P4)}
    v_lshl_add_u32 {v(P6)}, {v(P0)}, 3, {v(P6)}
    v_add_lshl_u32 {v(V_LAY)}, {v(P6)}, {v(V_HALF16)}, 3
    v_mov_b32 {v(V_ONE)}, 1
    v_mov_b32 {v(V_CTRA)}, {L_CTR}
    v_mov_b64 v[32:33], 0
    v_mov_b64 v[34:35], 0
    v_lshlrev_b32 {v(P6)}, 4, v0
    v_add_u32 {v(P6)}, {L_ACC}, {v(P6)}
    v_add_u32 {v(P0)}, {41 * NS - 16384}, {v(P6)}
    """)
    for i in range(4):
        A(f"ds_write_b128 {v(P6)}, v[32:35] offset:{16384 * i}")
    A(f"v_add_u32 {v(P6)}, 65536, {v(P6)}\nds_write_b128 {v(P0)}, v[32:35]\nds_write_b128 {v(P6)}, v[32:35]")
    assert 5 * 16384 <= 41 * NS <= 6 * 16384
    A(f"""
    s_waitcnt vmcnt(4)
    v_and_b32 {v(P0)}, 0xffff, {v(V_DCNT)}
    v_mad_u32_u24 {v(V_DBASE)}, {v(P0)}, 12, {v(V_DBASE)}
    v_lshrrev_b32 {v(V_DCNT)}, 16, {v(V_DCNT)}
    """)
    stamp(A, opt, 1)
    NC = 4
    REC1, REC2, RK1, RK2, HA1, HA2, PB, SC = 32, 48, 64, 68, 72, 76, 80, 84
    A(f"""
    K2_ROUND:
    v_and_b32 {v(P0)}, 0xff, v0
    v_lshlrev_b32 {v(P0)}, 2, {v(P0)}
    v_mov_b32 {v(P1)}, 0
    v_mov_b32 {v(P2)}, {NW}
    ds_write_b32 {v(P0)}, {v(P1)} offset:{L_HIST}
    ds_write2_b32 {v(V_CTRA)}, {v(P2)}, {v(P1)} offset0:0 offset1:1
    v_and_b32 {v(P3)}, 15, v0
    v_add_u32 {v(P3)}, {s(S_K0)}, {v(P3)}
    v_mul_u32_u24 {v(P4)}, 12, {v(P3)}
    s_lshl_b32 {s(S_TMP)}, 16, {s(S_WIDE)}
    s_add_u32 {s(S_TMP)}, {s(S_TMP)}, {s(S_K0)}
    v_cmp_lt_u32 {s(S_CMP, 2)}, {s(S_TMP)}, {v(V_DCNT)}
    s_cmp_eq_u32 {s(S_WIDE)}, 1
    s_cselect_b32 {s(S_C1)}, 16, 0x7fffffff
    s_mov_b64 {s(S_ANY2, 2)}, 0
    """)
    for c in range(NC):
        A(f"""
        v_add_u32_dpp {v(HA2 + c)}, {v(V_DBASE)}, {v(P4)} row_newbcast:{c} {DPP}
        v_sub_u32_dpp {v(P5)}, {v(V_DCNT)}, {v(P3)} row_newbcast:{c} {DPP}
        v_cmp_lt_i32 {s(S_M1 + 2 * c, 2)}, 0, {v(P5)}
        v_cmp_lt_i32 {s(S_M2 + 2 * c, 2)}, {s(S_C1)}, {v(P5)}
        """)
    for c in range(NC):
        A(f"""
        s_mov_b64 exec, {s(S_M1 + 2 * c, 2)}
        s_or_b64 {s(S_ANY2, 2)}, {s(S_ANY2, 2)}, {s(S_M2 + 2 * c, 2)}
        global_load_dwordx3 {v(REC1 + 4 * c, 3)}, {v(HA2 + c)}, {s(S_WS, 2)}
        """)
    A(f"s_cmp_eq_u64 {s(S_ANY2, 2)}, 0\ns_cbranch_scc1 K2_NOSEC_A")
    for c in range(NC):
        A(f"""
        s_mov_b64 exec, {s(S_M2 + 2 * c, 2)}
        s_cbranch_execz K2_SA{c}
        global_load_dwordx3 {v(REC2 + 4 * c, 3)}, {v(HA2 + c)}, {s(S_WS, 2)} offset:192
        K2_SA{c}:
        """)
    A(f"""
    K2_NOSEC_A:
    s_mov_b64 exec, -1
    v_lshrrev_b32 {v(PB)}, 4, v0
    v_mul_u32_u24 {v(PB)}, {4 * CHUNK}, {v(PB)}
    s_waitcnt lgkmcnt(0)
    s_barrier
    """)
    npre = opt.get("xpre", 0)
    if npre:
        A(f"""
        s_lshr_b32 {s(S_TMP)}, s2, 3
        s_mul_i32 {s(S_TMP)}, {s(S_TMP)}, {npre * 128}
        s_add_u32 {s(S_TMP)}, {s(S_TMP)}, {opt.get("xpre_base", 0)}
        v_lshl_add_u32 {v(P5)}, v0, 7, {s(S_TMP)}
        v_cmp_gt_u32 vcc, {npre}, v0
        v_mov_b32 {v(P6)}, 0x80000000
        s_nop 0
        v_cndmask_b32 {v(P5)}, {v(P6)}, {v(P5)}, vcc
        buffer_load_dword v127, {v(P5)}, {s(S_XP, 4)}, 0 offen
        """)
    A(f"""
    s_cmp_eq_u64 {s(S_CMP, 2)}, 0
    s_cbranch_scc1 K2_NOMORE
    ds_write_b32 {v(V_CTRA)}, {v(V_ONE)} offset:4
    K2_NOMORE:
    s_mov_b32 {s(S_C0)}, {opt.get("abl_x", 0x7ffe00)}
    s_mov_b32 {s(S_C1)}, 0xfc000fff
    s_waitcnt vmcnt({1 if npre else 0})
    """)
    stamp(A, opt, 2)
    nph = opt.get("nph", 0)

    def hist(rec, rk, ha, c):
        idx = rec + 4 * c + 2
        if nph:
            A(f"""
            v_bfe_u32 {v(P0)}, {v(idx)}, 12, 14
            v_mul_u32_u24 {v(P0)}, {(nph << 16) // 10001}, {v(P0)}
            v_lshrrev_b32 {v(P0)}, 16, {v(P0)}
            v_lshrrev_b32 {v(P1)}, 26, {v(idx)}
            v_lshl_or_b32 {v(P0)}, {v(P1)}, 2, {v(P0)}
            v_lshlrev_b32 {v(ha + c)}, 2, {v(P0)}
            """)
        else:
            A(f"v_lshlrev_b32_sdwa {v(ha + c)}, 2, {v(idx)} dst_sel:DWORD dst_unused:UNUSED_PAD src0_sel:DWORD src1_sel:BYTE_3")
        A(f"""
        v_and_b32 {v(idx + 1)}, {s(S_C1)}, {v(idx)}
        ds_add_rtn_u32 {v(rk + c)}, {v(ha + c)}, {v(V_ONE)} offset:{L_HIST}
        v_lshrrev_b32 {v(idx)}, 3, {v(idx)}
        v_and_b32 {v(idx)}, {s(S_C0)}, {v(idx)}
        s_movk_i32 {s(S_TMP)}, {c * CHUNK}
        """)
        if opt.get("abl_x"):
            A(f"v_add_u32 {v(idx)}, 512, {v(idx)}")
        if not opt.get("abl_ef"):
            A(f"v_add3_u32 {v(idx + 1)}, {v(idx + 1)}, {v(PB)}, {s(S_TMP)}")

    def place(rec, rk, ha, c):
        A(f"""
        v_add_lshl_u32 {v(ha + c)}, {v(ha + c)}, {v(rk + c)}, 2
        v_and_b32 {v(P0)}, 64, {v(ha + c)}
        v_lshlrev_b32 {v(rk + c)}, 1, {v(ha + c)}
        v_mad_i32_i24 {v(rec + 4 * c + 2)}, {v(P0)}, -8, {v(rec + 4 * c + 2)}
        ds_write_b64 {v(rk + c)}, {v(rec + 4 * c, 2)} offset:{L_Y}
        ds_write2st64_b32 {v(ha + c)}, {v(rec + 4 * c + 2)}, {v(rec + 4 * c + 3)} offset0:{L_SRC // 256} offset1:{L_EID // 256}
        """)

    for c in range(NC):
        A(f"s_mov_b64 exec, {s(S_M1 + 2 * c, 2)}")
        hist(REC1, RK1, HA1, c)
    A(f"s_cmp_eq_u64 {s(S_ANY2, 2)}, 0\ns_cbranch_scc1 K2_NOSEC_B")
    for c in range(NC):
        A(f"s_mov_b64 exec, {s(S_M2 + 2 * c, 2)}\ns_cbranch_execz K2_SB{c}")
        hist(REC2, RK2, HA2, c)
        A(f"K2_SB{c}:")
    order = opt.get("order", [0, 1, 2, 3])
    A(f"""
    K2_NOSEC_B:
    s_mov_b64 exec, -1
    v_and_b32 {v(P1)}, 63, v0
    v_lshlrev_b32 {v(P2)}, 4, {v(P1)}
    s_waitcnt lgkmcnt(0)
    s_barrier
    ds_read_b128 {v(SC, 4)}, {v(P2)} offset:{L_HIST}
    ds_read_b32 {v(P3)}, {v(V_CTRA)} offset:4
    s_waitcnt lgkmcnt(0)
    v_readfirstlane_b32 {s(S_MORE)}, {v(P3)}
    v_lshl_or_b32 {v(SC + 4)}, {v(SC + order[1])}, 16, {v(SC + order[0])}
    v_lshl_or_b32 {v(SC + 5)}, {v(SC + order[3])}, 16, {v(SC + order[2])}
    v_mov_b32 {v(SC + 6)}, {v(SC + 4)}
    v_mov_b32 {v(SC + 7)}, {v(SC + 5)}
    """)
    wave_scan(A, [SC + 6, SC + 7])
    A(f"""
    s_nop 0
    v_readlane_b32 s70, {v(SC + 6)}, 63
    v_readlane_b32 s71, {v(SC + 7)}, 63
    v_sub_u32 {v(SC + 6)}, {v(SC + 6)}, {v(SC + 4)}
    v_sub_u32 {v(SC + 7)}, {v(SC + 7)}, {v(SC + 5)}
    s_and_b32 s72, s70, 0xffff
    s_lshr_b32 s73, s70, 16
    s_add_u32 s73, s73, s72
    s_and_b32 s74, s71, 0xffff
    s_add_u32 s74, s74, s73
    s_lshr_b32 {s(S_N)}, s71, 16
    s_add_u32 {s(S_N)}, {s(S_N)}, s74
    s_cmp_le_u32 {s(S_N)}, {CAP}
    s_cbranch_scc1 K2_FITS
    s_mov_b32 {s(S_WIDE)}, 0
    s_waitcnt vmcnt(0)
    s_barrier
    s_branch K2_ROUND
    K2_FITS:
    v_and_b32 {v(SC + order[0])}, 0xffff, {v(SC + 6)}
    v_lshrrev_b32 {v(SC + 6)}, 16, {v(SC + 6)}
    v_add_u32 {v(SC + order[1])}, s72, {v(SC + 6)}
    v_and_b32 {v(SC + 6)}, 0xffff, {v(SC + 7)}
    v_add_u32 {v(SC + order[2])}, s73, {v(SC + 6)}
    v_lshrrev_b32 {v(SC + 7)}, 16, {v(SC + 7)}
    v_add_u32 {v(SC + order[3])}, s74, {v(SC + 7)}
    ds_write_b128 {v(P2)}, {v(SC, 4)} offset:{L_PREF}
    s_add_u32 {s(S_NT)}, {s(S_N)}, 31
    s_lshr_b32 {s(S_NT)}, {s(S_NT)}, 5
    """)
    for c in range(NC):
        A(f"s_mov_b64 exec, {s(S_M1 + 2 * c, 2)}\nds_read_b32 {v(HA1 + c)}, {v(HA1 + c)} offset:{L_PREF}")
    A(f"""
    s_mov_b64 exec, -1
    v_add_lshl_u32 {v(P1)}, {v(P1)}, {s(S_N)}, 2
    v_lshlrev_b32 {v(P2)}, 1, {v(P1)}
    v_mov_b64 {v(SC + 4, 2)}, 0
    v_mov_b32 {v(SC + 6)}, 512
    v_mov_b32 {v(SC + 7)}, {(40 << 26) | 0xfffff}
    ds_write_b64 {v(P2)}, {v(SC + 4, 2)} offset:{L_Y}
    ds_write2st64_b32 {v(P1)}, {v(SC + 6)}, {v(SC + 7)} offset0:{L_SRC // 256} offset1:{L_EID // 256}
    s_waitcnt lgkmcnt(2)
    """)
    for c in range(NC):
        A(f"s_mov_b64 exec, {s(S_M1 + 2 * c, 2)}")
        place(REC1, RK1, HA1, c)
    A(f"s_cmp_eq_u64 {s(S_ANY2, 2)}, 0\ns_cbranch_scc1 K2_NOSEC_C")
    for c in range(NC):
        A(f"""
        s_mov_b64 exec, {s(S_M2 + 2 * c, 2)}
        s_cbranch_execz K2_SC{c}
        ds_read_b32 {v(HA2 + c)}, {v(HA2 + c)} offset:{L_PREF}
        s_waitcnt lgkmcnt(0)
        """)
        place(REC2, RK2, HA2, c)
        A(f"K2_SC{c}:")

    def tile_addr(t4, t8):
        A(f"""
        v_add_u32 {v(V_EID)}, {s(t4)}, {v(V_LAE)}
        v_add_u32 {v(V_KN)}, {s(t4)}, {v(V_LAD)}
        v_add_u32 {v(V_MT)}, {s(t8)}, {v(V_LAY)}
        v_lshl_add_u32 {v(V_SA)}, {v(V_HALF16)}, 2, {s(t4)}
        """)

    def tile_reads():
        A(f"""
        ds_read_b32 {v(V_EID)}, {v(V_EID)} offset:{L_EID}
        ds_read_b32 {v(V_KN)}, {v(V_KN)} offset:{L_EID}
        ds_read_b64 {v(YR, 2)}, {v(V_MT)} offset:{L_Y}
        """)

    def so_read(g):
        A(f"ds_read_b128 {v(SO + 4 * (g % 2), 4)}, {v(V_SA)} offset:{L_SRC + 16 * (g % 4)}")

    def xload(r):
        A(f"buffer_load_dwordx4 {v(X + 4 * (r % 4), 4)}, {v(SO + 4 * ((r // 4) % 2) + r % 4)}, {s(S_X, 4)}, 0 offen")

    def ef_load():
        A(f"v_mad_u32_u24 {v(V_EID)}, {v(V_EID)}, 32, {v(V_HALF16)}")
        A(f"buffer_load_dwordx4 {v(EF, 4)}, {v(V_EID)}, {s(S_EF, 4)}, 0 offen {efl}")

    key_ops = [f"v_mul_u32_u24_sdwa {v(V_KN)}, {s(S_C0)}, {v(V_KN)} dst_sel:DWORD dst_unused:UNUSED_PAD src0_sel:DWORD src1_sel:BYTE_3",
               f"v_xor_b32_dpp {v(V_MT)}, {v(V_KN)}, {v(V_KN)} row_shl:1 {DPP} bound_ctrl:0",
               f"v_cmp_ne_u32 {s(S_CMP, 2)}, 0, {v(V_MT)}"]

    A(f"""
    K2_NOSEC_C:
    s_mov_b64 exec, -1
    s_lshl_b32 {s(S_TMP)}, {s(S_WAVE)}, 7
    s_lshl_b32 {s(S_TMP2)}, {s(S_WAVE)}, 8
    """)
    tile_addr(S_TMP, S_TMP2)
    A(f"""
    s_movk_i32 {s(S_C0)}, {NS // 4}
    v_mov_b32 {v(V_KK)}, {40 * NS}
    s_waitcnt lgkmcnt(0)
    s_barrier
    """)
    stamp(A, opt, 3)
    if opt.get("diag") == "sorted":
        A("s_memrealtime s[76:77]")
    A(f"s_cmp_ge_u32 {s(S_WAVE)}, {s(S_NT)}\ns_cbranch_scc1 K2_MAIN_DONE")
    A(f"ds_read_b32 {v(V_EID)}, {v(V_EID)} offset:{L_EID}")
    so_read(0)
    A(f"ds_read_b32 {v(V_KN)}, {v(V_KN)} offset:{L_EID}\nds_read_b64 {v(YR, 2)}, {v(V_MT)} offset:{L_Y}")
    so_read(1)
    A("s_waitcnt lgkmcnt(4)")
    ef_load()
    A("s_waitcnt lgkmcnt(3)")
    for r in range(4):
        xload(r)
    A("s_waitcnt lgkmcnt(0)")
    A(key_ops[0] + "\ns_nop 1\n" + key_ops[1] + "\n" + key_ops[2])
    A("s_waitcnt vmcnt(4)")
    stamp(A, opt, 4)

    def flush_ops(r):
        ops = [[f"v_add_u32_dpp {v(V_FA)}, {v(V_KK)}, {v(V_ACCL)} row_newbcast:{r} {DPP}"]]
        for j in range(8):
            st = STG + 2 * (j % 4)
            ops.append([f"v_cvt_f64_f32 {v(st, 2)}, {v(ACC + j)}", f"ds_add_f64 {v(V_FA)}, {v(st, 2)} offset:{RS * j}"])
        return ops

    def emit(groups):
        for g in groups:
            for op in ([g] if isinstance(g, str) else g):
                A(op)

    def acc_ops(r, first):
        ops = []
        for j in range(4):
            rr = D + 16 * (j // 2) + (r & ~1)
            o = r & 1
            if first:
                ops.append(f"v_pk_mul_f32 {v(ACC + 2 * j, 2)}, {v(rr, 2)}, {v(TP + 2 * j, 2)} op_sel:[{o},0] op_sel_hi:[{o},1]")
            else:
                ops.append(f"v_pk_fma_f32 {v(ACC + 2 * j, 2)}, {v(rr, 2)}, {v(TP + 2 * j, 2)}, {v(ACC + 2 * j, 2)} op_sel:[{o},0,0] op_sel_hi:[{o},1,1]")
        return ops

    def exp_ops(q):
        return [f"v_exp_f32 {v(E + j)}, {v(D + 16 * (j // 2) + q + j % 2)}" for j in range(4)]

    add_ops = [f"v_pk_add_f32 {v(E + 2 * j, 2)}, {v(E + 2 * j, 2)}, 1.0 op_sel_hi:[1,0]" for j in range(2)]
    rcp_ops = [f"v_rcp_f32 {v(E + j)}, {v(E + j)}" for j in range(4)]

    def mul_ops(q):
        return [f"v_pk_mul_f32 {v(D + 16 * j + q, 2)}, {v(D + 16 * j + q, 2)}, {v(E + 2 * j, 2)}" for j in range(2)]

    A(".p2align 6")
    loop_start = len(A.lines)
    A("K2_LOOP:")
    fo = flush_ops(15)
    tm = [f"v_mfma_f32_4x4x4_16b_bf16 {v(D + 16 + 4 * i, 4)}, {v(YR, 2)}, {v(CG + 2 * i, 2)}, 0" for i in range(4)]
    tc = [f"v_cvt_pk_bf16_f32 {v(T + 2 * j + hh)}, {v(D + 16 + 8 * hh + j)}, {v(D + 20 + 8 * hh + j)}" for hh in range(2) for j in range(2)]
    ex = exp_ops(0)
    emit([tm[0], fo[0], tm[1], fo[1], tm[2], fo[2], tm[3], fo[3]])
    A(f"v_mfma_f32_32x32x16_bf16 {v(D, 16)}, {v(EF, 4)}, {v(W, 4)}, 0")
    emit([tc[0], tc[1], fo[4], fo[5], tc[2], tc[3]])
    A(f"v_mfma_f32_32x32x16_bf16 {v(D + 16, 16)}, {v(EF, 4)}, {v(W + 4, 4)}, 0")
    emit([fo[6], fo[7], fo[8], f"v_mov_b32 {v(V_KK)}, {v(V_KN)}", f"s_or_b32 {s(S_MASK)}, {s(S_CMP)}, {s(S_CMP + 1)}",
          ex[0], ex[1], "s_nop 1", ex[2], ex[3], "s_nop 0"] + add_ops)
    for r in range(16):
        tr = T + (2 if r >= 8 else 0)
        m4 = [f"v_mfma_f32_4x4x4_16b_bf16 {v(TP + 4 * h, 4)}, {v(tr, 2)}, {v(X + 4 * (r % 4) + 2 * h, 2)}, 0 cbsz:3 abid:{r % 8}" for h in range(2)]
        A(f"s_waitcnt vmcnt({4 if 9 <= r <= 12 else 3})")
        if r == 15:
            emit([m4[0], key_ops[0], m4[1]])
            xload(r + 4)
            emit([key_ops[1], key_ops[2]])
            side = []
        else:
            trans = rcp_ops if r % 2 == 0 else exp_ops(r + 1)
            side = mul_ops(r) if r % 2 == 0 else add_ops
            emit([m4[0], trans[0], m4[1], trans[1], trans[2], trans[3]])
            if r % 4 == 0 and r > 0:
                A("s_waitcnt lgkmcnt(0)")
            xload(r + 4)
        if r % 4 == 0:
            so_read(r // 4 + 2)
        if r == 1:
            A(f"s_mov_b64 exec, 1\nds_add_rtn_u32 {v(V_MT)}, {v(V_CTRA)}, {v(V_ONE)}\ns_mov_b64 exec, -1")
        if r == 4:
            A(f"v_readfirstlane_b32 {s(S_NEXT)}, {v(V_MT)}")
        if r == 5:
            A(f"s_min_u32 {s(S_NEXT)}, {s(S_NEXT)}, {s(S_NT)}\ns_lshl_b32 {s(S_TMP)}, {s(S_NEXT)}, 7\ns_lshl_b32 {s(S_TMP2)}, {s(S_NEXT)}, 8")
            tile_addr(S_TMP, S_TMP2)
            tile_reads()
        if r == 8:
            ef_load()
        if r == 14:
            A("s_waitcnt lgkmcnt(0)")
        emit(side)
        if r > 0:
            A(f"s_bitcmp1_b32 {s(S_MASK)}, {r - 1}\ns_cbranch_scc1 K2_F{r}")
        emit(acc_ops(r, r == 0))
        if r > 0:
            A(f"K2_R{r}:")
    A(f"s_cmp_lt_u32 {s(S_NEXT)}, {s(S_NT)}\ns_cbranch_scc1 K2_LOOP")
    drop = opt.get("drop", [])
    if drop:
        A.lines[loop_start:] = [ln for ln in A.lines[loop_start:] if not any(d in ln for d in drop)]
    emit(flush_ops(15))
    A("s_branch K2_MAIN_DONE")
    for r in range(1, 16):
        A(f"K2_F{r}:")
        emit(flush_ops(r - 1))
        emit(acc_ops(r, True))
        A(f"s_branch K2_R{r}")
    WM, A64, AG, AF, OD, OP = 32, 80, 16, 8, 80, 96
    A("K2_MAIN_DONE:")
    stamp(A, opt, 5)
    A(f"""
    s_cmp_eq_u32 {s(S_MORE)}, 0
    s_cbranch_scc1 K2_EPI
    s_lshl_b32 {s(S_TMP)}, 16, {s(S_WIDE)}
    s_add_u32 {s(S_K0)}, {s(S_K0)}, {s(S_TMP)}
    s_waitcnt vmcnt(0) lgkmcnt(0)
    s_barrier
    s_branch K2_ROUND
    K2_EPI:
    s_cmp_ge_u32 {s(S_WAVE)}, 10
    s_cbranch_scc0 K2_MIX
    s_waitcnt lgkmcnt(0)
    s_barrier
    """)
    stamp(A, opt, 6)
    A(f"""
    s_branch K2_FIN
    K2_MIX:
    v_and_b32 v1, 63, v0
    v_lshlrev_b32 v2, 4, v1
    v_add_u32 v2, {WS_WF + 6144}, v2
    v_add_u32 v3, 4096, v2
    """)
    for f in range(8):
        A(f"global_load_dwordx4 {v(WM + 4 * f, 4)}, {'v2' if f < 4 else 'v3'}, {s(S_WS, 2)} offset:{1024 * (f % 4)}")
    A(f"""
    v_bfe_u32 v2, v1, 2, 2
    v_mul_u32_u24 v2, {NS}, v2
    v_and_b32 v3, 3, v1
    v_mul_u32_u24 v3, {RS}, v3
    v_lshrrev_b32 v4, 4, v1
    v_lshlrev_b32 v5, 6, v4
    v_add3_u32 v2, v2, v3, v5
    s_mul_i32 s70, {s(S_WAVE)}, {4 * NS}
    s_add_u32 s70, s70, {L_ACC}
    v_add_u32 v2, s70, v2
    v_and_b32 v3, 15, v1
    v_lshlrev_b32 v3, 4, v3
    v_lshl_add_u32 v3, v4, 17, v3
    s_lshl_b32 s70, {s(S_WAVE)}, 19
    s_lshl_b32 s71, {s(S_BETA)}, 9
    s_add_u32 s70, s70, s71
    v_add_u32 v3, s70, v3
    s_mov_b32 {s(S_SC)}, {fbits(-math.log(2.0))}
    s_mov_b32 {s(S_SC + 1)}, {fbits(-math.log(2.0))}
    s_waitcnt lgkmcnt(0)
    s_barrier
    """)
    stamp(A, opt, 6)
    for cpar in range(2):
        for hh in range(4):
            A(f"ds_read_b128 {v(A64 + 16 * cpar + 4 * hh, 4)}, v2 offset:{4 * RS * cpar + 16 * hh}")
    for j in range(8):
        A(f"s_waitcnt lgkmcnt({7 - j})")
        A(f"v_cvt_f32_f64 {v(AG + 2 * j)}, {v(A64 + 4 * j, 2)}")
        A(f"v_cvt_f32_f64 {v(AG + 2 * j + 1)}, {v(A64 + 4 * j + 2, 2)}")
    for j in range(8):
        A(f"v_pk_mul_f32 {v(AG + 2 * j, 2)}, {v(AG + 2 * j, 2)}, {s(S_SC, 2)}")
    for j in range(8):
        A(f"v_cvt_pk_bf16_f32 {v(AF + j)}, {v(AG + 2 * j)}, {v(AG + 2 * j + 1)}")
    A("s_waitcnt vmcnt(0)\ns_nop 0")
    for dt in range(4):
        A(f"v_mfma_f32_16x16x32_bf16 {v(OD + 4 * dt, 4)}, {v(AF, 4)}, {v(WM + 4 * dt, 4)}, 0")
    for dt in range(4):
        A(f"v_mfma_f32_16x16x32_bf16 {v(OD + 4 * dt, 4)}, {v(AF + 4, 4)}, {v(WM + 16 + 4 * dt, 4)}, {v(OD + 4 * dt, 4)}")
    A("s_nop 7")
    for j in range(8):
        A(f"v_cvt_pk_bf16_f32 {v(OP + j)}, {v(OD + 2 * j)}, {v(OD + 2 * j + 1)}")
    ost = opt.get("out_st", "")
    A(f"buffer_store_dwordx4 {v(OP, 4)}, v3, {s(S_OUT, 4)}, 0 offen {ost}")
    A(f"buffer_store_dwordx4 {v(OP + 4, 4)}, v3, {s(S_OUT, 4)}, 0 offen offset:256 {ost}")
    A("K2_FIN:")
    if opt.get("diag"):
        if opt["diag"] == "k1":
            A(f"s_lshl_b32 s76, s2, 2\ns_add_u32 s76, s76, {100 << 20}\ns_load_dword s76, {s(S_WS, 2)}, s76")
        A("""
        s_waitcnt lgkmcnt(0)
        K2_SPIN:
        s_memrealtime s[74:75]
        s_waitcnt lgkmcnt(0)
        s_sub_u32 s74, s74, s76
        s_cmp_lt_u32 s74, 10000
        s_cbranch_scc1 K2_SPIN
        """)
    if opt.get("prof"):
        A("s_waitcnt vmcnt(0)")
        stamp(A, opt, 7)
        stamp_out(A, opt, 8, S_WS, (128 << 20) + (1 << 20), S_WAVE)
    A("K2_END:\ns_endpgm")


def gen_probe(A, name, argoff, flag, base=0):
    kernel_head(A, name)
    if argoff is not None:
        A(f"""
        s_cmp_ge_u32 s2, 256
        s_cbranch_scc1 {name}_END
        s_load_dwordx2 s[4:5], s[0:1], {argoff}
        s_mul_i32 s6, s2, 80000
        s_add_u32 s6, s6, {base}
        v_lshl_add_u32 v1, v0, 4, s6
        v_cmp_gt_u32 vcc, 1000, v0
        s_mov_b64 exec, vcc
        s_waitcnt lgkmcnt(0)
        """)
        for j in range(5):
            A(f"global_load_dwordx4 v[4:7], v1, s[4:5] {flag}\nv_add_u32 v1, 16000, v1")
        A(f"s_waitcnt vmcnt(0)\n{name}_END:")
    A("s_endpgm")


def gen_probe_copy(A, name, rd, wr, lf, sf):
    kernel_head(A, name)
    A(f"""
    s_cmp_ge_u32 s2, 256
    s_cbranch_scc1 {name}_END
    s_load_dwordx2 s[4:5], s[0:1], 32
    s_load_dwordx2 s[8:9], s[0:1], 80
    s_mul_i32 s6, s2, 80000
    v_lshl_add_u32 v1, v0, 4, s6
    v_add_u32 v2, {64 << 20}, v1
    v_cmp_gt_u32 vcc, 1000, v0
    s_mov_b64 exec, vcc
    s_waitcnt lgkmcnt(0)
    """)
    for j in range(5):
        if rd:
            A(f"global_load_dwordx4 v[{4 + 4 * j}:{7 + 4 * j}], v1, s[4:5] {lf}\nv_add_u32 v1, 16000, v1")
    for j in range(5):
        if rd:
            A("s_waitcnt vmcnt(4)")
        if wr:
            A(f"global_store_dwordx4 v2, v[{4 + 4 * j}:{7 + 4 * j}], s[8:9] {sf}\nv_add_u32 v2, 16000, v2")
    A(f"s_waitcnt vmcnt(0)\n{name}_END:\ns_endpgm")


CPROBES = {"pcopy_kernel": (1, 1, "", ""), "pwrite_kernel": (0, 1, "", ""), "pcopynt_kernel": (1, 1, "nt", ""), "pwritesc_kernel": (0, 1, "", "sc0 sc1"), "pwritent_kernel": (0, 1, "", "nt")}
PROBES = {"empty_kernel": (None, ""), "pef_kernel": (32, ""), "pefnt_kernel": (32, "nt"), "pws_kernel": (80, "", 64 << 20), "pwsend_kernel": (80, "", 230 << 20)}


def generate(opt):
    A = Asm()
    out = HEADER
    for p in opt.get("pre", []):
        out += f"; @launch kernel={p} grid=(256,1,1) block=(1024,1,1) lds=0\n"
    out += f"; @launch kernel=sort_kernel grid=(257,1,1) block=(640,1,1) lds={K1_LDS}\n"
    out += f"; @launch kernel={NAME}_kernel grid=(256,1,1) block=(1024,1,1) lds={K2_LDS}\n"
    for p in opt.get("post", []):
        out += f"; @launch kernel={p} grid=(256,1,1) block=(1024,1,1) lds=0\n"
    out += '.amdgcn_target "amdgcn-amd-amdhsa--gfx950"\n.text\n'
    probes = sorted(set(opt.get("pre", []) + opt.get("post", [])))
    for p in probes:
        if p in PROBES:
            gen_probe(A, p, *PROBES[p])
        else:
            gen_probe_copy(A, p, *CPROBES[p])
    gen_k1(A, opt)
    gen_k2(A, opt)
    out += A.text()
    out += '.section .rodata,"a"\n.p2align 6\n'
    out += descriptor("sort_kernel", 48, 96)
    out += ".p2align 6\n"
    out += descriptor(NAME + "_kernel", NVGPR2, 96)
    for p in probes:
        out += ".p2align 6\n" + descriptor(p, 24, 16)
    return out


if __name__ == "__main__":
    opt = eval("dict(" + (sys.argv[2] if len(sys.argv) > 2 else "") + ")")
    path = sys.argv[1] if len(sys.argv) > 1 else f"cdna_kernels/{NAME}.s"
    open(path, "w").write(generate(opt))
```

```python
import sys, struct, math

NAME = "standalone__tensor_product_equiv_tfn__graph"

HEADER = """; Kernarg layout for this problem (88 bytes, ptrs only, base s[0:1]):
"""

CHUNK = 2500
RECSTRIDE = 30080
WS_TAB = 256 * RECSTRIDE
WS_WF = WS_TAB + 256 * 1024

RS = 272
NS = 8 * RS
L_HIST = 0
L_PREF = 1024
L_CTR = 2048
CAP = 4096
L_SRC = 2304
L_EID = L_SRC + (CAP + 64) * 4
L_Y = L_EID + (CAP + 64) * 4
L_ACC = L_Y + (CAP + 64) * 8
K2_LDS = L_ACC + 41 * NS
K1_LDS = 32768

DPP = "row_mask:0xf bank_mask:0xf"


def fbits(x):
    return "0x%08x" % struct.unpack("<I", struct.pack("<f", x))[0]


class Asm:
    def __init__(self):
        self.lines = []

    def __call__(self, s):
        for ln in s.strip("\n").split("\n"):
            ln = ln.strip()
            if not ln:
                continue
            if ln.endswith(":") or ln.startswith("."):
                self.lines.append(ln)
            else:
                self.lines.append("    " + ln)

    def text(self):
        return "\n".join(self.lines) + "\n"


def v(a, n=1):
    return f"v{a}" if n == 1 else f"v[{a}:{a+n-1}]"


def s(a, n=1):
    return f"s{a}" if n == 1 else f"s[{a}:{a+n-1}]"


def wave_scan(A, regs):
    steps = ["row_shr:1 " + DPP + " bound_ctrl:0", "row_shr:2 " + DPP + " bound_ctrl:0",
             "row_shr:4 " + DPP + " bound_ctrl:0", "row_shr:8 " + DPP + " bound_ctrl:0",
             "row_bcast:15 row_mask:0xa bank_mask:0xf", "row_bcast:31 row_mask:0xc bank_mask:0xf"]
    for st in steps:
        A("s_nop 1")
        for r in regs:
            A(f"v_add_u32_dpp {v(r)}, {v(r)}, {v(r)} {st}")


def kernel_head(A, name):
    A(f".globl {name}\n.p2align 8\n.type {name},@function\n{name}:")


def descriptor(name, vgpr, sgpr):
    acc = (vgpr + 3) // 4 * 4
    return f""".amdhsa_kernel {name}
  .amdhsa_next_free_vgpr {vgpr}
  .amdhsa_next_free_sgpr {sgpr}
  .amdhsa_accum_offset {acc}
  .amdhsa_group_segment_fixed_size 0
  .amdhsa_kernarg_size 88
  .amdhsa_user_sgpr_count 2
  .amdhsa_user_sgpr_kernarg_segment_ptr 1
  .amdhsa_system_sgpr_workgroup_id_x 1
  .amdhsa_float_denorm_mode_32 3
.end_amdhsa_kernel
"""


def stamp(A, opt, slot):
    if opt.get("prof"):
        A(f"{'s_memtime' if opt['prof'] == 'clk' else 's_memrealtime'} {s(80 + 2 * slot, 2)}")
        if opt["prof"] == "both" and slot in (3, 5):
            A(f"s_waitcnt lgkmcnt(0)\ns_memtime {s(80 + (slot - 1), 2)}")


def stamp_out(A, opt, nslots, wsreg, base, wave_sgpr):
    if opt.get("prof"):
        A("s_waitcnt lgkmcnt(0)")
        A(f"s_lshl_b32 s78, s2, 4\ns_add_u32 s78, s78, {s(wave_sgpr)}\ns_lshl_b32 s78, s78, 5\ns_add_u32 s78, s78, {base}")
        A("s_mov_b64 exec, -1\nv_mov_b32 v1, s78")
        for i in range(nslots):
            A(f"v_mov_b32 v2, {s(80 + 2 * i)}\nglobal_store_dword v1, v2, {s(wsreg, 2)} offset:{4 * i}")


def gen_k1(A, opt):
    ld = opt.get("k1_ld", "")
    st = opt.get("k1_st", "")
    kernel_head(A, "sort_kernel")
    stamp(A, opt, 0)
    if opt.get("diag"):
        A("s_memrealtime s[40:41]")
    A("""
    s_cmp_gt_u32 s2, 256
    s_cbranch_scc1 K1_END
    s_load_dwordx4 s[4:7], s[0:1], 8
    s_load_dwordx2 s[8:9], s[0:1], 24
    s_load_dwordx2 s[10:11], s[0:1], 80
    s_load_dwordx2 s[18:19], s[0:1], 0
    s_load_dwordx2 s[20:21], s[0:1], 32
    v_lshrrev_b32 v1, 6, v0
    s_cmp_eq_u32 s2, 256
    v_readfirstlane_b32 s3, v1
    s_cbranch_scc1 K1_PREP
    """)
    A(f"""
    s_mul_i32 s12, s2, {CHUNK * 4}
    s_mul_i32 s13, s2, {CHUNK * 8}
    v_lshl_add_u32 v1, v0, 4, s12
    v_lshl_add_u32 v2, v0, 5, s13
    v_and_b32 v3, 0xff, v0
    v_lshlrev_b32 v3, 2, v3
    v_mov_b32 v4, 0
    ds_write_b32 v3, v4
    v_cmp_gt_u32 vcc, {CHUNK // 4}, v0
    s_mov_b64 s[14:15], vcc
    s_mov_b64 exec, vcc
    s_waitcnt lgkmcnt(0)
    global_load_dwordx4 v[8:11], v1, s[6:7] {ld}
    global_load_dwordx4 v[12:15], v1, s[4:5] {ld}
    global_load_dwordx4 v[16:19], v2, s[8:9] {ld}
    global_load_dwordx4 v[20:23], v2, s[8:9] offset:16 {ld}
    """)
    npre = 0
    A("""
    v_mov_b32 v5, 1
    v_lshlrev_b32 v6, 2, v0
    v_add_u32 v6, 4096, v6
    s_lshr_b32 s22, s2, 3
    s_barrier
    """)

    def touch(base, nlines, total, stride_shift, per_xcd, origin=0):
        nonlocal npre
        done = 0
        while done < nlines:
            n = min(nlines - done, 625)
            A(f"""
            s_mul_i32 s23, {'s22' if per_xcd else 's2'}, {nlines << stride_shift}
            s_add_u32 s23, s23, {origin + (done << stride_shift)}
            v_min_u32 v40, {n - 1}, v0
            v_lshl_add_u32 v40, v40, {stride_shift}, s23
            v_min_u32 v40, {total - 4}, v40
            global_load_dword v41, v40, {base}
            """)
            npre += 1
            done += n

    if opt.get("t_code"):
        A(f"""
        s_getpc_b64 s[24:25]
        K1_PC:
        s_add_u32 s24, s24, {NAME}_kernel - K1_PC
        s_addc_u32 s25, s25, 0
        v_min_u32 v40, (K2_END - {NAME}_kernel) / 128, v0
        v_lshlrev_b32 v40, 7, v40
        global_load_dword v41, v40, s[24:25]
        """)
        npre += 1
    if opt.get("t_tlb"):
        touch("s[20:21]", 10, 20480000, 16, True)
        touch("s[18:19]", 3, 5120000, 16, True)
    if opt.get("t_xl2"):
        touch("s[18:19]", opt["t_xl2"], 5120000, 7, True)
    if opt.get("t_xmall"):
        touch("s[18:19]", 157, 5120000, 7, False)
    if opt.get("t_efmall"):
        touch("s[20:21]", opt["t_efmall"], 20480000, 7, False)
    A(f"s_waitcnt vmcnt({3 + npre})")
    for k in range(4):
        A(f"v_lshlrev_b32_sdwa {v(24 + k)}, 2, {v(8 + k)} dst_sel:DWORD dst_unused:UNUSED_PAD src0_sel:DWORD src1_sel:BYTE_0")
    for k in range(4):
        A(f"ds_add_rtn_u32 {v(28 + k)}, {v(24 + k)}, v5")
    A(f"s_waitcnt vmcnt({2 + npre})")
    for k in range(4):
        A(f"""
        v_lshrrev_b32 {v(8 + k)}, 8, {v(8 + k)}
        v_lshl_or_b32 {v(8 + k)}, {v(8 + k)}, 14, {v(12 + k)}
        v_or_b32 v7, {k}, v6
        v_lshl_add_u32 {v(8 + k)}, {v(8 + k)}, 12, v7
        """)
    A("""
    s_mov_b64 exec, -1
    v_and_b32 v3, 63, v0
    v_lshlrev_b32 v3, 4, v3
    s_waitcnt lgkmcnt(0)
    s_barrier
    ds_read_b128 v[32:35], v3
    s_waitcnt lgkmcnt(0)
    v_add_u32 v38, v32, v33
    v_add_u32 v39, v38, v34
    v_add_u32 v4, v39, v35
    v_mov_b32 v36, v4
    """)
    wave_scan(A, [36])
    A(f"""
    v_sub_u32 v36, v36, v4
    v_add_u32 v37, v36, v32
    v_add_u32 v38, v36, v38
    v_add_u32 v39, v36, v39
    ds_write_b128 v3, v[36:39] offset:1024
    s_mov_b64 exec, s[14:15]
    """)
    for k in range(4):
        A(f"ds_read_b32 {v(24 + k)}, {v(24 + k)} offset:1024")
    A(f"""
    s_mov_b64 exec, -1
    s_cmp_lg_u32 s3, 0
    s_cbranch_scc1 K1_NOTAB
    s_lshl_b32 s16, s2, 10
    s_add_u32 s16, s16, {WS_TAB}
    v_add_u32 v3, s16, v3
    v_lshl_or_b32 v32, v32, 16, v36
    v_lshl_or_b32 v33, v33, 16, v37
    v_lshl_or_b32 v34, v34, 16, v38
    v_lshl_or_b32 v35, v35, 16, v39
    global_store_dwordx4 v3, v[32:35], s[10:11] {st}
    K1_NOTAB:
    s_mov_b64 exec, s[14:15]
    s_movk_i32 s17, 2048
    s_waitcnt lgkmcnt(0)
    """)
    for k in range(4):
        A(f"v_add_u32 {v(24 + k)}, {v(24 + k)}, {v(28 + k)}\nv_mad_u32_u24 {v(24 + k)}, {v(24 + k)}, 12, s17")
    for k in range(4):
        A(f"ds_write_b32 {v(24 + k)}, {v(8 + k)} offset:8")
    if npre:
        A(f"s_cmp_lg_u32 s3, 0\ns_cbranch_scc1 K1_W0\ns_waitcnt vmcnt({npre + 1})\ns_branch K1_W1\nK1_W0:\ns_waitcnt vmcnt({npre})\nK1_W1:")
    else:
        A("s_cmp_lg_u32 s3, 0\ns_cbranch_scc1 K1_W0\ns_waitcnt vmcnt(1)\ns_branch K1_W1\nK1_W0:\ns_waitcnt vmcnt(0)\nK1_W1:")
    for k in range(4):
        A(f"ds_write2_b32 {v(24 + k)}, {v(16 + 2 * k)}, {v(17 + 2 * k)} offset0:0 offset1:1")
    A(f"""
    s_mov_b64 exec, -1
    v_lshlrev_b32 v3, 4, v0
    s_mul_i32 s16, s2, {RECSTRIDE}
    v_add_u32 v4, s16, v3
    v_add_u32 v5, 10240, v4
    v_add_u32 v6, 20480, v4
    v_cmp_gt_u32 vcc, {CHUNK * 12 // 16 - 1280}, v0
    s_waitcnt lgkmcnt(0)
    s_barrier
    ds_read_b128 v[8:11], v3 offset:2048
    ds_read_b128 v[12:15], v3 offset:{2048 + 10240}
    ds_read_b128 v[16:19], v3 offset:{2048 + 20480}
    s_waitcnt lgkmcnt(2)
    global_store_dwordx4 v4, v[8:11], s[10:11] {st}
    s_waitcnt lgkmcnt(1)
    global_store_dwordx4 v5, v[12:15], s[10:11] {st}
    s_mov_b64 exec, vcc
    s_waitcnt lgkmcnt(0)
    global_store_dwordx4 v6, v[16:19], s[10:11] {st}
    """)
    if opt.get("diag"):
        A(f"s_lshl_b32 s42, s2, 2\ns_add_u32 s42, s42, {100 << 20}\nv_mov_b32 v1, s42\nv_mov_b32 v2, s40\nglobal_store_dword v1, v2, s[10:11]")
    if opt.get("prof"):
        A("s_waitcnt vmcnt(0)")
        stamp(A, opt, 1)
        stamp_out(A, opt, 2, 10, 128 << 20, 3)
    A("s_endpgm")
    A(f"""
    K1_PREP:
    s_load_dwordx4 s[12:15], s[0:1], 40
    s_load_dwordx2 s[16:17], s[0:1], 56
    v_and_b32 v1, 63, v0
    v_lshlrev_b32 v2, 4, v1
    v_add_u32 v2, {WS_WF}, v2
    s_waitcnt lgkmcnt(0)
    s_cmp_eq_u32 s3, 0
    s_cbranch_scc1 K1_PREP_W
    s_cmp_eq_u32 s3, 1
    s_cbranch_scc1 K1_PREP_CG
    s_sub_u32 s18, s3, 2
    s_lshr_b32 s19, s18, 2
    s_lshl_b32 s19, s19, 7
    s_and_b32 s20, s18, 1
    s_lshl_b32 s20, s20, 1
    s_add_u32 s19, s19, s20
    s_and_b32 s20, s18, 2
    s_lshl_b32 s20, s20, 5
    s_add_u32 s19, s19, s20
    v_lshrrev_b32 v3, 4, v1
    v_lshlrev_b32 v3, 11, v3
    v_and_b32 v4, 15, v1
    v_lshl_add_u32 v3, v4, 2, v3
    v_add_u32 v3, s19, v3
    """)
    for i in range(8):
        A(f"global_load_ushort {v(8 + i)}, v3, s[16:17] offset:{256 * i}")
    A("s_lshl_b32 s18, s18, 10\ns_add_u32 s18, s18, 6144\nv_add_u32 v2, s18, v2\ns_waitcnt vmcnt(0)")
    for j in range(4):
        A(f"v_lshl_or_b32 {v(16 + j)}, {v(9 + 2 * j)}, 16, {v(8 + 2 * j)}")
    A("global_store_dwordx4 v2, v[16:19], s[10:11]\ns_endpgm")
    A("K1_PREP_CG:\nv_and_b32 v3, 3, v1\nv_lshlrev_b32 v3, 1, v3")
    for i in range(16):
        A(f"global_load_ushort {v(8 + i)}, v3, s[14:15] offset:{8 * i}")
    A("v_add_u32 v2, 4096, v2\ns_waitcnt vmcnt(0)")
    for j in range(8):
        A(f"v_lshl_or_b32 {v(24 + j)}, {v(9 + 2 * j)}, 16, {v(8 + 2 * j)}")
    A("global_store_dwordx4 v2, v[24:27], s[10:11]\nglobal_store_dwordx4 v2, v[28:31], s[10:11] offset:1024\ns_endpgm")
    A("""
    K1_PREP_W:
    v_lshrrev_b32 v3, 5, v1
    v_lshlrev_b32 v3, 10, v3
    v_and_b32 v4, 31, v1
    v_lshl_add_u32 v3, v4, 2, v3
    """)
    for i in range(8):
        A(f"global_load_dword {v(8 + i)}, v3, s[12:13] offset:{128 * i}")
    A(f"s_mov_b32 s18, {fbits(-math.log2(math.e))}\ns_waitcnt vmcnt(0)")
    for par in range(2):
        for i in range(8):
            if par == 0:
                A(f"v_lshlrev_b32 {v(16 + i)}, 16, {v(8 + i)}")
            else:
                A(f"v_and_b32 {v(16 + i)}, 0xffff0000, {v(8 + i)}")
            A(f"v_mul_f32 {v(16 + i)}, s18, {v(16 + i)}")
        H = 24 + 8 * par
        for j in range(4):
            A(f"""
            v_cvt_pk_bf16_f32 {v(H + j)}, {v(16 + 2 * j)}, {v(17 + 2 * j)}
            v_lshlrev_b32 v5, 16, {v(H + j)}
            v_and_b32 v6, 0xffff0000, {v(H + j)}
            v_sub_f32 v5, {v(16 + 2 * j)}, v5
            v_sub_f32 v6, {v(17 + 2 * j)}, v6
            v_cvt_pk_bf16_f32 {v(H + 4 + j)}, v5, v6
            """)
    for f in range(4):
        A(f"global_store_dwordx4 v2, {v(24 + 4 * f, 4)}, s[10:11] offset:{1024 * f}")
    A("K1_END:\ns_endpgm")


NW = 16
V_DBASE, V_DCNT, V_HALF16, V_ACCL, V_LAD, V_LAE, V_LAY = 1, 2, 3, 4, 5, 6, 7
V_ONE, V_CTRA, V_KK, V_KN, V_EID, V_SA, V_FA, V_MT = 8, 9, 10, 11, 12, 13, 14, 15
CG = 16
W = 24
D = 32
X = 64
TP = 80
ACC = 88
STG = 96
SO = 104
E = 112
T = 116
EF = 120
YR = 124
NVGPR2 = 128

S_X, S_EF, S_OUT, S_WS = 4, 8, 12, 16
S_BETA, S_WAVE, S_K0, S_WIDE, S_N, S_NT, S_NEXT, S_MASK = 18, 19, 20, 21, 22, 23, 24, 25
S_CMP = 26
S_MORE, S_TMP, S_C0, S_C1 = 28, 29, 30, 31
S_M1, S_M2 = 32, 40
S_ANY2 = 48
S_SC = 50
S_XP = 52
S_TMP2 = 56


def gen_k2(A, opt):
    name = NAME + "_kernel"
    efl = opt.get("ef_ld", "")
    P0, P1, P2, P3, P4, P5, P6 = 112, 113, 114, 115, 116, 117, 118
    kernel_head(A, name)
    stamp(A, opt, 0)
    if opt.get("diag") == "k2":
        A("s_memrealtime s[76:77]")
    A(f"""
    s_cmp_ge_u32 s2, 256
    s_cbranch_scc1 K2_END
    s_load_dwordx2 {s(S_WS, 2)}, s[0:1], 80
    s_load_dwordx2 {s(S_XP, 2)}, s[0:1], 0
    s_load_dwordx2 {s(S_EF, 2)}, s[0:1], 32
    s_load_dwordx2 {s(S_OUT, 2)}, s[0:1], 64
    s_and_b32 {s(S_BETA)}, s2, 7
    s_lshl_b32 {s(S_BETA)}, {s(S_BETA)}, 5
    s_lshr_b32 s3, s2, 3
    s_add_u32 {s(S_BETA)}, {s(S_BETA)}, s3
    v_lshrrev_b32 {v(P0)}, 6, v0
    v_and_b32 {v(P1)}, 63, v0
    v_readfirstlane_b32 {s(S_WAVE)}, {v(P0)}
    v_lshrrev_b32 {v(P2)}, 4, v0
    v_lshlrev_b32 {v(P2)}, 2, {v(P2)}
    v_and_or_b32 {v(P3)}, v0, 3, {v(P2)}
    s_lshl_b32 s3, {s(S_BETA)}, 2
    s_add_u32 s3, s3, {WS_TAB}
    v_lshl_add_u32 {v(P4)}, {v(P3)}, 10, s3
    v_lshlrev_b32 {v(P5)}, 4, {v(P1)}
    v_add_u32 {v(P5)}, {WS_WF + 2048}, {v(P5)}
    s_waitcnt lgkmcnt(0)
    global_load_dword {v(V_DCNT)}, {v(P4)}, {s(S_WS, 2)}
    global_load_dwordx4 {v(W, 4)}, {v(P5)}, {s(S_WS, 2)} offset:-2048
    global_load_dwordx4 {v(W + 4, 4)}, {v(P5)}, {s(S_WS, 2)}
    global_load_dwordx4 {v(CG, 4)}, {v(P5)}, {s(S_WS, 2)} offset:2048
    global_load_dwordx4 {v(CG + 4, 4)}, {v(P5)}, {s(S_WS, 2)} offset:3072
    s_sub_u32 {s(S_X)}, {s(S_XP)}, 512
    s_subb_u32 {s(S_X + 1)}, {s(S_XP + 1)}, 0
    s_and_b32 {s(S_X + 1)}, {s(S_X + 1)}, 0xffff
    s_or_b32 {s(S_X + 1)}, {s(S_X + 1)}, 0x100000
    s_mov_b32 {s(S_X + 2)}, 64
    s_mov_b32 {s(S_X + 3)}, 0x800000
    s_and_b32 {s(S_XP + 1)}, {s(S_XP + 1)}, 0xffff
    s_mov_b32 {s(S_XP + 2)}, 5120000
    s_mov_b32 {s(S_XP + 3)}, 0x20000
    s_and_b32 {s(S_EF + 1)}, {s(S_EF + 1)}, 0xffff
    s_mov_b32 {s(S_EF + 2)}, 20480000
    s_mov_b32 {s(S_EF + 3)}, 0x20000
    s_and_b32 {s(S_OUT + 1)}, {s(S_OUT + 1)}, 0xffff
    s_mov_b32 {s(S_OUT + 2)}, 5120000
    s_mov_b32 {s(S_OUT + 3)}, 0x20000
    s_mov_b32 {s(S_K0)}, 0
    s_mov_b32 {s(S_WIDE)}, 1
    v_mul_u32_u24 {v(V_DBASE)}, {RECSTRIDE}, {v(P3)}
    v_and_b32 {v(P4)}, 31, {v(P1)}
    v_lshrrev_b32 {v(P5)}, 5, {v(P1)}
    v_lshlrev_b32 {v(V_HALF16)}, 4, {v(P5)}
    v_lshlrev_b32 {v(V_ACCL)}, 3, {v(P4)}
    v_add_u32 {v(V_ACCL)}, {L_ACC}, {v(V_ACCL)}
    v_and_b32 {v(P6)}, 15, v0
    v_add_lshl_u32 {v(V_LAD)}, {v(P6)}, {v(V_HALF16)}, 2
    v_lshrrev_b32 {v(P6)}, 3, {v(P4)}
    v_lshlrev_b32 {v(P6)}, 2, {v(P6)}
    v_and_or_b32 {v(P6)}, {v(P4)}, 3, {v(P6)}
    v_lshlrev_b32 {v(P6)}, 2, {v(P6)}
    v_and_b32 {v(P0)}, 4, {v(P4)}
    v_lshl_add_u32 {v(V_LAE)}, {v(P0)}, 4, {v(P6)}
    v_lshrrev_b32 {v(P6)}, 2, {v(P4)}
    v_and_b32 {v(P0)}, 1, {v(P4)}
    v_lshl_add_u32 {v(P6)}, {v(P0)}, 3, {v(P6)}
    v_add_lshl_u32 {v(V_LAY)}, {v(P6)}, {v(V_HALF16)}, 3
    v_mov_b32 {v(V_ONE)}, 1
    v_mov_b32 {v(V_CTRA)}, {L_CTR}
    v_mov_b64 v[32:33], 0
    v_mov_b64 v[34:35], 0
    v_lshlrev_b32 {v(P6)}, 4, v0
    v_add_u32 {v(P6)}, {L_ACC}, {v(P6)}
    v_add_u32 {v(P0)}, {41 * NS - 16384}, {v(P6)}
    """)
    for i in range(4):
        A(f"ds_write_b128 {v(P6)}, v[32:35] offset:{16384 * i}")
    A(f"v_add_u32 {v(P6)}, 65536, {v(P6)}\nds_write_b128 {v(P0)}, v[32:35]\nds_write_b128 {v(P6)}, v[32:35]")
    assert 5 * 16384 <= 41 * NS <= 6 * 16384
    A(f"""
    s_waitcnt vmcnt(4)
    v_and_b32 {v(P0)}, 0xffff, {v(V_DCNT)}
    v_mad_u32_u24 {v(V_DBASE)}, {v(P0)}, 12, {v(V_DBASE)}
    v_lshrrev_b32 {v(V_DCNT)}, 16, {v(V_DCNT)}
    """)
    stamp(A, opt, 1)
    NC = 4
    REC1, REC2, RK1, RK2, HA1, HA2, PB, SC = 32, 48, 64, 68, 72, 76, 80, 84
    A(f"""
    K2_ROUND:
    v_and_b32 {v(P0)}, 0xff, v0
    v_lshlrev_b32 {v(P0)}, 2, {v(P0)}
    v_mov_b32 {v(P1)}, 0
    v_mov_b32 {v(P2)}, {NW}
    ds_write_b32 {v(P0)}, {v(P1)} offset:{L_HIST}
    ds_write2_b32 {v(V_CTRA)}, {v(P2)}, {v(P1)} offset0:0 offset1:1
    v_and_b32 {v(P3)}, 15, v0
    v_add_u32 {v(P3)}, {s(S_K0)}, {v(P3)}
    v_mul_u32_u24 {v(P4)}, 12, {v(P3)}
    s_lshl_b32 {s(S_TMP)}, 16, {s(S_WIDE)}
    s_add_u32 {s(S_TMP)}, {s(S_TMP)}, {s(S_K0)}
    v_cmp_lt_u32 {s(S_CMP, 2)}, {s(S_TMP)}, {v(V_DCNT)}
    s_cmp_eq_u32 {s(S_WIDE)}, 1
    s_cselect_b32 {s(S_C1)}, 16, 0x7fffffff
    s_mov_b64 {s(S_ANY2, 2)}, 0
    """)
    for c in range(NC):
        A(f"""
        v_add_u32_dpp {v(HA2 + c)}, {v(V_DBASE)}, {v(P4)} row_newbcast:{c} {DPP}
        v_sub_u32_dpp {v(P5)}, {v(V_DCNT)}, {v(P3)} row_newbcast:{c} {DPP}
        v_cmp_lt_i32 {s(S_M1 + 2 * c, 2)}, 0, {v(P5)}
        v_cmp_lt_i32 {s(S_M2 + 2 * c, 2)}, {s(S_C1)}, {v(P5)}
        """)
    for c in range(NC):
        A(f"""
        s_mov_b64 exec, {s(S_M1 + 2 * c, 2)}
        s_or_b64 {s(S_ANY2, 2)}, {s(S_ANY2, 2)}, {s(S_M2 + 2 * c, 2)}
        global_load_dwordx3 {v(REC1 + 4 * c, 3)}, {v(HA2 + c)}, {s(S_WS, 2)}
        """)
    A(f"s_cmp_eq_u64 {s(S_ANY2, 2)}, 0\ns_cbranch_scc1 K2_NOSEC_A")
    for c in range(NC):
        A(f"""
        s_mov_b64 exec, {s(S_M2 + 2 * c, 2)}
        s_cbranch_execz K2_SA{c}
        global_load_dwordx3 {v(REC2 + 4 * c, 3)}, {v(HA2 + c)}, {s(S_WS, 2)} offset:192
        K2_SA{c}:
        """)
    A(f"""
    K2_NOSEC_A:
    s_mov_b64 exec, -1
    v_lshrrev_b32 {v(PB)}, 4, v0
    v_mul_u32_u24 {v(PB)}, {4 * CHUNK}, {v(PB)}
    s_waitcnt lgkmcnt(0)
    s_barrier
    """)
    npre = opt.get("xpre", 0)
    if npre:
        A(f"""
        s_lshr_b32 {s(S_TMP)}, s2, 3
        s_mul_i32 {s(S_TMP)}, {s(S_TMP)}, {npre * 128}
        s_add_u32 {s(S_TMP)}, {s(S_TMP)}, {opt.get("xpre_base", 0)}
        v_lshl_add_u32 {v(P5)}, v0, 7, {s(S_TMP)}
        v_cmp_gt_u32 vcc, {npre}, v0
        v_mov_b32 {v(P6)}, 0x80000000
        s_nop 0
        v_cndmask_b32 {v(P5)}, {v(P6)}, {v(P5)}, vcc
        buffer_load_dword v127, {v(P5)}, {s(S_XP, 4)}, 0 offen
        """)
    A(f"""
    s_cmp_eq_u64 {s(S_CMP, 2)}, 0
    s_cbranch_scc1 K2_NOMORE
    ds_write_b32 {v(V_CTRA)}, {v(V_ONE)} offset:4
    K2_NOMORE:
    s_mov_b32 {s(S_C0)}, {opt.get("abl_x", 0x7ffe00)}
    s_mov_b32 {s(S_C1)}, 0xfc000fff
    s_waitcnt vmcnt({1 if npre else 0})
    """)
    stamp(A, opt, 2)
    nph = opt.get("nph", 0)

    def hist(rec, rk, ha, c):
        idx = rec + 4 * c + 2
        if nph:
            A(f"""
            v_bfe_u32 {v(P0)}, {v(idx)}, 12, 14
            v_mul_u32_u24 {v(P0)}, {(nph << 16) // 10001}, {v(P0)}
            v_lshrrev_b32 {v(P0)}, 16, {v(P0)}
            v_lshrrev_b32 {v(P1)}, 26, {v(idx)}
            v_lshl_or_b32 {v(P0)}, {v(P1)}, 2, {v(P0)}
            v_lshlrev_b32 {v(ha + c)}, 2, {v(P0)}
            """)
        else:
            A(f"v_lshlrev_b32_sdwa {v(ha + c)}, 2, {v(idx)} dst_sel:DWORD dst_unused:UNUSED_PAD src0_sel:DWORD src1_sel:BYTE_3")
        A(f"""
        v_and_b32 {v(idx + 1)}, {s(S_C1)}, {v(idx)}
        ds_add_rtn_u32 {v(rk + c)}, {v(ha + c)}, {v(V_ONE)} offset:{L_HIST}
        v_lshrrev_b32 {v(idx)}, 3, {v(idx)}
        v_and_b32 {v(idx)}, {s(S_C0)}, {v(idx)}
        s_movk_i32 {s(S_TMP)}, {c * CHUNK}
        """)
        if opt.get("abl_x"):
            A(f"v_add_u32 {v(idx)}, 512, {v(idx)}")
        if not opt.get("abl_ef"):
            A(f"v_add3_u32 {v(idx + 1)}, {v(idx + 1)}, {v(PB)}, {s(S_TMP)}")

    def place(rec, rk, ha, c):
        A(f"""
        v_add_lshl_u32 {v(ha + c)}, {v(ha + c)}, {v(rk + c)}, 2
        v_and_b32 {v(P0)}, 64, {v(ha + c)}
        v_lshlrev_b32 {v(rk + c)}, 1, {v(ha + c)}
        v_mad_i32_i24 {v(rec + 4 * c + 2)}, {v(P0)}, -8, {v(rec + 4 * c + 2)}
        ds_write_b64 {v(rk + c)}, {v(rec + 4 * c, 2)} offset:{L_Y}
        ds_write2st64_b32 {v(ha + c)}, {v(rec + 4 * c + 2)}, {v(rec + 4 * c + 3)} offset0:{L_SRC // 256} offset1:{L_EID // 256}
        """)

    for c in range(NC):
        A(f"s_mov_b64 exec, {s(S_M1 + 2 * c, 2)}")
        hist(REC1, RK1, HA1, c)
    A(f"s_cmp_eq_u64 {s(S_ANY2, 2)}, 0\ns_cbranch_scc1 K2_NOSEC_B")
    for c in range(NC):
        A(f"s_mov_b64 exec, {s(S_M2 + 2 * c, 2)}\ns_cbranch_execz K2_SB{c}")
        hist(REC2, RK2, HA2, c)
        A(f"K2_SB{c}:")
    order = opt.get("order", [0, 1, 2, 3])
    A(f"""
    K2_NOSEC_B:
    s_mov_b64 exec, -1
    v_and_b32 {v(P1)}, 63, v0
    v_lshlrev_b32 {v(P2)}, 4, {v(P1)}
    s_waitcnt lgkmcnt(0)
    s_barrier
    ds_read_b128 {v(SC, 4)}, {v(P2)} offset:{L_HIST}
    ds_read_b32 {v(P3)}, {v(V_CTRA)} offset:4
    s_waitcnt lgkmcnt(0)
    v_readfirstlane_b32 {s(S_MORE)}, {v(P3)}
    v_lshl_or_b32 {v(SC + 4)}, {v(SC + order[1])}, 16, {v(SC + order[0])}
    v_lshl_or_b32 {v(SC + 5)}, {v(SC + order[3])}, 16, {v(SC + order[2])}
    v_mov_b32 {v(SC + 6)}, {v(SC + 4)}
    v_mov_b32 {v(SC + 7)}, {v(SC + 5)}
    """)
    wave_scan(A, [SC + 6, SC + 7])
    A(f"""
    s_nop 0
    v_readlane_b32 s70, {v(SC + 6)}, 63
    v_readlane_b32 s71, {v(SC + 7)}, 63
    v_sub_u32 {v(SC + 6)}, {v(SC + 6)}, {v(SC + 4)}
    v_sub_u32 {v(SC + 7)}, {v(SC + 7)}, {v(SC + 5)}
    s_and_b32 s72, s70, 0xffff
    s_lshr_b32 s73, s70, 16
    s_add_u32 s73, s73, s72
    s_and_b32 s74, s71, 0xffff
    s_add_u32 s74, s74, s73
    s_lshr_b32 {s(S_N)}, s71, 16
    s_add_u32 {s(S_N)}, {s(S_N)}, s74
    s_cmp_le_u32 {s(S_N)}, {CAP}
    s_cbranch_scc1 K2_FITS
    s_mov_b32 {s(S_WIDE)}, 0
    s_waitcnt vmcnt(0)
    s_barrier
    s_branch K2_ROUND
    K2_FITS:
    v_and_b32 {v(SC + order[0])}, 0xffff, {v(SC + 6)}
    v_lshrrev_b32 {v(SC + 6)}, 16, {v(SC + 6)}
    v_add_u32 {v(SC + order[1])}, s72, {v(SC + 6)}
    v_and_b32 {v(SC + 6)}, 0xffff, {v(SC + 7)}
    v_add_u32 {v(SC + order[2])}, s73, {v(SC + 6)}
    v_lshrrev_b32 {v(SC + 7)}, 16, {v(SC + 7)}
    v_add_u32 {v(SC + order[3])}, s74, {v(SC + 7)}
    ds_write_b128 {v(P2)}, {v(SC, 4)} offset:{L_PREF}
    s_add_u32 {s(S_NT)}, {s(S_N)}, 31
    s_lshr_b32 {s(S_NT)}, {s(S_NT)}, 5
    """)
    for c in range(NC):
        A(f"s_mov_b64 exec, {s(S_M1 + 2 * c, 2)}\nds_read_b32 {v(HA1 + c)}, {v(HA1 + c)} offset:{L_PREF}")
    A(f"""
    s_mov_b64 exec, -1
    v_add_lshl_u32 {v(P1)}, {v(P1)}, {s(S_N)}, 2
    v_lshlrev_b32 {v(P2)}, 1, {v(P1)}
    v_mov_b64 {v(SC + 4, 2)}, 0
    v_mov_b32 {v(SC + 6)}, 512
    v_mov_b32 {v(SC + 7)}, {(40 << 26) | 0xfffff}
    ds_write_b64 {v(P2)}, {v(SC + 4, 2)} offset:{L_Y}
    ds_write2st64_b32 {v(P1)}, {v(SC + 6)}, {v(SC + 7)} offset0:{L_SRC // 256} offset1:{L_EID // 256}
    s_waitcnt lgkmcnt(2)
    """)
    for c in range(NC):
        A(f"s_mov_b64 exec, {s(S_M1 + 2 * c, 2)}")
        place(REC1, RK1, HA1, c)
    A(f"s_cmp_eq_u64 {s(S_ANY2, 2)}, 0\ns_cbranch_scc1 K2_NOSEC_C")
    for c in range(NC):
        A(f"""
        s_mov_b64 exec, {s(S_M2 + 2 * c, 2)}
        s_cbranch_execz K2_SC{c}
        ds_read_b32 {v(HA2 + c)}, {v(HA2 + c)} offset:{L_PREF}
        s_waitcnt lgkmcnt(0)
        """)
        place(REC2, RK2, HA2, c)
        A(f"K2_SC{c}:")

    def tile_addr(t4, t8):
        A(f"""
        v_add_u32 {v(V_EID)}, {s(t4)}, {v(V_LAE)}
        v_add_u32 {v(V_KN)}, {s(t4)}, {v(V_LAD)}
        v_add_u32 {v(V_MT)}, {s(t8)}, {v(V_LAY)}
        v_lshl_add_u32 {v(V_SA)}, {v(V_HALF16)}, 2, {s(t4)}
        """)

    def tile_reads():
        A(f"""
        ds_read_b32 {v(V_EID)}, {v(V_EID)} offset:{L_EID}
        ds_read_b32 {v(V_KN)}, {v(V_KN)} offset:{L_EID}
        ds_read_b64 {v(YR, 2)}, {v(V_MT)} offset:{L_Y}
        """)

    def so_read(g):
        A(f"ds_read_b128 {v(SO + 4 * (g % 2), 4)}, {v(V_SA)} offset:{L_SRC + 16 * (g % 4)}")

    def xload(r):
        A(f"buffer_load_dwordx4 {v(X + 4 * (r % 4), 4)}, {v(SO + 4 * ((r // 4) % 2) + r % 4)}, {s(S_X, 4)}, 0 offen")

    def ef_load():
        A(f"v_mad_u32_u24 {v(V_EID)}, {v(V_EID)}, 32, {v(V_HALF16)}")
        A(f"buffer_load_dwordx4 {v(EF, 4)}, {v(V_EID)}, {s(S_EF, 4)}, 0 offen {efl}")

    key_ops = [f"v_mul_u32_u24_sdwa {v(V_KN)}, {s(S_C0)}, {v(V_KN)} dst_sel:DWORD dst_unused:UNUSED_PAD src0_sel:DWORD src1_sel:BYTE_3",
               f"v_xor_b32_dpp {v(V_MT)}, {v(V_KN)}, {v(V_KN)} row_shl:1 {DPP} bound_ctrl:0",
               f"v_cmp_ne_u32 {s(S_CMP, 2)}, 0, {v(V_MT)}"]

    A(f"""
    K2_NOSEC_C:
    s_mov_b64 exec, -1
    s_lshl_b32 {s(S_TMP)}, {s(S_WAVE)}, 7
    s_lshl_b32 {s(S_TMP2)}, {s(S_WAVE)}, 8
    """)
    tile_addr(S_TMP, S_TMP2)
    A(f"""
    s_movk_i32 {s(S_C0)}, {NS // 4}
    v_mov_b32 {v(V_KK)}, {40 * NS}
    s_waitcnt lgkmcnt(0)
    s_barrier
    """)
    stamp(A, opt, 3)
    if opt.get("diag") == "sorted":
        A("s_memrealtime s[76:77]")
    A(f"s_cmp_ge_u32 {s(S_WAVE)}, {s(S_NT)}\ns_cbranch_scc1 K2_MAIN_DONE")
    A(f"ds_read_b32 {v(V_EID)}, {v(V_EID)} offset:{L_EID}")
    so_read(0)
    A(f"ds_read_b32 {v(V_KN)}, {v(V_KN)} offset:{L_EID}\nds_read_b64 {v(YR, 2)}, {v(V_MT)} offset:{L_Y}")
    so_read(1)
    A("s_waitcnt lgkmcnt(4)")
    ef_load()
    A("s_waitcnt lgkmcnt(3)")
    for r in range(4):
        xload(r)
    A("s_waitcnt lgkmcnt(0)")
    A(key_ops[0] + "\ns_nop 1\n" + key_ops[1] + "\n" + key_ops[2])
    A("s_waitcnt vmcnt(4)")
    stamp(A, opt, 4)

    def flush_ops(r):
        ops = [[f"v_add_u32_dpp {v(V_FA)}, {v(V_KK)}, {v(V_ACCL)} row_newbcast:{r} {DPP}"]]
        for j in range(8):
            st = STG + 2 * (j % 4)
            ops.append([f"v_cvt_f64_f32 {v(st, 2)}, {v(ACC + j)}", f"ds_add_f64 {v(V_FA)}, {v(st, 2)} offset:{RS * j}"])
        return ops

    def emit(groups):
        for g in groups:
            for op in ([g] if isinstance(g, str) else g):
                A(op)

    def acc_ops(r, first):
        ops = []
        for j in range(4):
            rr = D + 16 * (j // 2) + (r & ~1)
            o = r & 1
            if first:
                ops.append(f"v_pk_mul_f32 {v(ACC + 2 * j, 2)}, {v(rr, 2)}, {v(TP + 2 * j, 2)} op_sel:[{o},0] op_sel_hi:[{o},1]")
            else:
                ops.append(f"v_pk_fma_f32 {v(ACC + 2 * j, 2)}, {v(rr, 2)}, {v(TP + 2 * j, 2)}, {v(ACC + 2 * j, 2)} op_sel:[{o},0,0] op_sel_hi:[{o},1,1]")
        return ops

    def exp_ops(q):
        return [f"v_exp_f32 {v(E + j)}, {v(D + 16 * (j // 2) + q + j % 2)}" for j in range(4)]

    add_ops = [f"v_pk_add_f32 {v(E + 2 * j, 2)}, {v(E + 2 * j, 2)}, 1.0 op_sel_hi:[1,0]" for j in range(2)]
    rcp_ops = [f"v_rcp_f32 {v(E + j)}, {v(E + j)}" for j in range(4)]

    def mul_ops(q):
        return [f"v_pk_mul_f32 {v(D + 16 * j + q, 2)}, {v(D + 16 * j + q, 2)}, {v(E + 2 * j, 2)}" for j in range(2)]

    A(".p2align 6")
    loop_start = len(A.lines)
    A("K2_LOOP:")
    fo = flush_ops(15)
    tm = [f"v_mfma_f32_4x4x4_16b_bf16 {v(D + 16 + 4 * i, 4)}, {v(YR, 2)}, {v(CG + 2 * i, 2)}, 0" for i in range(4)]
    tc = [f"v_cvt_pk_bf16_f32 {v(T + 2 * j + hh)}, {v(D + 16 + 8 * hh + j)}, {v(D + 20 + 8 * hh + j)}" for hh in range(2) for j in range(2)]
    ex = exp_ops(0)
    emit([tm[0], fo[0], tm[1], fo[1], tm[2], fo[2], tm[3], fo[3]])
    A(f"v_mfma_f32_32x32x16_bf16 {v(D, 16)}, {v(EF, 4)}, {v(W, 4)}, 0")
    emit([tc[0], tc[1], fo[4], fo[5], tc[2], tc[3]])
    A(f"v_mfma_f32_32x32x16_bf16 {v(D + 16, 16)}, {v(EF, 4)}, {v(W + 4, 4)}, 0")
    emit([fo[6], fo[7], fo[8], f"v_mov_b32 {v(V_KK)}, {v(V_KN)}", f"s_or_b32 {s(S_MASK)}, {s(S_CMP)}, {s(S_CMP + 1)}",
          ex[0], ex[1], "s_nop 1", ex[2], ex[3], "s_nop 0"] + add_ops)
    for r in range(16):
        tr = T + (2 if r >= 8 else 0)
        m4 = [f"v_mfma_f32_4x4x4_16b_bf16 {v(TP + 4 * h, 4)}, {v(tr, 2)}, {v(X + 4 * (r % 4) + 2 * h, 2)}, 0 cbsz:3 abid:{r % 8}" for h in range(2)]
        A(f"s_waitcnt vmcnt({4 if 9 <= r <= 12 else 3})")
        if r == 15:
            emit([m4[0], key_ops[0], m4[1]])
            xload(r + 4)
            emit([key_ops[1], key_ops[2]])
            side = []
        else:
            trans = rcp_ops if r % 2 == 0 else exp_ops(r + 1)
            side = mul_ops(r) if r % 2 == 0 else add_ops
            emit([m4[0], trans[0], m4[1], trans[1], trans[2], trans[3]])
            if r % 4 == 0 and r > 0:
                A("s_waitcnt lgkmcnt(0)")
            xload(r + 4)
        if r % 4 == 0:
            so_read(r // 4 + 2)
        if r == 1:
            A(f"s_mov_b64 exec, 1\nds_add_rtn_u32 {v(V_MT)}, {v(V_CTRA)}, {v(V_ONE)}\ns_mov_b64 exec, -1")
        if r == 4:
            A(f"v_readfirstlane_b32 {s(S_NEXT)}, {v(V_MT)}")
        if r == 5:
            A(f"s_min_u32 {s(S_NEXT)}, {s(S_NEXT)}, {s(S_NT)}\ns_lshl_b32 {s(S_TMP)}, {s(S_NEXT)}, 7\ns_lshl_b32 {s(S_TMP2)}, {s(S_NEXT)}, 8")
            tile_addr(S_TMP, S_TMP2)
            tile_reads()
        if r == 8:
            ef_load()
        if r == 14:
            A("s_waitcnt lgkmcnt(0)")
        emit(side)
        if r > 0:
            A(f"s_bitcmp1_b32 {s(S_MASK)}, {r - 1}\ns_cbranch_scc1 K2_F{r}")
        emit(acc_ops(r, r == 0))
        if r > 0:
            A(f"K2_R{r}:")
    A(f"s_cmp_lt_u32 {s(S_NEXT)}, {s(S_NT)}\ns_cbranch_scc1 K2_LOOP")
    drop = opt.get("drop", [])
    if drop:
        A.lines[loop_start:] = [ln for ln in A.lines[loop_start:] if not any(d in ln for d in drop)]
    emit(flush_ops(15))
    A("s_branch K2_MAIN_DONE")
    for r in range(1, 16):
        A(f"K2_F{r}:")
        emit(flush_ops(r - 1))
        emit(acc_ops(r, True))
        A(f"s_branch K2_R{r}")
    WM, A64, AG, AF, OD, OP = 32, 80, 16, 8, 80, 96
    A("K2_MAIN_DONE:")
    stamp(A, opt, 5)
    A(f"""
    s_cmp_eq_u32 {s(S_MORE)}, 0
    s_cbranch_scc1 K2_EPI
    s_lshl_b32 {s(S_TMP)}, 16, {s(S_WIDE)}
    s_add_u32 {s(S_K0)}, {s(S_K0)}, {s(S_TMP)}
    s_waitcnt vmcnt(0) lgkmcnt(0)
    s_barrier
    s_branch K2_ROUND
    K2_EPI:
    s_cmp_ge_u32 {s(S_WAVE)}, 10
    s_cbranch_scc0 K2_MIX
    s_waitcnt lgkmcnt(0)
    s_barrier
    """)
    stamp(A, opt, 6)
    A(f"""
    s_branch K2_FIN
    K2_MIX:
    v_and_b32 v1, 63, v0
    v_lshlrev_b32 v2, 4, v1
    v_add_u32 v2, {WS_WF + 6144}, v2
    v_add_u32 v3, 4096, v2
    """)
    for f in range(8):
        A(f"global_load_dwordx4 {v(WM + 4 * f, 4)}, {'v2' if f < 4 else 'v3'}, {s(S_WS, 2)} offset:{1024 * (f % 4)}")
    A(f"""
    v_bfe_u32 v2, v1, 2, 2
    v_mul_u32_u24 v2, {NS}, v2
    v_and_b32 v3, 3, v1
    v_mul_u32_u24 v3, {RS}, v3
    v_lshrrev_b32 v4, 4, v1
    v_lshlrev_b32 v5, 6, v4
    v_add3_u32 v2, v2, v3, v5
    s_mul_i32 s70, {s(S_WAVE)}, {4 * NS}
    s_add_u32 s70, s70, {L_ACC}
    v_add_u32 v2, s70, v2
    v_and_b32 v3, 15, v1
    v_lshlrev_b32 v3, 4, v3
    v_lshl_add_u32 v3, v4, 17, v3
    s_lshl_b32 s70, {s(S_WAVE)}, 19
    s_lshl_b32 s71, {s(S_BETA)}, 9
    s_add_u32 s70, s70, s71
    v_add_u32 v3, s70, v3
    s_mov_b32 {s(S_SC)}, {fbits(-math.log(2.0))}
    s_mov_b32 {s(S_SC + 1)}, {fbits(-math.log(2.0))}
    s_waitcnt lgkmcnt(0)
    s_barrier
    """)
    stamp(A, opt, 6)
    for cpar in range(2):
        for hh in range(4):
            A(f"ds_read_b128 {v(A64 + 16 * cpar + 4 * hh, 4)}, v2 offset:{4 * RS * cpar + 16 * hh}")
    for j in range(8):
        A(f"s_waitcnt lgkmcnt({7 - j})")
        A(f"v_cvt_f32_f64 {v(AG + 2 * j)}, {v(A64 + 4 * j, 2)}")
        A(f"v_cvt_f32_f64 {v(AG + 2 * j + 1)}, {v(A64 + 4 * j + 2, 2)}")
    for j in range(8):
        A(f"v_pk_mul_f32 {v(AG + 2 * j, 2)}, {v(AG + 2 * j, 2)}, {s(S_SC, 2)}")
    for j in range(8):
        A(f"v_cvt_pk_bf16_f32 {v(AF + j)}, {v(AG + 2 * j)}, {v(AG + 2 * j + 1)}")
    A("s_waitcnt vmcnt(0)\ns_nop 0")
    for dt in range(4):
        A(f"v_mfma_f32_16x16x32_bf16 {v(OD + 4 * dt, 4)}, {v(AF, 4)}, {v(WM + 4 * dt, 4)}, 0")
    for dt in range(4):
        A(f"v_mfma_f32_16x16x32_bf16 {v(OD + 4 * dt, 4)}, {v(AF + 4, 4)}, {v(WM + 16 + 4 * dt, 4)}, {v(OD + 4 * dt, 4)}")
    A("s_nop 7")
    for j in range(8):
        A(f"v_cvt_pk_bf16_f32 {v(OP + j)}, {v(OD + 2 * j)}, {v(OD + 2 * j + 1)}")
    ost = opt.get("out_st", "")
    A(f"buffer_store_dwordx4 {v(OP, 4)}, v3, {s(S_OUT, 4)}, 0 offen {ost}")
    A(f"buffer_store_dwordx4 {v(OP + 4, 4)}, v3, {s(S_OUT, 4)}, 0 offen offset:256 {ost}")
    A("K2_FIN:")
    if opt.get("diag"):
        if opt["diag"] == "k1":
            A(f"s_lshl_b32 s76, s2, 2\ns_add_u32 s76, s76, {100 << 20}\ns_load_dword s76, {s(S_WS, 2)}, s76")
        A("""
        s_waitcnt lgkmcnt(0)
        K2_SPIN:
        s_memrealtime s[74:75]
        s_waitcnt lgkmcnt(0)
        s_sub_u32 s74, s74, s76
        s_cmp_lt_u32 s74, 10000
        s_cbranch_scc1 K2_SPIN
        """)
    if opt.get("prof"):
        A("s_waitcnt vmcnt(0)")
        stamp(A, opt, 7)
        stamp_out(A, opt, 8, S_WS, (128 << 20) + (1 << 20), S_WAVE)
    A("K2_END:\ns_endpgm")


def gen_probe(A, name, argoff, flag, base=0):
    kernel_head(A, name)
    if argoff is not None:
        A(f"""
        s_cmp_ge_u32 s2, 256
        s_cbranch_scc1 {name}_END
        s_load_dwordx2 s[4:5], s[0:1], {argoff}
        s_mul_i32 s6, s2, 80000
        s_add_u32 s6, s6, {base}
        v_lshl_add_u32 v1, v0, 4, s6
        v_cmp_gt_u32 vcc, 1000, v0
        s_mov_b64 exec, vcc
        s_waitcnt lgkmcnt(0)
        """)
        for j in range(5):
            A(f"global_load_dwordx4 v[4:7], v1, s[4:5] {flag}\nv_add_u32 v1, 16000, v1")
        A(f"s_waitcnt vmcnt(0)\n{name}_END:")
    A("s_endpgm")


def gen_probe_copy(A, name, rd, wr, lf, sf):
    kernel_head(A, name)
    A(f"""
    s_cmp_ge_u32 s2, 256
    s_cbranch_scc1 {name}_END
    s_load_dwordx2 s[4:5], s[0:1], 32
    s_load_dwordx2 s[8:9], s[0:1], 80
    s_mul_i32 s6, s2, 80000
    v_lshl_add_u32 v1, v0, 4, s6
    v_add_u32 v2, {64 << 20}, v1
    v_cmp_gt_u32 vcc, 1000, v0
    s_mov_b64 exec, vcc
    s_waitcnt lgkmcnt(0)
    """)
    for j in range(5):
        if rd:
            A(f"global_load_dwordx4 v[{4 + 4 * j}:{7 + 4 * j}], v1, s[4:5] {lf}\nv_add_u32 v1, 16000, v1")
    for j in range(5):
        if rd:
            A("s_waitcnt vmcnt(4)")
        if wr:
            A(f"global_store_dwordx4 v2, v[{4 + 4 * j}:{7 + 4 * j}], s[8:9] {sf}\nv_add_u32 v2, 16000, v2")
    A(f"s_waitcnt vmcnt(0)\n{name}_END:\ns_endpgm")


CPROBES = {"pcopy_kernel": (1, 1, "", ""), "pwrite_kernel": (0, 1, "", ""), "pcopynt_kernel": (1, 1, "nt", ""), "pwritesc_kernel": (0, 1, "", "sc0 sc1"), "pwritent_kernel": (0, 1, "", "nt")}
PROBES = {"empty_kernel": (None, ""), "pef_kernel": (32, ""), "pefnt_kernel": (32, "nt"), "pws_kernel": (80, "", 64 << 20), "pwsend_kernel": (80, "", 230 << 20)}


def generate(opt):
    A = Asm()
    out = HEADER
    for p in opt.get("pre", []):
        out += f"; @launch kernel={p} grid=(256,1,1) block=(1024,1,1) lds=0\n"
    out += f"; @launch kernel=sort_kernel grid=(257,1,1) block=(640,1,1) lds={K1_LDS}\n"
    out += f"; @launch kernel={NAME}_kernel grid=(256,1,1) block=(1024,1,1) lds={K2_LDS}\n"
    for p in opt.get("post", []):
        out += f"; @launch kernel={p} grid=(256,1,1) block=(1024,1,1) lds=0\n"
    out += '.amdgcn_target "amdgcn-amd-amdhsa--gfx950"\n.text\n'
    probes = sorted(set(opt.get("pre", []) + opt.get("post", [])))
    for p in probes:
        if p in PROBES:
            gen_probe(A, p, *PROBES[p])
        else:
            gen_probe_copy(A, p, *CPROBES[p])
    gen_k1(A, opt)
    gen_k2(A, opt)
    out += A.text()
    out += '.section .rodata,"a"\n.p2align 6\n'
    out += descriptor("sort_kernel", 48, 96)
    out += ".p2align 6\n"
    out += descriptor(NAME + "_kernel", NVGPR2, 96)
    for p in probes:
        out += ".p2align 6\n" + descriptor(p, 24, 16)
    return out


if __name__ == "__main__":
    opt = eval("dict(" + (sys.argv[2] if len(sys.argv) > 2 else "") + ")")
    path = sys.argv[1] if len(sys.argv) > 1 else f"cdna_kernels/{NAME}.s"
    open(path, "w").write(generate(opt))
```

```python
import sys, struct, math

NAME = "standalone__tensor_product_equiv_tfn__graph"

HEADER = """; Kernarg layout for this problem (88 bytes, ptrs only, base s[0:1]):
"""

CHUNK = 2500
RECSTRIDE = 30080
WS_TAB = 256 * RECSTRIDE
WS_WF = WS_TAB + 256 * 1024

RS = 272
NS = 8 * RS
L_HIST = 0
L_PREF = 1024
L_CTR = 2048
CAP = 4096
L_SRC = 2304
L_EID = L_SRC + (CAP + 64) * 4
L_Y = L_EID + (CAP + 64) * 4
L_ACC = L_Y + (CAP + 64) * 8
K2_LDS = L_ACC + 41 * NS
K1_LDS = 32768

DPP = "row_mask:0xf bank_mask:0xf"


def fbits(x):
    return "0x%08x" % struct.unpack("<I", struct.pack("<f", x))[0]


class Asm:
    def __init__(self):
        self.lines = []

    def __call__(self, s):
        for ln in s.strip("\n").split("\n"):
            ln = ln.strip()
            if not ln:
                continue
            if ln.endswith(":") or ln.startswith("."):
                self.lines.append(ln)
            else:
                self.lines.append("    " + ln)

    def text(self):
        return "\n".join(self.lines) + "\n"


def v(a, n=1):
    return f"v{a}" if n == 1 else f"v[{a}:{a+n-1}]"


def s(a, n=1):
    return f"s{a}" if n == 1 else f"s[{a}:{a+n-1}]"


def wave_scan(A, regs):
    steps = ["row_shr:1 " + DPP + " bound_ctrl:0", "row_shr:2 " + DPP + " bound_ctrl:0",
             "row_shr:4 " + DPP + " bound_ctrl:0", "row_shr:8 " + DPP + " bound_ctrl:0",
             "row_bcast:15 row_mask:0xa bank_mask:0xf", "row_bcast:31 row_mask:0xc bank_mask:0xf"]
    for st in steps:
        A("s_nop 1")
        for r in regs:
            A(f"v_add_u32_dpp {v(r)}, {v(r)}, {v(r)} {st}")


def kernel_head(A, name):
    A(f".globl {name}\n.p2align 8\n.type {name},@function\n{name}:")


def descriptor(name, vgpr, sgpr):
    acc = (vgpr + 3) // 4 * 4
    return f""".amdhsa_kernel {name}
  .amdhsa_next_free_vgpr {vgpr}
  .amdhsa_next_free_sgpr {sgpr}
  .amdhsa_accum_offset {acc}
  .amdhsa_group_segment_fixed_size 0
  .amdhsa_kernarg_size 88
  .amdhsa_user_sgpr_count 2
  .amdhsa_user_sgpr_kernarg_segment_ptr 1
  .amdhsa_system_sgpr_workgroup_id_x 1
  .amdhsa_float_denorm_mode_32 3
.end_amdhsa_kernel
"""


def stamp(A, opt, slot):
    if opt.get("prof"):
        A(f"{'s_memtime' if opt['prof'] == 'clk' else 's_memrealtime'} {s(80 + 2 * slot, 2)}")
        if opt["prof"] == "both" and slot in (3, 5):
            A(f"s_waitcnt lgkmcnt(0)\ns_memtime {s(80 + (slot - 1), 2)}")


def stamp_out(A, opt, nslots, wsreg, base, wave_sgpr):
    if opt.get("prof"):
        A("s_waitcnt lgkmcnt(0)")
        A(f"s_lshl_b32 s78, s2, 4\ns_add_u32 s78, s78, {s(wave_sgpr)}\ns_lshl_b32 s78, s78, 5\ns_add_u32 s78, s78, {base}")
        A("s_mov_b64 exec, -1\nv_mov_b32 v1, s78")
        for i in range(nslots):
            A(f"v_mov_b32 v2, {s(80 + 2 * i)}\nglobal_store_dword v1, v2, {s(wsreg, 2)} offset:{4 * i}")


def gen_k1(A, opt):
    ld = opt.get("k1_ld", "")
    st = opt.get("k1_st", "")
    kernel_head(A, "sort_kernel")
    stamp(A, opt, 0)
    if opt.get("diag"):
        A("s_memrealtime s[40:41]")
    A("""
    s_cmp_gt_u32 s2, 256
    s_cbranch_scc1 K1_END
    s_load_dwordx4 s[4:7], s[0:1], 8
    s_load_dwordx2 s[8:9], s[0:1], 24
    s_load_dwordx2 s[10:11], s[0:1], 80
    s_load_dwordx2 s[18:19], s[0:1], 0
    s_load_dwordx2 s[20:21], s[0:1], 32
    v_lshrrev_b32 v1, 6, v0
    s_cmp_eq_u32 s2, 256
    v_readfirstlane_b32 s3, v1
    s_cbranch_scc1 K1_PREP
    """)
    A(f"""
    s_mul_i32 s12, s2, {CHUNK * 4}
    s_mul_i32 s13, s2, {CHUNK * 8}
    v_lshl_add_u32 v1, v0, 4, s12
    v_lshl_add_u32 v2, v0, 5, s13
    v_and_b32 v3, 0xff, v0
    v_lshlrev_b32 v3, 2, v3
    v_mov_b32 v4, 0
    ds_write_b32 v3, v4
    v_cmp_gt_u32 vcc, {CHUNK // 4}, v0
    s_mov_b64 s[14:15], vcc
    s_mov_b64 exec, vcc
    s_waitcnt lgkmcnt(0)
    global_load_dwordx4 v[8:11], v1, s[6:7] {ld}
    global_load_dwordx4 v[12:15], v1, s[4:5] {ld}
    global_load_dwordx4 v[16:19], v2, s[8:9] {ld}
    global_load_dwordx4 v[20:23], v2, s[8:9] offset:16 {ld}
    """)
    npre = 0
    A("""
    v_mov_b32 v5, 1
    v_lshlrev_b32 v6, 2, v0
    v_add_u32 v6, 4096, v6
    s_lshr_b32 s22, s2, 3
    s_barrier
    """)

    def touch(base, nlines, total, stride_shift, per_xcd, origin=0):
        nonlocal npre
        done = 0
        while done < nlines:
            n = min(nlines - done, 625)
            A(f"""
            s_mul_i32 s23, {'s22' if per_xcd else 's2'}, {nlines << stride_shift}
            s_add_u32 s23, s23, {origin + (done << stride_shift)}
            v_min_u32 v40, {n - 1}, v0
            v_lshl_add_u32 v40, v40, {stride_shift}, s23
            v_min_u32 v40, {total - 4}, v40
            global_load_dword v41, v40, {base}
            """)
            npre += 1
            done += n

    if opt.get("t_code"):
        A(f"""
        s_getpc_b64 s[24:25]
        K1_PC:
        s_add_u32 s24, s24, {NAME}_kernel - K1_PC
        s_addc_u32 s25, s25, 0
        v_min_u32 v40, (K2_END - {NAME}_kernel) / 128, v0
        v_lshlrev_b32 v40, 7, v40
        global_load_dword v41, v40, s[24:25]
        """)
        npre += 1
    if opt.get("t_tlb"):
        touch("s[20:21]", 10, 20480000, 16, True)
        touch("s[18:19]", 3, 5120000, 16, True)
    if opt.get("t_xl2"):
        touch("s[18:19]", opt["t_xl2"], 5120000, 7, True)
    if opt.get("t_xmall"):
        touch("s[18:19]", 157, 5120000, 7, False)
    if opt.get("t_efmall"):
        touch("s[20:21]", opt["t_efmall"], 20480000, 7, False)
    A(f"s_waitcnt vmcnt({3 + npre})")
    for k in range(4):
        A(f"v_lshlrev_b32_sdwa {v(24 + k)}, 2, {v(8 + k)} dst_sel:DWORD dst_unused:UNUSED_PAD src0_sel:DWORD src1_sel:BYTE_0")
    for k in range(4):
        A(f"ds_add_rtn_u32 {v(28 + k)}, {v(24 + k)}, v5")
    A(f"s_waitcnt vmcnt({2 + npre})")
    for k in range(4):
        A(f"""
        v_lshrrev_b32 {v(8 + k)}, 8, {v(8 + k)}
        v_lshl_or_b32 {v(8 + k)}, {v(8 + k)}, 14, {v(12 + k)}
        v_or_b32 v7, {k}, v6
        v_lshl_add_u32 {v(8 + k)}, {v(8 + k)}, 12, v7
        """)
    A("""
    s_mov_b64 exec, -1
    v_and_b32 v3, 63, v0
    v_lshlrev_b32 v3, 4, v3
    s_waitcnt lgkmcnt(0)
    s_barrier
    ds_read_b128 v[32:35], v3
    s_waitcnt lgkmcnt(0)
    v_add_u32 v38, v32, v33
    v_add_u32 v39, v38, v34
    v_add_u32 v4, v39, v35
    v_mov_b32 v36, v4
    """)
    wave_scan(A, [36])
    A(f"""
    v_sub_u32 v36, v36, v4
    v_add_u32 v37, v36, v32
    v_add_u32 v38, v36, v38
    v_add_u32 v39, v36, v39
    ds_write_b128 v3, v[36:39] offset:1024
    s_mov_b64 exec, s[14:15]
    """)
    for k in range(4):
        A(f"ds_read_b32 {v(24 + k)}, {v(24 + k)} offset:1024")
    A(f"""
    s_mov_b64 exec, -1
    s_cmp_lg_u32 s3, 0
    s_cbranch_scc1 K1_NOTAB
    s_lshl_b32 s16, s2, 10
    s_add_u32 s16, s16, {WS_TAB}
    v_add_u32 v3, s16, v3
    v_lshl_or_b32 v32, v32, 16, v36
    v_lshl_or_b32 v33, v33, 16, v37
    v_lshl_or_b32 v34, v34, 16, v38
    v_lshl_or_b32 v35, v35, 16, v39
    global_store_dwordx4 v3, v[32:35], s[10:11] {st}
    K1_NOTAB:
    s_mov_b64 exec, s[14:15]
    s_movk_i32 s17, 2048
    s_waitcnt lgkmcnt(0)
    """)
    for k in range(4):
        A(f"v_add_u32 {v(24 + k)}, {v(24 + k)}, {v(28 + k)}\nv_mad_u32_u24 {v(24 + k)}, {v(24 + k)}, 12, s17")
    for k in range(4):
        A(f"ds_write_b32 {v(24 + k)}, {v(8 + k)} offset:8")
    if npre:
        A(f"s_cmp_lg_u32 s3, 0\ns_cbranch_scc1 K1_W0\ns_waitcnt vmcnt({npre + 1})\ns_branch K1_W1\nK1_W0:\ns_waitcnt vmcnt({npre})\nK1_W1:")
    else:
        A("s_cmp_lg_u32 s3, 0\ns_cbranch_scc1 K1_W0\ns_waitcnt vmcnt(1)\ns_branch K1_W1\nK1_W0:\ns_waitcnt vmcnt(0)\nK1_W1:")
    for k in range(4):
        A(f"ds_write2_b32 {v(24 + k)}, {v(16 + 2 * k)}, {v(17 + 2 * k)} offset0:0 offset1:1")
    A(f"""
    s_mov_b64 exec, -1
    v_lshlrev_b32 v3, 4, v0
    s_mul_i32 s16, s2, {RECSTRIDE}
    v_add_u32 v4, s16, v3
    v_add_u32 v5, 10240, v4
    v_add_u32 v6, 20480, v4
    v_cmp_gt_u32 vcc, {CHUNK * 12 // 16 - 1280}, v0
    s_waitcnt lgkmcnt(0)
    s_barrier
    ds_read_b128 v[8:11], v3 offset:2048
    ds_read_b128 v[12:15], v3 offset:{2048 + 10240}
    ds_read_b128 v[16:19], v3 offset:{2048 + 20480}
    s_waitcnt lgkmcnt(2)
    global_store_dwordx4 v4, v[8:11], s[10:11] {st}
    s_waitcnt lgkmcnt(1)
    global_store_dwordx4 v5, v[12:15], s[10:11] {st}
    s_mov_b64 exec, vcc
    s_waitcnt lgkmcnt(0)
    global_store_dwordx4 v6, v[16:19], s[10:11] {st}
    s_mov_b64 exec, -1
    """)
    if opt.get("l_xl2"):
        touch("s[18:19]", opt["l_xl2"], 5120000, 7, True, opt.get("l_xl2_base", 0))
    if opt.get("l_xmall"):
        touch("s[18:19]", 157, 5120000, 7, False)
    if opt.get("l_efmall"):
        touch("s[20:21]", opt["l_efmall"], 20480000, 7, False)
    if opt.get("diag"):
        A(f"s_lshl_b32 s42, s2, 2\ns_add_u32 s42, s42, {100 << 20}\nv_mov_b32 v1, s42\nv_mov_b32 v2, s40\nglobal_store_dword v1, v2, s[10:11]")
    if opt.get("prof"):
        A("s_waitcnt vmcnt(0)")
        stamp(A, opt, 1)
        stamp_out(A, opt, 2, 10, 128 << 20, 3)
    A("s_endpgm")
    A(f"""
    K1_PREP:
    s_load_dwordx4 s[12:15], s[0:1], 40
    s_load_dwordx2 s[16:17], s[0:1], 56
    v_and_b32 v1, 63, v0
    v_lshlrev_b32 v2, 4, v1
    v_add_u32 v2, {WS_WF}, v2
    s_waitcnt lgkmcnt(0)
    s_cmp_eq_u32 s3, 0
    s_cbranch_scc1 K1_PREP_W
    s_cmp_eq_u32 s3, 1
    s_cbranch_scc1 K1_PREP_CG
    s_sub_u32 s18, s3, 2
    s_lshr_b32 s19, s18, 2
    s_lshl_b32 s19, s19, 7
    s_and_b32 s20, s18, 1
    s_lshl_b32 s20, s20, 1
    s_add_u32 s19, s19, s20
    s_and_b32 s20, s18, 2
    s_lshl_b32 s20, s20, 5
    s_add_u32 s19, s19, s20
    v_lshrrev_b32 v3, 4, v1
    v_lshlrev_b32 v3, 11, v3
    v_and_b32 v4, 15, v1
    v_lshl_add_u32 v3, v4, 2, v3
    v_add_u32 v3, s19, v3
    """)
    for i in range(8):
        A(f"global_load_ushort {v(8 + i)}, v3, s[16:17] offset:{256 * i}")
    A("s_lshl_b32 s18, s18, 10\ns_add_u32 s18, s18, 6144\nv_add_u32 v2, s18, v2\ns_waitcnt vmcnt(0)")
    for j in range(4):
        A(f"v_lshl_or_b32 {v(16 + j)}, {v(9 + 2 * j)}, 16, {v(8 + 2 * j)}")
    A("global_store_dwordx4 v2, v[16:19], s[10:11]\ns_endpgm")
    A("K1_PREP_CG:\nv_and_b32 v3, 3, v1\nv_lshlrev_b32 v3, 1, v3")
    for i in range(16):
        A(f"global_load_ushort {v(8 + i)}, v3, s[14:15] offset:{8 * i}")
    A("v_add_u32 v2, 4096, v2\ns_waitcnt vmcnt(0)")
    for j in range(8):
        A(f"v_lshl_or_b32 {v(24 + j)}, {v(9 + 2 * j)}, 16, {v(8 + 2 * j)}")
    A("global_store_dwordx4 v2, v[24:27], s[10:11]\nglobal_store_dwordx4 v2, v[28:31], s[10:11] offset:1024\ns_endpgm")
    A("""
    K1_PREP_W:
    v_lshrrev_b32 v3, 5, v1
    v_lshlrev_b32 v3, 10, v3
    v_and_b32 v4, 31, v1
    v_lshl_add_u32 v3, v4, 2, v3
    """)
    for i in range(8):
        A(f"global_load_dword {v(8 + i)}, v3, s[12:13] offset:{128 * i}")
    A(f"s_mov_b32 s18, {fbits(-math.log2(math.e))}\ns_waitcnt vmcnt(0)")
    for par in range(2):
        for i in range(8):
            if par == 0:
                A(f"v_lshlrev_b32 {v(16 + i)}, 16, {v(8 + i)}")
            else:
                A(f"v_and_b32 {v(16 + i)}, 0xffff0000, {v(8 + i)}")
            A(f"v_mul_f32 {v(16 + i)}, s18, {v(16 + i)}")
        H = 24 + 8 * par
        for j in range(4):
            A(f"""
            v_cvt_pk_bf16_f32 {v(H + j)}, {v(16 + 2 * j)}, {v(17 + 2 * j)}
            v_lshlrev_b32 v5, 16, {v(H + j)}
            v_and_b32 v6, 0xffff0000, {v(H + j)}
            v_sub_f32 v5, {v(16 + 2 * j)}, v5
            v_sub_f32 v6, {v(17 + 2 * j)}, v6
            v_cvt_pk_bf16_f32 {v(H + 4 + j)}, v5, v6
            """)
    for f in range(4):
        A(f"global_store_dwordx4 v2, {v(24 + 4 * f, 4)}, s[10:11] offset:{1024 * f}")
    A("K1_END:\ns_endpgm")


NW = 16
V_DBASE, V_DCNT, V_HALF16, V_ACCL, V_LAD, V_LAE, V_LAY = 1, 2, 3, 4, 5, 6, 7
V_ONE, V_CTRA, V_KK, V_KN, V_EID, V_SA, V_FA, V_MT = 8, 9, 10, 11, 12, 13, 14, 15
CG = 16
W = 24
D = 32
X = 64
TP = 80
ACC = 88
STG = 96
SO = 104
E = 112
T = 116
EF = 120
YR = 124
NVGPR2 = 128

S_X, S_EF, S_OUT, S_WS = 4, 8, 12, 16
S_BETA, S_WAVE, S_K0, S_WIDE, S_N, S_NT, S_NEXT, S_MASK = 18, 19, 20, 21, 22, 23, 24, 25
S_CMP = 26
S_MORE, S_TMP, S_C0, S_C1 = 28, 29, 30, 31
S_M1, S_M2 = 32, 40
S_ANY2 = 48
S_SC = 50
S_XP = 52
S_TMP2 = 56


def gen_k2(A, opt):
    name = NAME + "_kernel"
    efl = opt.get("ef_ld", "")
    P0, P1, P2, P3, P4, P5, P6 = 112, 113, 114, 115, 116, 117, 118
    kernel_head(A, name)
    stamp(A, opt, 0)
    if opt.get("diag") == "k2":
        A("s_memrealtime s[76:77]")
    A(f"""
    s_cmp_ge_u32 s2, 256
    s_cbranch_scc1 K2_END
    s_load_dwordx2 {s(S_WS, 2)}, s[0:1], 80
    s_load_dwordx2 {s(S_XP, 2)}, s[0:1], 0
    s_load_dwordx2 {s(S_EF, 2)}, s[0:1], 32
    s_load_dwordx2 {s(S_OUT, 2)}, s[0:1], 64
    s_and_b32 {s(S_BETA)}, s2, 7
    s_lshl_b32 {s(S_BETA)}, {s(S_BETA)}, 5
    s_lshr_b32 s3, s2, 3
    s_add_u32 {s(S_BETA)}, {s(S_BETA)}, s3
    v_lshrrev_b32 {v(P0)}, 6, v0
    v_and_b32 {v(P1)}, 63, v0
    v_readfirstlane_b32 {s(S_WAVE)}, {v(P0)}
    v_lshrrev_b32 {v(P2)}, 4, v0
    v_lshlrev_b32 {v(P2)}, 2, {v(P2)}
    v_and_or_b32 {v(P3)}, v0, 3, {v(P2)}
    s_lshl_b32 s3, {s(S_BETA)}, 2
    s_add_u32 s3, s3, {WS_TAB}
    v_lshl_add_u32 {v(P4)}, {v(P3)}, 10, s3
    v_lshlrev_b32 {v(P5)}, 4, {v(P1)}
    v_add_u32 {v(P5)}, {WS_WF + 2048}, {v(P5)}
    s_waitcnt lgkmcnt(0)
    global_load_dword {v(V_DCNT)}, {v(P4)}, {s(S_WS, 2)}
    global_load_dwordx4 {v(W, 4)}, {v(P5)}, {s(S_WS, 2)} offset:-2048
    global_load_dwordx4 {v(W + 4, 4)}, {v(P5)}, {s(S_WS, 2)}
    global_load_dwordx4 {v(CG, 4)}, {v(P5)}, {s(S_WS, 2)} offset:2048
    global_load_dwordx4 {v(CG + 4, 4)}, {v(P5)}, {s(S_WS, 2)} offset:3072
    s_sub_u32 {s(S_X)}, {s(S_XP)}, 512
    s_subb_u32 {s(S_X + 1)}, {s(S_XP + 1)}, 0
    s_and_b32 {s(S_X + 1)}, {s(S_X + 1)}, 0xffff
    s_or_b32 {s(S_X + 1)}, {s(S_X + 1)}, 0x100000
    s_mov_b32 {s(S_X + 2)}, 64
    s_mov_b32 {s(S_X + 3)}, 0x800000
    s_and_b32 {s(S_XP + 1)}, {s(S_XP + 1)}, 0xffff
    s_mov_b32 {s(S_XP + 2)}, 5120000
    s_mov_b32 {s(S_XP + 3)}, 0x20000
    s_and_b32 {s(S_EF + 1)}, {s(S_EF + 1)}, 0xffff
    s_mov_b32 {s(S_EF + 2)}, 20480000
    s_mov_b32 {s(S_EF + 3)}, 0x20000
    s_and_b32 {s(S_OUT + 1)}, {s(S_OUT + 1)}, 0xffff
    s_mov_b32 {s(S_OUT + 2)}, 5120000
    s_mov_b32 {s(S_OUT + 3)}, 0x20000
    s_mov_b32 {s(S_K0)}, 0
    s_mov_b32 {s(S_WIDE)}, 1
    v_mul_u32_u24 {v(V_DBASE)}, {RECSTRIDE}, {v(P3)}
    v_and_b32 {v(P4)}, 31, {v(P1)}
    v_lshrrev_b32 {v(P5)}, 5, {v(P1)}
    v_lshlrev_b32 {v(V_HALF16)}, 4, {v(P5)}
    v_lshlrev_b32 {v(V_ACCL)}, 3, {v(P4)}
    v_add_u32 {v(V_ACCL)}, {L_ACC}, {v(V_ACCL)}
    v_and_b32 {v(P6)}, 15, v0
    v_add_lshl_u32 {v(V_LAD)}, {v(P6)}, {v(V_HALF16)}, 2
    v_lshrrev_b32 {v(P6)}, 3, {v(P4)}
    v_lshlrev_b32 {v(P6)}, 2, {v(P6)}
    v_and_or_b32 {v(P6)}, {v(P4)}, 3, {v(P6)}
    v_lshlrev_b32 {v(P6)}, 2, {v(P6)}
    v_and_b32 {v(P0)}, 4, {v(P4)}
    v_lshl_add_u32 {v(V_LAE)}, {v(P0)}, 4, {v(P6)}
    v_lshrrev_b32 {v(P6)}, 2, {v(P4)}
    v_and_b32 {v(P0)}, 1, {v(P4)}
    v_lshl_add_u32 {v(P6)}, {v(P0)}, 3, {v(P6)}
    v_add_lshl_u32 {v(V_LAY)}, {v(P6)}, {v(V_HALF16)}, 3
    v_mov_b32 {v(V_ONE)}, 1
    v_mov_b32 {v(V_CTRA)}, {L_CTR}
    v_mov_b64 v[32:33], 0
    v_mov_b64 v[34:35], 0
    v_lshlrev_b32 {v(P6)}, 4, v0
    v_add_u32 {v(P6)}, {L_ACC}, {v(P6)}
    v_add_u32 {v(P0)}, {41 * NS - 16384}, {v(P6)}
    """)
    for i in range(4):
        A(f"ds_write_b128 {v(P6)}, v[32:35] offset:{16384 * i}")
    A(f"v_add_u32 {v(P6)}, 65536, {v(P6)}\nds_write_b128 {v(P0)}, v[32:35]\nds_write_b128 {v(P6)}, v[32:35]")
    assert 5 * 16384 <= 41 * NS <= 6 * 16384
    A(f"""
    s_waitcnt vmcnt(4)
    v_and_b32 {v(P0)}, 0xffff, {v(V_DCNT)}
    v_mad_u32_u24 {v(V_DBASE)}, {v(P0)}, 12, {v(V_DBASE)}
    v_lshrrev_b32 {v(V_DCNT)}, 16, {v(V_DCNT)}
    """)
    stamp(A, opt, 1)
    NC = 4
    REC1, REC2, RK1, RK2, HA1, HA2, PB, SC = 32, 48, 64, 68, 72, 76, 80, 84
    A(f"""
    K2_ROUND:
    v_and_b32 {v(P0)}, 0xff, v0
    v_lshlrev_b32 {v(P0)}, 2, {v(P0)}
    v_mov_b32 {v(P1)}, 0
    v_mov_b32 {v(P2)}, {NW - opt.get("helpers", 0)}
    ds_write_b32 {v(P0)}, {v(P1)} offset:{L_HIST}
    ds_write2_b32 {v(V_CTRA)}, {v(P2)}, {v(P1)} offset0:0 offset1:1
    v_and_b32 {v(P3)}, 15, v0
    v_add_u32 {v(P3)}, {s(S_K0)}, {v(P3)}
    v_mul_u32_u24 {v(P4)}, 12, {v(P3)}
    s_lshl_b32 {s(S_TMP)}, 16, {s(S_WIDE)}
    s_add_u32 {s(S_TMP)}, {s(S_TMP)}, {s(S_K0)}
    v_cmp_lt_u32 {s(S_CMP, 2)}, {s(S_TMP)}, {v(V_DCNT)}
    s_cmp_eq_u32 {s(S_WIDE)}, 1
    s_cselect_b32 {s(S_C1)}, 16, 0x7fffffff
    s_mov_b64 {s(S_ANY2, 2)}, 0
    """)
    for c in range(NC):
        A(f"""
        v_add_u32_dpp {v(HA2 + c)}, {v(V_DBASE)}, {v(P4)} row_newbcast:{c} {DPP}
        v_sub_u32_dpp {v(P5)}, {v(V_DCNT)}, {v(P3)} row_newbcast:{c} {DPP}
        v_cmp_lt_i32 {s(S_M1 + 2 * c, 2)}, 0, {v(P5)}
        v_cmp_lt_i32 {s(S_M2 + 2 * c, 2)}, {s(S_C1)}, {v(P5)}
        """)
    for c in range(NC):
        A(f"""
        s_mov_b64 exec, {s(S_M1 + 2 * c, 2)}
        s_or_b64 {s(S_ANY2, 2)}, {s(S_ANY2, 2)}, {s(S_M2 + 2 * c, 2)}
        global_load_dwordx3 {v(REC1 + 4 * c, 3)}, {v(HA2 + c)}, {s(S_WS, 2)}
        """)
    A(f"s_cmp_eq_u64 {s(S_ANY2, 2)}, 0\ns_cbranch_scc1 K2_NOSEC_A")
    for c in range(NC):
        A(f"""
        s_mov_b64 exec, {s(S_M2 + 2 * c, 2)}
        s_cbranch_execz K2_SA{c}
        global_load_dwordx3 {v(REC2 + 4 * c, 3)}, {v(HA2 + c)}, {s(S_WS, 2)} offset:192
        K2_SA{c}:
        """)
    A(f"""
    K2_NOSEC_A:
    s_mov_b64 exec, -1
    v_lshrrev_b32 {v(PB)}, 4, v0
    v_mul_u32_u24 {v(PB)}, {4 * CHUNK}, {v(PB)}
    s_waitcnt lgkmcnt(0)
    s_barrier
    """)
    npre = opt.get("xpre", 0)
    if npre:
        A(f"""
        s_lshr_b32 {s(S_TMP)}, s2, 3
        s_mul_i32 {s(S_TMP)}, {s(S_TMP)}, {npre * 128}
        s_add_u32 {s(S_TMP)}, {s(S_TMP)}, {opt.get("xpre_base", 0)}
        v_lshl_add_u32 {v(P5)}, v0, 7, {s(S_TMP)}
        v_cmp_gt_u32 vcc, {npre}, v0
        v_mov_b32 {v(P6)}, 0x80000000
        s_nop 0
        v_cndmask_b32 {v(P5)}, {v(P6)}, {v(P5)}, vcc
        buffer_load_dword v127, {v(P5)}, {s(S_XP, 4)}, 0 offen
        """)
    A(f"""
    s_cmp_eq_u64 {s(S_CMP, 2)}, 0
    s_cbranch_scc1 K2_NOMORE
    ds_write_b32 {v(V_CTRA)}, {v(V_ONE)} offset:4
    K2_NOMORE:
    s_mov_b32 {s(S_C0)}, {opt.get("abl_x", 0x7ffe00)}
    s_mov_b32 {s(S_C1)}, 0xfc000fff
    s_waitcnt vmcnt({1 if npre else 0})
    """)
    stamp(A, opt, 2)
    nph = opt.get("nph", 0)

    def hist(rec, rk, ha, c):
        idx = rec + 4 * c + 2
        if nph:
            A(f"""
            v_bfe_u32 {v(P0)}, {v(idx)}, 12, 14
            v_mul_u32_u24 {v(P0)}, {(nph << 16) // 10001}, {v(P0)}
            v_lshrrev_b32 {v(P0)}, 16, {v(P0)}
            v_lshrrev_b32 {v(P1)}, 26, {v(idx)}
            v_lshl_or_b32 {v(P0)}, {v(P1)}, 2, {v(P0)}
            v_lshlrev_b32 {v(ha + c)}, 2, {v(P0)}
            """)
        else:
            A(f"v_lshlrev_b32_sdwa {v(ha + c)}, 2, {v(idx)} dst_sel:DWORD dst_unused:UNUSED_PAD src0_sel:DWORD src1_sel:BYTE_3")
        A(f"""
        v_and_b32 {v(idx + 1)}, {s(S_C1)}, {v(idx)}
        ds_add_rtn_u32 {v(rk + c)}, {v(ha + c)}, {v(V_ONE)} offset:{L_HIST}
        v_lshrrev_b32 {v(idx)}, 3, {v(idx)}
        v_and_b32 {v(idx)}, {s(S_C0)}, {v(idx)}
        s_movk_i32 {s(S_TMP)}, {c * CHUNK}
        """)
        if opt.get("abl_x"):
            A(f"v_add_u32 {v(idx)}, 512, {v(idx)}")
        if not opt.get("abl_ef"):
            A(f"v_add3_u32 {v(idx + 1)}, {v(idx + 1)}, {v(PB)}, {s(S_TMP)}")

    def place(rec, rk, ha, c):
        A(f"""
        v_add_lshl_u32 {v(ha + c)}, {v(ha + c)}, {v(rk + c)}, 2
        v_and_b32 {v(P0)}, 64, {v(ha + c)}
        v_lshlrev_b32 {v(rk + c)}, 1, {v(ha + c)}
        v_mad_i32_i24 {v(rec + 4 * c + 2)}, {v(P0)}, -8, {v(rec + 4 * c + 2)}
        ds_write_b64 {v(rk + c)}, {v(rec + 4 * c, 2)} offset:{L_Y}
        ds_write2st64_b32 {v(ha + c)}, {v(rec + 4 * c + 2)}, {v(rec + 4 * c + 3)} offset0:{L_SRC // 256} offset1:{L_EID // 256}
        """)

    for c in range(NC):
        A(f"s_mov_b64 exec, {s(S_M1 + 2 * c, 2)}")
        hist(REC1, RK1, HA1, c)
    A(f"s_cmp_eq_u64 {s(S_ANY2, 2)}, 0\ns_cbranch_scc1 K2_NOSEC_B")
    for c in range(NC):
        A(f"s_mov_b64 exec, {s(S_M2 + 2 * c, 2)}\ns_cbranch_execz K2_SB{c}")
        hist(REC2, RK2, HA2, c)
        A(f"K2_SB{c}:")
    order = opt.get("order", [0, 1, 2, 3])
    A(f"""
    K2_NOSEC_B:
    s_mov_b64 exec, -1
    v_and_b32 {v(P1)}, 63, v0
    v_lshlrev_b32 {v(P2)}, 4, {v(P1)}
    s_waitcnt lgkmcnt(0)
    s_barrier
    ds_read_b128 {v(SC, 4)}, {v(P2)} offset:{L_HIST}
    ds_read_b32 {v(P3)}, {v(V_CTRA)} offset:4
    s_waitcnt lgkmcnt(0)
    v_readfirstlane_b32 {s(S_MORE)}, {v(P3)}
    v_lshl_or_b32 {v(SC + 4)}, {v(SC + order[1])}, 16, {v(SC + order[0])}
    v_lshl_or_b32 {v(SC + 5)}, {v(SC + order[3])}, 16, {v(SC + order[2])}
    v_mov_b32 {v(SC + 6)}, {v(SC + 4)}
    v_mov_b32 {v(SC + 7)}, {v(SC + 5)}
    """)
    wave_scan(A, [SC + 6, SC + 7])
    A(f"""
    s_nop 0
    v_readlane_b32 s70, {v(SC + 6)}, 63
    v_readlane_b32 s71, {v(SC + 7)}, 63
    v_sub_u32 {v(SC + 6)}, {v(SC + 6)}, {v(SC + 4)}
    v_sub_u32 {v(SC + 7)}, {v(SC + 7)}, {v(SC + 5)}
    s_and_b32 s72, s70, 0xffff
    s_lshr_b32 s73, s70, 16
    s_add_u32 s73, s73, s72
    s_and_b32 s74, s71, 0xffff
    s_add_u32 s74, s74, s73
    s_lshr_b32 {s(S_N)}, s71, 16
    s_add_u32 {s(S_N)}, {s(S_N)}, s74
    s_cmp_le_u32 {s(S_N)}, {CAP}
    s_cbranch_scc1 K2_FITS
    s_mov_b32 {s(S_WIDE)}, 0
    s_waitcnt vmcnt(0)
    s_barrier
    s_branch K2_ROUND
    K2_FITS:
    v_and_b32 {v(SC + order[0])}, 0xffff, {v(SC + 6)}
    v_lshrrev_b32 {v(SC + 6)}, 16, {v(SC + 6)}
    v_add_u32 {v(SC + order[1])}, s72, {v(SC + 6)}
    v_and_b32 {v(SC + 6)}, 0xffff, {v(SC + 7)}
    v_add_u32 {v(SC + order[2])}, s73, {v(SC + 6)}
    v_lshrrev_b32 {v(SC + 7)}, 16, {v(SC + 7)}
    v_add_u32 {v(SC + order[3])}, s74, {v(SC + 7)}
    ds_write_b128 {v(P2)}, {v(SC, 4)} offset:{L_PREF}
    s_add_u32 {s(S_NT)}, {s(S_N)}, 31
    s_lshr_b32 {s(S_NT)}, {s(S_NT)}, 5
    """)
    for c in range(NC):
        A(f"s_mov_b64 exec, {s(S_M1 + 2 * c, 2)}\nds_read_b32 {v(HA1 + c)}, {v(HA1 + c)} offset:{L_PREF}")
    A(f"""
    s_mov_b64 exec, -1
    v_add_lshl_u32 {v(P1)}, {v(P1)}, {s(S_N)}, 2
    v_lshlrev_b32 {v(P2)}, 1, {v(P1)}
    v_mov_b64 {v(SC + 4, 2)}, 0
    v_mov_b32 {v(SC + 6)}, 512
    v_mov_b32 {v(SC + 7)}, {(40 << 26) | 0xfffff}
    ds_write_b64 {v(P2)}, {v(SC + 4, 2)} offset:{L_Y}
    ds_write2st64_b32 {v(P1)}, {v(SC + 6)}, {v(SC + 7)} offset0:{L_SRC // 256} offset1:{L_EID // 256}
    s_waitcnt lgkmcnt(2)
    """)
    for c in range(NC):
        A(f"s_mov_b64 exec, {s(S_M1 + 2 * c, 2)}")
        place(REC1, RK1, HA1, c)
    A(f"s_cmp_eq_u64 {s(S_ANY2, 2)}, 0\ns_cbranch_scc1 K2_NOSEC_C")
    for c in range(NC):
        A(f"""
        s_mov_b64 exec, {s(S_M2 + 2 * c, 2)}
        s_cbranch_execz K2_SC{c}
        ds_read_b32 {v(HA2 + c)}, {v(HA2 + c)} offset:{L_PREF}
        s_waitcnt lgkmcnt(0)
        """)
        place(REC2, RK2, HA2, c)
        A(f"K2_SC{c}:")

    def tile_addr(t4, t8):
        A(f"""
        v_add_u32 {v(V_EID)}, {s(t4)}, {v(V_LAE)}
        v_add_u32 {v(V_KN)}, {s(t4)}, {v(V_LAD)}
        v_add_u32 {v(V_MT)}, {s(t8)}, {v(V_LAY)}
        v_lshl_add_u32 {v(V_SA)}, {v(V_HALF16)}, 2, {s(t4)}
        """)

    def tile_reads():
        A(f"""
        ds_read_b32 {v(V_EID)}, {v(V_EID)} offset:{L_EID}
        ds_read_b32 {v(V_KN)}, {v(V_KN)} offset:{L_EID}
        ds_read_b64 {v(YR, 2)}, {v(V_MT)} offset:{L_Y}
        """)

    def so_read(g):
        A(f"ds_read_b128 {v(SO + 4 * (g % 2), 4)}, {v(V_SA)} offset:{L_SRC + 16 * (g % 4)}")

    def xload(r):
        A(f"buffer_load_dwordx4 {v(X + 4 * (r % 4), 4)}, {v(SO + 4 * ((r // 4) % 2) + r % 4)}, {s(S_X, 4)}, 0 offen")

    def ef_load():
        A(f"v_mad_u32_u24 {v(V_EID)}, {v(V_EID)}, 32, {v(V_HALF16)}")
        A(f"buffer_load_dwordx4 {v(EF, 4)}, {v(V_EID)}, {s(S_EF, 4)}, 0 offen {efl}")

    key_ops = [f"v_mul_u32_u24_sdwa {v(V_KN)}, {s(S_C0)}, {v(V_KN)} dst_sel:DWORD dst_unused:UNUSED_PAD src0_sel:DWORD src1_sel:BYTE_3",
               f"v_xor_b32_dpp {v(V_MT)}, {v(V_KN)}, {v(V_KN)} row_shl:1 {DPP} bound_ctrl:0",
               f"v_cmp_ne_u32 {s(S_CMP, 2)}, 0, {v(V_MT)}"]

    A(f"""
    K2_NOSEC_C:
    s_mov_b64 exec, -1
    s_lshl_b32 {s(S_TMP)}, {s(S_WAVE)}, 7
    s_lshl_b32 {s(S_TMP2)}, {s(S_WAVE)}, 8
    """)
    tile_addr(S_TMP, S_TMP2)
    A(f"""
    s_movk_i32 {s(S_C0)}, {NS // 4}
    v_mov_b32 {v(V_KK)}, {40 * NS}
    s_waitcnt lgkmcnt(0)
    s_barrier
    """)
    stamp(A, opt, 3)
    if opt.get("diag") == "sorted":
        A("s_memrealtime s[76:77]")
    NH = opt.get("helpers", 0)
    if NH:
        h0 = opt.get("h0", 0)
        A(f"""
        s_cmp_lt_u32 {s(S_WAVE)}, {NW - NH}
        s_cbranch_scc1 K2_START
        s_cmp_lg_u32 {s(S_K0)}, 0
        s_cbranch_scc1 K2_JOIN
        s_lshr_b32 s58, s2, 3
        s_and_b32 s59, s2, 7
        s_lshl_b32 s59, s59, 2
        s_add_u32 s58, s58, s59
        s_and_b32 s58, s58, 31
        s_mul_i32 s58, s58, {NH}
        s_add_u32 s58, s58, {s(S_WAVE)}
        s_sub_u32 s58, s58, {NW - NH}
        s_lshl_b32 s58, s58, 11
        s_add_u32 s58, s58, {h0 * 128}
        K2_SWEEP:
        """)
        for j in range(16):
            if opt.get("hx2", 1):
                A(f"s_buffer_load_dwordx2 s[60:61], {s(S_XP, 4)}, s58 offset:{128 * j + 60}")
            else:
                A(f"s_buffer_load_dword s60, {s(S_XP, 4)}, s58 offset:{128 * j}\ns_buffer_load_dword s60, {s(S_XP, 4)}, s58 offset:{128 * j + 64}")
        A(f"""
        s_add_u32 s58, s58, {32 * NH * 2048}
        s_cmp_lt_u32 s58, 5120000
        s_cbranch_scc1 K2_SWEEP
        K2_JOIN:
        s_mov_b64 exec, 1
        ds_add_rtn_u32 {v(V_FA)}, {v(V_CTRA)}, {v(V_ONE)}
        s_mov_b64 exec, -1
        s_waitcnt lgkmcnt(0)
        v_readfirstlane_b32 {s(S_NEXT)}, {v(V_FA)}
        s_nop 3
        s_cmp_ge_u32 {s(S_NEXT)}, {s(S_NT)}
        s_cbranch_scc1 K2_MAIN_DONE
        s_lshl_b32 {s(S_TMP)}, {s(S_NEXT)}, 7
        s_lshl_b32 {s(S_TMP2)}, {s(S_NEXT)}, 8
        """)
        tile_addr(S_TMP, S_TMP2)
        A("s_branch K2_FIRST\nK2_START:")
    A(f"s_cmp_ge_u32 {s(S_WAVE)}, {s(S_NT)}\ns_cbranch_scc1 K2_MAIN_DONE\nK2_FIRST:")
    A(f"ds_read_b32 {v(V_EID)}, {v(V_EID)} offset:{L_EID}")
    so_read(0)
    A(f"ds_read_b32 {v(V_KN)}, {v(V_KN)} offset:{L_EID}\nds_read_b64 {v(YR, 2)}, {v(V_MT)} offset:{L_Y}")
    so_read(1)
    A("s_waitcnt lgkmcnt(4)")
    ef_load()
    A("s_waitcnt lgkmcnt(3)")
    for r in range(4):
        xload(r)
    A("s_waitcnt lgkmcnt(0)")
    A(key_ops[0] + "\ns_nop 1\n" + key_ops[1] + "\n" + key_ops[2])
    A("s_waitcnt vmcnt(4)")
    stamp(A, opt, 4)

    def flush_ops(r):
        ops = [[f"v_add_u32_dpp {v(V_FA)}, {v(V_KK)}, {v(V_ACCL)} row_newbcast:{r} {DPP}"]]
        for j in range(8):
            st = STG + 2 * (j % 4)
            ops.append([f"v_cvt_f64_f32 {v(st, 2)}, {v(ACC + j)}", f"ds_add_f64 {v(V_FA)}, {v(st, 2)} offset:{RS * j}"])
        return ops

    def emit(groups):
        for g in groups:
            for op in ([g] if isinstance(g, str) else g):
                A(op)

    def acc_ops(r, first):
        ops = []
        for j in range(4):
            rr = D + 16 * (j // 2) + (r & ~1)
            o = r & 1
            if first:
                ops.append(f"v_pk_mul_f32 {v(ACC + 2 * j, 2)}, {v(rr, 2)}, {v(TP + 2 * j, 2)} op_sel:[{o},0] op_sel_hi:[{o},1]")
            else:
                ops.append(f"v_pk_fma_f32 {v(ACC + 2 * j, 2)}, {v(rr, 2)}, {v(TP + 2 * j, 2)}, {v(ACC + 2 * j, 2)} op_sel:[{o},0,0] op_sel_hi:[{o},1,1]")
        return ops

    def exp_ops(q):
        return [f"v_exp_f32 {v(E + j)}, {v(D + 16 * (j // 2) + q + j % 2)}" for j in range(4)]

    add_ops = [f"v_pk_add_f32 {v(E + 2 * j, 2)}, {v(E + 2 * j, 2)}, 1.0 op_sel_hi:[1,0]" for j in range(2)]
    rcp_ops = [f"v_rcp_f32 {v(E + j)}, {v(E + j)}" for j in range(4)]

    def mul_ops(q):
        return [f"v_pk_mul_f32 {v(D + 16 * j + q, 2)}, {v(D + 16 * j + q, 2)}, {v(E + 2 * j, 2)}" for j in range(2)]

    A(".p2align 6")
    loop_start = len(A.lines)
    A("K2_LOOP:")
    fo = flush_ops(15)
    tm = [f"v_mfma_f32_4x4x4_16b_bf16 {v(D + 16 + 4 * i, 4)}, {v(YR, 2)}, {v(CG + 2 * i, 2)}, 0" for i in range(4)]
    tc = [f"v_cvt_pk_bf16_f32 {v(T + 2 * j + hh)}, {v(D + 16 + 8 * hh + j)}, {v(D + 20 + 8 * hh + j)}" for hh in range(2) for j in range(2)]
    ex = exp_ops(0)
    emit([tm[0], fo[0], tm[1], fo[1], tm[2], fo[2], tm[3], fo[3]])
    A(f"v_mfma_f32_32x32x16_bf16 {v(D, 16)}, {v(EF, 4)}, {v(W, 4)}, 0")
    emit([tc[0], tc[1], fo[4], fo[5], tc[2], tc[3]])
    A(f"v_mfma_f32_32x32x16_bf16 {v(D + 16, 16)}, {v(EF, 4)}, {v(W + 4, 4)}, 0")
    emit([fo[6], fo[7], fo[8], f"v_mov_b32 {v(V_KK)}, {v(V_KN)}", f"s_or_b32 {s(S_MASK)}, {s(S_CMP)}, {s(S_CMP + 1)}",
          ex[0], ex[1], "s_nop 1", ex[2], ex[3], "s_nop 0"] + add_ops)
    for r in range(16):
        tr = T + (2 if r >= 8 else 0)
        m4 = [f"v_mfma_f32_4x4x4_16b_bf16 {v(TP + 4 * h, 4)}, {v(tr, 2)}, {v(X + 4 * (r % 4) + 2 * h, 2)}, 0 cbsz:3 abid:{r % 8}" for h in range(2)]
        A(f"s_waitcnt vmcnt({4 if 9 <= r <= 12 else 3})")
        if r == 15:
            emit([m4[0], key_ops[0], m4[1]])
            xload(r + 4)
            emit([key_ops[1], key_ops[2]])
            side = []
        else:
            trans = rcp_ops if r % 2 == 0 else exp_ops(r + 1)
            side = mul_ops(r) if r % 2 == 0 else add_ops
            emit([m4[0], trans[0], m4[1], trans[1], trans[2], trans[3]])
            if r % 4 == 0 and r > 0:
                A("s_waitcnt lgkmcnt(0)")
            xload(r + 4)
        if r % 4 == 0:
            so_read(r // 4 + 2)
        if r == 1:
            A(f"s_mov_b64 exec, 1\nds_add_rtn_u32 {v(V_MT)}, {v(V_CTRA)}, {v(V_ONE)}\ns_mov_b64 exec, -1")
        if r == 4:
            A(f"v_readfirstlane_b32 {s(S_NEXT)}, {v(V_MT)}")
        if r == 5:
            A(f"s_min_u32 {s(S_NEXT)}, {s(S_NEXT)}, {s(S_NT)}\ns_lshl_b32 {s(S_TMP)}, {s(S_NEXT)}, 7\ns_lshl_b32 {s(S_TMP2)}, {s(S_NEXT)}, 8")
            tile_addr(S_TMP, S_TMP2)
            tile_reads()
        if r == 8:
            ef_load()
        if r == 14:
            A("s_waitcnt lgkmcnt(0)")
        emit(side)
        if r > 0:
            A(f"s_bitcmp1_b32 {s(S_MASK)}, {r - 1}\ns_cbranch_scc1 K2_F{r}")
        emit(acc_ops(r, r == 0))
        if r > 0:
            A(f"K2_R{r}:")
    A(f"s_cmp_lt_u32 {s(S_NEXT)}, {s(S_NT)}\ns_cbranch_scc1 K2_LOOP")
    drop = opt.get("drop", [])
    if drop:
        A.lines[loop_start:] = [ln for ln in A.lines[loop_start:] if not any(d in ln for d in drop)]
    emit(flush_ops(15))
    A("s_branch K2_MAIN_DONE")
    for r in range(1, 16):
        A(f"K2_F{r}:")
        emit(flush_ops(r - 1))
        emit(acc_ops(r, True))
        A(f"s_branch K2_R{r}")
    WM, A64, AG, AF, OD, OP = 32, 80, 16, 8, 80, 96
    A("K2_MAIN_DONE:")
    stamp(A, opt, 5)
    A(f"""
    s_cmp_eq_u32 {s(S_MORE)}, 0
    s_cbranch_scc1 K2_EPI
    s_lshl_b32 {s(S_TMP)}, 16, {s(S_WIDE)}
    s_add_u32 {s(S_K0)}, {s(S_K0)}, {s(S_TMP)}
    s_waitcnt vmcnt(0) lgkmcnt(0)
    s_barrier
    s_branch K2_ROUND
    K2_EPI:
    s_cmp_ge_u32 {s(S_WAVE)}, 10
    s_cbranch_scc0 K2_MIX
    s_waitcnt lgkmcnt(0)
    s_barrier
    """)
    stamp(A, opt, 6)
    A(f"""
    s_branch K2_FIN
    K2_MIX:
    v_and_b32 v1, 63, v0
    v_lshlrev_b32 v2, 4, v1
    v_add_u32 v2, {WS_WF + 6144}, v2
    v_add_u32 v3, 4096, v2
    """)
    for f in range(8):
        A(f"global_load_dwordx4 {v(WM + 4 * f, 4)}, {'v2' if f < 4 else 'v3'}, {s(S_WS, 2)} offset:{1024 * (f % 4)}")
    A(f"""
    v_bfe_u32 v2, v1, 2, 2
    v_mul_u32_u24 v2, {NS}, v2
    v_and_b32 v3, 3, v1
    v_mul_u32_u24 v3, {RS}, v3
    v_lshrrev_b32 v4, 4, v1
    v_lshlrev_b32 v5, 6, v4
    v_add3_u32 v2, v2, v3, v5
    s_mul_i32 s70, {s(S_WAVE)}, {4 * NS}
    s_add_u32 s70, s70, {L_ACC}
    v_add_u32 v2, s70, v2
    v_and_b32 v3, 15, v1
    v_lshlrev_b32 v3, 4, v3
    v_lshl_add_u32 v3, v4, 17, v3
    s_lshl_b32 s70, {s(S_WAVE)}, 19
    s_lshl_b32 s71, {s(S_BETA)}, 9
    s_add_u32 s70, s70, s71
    v_add_u32 v3, s70, v3
    s_mov_b32 {s(S_SC)}, {fbits(-math.log(2.0))}
    s_mov_b32 {s(S_SC + 1)}, {fbits(-math.log(2.0))}
    s_waitcnt lgkmcnt(0)
    s_barrier
    """)
    stamp(A, opt, 6)
    for cpar in range(2):
        for hh in range(4):
            A(f"ds_read_b128 {v(A64 + 16 * cpar + 4 * hh, 4)}, v2 offset:{4 * RS * cpar + 16 * hh}")
    for j in range(8):
        A(f"s_waitcnt lgkmcnt({7 - j})")
        A(f"v_cvt_f32_f64 {v(AG + 2 * j)}, {v(A64 + 4 * j, 2)}")
        A(f"v_cvt_f32_f64 {v(AG + 2 * j + 1)}, {v(A64 + 4 * j + 2, 2)}")
    for j in range(8):
        A(f"v_pk_mul_f32 {v(AG + 2 * j, 2)}, {v(AG + 2 * j, 2)}, {s(S_SC, 2)}")
    for j in range(8):
        A(f"v_cvt_pk_bf16_f32 {v(AF + j)}, {v(AG + 2 * j)}, {v(AG + 2 * j + 1)}")
    A("s_waitcnt vmcnt(0)\ns_nop 0")
    for dt in range(4):
        A(f"v_mfma_f32_16x16x32_bf16 {v(OD + 4 * dt, 4)}, {v(AF, 4)}, {v(WM + 4 * dt, 4)}, 0")
    for dt in range(4):
        A(f"v_mfma_f32_16x16x32_bf16 {v(OD + 4 * dt, 4)}, {v(AF + 4, 4)}, {v(WM + 16 + 4 * dt, 4)}, {v(OD + 4 * dt, 4)}")
    A("s_nop 7")
    for j in range(8):
        A(f"v_cvt_pk_bf16_f32 {v(OP + j)}, {v(OD + 2 * j)}, {v(OD + 2 * j + 1)}")
    ost = opt.get("out_st", "")
    A(f"buffer_store_dwordx4 {v(OP, 4)}, v3, {s(S_OUT, 4)}, 0 offen {ost}")
    A(f"buffer_store_dwordx4 {v(OP + 4, 4)}, v3, {s(S_OUT, 4)}, 0 offen offset:256 {ost}")
    A("K2_FIN:")
    if opt.get("diag"):
        if opt["diag"] == "k1":
            A(f"s_lshl_b32 s76, s2, 2\ns_add_u32 s76, s76, {100 << 20}\ns_load_dword s76, {s(S_WS, 2)}, s76")
        A("""
        s_waitcnt lgkmcnt(0)
        K2_SPIN:
        s_memrealtime s[74:75]
        s_waitcnt lgkmcnt(0)
        s_sub_u32 s74, s74, s76
        s_cmp_lt_u32 s74, 10000
        s_cbranch_scc1 K2_SPIN
        """)
    if opt.get("prof"):
        A("s_waitcnt vmcnt(0)")
        stamp(A, opt, 7)
        stamp_out(A, opt, 8, S_WS, (128 << 20) + (1 << 20), S_WAVE)
    A("K2_END:\ns_endpgm")


def gen_probe(A, name, argoff, flag, base=0):
    kernel_head(A, name)
    if argoff is not None:
        A(f"""
        s_cmp_ge_u32 s2, 256
        s_cbranch_scc1 {name}_END
        s_load_dwordx2 s[4:5], s[0:1], {argoff}
        s_mul_i32 s6, s2, 80000
        s_add_u32 s6, s6, {base}
        v_lshl_add_u32 v1, v0, 4, s6
        v_cmp_gt_u32 vcc, 1000, v0
        s_mov_b64 exec, vcc
        s_waitcnt lgkmcnt(0)
        """)
        for j in range(5):
            A(f"global_load_dwordx4 v[4:7], v1, s[4:5] {flag}\nv_add_u32 v1, 16000, v1")
        A(f"s_waitcnt vmcnt(0)\n{name}_END:")
    A("s_endpgm")


def gen_probe_copy(A, name, rd, wr, lf, sf):
    kernel_head(A, name)
    A(f"""
    s_cmp_ge_u32 s2, 256
    s_cbranch_scc1 {name}_END
    s_load_dwordx2 s[4:5], s[0:1], 32
    s_load_dwordx2 s[8:9], s[0:1], 80
    s_mul_i32 s6, s2, 80000
    v_lshl_add_u32 v1, v0, 4, s6
    v_add_u32 v2, {64 << 20}, v1
    v_cmp_gt_u32 vcc, 1000, v0
    s_mov_b64 exec, vcc
    s_waitcnt lgkmcnt(0)
    """)
    for j in range(5):
        if rd:
            A(f"global_load_dwordx4 v[{4 + 4 * j}:{7 + 4 * j}], v1, s[4:5] {lf}\nv_add_u32 v1, 16000, v1")
    for j in range(5):
        if rd:
            A("s_waitcnt vmcnt(4)")
        if wr:
            A(f"global_store_dwordx4 v2, v[{4 + 4 * j}:{7 + 4 * j}], s[8:9] {sf}\nv_add_u32 v2, 16000, v2")
    A(f"s_waitcnt vmcnt(0)\n{name}_END:\ns_endpgm")


CPROBES = {"pcopy_kernel": (1, 1, "", ""), "pwrite_kernel": (0, 1, "", ""), "pcopynt_kernel": (1, 1, "nt", ""), "pwritesc_kernel": (0, 1, "", "sc0 sc1"), "pwritent_kernel": (0, 1, "", "nt")}
PROBES = {"empty_kernel": (None, ""), "pef_kernel": (32, ""), "pefnt_kernel": (32, "nt"), "pws_kernel": (80, "", 64 << 20), "pwsend_kernel": (80, "", 230 << 20)}


def generate(opt):
    A = Asm()
    out = HEADER
    for p in opt.get("pre", []):
        out += f"; @launch kernel={p} grid=(256,1,1) block=(1024,1,1) lds=0\n"
    out += f"; @launch kernel=sort_kernel grid=(257,1,1) block=(640,1,1) lds={K1_LDS}\n"
    out += f"; @launch kernel={NAME}_kernel grid=(256,1,1) block=(1024,1,1) lds={K2_LDS}\n"
    for p in opt.get("post", []):
        out += f"; @launch kernel={p} grid=(256,1,1) block=(1024,1,1) lds=0\n"
    out += '.amdgcn_target "amdgcn-amd-amdhsa--gfx950"\n.text\n'
    probes = sorted(set(opt.get("pre", []) + opt.get("post", [])))
    for p in probes:
        if p in PROBES:
            gen_probe(A, p, *PROBES[p])
        else:
            gen_probe_copy(A, p, *CPROBES[p])
    gen_k1(A, opt)
    gen_k2(A, opt)
    out += A.text()
    out += '.section .rodata,"a"\n.p2align 6\n'
    out += descriptor("sort_kernel", 48, 96)
    out += ".p2align 6\n"
    out += descriptor(NAME + "_kernel", NVGPR2, 96)
    for p in probes:
        out += ".p2align 6\n" + descriptor(p, 24, 16)
    return out


if __name__ == "__main__":
    opt = eval("dict(" + (sys.argv[2] if len(sys.argv) > 2 else "") + ")")
    path = sys.argv[1] if len(sys.argv) > 1 else f"cdna_kernels/{NAME}.s"
    open(path, "w").write(generate(opt))
```

```python
import sys, struct, math

NAME = "standalone__tensor_product_equiv_tfn__graph"

HEADER = """; Kernarg layout for this problem (88 bytes, ptrs only, base s[0:1]):
"""

CHUNK = 2500
RECSTRIDE = 30080
WS_TAB = 256 * RECSTRIDE
WS_WF = WS_TAB + 256 * 2048

RS = 272
NS = 8 * RS
L_HIST = 0
L_PREF = 1024
L_CTR = 2048
CAP = 4096
L_SRC = 2304
L_EID = L_SRC + (CAP + 64) * 4
L_Y = L_EID + (CAP + 64) * 4
L_ACC = L_Y + (CAP + 64) * 8
K2_LDS = L_ACC + 41 * NS
L_STG = 2304
SPIN_MAX = 1 << 18
PSIZE = 2500

DPP = "row_mask:0xf bank_mask:0xf"


def fbits(x):
    return "0x%08x" % struct.unpack("<I", struct.pack("<f", x))[0]


class Asm:
    def __init__(self):
        self.lines = []

    def __call__(self, s):
        for ln in s.strip("\n").split("\n"):
            ln = ln.strip()
            if not ln:
                continue
            if ln.endswith(":") or ln.startswith("."):
                self.lines.append(ln)
            else:
                self.lines.append("    " + ln)

    def text(self):
        return "\n".join(self.lines) + "\n"


def v(a, n=1):
    return f"v{a}" if n == 1 else f"v[{a}:{a+n-1}]"


def s(a, n=1):
    return f"s{a}" if n == 1 else f"s[{a}:{a+n-1}]"


def wave_scan(A, regs):
    steps = ["row_shr:1 " + DPP + " bound_ctrl:0", "row_shr:2 " + DPP + " bound_ctrl:0",
             "row_shr:4 " + DPP + " bound_ctrl:0", "row_shr:8 " + DPP + " bound_ctrl:0",
             "row_bcast:15 row_mask:0xa bank_mask:0xf", "row_bcast:31 row_mask:0xc bank_mask:0xf"]
    for st in steps:
        A("s_nop 1")
        for r in regs:
            A(f"v_add_u32_dpp {v(r)}, {v(r)}, {v(r)} {st}")


def kernel_head(A, name):
    A(f".globl {name}\n.p2align 8\n.type {name},@function\n{name}:")


def descriptor(name, vgpr, sgpr):
    acc = (vgpr + 3) // 4 * 4
    return f""".amdhsa_kernel {name}
  .amdhsa_next_free_vgpr {vgpr}
  .amdhsa_next_free_sgpr {sgpr}
  .amdhsa_accum_offset {acc}
  .amdhsa_group_segment_fixed_size 0
  .amdhsa_kernarg_size 88
  .amdhsa_user_sgpr_count 2
  .amdhsa_user_sgpr_kernarg_segment_ptr 1
  .amdhsa_system_sgpr_workgroup_id_x 1
  .amdhsa_float_denorm_mode_32 3
.end_amdhsa_kernel
"""


def stamp(A, opt, slot):
    if opt.get("prof"):
        A(f"{'s_memtime' if opt['prof'] == 'clk' else 's_memrealtime'} {s(80 + 2 * slot, 2)}")
        if opt["prof"] == "both" and slot in (3, 5):
            A(f"s_waitcnt lgkmcnt(0)\ns_memtime {s(80 + (slot - 1), 2)}")


def stamp_out(A, opt, nslots, wsreg, base, wave_sgpr):
    if opt.get("prof"):
        A("s_waitcnt lgkmcnt(0)")
        A(f"s_lshl_b32 s78, s2, 4\ns_add_u32 s78, s78, {s(wave_sgpr)}\ns_lshl_b32 s78, s78, 6\ns_add_u32 s78, s78, {base}")
        A("s_mov_b64 exec, -1\nv_mov_b32 v1, s78")
        for i in range(nslots):
            A(f"v_mov_b32 v2, {s(80 + 2 * i)}\nglobal_store_dword v1, v2, {s(wsreg, 2)} offset:{4 * i}")


NW = 16
V_DBASE, V_DCNT, V_HALF16, V_ACCL, V_LAD, V_LAE, V_LAY = 1, 2, 3, 4, 5, 6, 7
V_ONE, V_CTRA, V_KK, V_KN, V_EID, V_SA, V_FA, V_MT = 8, 9, 10, 11, 12, 13, 14, 15
CG = 16
W = 24
D = 32
X = 64
TP = 80
ACC = 88
STG = 96
SO = 104
E = 112
T = 116
EF = 120
YR = 124
NVGPR2 = 128

S_X, S_EF, S_OUT, S_WS = 4, 8, 12, 16
S_BETA, S_WAVE, S_K0, S_WIDE, S_N, S_NT, S_NEXT, S_MASK = 18, 19, 20, 21, 22, 23, 24, 25
S_CMP = 26
S_MORE, S_TMP, S_C0, S_C1 = 28, 29, 30, 31
S_M1, S_M2 = 32, 40
S_ANY2 = 48
S_SC = 50
S_XP = 52
S_TMP2 = 56


def gen_k2(A, opt):
    name = NAME + "_kernel"
    efl = opt.get("ef_ld", "")
    P0, P1, P2, P3, P4, P5, P6 = 112, 113, 114, 115, 116, 117, 118
    kernel_head(A, name)
    stamp(A, opt, 0)
    if opt.get("diag") == "k2":
        A("s_memrealtime s[76:77]")
    WT = opt.get("wt", "sc0 sc1")
    KA = 32
    S_DBG = 58
    S_PM = 60
    QD, QS, QY, QH, QR, QT, QP = 32, 36, 40, 48, 52, 56, 60
    A(f"""
    s_cmp_ge_u32 s2, 256
    s_cbranch_scc1 K2_END
    s_load_dwordx16 {s(KA, 16)}, s[0:1], 0
    s_load_dwordx2 {s(S_WS, 2)}, s[0:1], 80
    s_load_dwordx2 {s(S_OUT, 2)}, s[0:1], 64
    s_load_dwordx2 {s(S_DBG, 2)}, s[0:1], 72
    v_lshrrev_b32 {v(P0)}, 6, v0
    v_and_b32 {v(P1)}, 63, v0
    v_readfirstlane_b32 {s(S_WAVE)}, {v(P0)}
    s_mul_i32 {s(S_TMP)}, s2, {CHUNK * 4}
    s_mul_i32 {s(S_TMP2)}, s2, {CHUNK * 8}
    v_lshl_add_u32 {v(P2)}, v0, 4, {s(S_TMP)}
    v_lshl_add_u32 {v(P3)}, v0, 5, {s(S_TMP2)}
    v_cmp_gt_u32 {s(S_PM, 2)}, {s(S_C0)}, v0
    """.replace(f"v_cmp_gt_u32 {s(S_PM, 2)}, {s(S_C0)}, v0", f"s_movk_i32 {s(S_C0)}, {CHUNK // 4}\nv_cmp_gt_u32 {s(S_PM, 2)}, {s(S_C0)}, v0"))
    A(f"""
    v_mov_b64 v[64:65], 0
    v_mov_b64 v[66:67], 0
    s_lshl_b32 s3, s2, 11
    s_add_u32 s3, s3, {WS_TAB}
    v_lshl_add_u32 {v(QP)}, {v(P1)}, 4, s3
    s_cmp_ge_u32 {s(S_WAVE)}, 10
    s_cbranch_scc1 KA_AUX0
    s_mov_b64 exec, {s(S_PM, 2)}
    s_waitcnt lgkmcnt(0)
    global_load_dwordx4 {v(QD, 4)}, {v(P2)}, {s(KA + 4, 2)}
    global_load_dwordx4 {v(QS, 4)}, {v(P2)}, {s(KA + 2, 2)}
    global_load_dwordx4 {v(QY, 4)}, {v(P3)}, {s(KA + 6, 2)}
    global_load_dwordx4 {v(QY + 4, 4)}, {v(P3)}, {s(KA + 6, 2)} offset:16
    s_mov_b64 exec, -1
    s_branch KA_JOIN0
    KA_AUX0:
    s_waitcnt lgkmcnt(0)
    s_cmp_eq_u32 {s(S_WAVE)}, 15
    s_cbranch_scc0 KA_AUX0B
    s_cmp_eq_u32 s2, 0
    s_cbranch_scc0 KA_JOIN0
    s_memrealtime s[62:63]
    s_waitcnt lgkmcnt(0)
    s_lshl_b32 s63, s63, 24
    s_or_b32 s63, s63, 1
    v_mov_b32 {v(QD)}, s63
    v_mov_b32 {v(QD + 1)}, s62
    s_mov_b64 exec, 1
    global_store_dwordx2 v64, {v(QD, 2)}, {s(S_DBG, 2)} {WT}
    s_mov_b64 exec, -1
    s_branch KA_JOIN0
    KA_AUX0B:
    s_cmp_eq_u32 {s(S_WAVE)}, 10
    s_cbranch_scc0 KA_JOIN0
    s_cmp_lt_u32 s2, 12
    s_cbranch_scc0 KA_JOIN0
    s_sub_u32 s62, s2, 4
    s_lshr_b32 s63, s62, 2
    s_lshl_b32 s63, s63, 7
    s_and_b32 s64, s62, 1
    s_lshl_b32 s64, s64, 1
    s_add_u32 s63, s63, s64
    s_and_b32 s64, s62, 2
    s_lshl_b32 s64, s64, 5
    s_add_u32 s63, s63, s64
    s_and_b32 s64, s2, 1
    s_lshl_b32 s65, s64, 6
    s_cmp_lt_u32 s2, 4
    s_cselect_b64 s[66:67], {s(KA + 12, 2)}, {s(KA + 14, 2)}
    s_cselect_b32 s63, s65, s63
    s_cselect_b32 s68, 6, 4
    s_cselect_b32 s69, 3, 15
    s_cselect_b32 s70, 1, 2
    s_cselect_b32 s71, 8, 256
    s_lshl_b32 s65, s64, 1
    s_cmp_lt_u32 s2, 2
    s_cselect_b64 s[66:67], {s(KA + 10, 2)}, s[66:67]
    s_cselect_b32 s63, s65, s63
    s_cselect_b32 s68, 5, s68
    s_cselect_b32 s69, 31, s69
    s_cselect_b32 s70, 2, s70
    s_cselect_b32 s71, 128, s71
    s_cselect_b32 s72, 10, 11
    v_lshrrev_b32 {v(P2)}, s68, {v(P1)}
    v_lshlrev_b32 {v(P2)}, s72, {v(P2)}
    v_and_b32 {v(P3)}, s69, {v(P1)}
    v_lshlrev_b32 {v(P3)}, s70, {v(P3)}
    v_add3_u32 {v(P2)}, {v(P2)}, {v(P3)}, s63
    """)
    for i in range(8):
        A(f"global_load_ushort {v(QD + i)}, {v(P2)}, s[66:67]\nv_add_u32 {v(P2)}, s71, {v(P2)}")
    A(f"""
    KA_JOIN0:
    v_and_b32 {v(P0)}, 0xff, v0
    v_lshlrev_b32 {v(P0)}, 2, {v(P0)}
    ds_write_b32 {v(P0)}, v64 offset:{L_HIST}
    s_and_b32 {s(S_BETA)}, s2, 7
    s_lshl_b32 {s(S_BETA)}, {s(S_BETA)}, 5
    s_lshr_b32 s3, s2, 3
    s_add_u32 {s(S_BETA)}, {s(S_BETA)}, s3
    s_sub_u32 {s(S_X)}, {s(KA)}, 512
    s_subb_u32 {s(S_X + 1)}, {s(KA + 1)}, 0
    s_and_b32 {s(S_X + 1)}, {s(S_X + 1)}, 0xffff
    s_or_b32 {s(S_X + 1)}, {s(S_X + 1)}, 0x100000
    s_mov_b32 {s(S_X + 2)}, 64
    s_mov_b32 {s(S_X + 3)}, 0x800000
    s_mov_b32 {s(S_XP)}, {s(KA)}
    s_and_b32 {s(S_XP + 1)}, {s(KA + 1)}, 0xffff
    s_mov_b32 {s(S_XP + 2)}, 5120000
    s_mov_b32 {s(S_XP + 3)}, 0x20000
    s_mov_b32 {s(S_EF)}, {s(KA + 8)}
    s_and_b32 {s(S_EF + 1)}, {s(KA + 9)}, 0xffff
    s_mov_b32 {s(S_EF + 2)}, 20480000
    s_mov_b32 {s(S_EF + 3)}, 0x20000
    s_and_b32 {s(S_OUT + 1)}, {s(S_OUT + 1)}, 0xffff
    s_mov_b32 {s(S_OUT + 2)}, 5120000
    s_mov_b32 {s(S_OUT + 3)}, 0x20000
    s_mov_b32 {s(S_K0)}, 0
    s_mov_b32 {s(S_WIDE)}, 1
    v_lshlrev_b32 {v(P6)}, 4, v0
    v_add_u32 {v(P6)}, {L_ACC}, {v(P6)}
    v_add_u32 {v(P0)}, {41 * NS - 16384}, {v(P6)}
    """)
    for i in range(4):
        A(f"ds_write_b128 {v(P6)}, v[64:67] offset:{16384 * i}")
    A(f"v_add_u32 {v(P6)}, 65536, {v(P6)}\nds_write_b128 {v(P0)}, v[64:67]\nds_write_b128 {v(P6)}, v[64:67]")
    assert 5 * 16384 <= 41 * NS <= 6 * 16384
    A(f"""
    v_lshrrev_b32 {v(P2)}, 4, v0
    v_lshlrev_b32 {v(P2)}, 2, {v(P2)}
    v_and_or_b32 {v(P3)}, v0, 3, {v(P2)}
    s_lshr_b32 s3, {s(S_BETA)}, 2
    s_lshl_b32 s3, s3, 4
    s_and_b32 {s(S_TMP)}, {s(S_BETA)}, 1
    s_lshl_b32 {s(S_TMP)}, {s(S_TMP)}, 3
    s_add_u32 s3, s3, {s(S_TMP)}
    s_and_b32 {s(S_TMP)}, {s(S_BETA)}, 2
    s_lshl_b32 {s(S_TMP)}, {s(S_TMP)}, 9
    s_add_u32 s3, s3, {s(S_TMP)}
    s_add_u32 s3, s3, {WS_TAB}
    v_lshl_add_u32 {v(V_FA)}, {v(P3)}, 11, s3
    v_mul_u32_u24 {v(V_DBASE)}, {RECSTRIDE}, {v(P3)}
    v_and_b32 {v(P4)}, 31, {v(P1)}
    v_lshrrev_b32 {v(P5)}, 5, {v(P1)}
    v_lshlrev_b32 {v(V_HALF16)}, 4, {v(P5)}
    v_lshlrev_b32 {v(V_ACCL)}, 3, {v(P4)}
    v_add_u32 {v(V_ACCL)}, {L_ACC}, {v(V_ACCL)}
    v_and_b32 {v(P6)}, 15, v0
    v_add_lshl_u32 {v(V_LAD)}, {v(P6)}, {v(V_HALF16)}, 2
    v_lshrrev_b32 {v(P6)}, 3, {v(P4)}
    v_lshlrev_b32 {v(P6)}, 2, {v(P6)}
    v_and_or_b32 {v(P6)}, {v(P4)}, 3, {v(P6)}
    v_lshlrev_b32 {v(P6)}, 2, {v(P6)}
    v_and_b32 {v(P0)}, 4, {v(P4)}
    v_lshl_add_u32 {v(V_LAE)}, {v(P0)}, 4, {v(P6)}
    v_lshrrev_b32 {v(P6)}, 2, {v(P4)}
    v_and_b32 {v(P0)}, 1, {v(P4)}
    v_lshl_add_u32 {v(P6)}, {v(P0)}, 3, {v(P6)}
    v_add_lshl_u32 {v(V_LAY)}, {v(P6)}, {v(V_HALF16)}, 3
    v_mov_b32 {v(V_ONE)}, 1
    v_mov_b32 {v(V_CTRA)}, {L_CTR}
    s_waitcnt lgkmcnt(0)
    s_barrier
    """)

    def xtouch(n, base, first_wave, reg):
        A(f"""
        s_lshr_b32 {s(S_TMP)}, s2, 3
        s_mul_i32 {s(S_TMP)}, {s(S_TMP)}, {n * 128}
        s_add_u32 {s(S_TMP)}, {s(S_TMP)}, {base * 128}
        v_subrev_u32 {v(P5)}, {64 * first_wave}, v0
        v_cmp_gt_u32 vcc, {n}, {v(P5)}
        v_lshl_add_u32 {v(P5)}, {v(P5)}, 7, {s(S_TMP)}
        v_mov_b32 {v(P6)}, 0x80000000
        v_cndmask_b32 {v(P5)}, {v(P6)}, {v(P5)}, vcc
        buffer_load_dword {v(reg)}, {v(P5)}, {s(S_XP, 4)}, 0 offen
        """)

    A(f"""
    s_cmp_ge_u32 {s(S_WAVE)}, 10
    s_cbranch_scc1 KA_AUX1
    s_mov_b64 exec, {s(S_PM, 2)}
    v_lshlrev_b32 {v(P0)}, 2, v0
    v_add_u32 {v(P0)}, 4096, {v(P0)}
    s_movk_i32 {s(S_C0)}, {4096 - PSIZE}
    s_waitcnt vmcnt(3)
    """)
    for k in range(4):
        A(f"v_lshlrev_b32_sdwa {v(QH + k)}, 2, {v(QD + k)} dst_sel:DWORD dst_unused:UNUSED_PAD src0_sel:DWORD src1_sel:BYTE_0")
        A(f"ds_add_rtn_u32 {v(QR + k)}, {v(QH + k)}, {v(V_ONE)} offset:{L_HIST}")
    A("s_waitcnt lgkmcnt(0)\ns_barrier\ns_waitcnt vmcnt(2)")
    for k in range(4):
        A(f"""
        v_mul_u32_u24 {v(P2)}, {(1 << 24) // PSIZE}, {v(QS + k)}
        v_lshrrev_b32 {v(P2)}, 24, {v(P2)}
        v_mad_u32_u24 {v(QS + k)}, {v(P2)}, {s(S_C0)}, {v(QS + k)}
        v_lshrrev_b32 {v(QD + k)}, 8, {v(QD + k)}
        v_lshl_or_b32 {v(QD + k)}, {v(QD + k)}, 14, {v(QS + k)}
        v_or_b32 {v(P3)}, {k}, {v(P0)}
        v_lshl_add_u32 {v(QD + k)}, {v(QD + k)}, 12, {v(P3)}
        """)
    A(f"s_movk_i32 {s(S_C0)}, {L_STG}\ns_barrier")
    for k in range(4):
        A(f"ds_read_b32 {v(QH + k)}, {v(QH + k)} offset:{L_PREF}")
    for k in range(4):
        A(f"""
        s_waitcnt lgkmcnt(3)
        v_add_u32 {v(QH + k)}, {v(QH + k)}, {v(QR + k)}
        v_mad_u32_u24 {v(QH + k)}, {v(QH + k)}, 12, {s(S_C0)}
        ds_write_b32 {v(QH + k)}, {v(QD + k)} offset:8
        """)
    A("s_waitcnt vmcnt(0)")
    for k in range(4):
        A(f"ds_write2_b32 {v(QH + k)}, {v(QY + 2 * k)}, {v(QY + 2 * k + 1)} offset0:0 offset1:1")
    A(f"""
    s_mov_b64 exec, -1
    s_branch KA_JOIN3
    KA_AUX1:
    s_cmp_eq_u32 {s(S_WAVE)}, 15
    s_cbranch_scc1 KA_SCAN
    """)
    if opt.get("w1"):
        A(f"s_cmp_eq_u32 {s(S_WAVE)}, 10\ns_cbranch_scc1 KA_NOW1")
        xtouch(opt["w1"], 0, 11, 127)
        A("KA_NOW1:")
    A(f"""
    s_barrier
    s_barrier
    s_cmp_eq_u32 {s(S_WAVE)}, 10
    s_cbranch_scc0 KA_JOIN3
    s_cmp_lt_u32 s2, 12
    s_cbranch_scc0 KA_JOIN3
    s_cmp_lt_u32 s2, 2
    s_cselect_b32 s62, {fbits(-math.log2(math.e))}, 1.0
    s_lshl_b32 s63, s2, 10
    s_add_u32 s63, s63, {WS_WF}
    v_lshl_add_u32 {v(P2)}, {v(P1)}, 4, s63
    s_waitcnt vmcnt(0)
    """)
    for i in range(8):
        A(f"v_lshlrev_b32 {v(QD + i)}, 16, {v(QD + i)}\nv_mul_f32 {v(QD + i)}, s62, {v(QD + i)}")
    for jj in range(4):
        A(f"v_cvt_pk_bf16_f32 {v(QY + jj)}, {v(QD + 2 * jj)}, {v(QD + 2 * jj + 1)}")
    A(f"""
    global_store_dwordx4 {v(P2)}, {v(QY, 4)}, {s(S_WS, 2)} {WT}
    s_branch KA_JOIN3
    KA_SCAN:
    v_lshlrev_b32 {v(P3)}, 4, {v(P1)}
    s_barrier
    global_load_dwordx2 {v(QD, 2)}, v64, {s(S_DBG, 2)} {WT}
    ds_read_b128 {v(QT, 4)}, {v(P3)} offset:{L_HIST}
    s_waitcnt lgkmcnt(0)
    v_add_u32 {v(QR + 2)}, {v(QT)}, {v(QT + 1)}
    v_add_u32 {v(QR + 3)}, {v(QR + 2)}, {v(QT + 2)}
    v_add_u32 {v(P4)}, {v(QR + 3)}, {v(QT + 3)}
    v_mov_b32 {v(QR)}, {v(P4)}
    """)
    wave_scan(A, [QR])
    A(f"""
    v_sub_u32 {v(QR)}, {v(QR)}, {v(P4)}
    v_add_u32 {v(QR + 1)}, {v(QR)}, {v(QT)}
    v_add_u32 {v(QR + 2)}, {v(QR)}, {v(QR + 2)}
    v_add_u32 {v(QR + 3)}, {v(QR)}, {v(QR + 3)}
    ds_write_b128 {v(P3)}, {v(QR, 4)} offset:{L_PREF}
    s_waitcnt lgkmcnt(0)
    s_barrier
    """)
    A(f"""
    s_mov_b32 {s(S_C1)}, {SPIN_MAX}
    KA_NONCE:
    s_waitcnt vmcnt(0)
    v_cmp_eq_u32 vcc, 0, {v(QD)}
    s_cbranch_vccz KA_GOTN
    s_sub_u32 {s(S_C1)}, {s(S_C1)}, 1
    s_cbranch_scc1 K2_END
    global_load_dwordx2 {v(QD, 2)}, v64, {s(S_DBG, 2)} {WT}
    s_branch KA_NONCE
    KA_GOTN:
    v_and_b32 {v(QD)}, 0xff000000, {v(QD)}
    ds_write_b64 {v(V_CTRA)}, {v(QD, 2)} offset:8
    """)
    for k in range(4):
        A(f"v_lshl_or_b32 {v(QT + k)}, {v(QT + k)}, 12, {v(QR + k)}\nv_or_b32 {v(QY + 2 * k)}, {v(QT + k)}, {v(QD)}\nv_mov_b32 {v(QY + 2 * k + 1)}, {v(QD + 1)}")
    A(f"""
    KA_JOIN3:
    v_lshlrev_b32 {v(P2)}, 4, v0
    s_mul_i32 {s(S_TMP)}, s2, {RECSTRIDE}
    v_add_u32 {v(P3)}, {s(S_TMP)}, {v(P2)}
    v_add_u32 {v(P4)}, 16384, {v(P3)}
    v_cmp_gt_u32 vcc, {CHUNK * 12 // 16 - 1024}, v0
    v_and_b32 {v(P0)}, 0xff, v0
    v_lshlrev_b32 {v(P0)}, 2, {v(P0)}
    v_mov_b32 {v(P5)}, {NW - opt.get("helpers", 0)}
    s_waitcnt lgkmcnt(0)
    s_barrier
    """)
    stamp(A, opt, 8)
    A(f"""
    ds_read_b128 {v(QD, 4)}, {v(P2)} offset:{L_STG}
    ds_read_b128 {v(QS, 4)}, {v(P2)} offset:{L_STG + 16384}
    ds_write_b32 {v(P0)}, v64 offset:{L_HIST}
    ds_write2_b32 {v(V_CTRA)}, {v(P5)}, v64 offset0:0 offset1:1
    s_waitcnt lgkmcnt(3)
    global_store_dwordx4 {v(P3)}, {v(QD, 4)}, {s(S_WS, 2)} {WT}
    s_and_saveexec_b64 {s(S_PM, 2)}, vcc
    s_cbranch_execz KA_NOST2
    s_waitcnt lgkmcnt(2)
    global_store_dwordx4 {v(P4)}, {v(QS, 4)}, {s(S_WS, 2)} {WT}
    KA_NOST2:
    s_mov_b64 exec, -1
    s_mov_b32 {s(S_C1)}, {SPIN_MAX}
    ds_read_b64 {v(QH, 2)}, {v(V_CTRA)} offset:8
    """)
    w2 = opt.get("w2", 0)
    if w2:
        xtouch(w2, 32 * opt.get("w1", 0), 0, 127)
    A(f"""
    s_waitcnt vmcnt({1 if w2 else 0}) lgkmcnt(0)
    s_barrier
    """)
    stamp(A, opt, 9)
    A(f"""
    s_cmp_eq_u32 {s(S_WAVE)}, 15
    s_cbranch_scc0 KA_POLL
    global_store_dwordx4 {v(QP)}, {v(QY, 4)}, {s(S_WS, 2)} {WT}
    global_store_dwordx4 {v(QP)}, {v(QY + 4, 4)}, {s(S_WS, 2)} offset:1024 {WT}
    KA_POLL:
    """)
    if opt.get("pdelay"):
        A(f"s_sleep {opt['pdelay']}")
    if opt.get("w2b"):
        xtouch(opt["w2b"], 32 * opt.get("w1", 0), 0, 127)
        if opt.get("w2bar"):
            A("s_waitcnt vmcnt(0)\ns_barrier")
    A(f"""
    KA_POLL2:
    global_load_dwordx2 {v(QD, 2)}, {v(V_FA)}, {s(S_WS, 2)} {opt.get("pflag", WT)}
    s_waitcnt vmcnt(0)
    v_mov_b32 {v(V_DCNT)}, {v(QD)}
    v_and_b32 {v(QD)}, 0xff000000, {v(QD)}
    v_cmp_ne_u64 vcc, {v(QD, 2)}, {v(QH, 2)}
    s_cbranch_vccz KA_READY
    s_mov_b64 exec, vcc
    s_sub_u32 {s(S_C1)}, {s(S_C1)}, 1
    s_cbranch_scc1 K2_END
    """)
    if opt.get("psleep"):
        A(f"s_sleep {opt['psleep']}")
    A(f"""
    s_branch KA_POLL2
    KA_READY:
    s_mov_b64 exec, -1
    v_and_b32 {v(P0)}, 0xfff, {v(V_DCNT)}
    v_mad_u32_u24 {v(V_DBASE)}, {v(P0)}, 12, {v(V_DBASE)}
    v_bfe_u32 {v(V_DCNT)}, {v(V_DCNT)}, 12, 12
    """)
    stamp(A, opt, 1)
    NC = 4
    REC1, REC2, RK1, RK2, HA1, HA2, PB, SC = 32, 48, 64, 68, 72, 76, 80, 84
    A(f"""
    s_branch K2_ROUND0
    K2_ROUND:
    v_and_b32 {v(P0)}, 0xff, v0
    v_lshlrev_b32 {v(P0)}, 2, {v(P0)}
    v_mov_b32 {v(P1)}, 0
    v_mov_b32 {v(P2)}, {NW - opt.get("helpers", 0)}
    ds_write_b32 {v(P0)}, {v(P1)} offset:{L_HIST}
    ds_write2_b32 {v(V_CTRA)}, {v(P2)}, {v(P1)} offset0:0 offset1:1
    s_waitcnt lgkmcnt(0)
    s_barrier
    K2_ROUND0:
    v_and_b32 {v(P3)}, 15, v0
    v_add_u32 {v(P3)}, {s(S_K0)}, {v(P3)}
    v_mul_u32_u24 {v(P4)}, 12, {v(P3)}
    s_lshl_b32 {s(S_TMP)}, 16, {s(S_WIDE)}
    s_add_u32 {s(S_TMP)}, {s(S_TMP)}, {s(S_K0)}
    v_cmp_lt_u32 {s(S_CMP, 2)}, {s(S_TMP)}, {v(V_DCNT)}
    s_cmp_eq_u32 {s(S_WIDE)}, 1
    s_cselect_b32 {s(S_C1)}, 16, 0x7fffffff
    s_mov_b64 {s(S_ANY2, 2)}, 0
    """)
    for c in range(NC):
        A(f"""
        v_add_u32_dpp {v(HA2 + c)}, {v(V_DBASE)}, {v(P4)} row_newbcast:{c} {DPP}
        v_sub_u32_dpp {v(P5)}, {v(V_DCNT)}, {v(P3)} row_newbcast:{c} {DPP}
        v_cmp_lt_i32 {s(S_M1 + 2 * c, 2)}, 0, {v(P5)}
        v_cmp_lt_i32 {s(S_M2 + 2 * c, 2)}, {s(S_C1)}, {v(P5)}
        """)
    for c in range(NC):
        A(f"""
        s_mov_b64 exec, {s(S_M1 + 2 * c, 2)}
        s_or_b64 {s(S_ANY2, 2)}, {s(S_ANY2, 2)}, {s(S_M2 + 2 * c, 2)}
        global_load_dwordx3 {v(REC1 + 4 * c, 3)}, {v(HA2 + c)}, {s(S_WS, 2)} {WT}
        """)
    A(f"s_cmp_eq_u64 {s(S_ANY2, 2)}, 0\ns_cbranch_scc1 K2_NOSEC_A")
    for c in range(NC):
        A(f"""
        s_mov_b64 exec, {s(S_M2 + 2 * c, 2)}
        s_cbranch_execz K2_SA{c}
        global_load_dwordx3 {v(REC2 + 4 * c, 3)}, {v(HA2 + c)}, {s(S_WS, 2)} offset:192 {WT}
        K2_SA{c}:
        """)
    A(f"""
    K2_NOSEC_A:
    s_mov_b64 exec, -1
    v_lshrrev_b32 {v(PB)}, 4, v0
    v_mul_u32_u24 {v(PB)}, {4 * CHUNK}, {v(PB)}
    """)
    A(f"""
    s_cmp_eq_u64 {s(S_CMP, 2)}, 0
    s_cbranch_scc1 K2_NOMORE
    ds_write_b32 {v(V_CTRA)}, {v(V_ONE)} offset:4
    K2_NOMORE:
    s_mov_b32 {s(S_C0)}, {opt.get("abl_x", 0x7ffe00)}
    s_mov_b32 {s(S_C1)}, 0xfc000fff
    s_mov_b32 {s(S_TMP2)}, {-(4096 - PSIZE) * 512}
    s_waitcnt vmcnt(0)
    """)
    stamp(A, opt, 2)
    if opt.get("w3"):
        xtouch(opt["w3"], 32 * (opt.get("w1", 0) + opt.get("w2", 0) + opt.get("w2b", 0)), 0, 127)

    def hist(rec, rk, ha, c):
        idx = rec + 4 * c + 2
        A(f"""
        v_lshlrev_b32_sdwa {v(ha + c)}, 2, {v(idx)} dst_sel:DWORD dst_unused:UNUSED_PAD src0_sel:DWORD src1_sel:BYTE_3
        v_and_b32 {v(idx + 1)}, {s(S_C1)}, {v(idx)}
        ds_add_rtn_u32 {v(rk + c)}, {v(ha + c)}, {v(V_ONE)} offset:{L_HIST}
        v_bfe_u32 {v(P0)}, {v(idx)}, 24, 2
        v_lshrrev_b32 {v(idx)}, 3, {v(idx)}
        v_and_b32 {v(idx)}, {s(S_C0)}, {v(idx)}
        s_movk_i32 {s(S_TMP)}, {c * CHUNK}
        """)
        if not opt.get("abl_x"):
            A(f"v_mad_i32_i24 {v(idx)}, {v(P0)}, {s(S_TMP2)}, {v(idx)}")
        if opt.get("abl_x"):
            A(f"v_add_u32 {v(idx)}, 512, {v(idx)}")
        if not opt.get("abl_ef"):
            A(f"v_add3_u32 {v(idx + 1)}, {v(idx + 1)}, {v(PB)}, {s(S_TMP)}")

    def place(rec, rk, ha, c):
        A(f"""
        v_add_lshl_u32 {v(ha + c)}, {v(ha + c)}, {v(rk + c)}, 2
        v_and_b32 {v(P0)}, 64, {v(ha + c)}
        v_lshlrev_b32 {v(rk + c)}, 1, {v(ha + c)}
        v_mad_i32_i24 {v(rec + 4 * c + 2)}, {v(P0)}, -8, {v(rec + 4 * c + 2)}
        ds_write_b64 {v(rk + c)}, {v(rec + 4 * c, 2)} offset:{L_Y}
        ds_write2st64_b32 {v(ha + c)}, {v(rec + 4 * c + 2)}, {v(rec + 4 * c + 3)} offset0:{L_SRC // 256} offset1:{L_EID // 256}
        """)

    for c in range(NC):
        A(f"s_mov_b64 exec, {s(S_M1 + 2 * c, 2)}")
        hist(REC1, RK1, HA1, c)
    A(f"s_cmp_eq_u64 {s(S_ANY2, 2)}, 0\ns_cbranch_scc1 K2_NOSEC_B")
    for c in range(NC):
        A(f"s_mov_b64 exec, {s(S_M2 + 2 * c, 2)}\ns_cbranch_execz K2_SB{c}")
        hist(REC2, RK2, HA2, c)
        A(f"K2_SB{c}:")
    order = opt.get("order", [0, 1, 2, 3])
    A(f"""
    K2_NOSEC_B:
    s_mov_b64 exec, -1
    v_and_b32 {v(P1)}, 63, v0
    v_lshlrev_b32 {v(P2)}, 4, {v(P1)}
    v_add_u32 {v(P4)}, {WS_WF}, {v(P2)}
    s_waitcnt lgkmcnt(0)
    s_barrier
    ds_read_b128 {v(SC, 4)}, {v(P2)} offset:{L_HIST}
    """)
    if opt.get("w4"):
        xtouch(opt["w4"], 32 * (opt.get("w1", 0) + opt.get("w2", 0) + opt.get("w2b", 0) + opt.get("w3", 0)), 0, 127)
    A(f"""
    global_load_dwordx4 {v(W, 4)}, {v(P4)}, {s(S_WS, 2)} {WT}
    global_load_dwordx4 {v(W + 4, 4)}, {v(P4)}, {s(S_WS, 2)} offset:1024 {WT}
    global_load_dwordx4 {v(CG, 4)}, {v(P4)}, {s(S_WS, 2)} offset:2048 {WT}
    global_load_dwordx4 {v(CG + 4, 4)}, {v(P4)}, {s(S_WS, 2)} offset:3072 {WT}
    ds_read_b32 {v(P3)}, {v(V_CTRA)} offset:4
    s_waitcnt lgkmcnt(0)
    v_readfirstlane_b32 {s(S_MORE)}, {v(P3)}
    v_lshl_or_b32 {v(SC + 4)}, {v(SC + order[1])}, 16, {v(SC + order[0])}
    v_lshl_or_b32 {v(SC + 5)}, {v(SC + order[3])}, 16, {v(SC + order[2])}
    v_mov_b32 {v(SC + 6)}, {v(SC + 4)}
    v_mov_b32 {v(SC + 7)}, {v(SC + 5)}
    """)
    wave_scan(A, [SC + 6, SC + 7])
    A(f"""
    s_nop 0
    v_readlane_b32 s70, {v(SC + 6)}, 63
    v_readlane_b32 s71, {v(SC + 7)}, 63
    v_sub_u32 {v(SC + 6)}, {v(SC + 6)}, {v(SC + 4)}
    v_sub_u32 {v(SC + 7)}, {v(SC + 7)}, {v(SC + 5)}
    s_and_b32 s72, s70, 0xffff
    s_lshr_b32 s73, s70, 16
    s_add_u32 s73, s73, s72
    s_and_b32 s74, s71, 0xffff
    s_add_u32 s74, s74, s73
    s_lshr_b32 {s(S_N)}, s71, 16
    s_add_u32 {s(S_N)}, {s(S_N)}, s74
    s_cmp_le_u32 {s(S_N)}, {CAP}
    s_cbranch_scc1 K2_FITS
    s_mov_b32 {s(S_WIDE)}, 0
    s_waitcnt vmcnt(0)
    s_barrier
    s_branch K2_ROUND
    K2_FITS:
    v_and_b32 {v(SC + order[0])}, 0xffff, {v(SC + 6)}
    v_lshrrev_b32 {v(SC + 6)}, 16, {v(SC + 6)}
    v_add_u32 {v(SC + order[1])}, s72, {v(SC + 6)}
    v_and_b32 {v(SC + 6)}, 0xffff, {v(SC + 7)}
    v_add_u32 {v(SC + order[2])}, s73, {v(SC + 6)}
    v_lshrrev_b32 {v(SC + 7)}, 16, {v(SC + 7)}
    v_add_u32 {v(SC + order[3])}, s74, {v(SC + 7)}
    ds_write_b128 {v(P2)}, {v(SC, 4)} offset:{L_PREF}
    s_add_u32 {s(S_NT)}, {s(S_N)}, 31
    s_lshr_b32 {s(S_NT)}, {s(S_NT)}, 5
    """)
    for c in range(NC):
        A(f"s_mov_b64 exec, {s(S_M1 + 2 * c, 2)}\nds_read_b32 {v(HA1 + c)}, {v(HA1 + c)} offset:{L_PREF}")
    A(f"""
    s_mov_b64 exec, -1
    v_add_lshl_u32 {v(P1)}, {v(P1)}, {s(S_N)}, 2
    v_lshlrev_b32 {v(P2)}, 1, {v(P1)}
    v_mov_b64 {v(SC + 4, 2)}, 0
    v_mov_b32 {v(SC + 6)}, 512
    v_mov_b32 {v(SC + 7)}, {(40 << 26) | 0xfffff}
    ds_write_b64 {v(P2)}, {v(SC + 4, 2)} offset:{L_Y}
    ds_write2st64_b32 {v(P1)}, {v(SC + 6)}, {v(SC + 7)} offset0:{L_SRC // 256} offset1:{L_EID // 256}
    s_waitcnt lgkmcnt(2)
    """)
    for c in range(NC):
        A(f"s_mov_b64 exec, {s(S_M1 + 2 * c, 2)}")
        place(REC1, RK1, HA1, c)
    A(f"s_cmp_eq_u64 {s(S_ANY2, 2)}, 0\ns_cbranch_scc1 K2_NOSEC_C")
    for c in range(NC):
        A(f"""
        s_mov_b64 exec, {s(S_M2 + 2 * c, 2)}
        s_cbranch_execz K2_SC{c}
        ds_read_b32 {v(HA2 + c)}, {v(HA2 + c)} offset:{L_PREF}
        s_waitcnt lgkmcnt(0)
        """)
        place(REC2, RK2, HA2, c)
        A(f"K2_SC{c}:")

    def tile_addr(t4, t8):
        A(f"""
        v_add_u32 {v(V_EID)}, {s(t4)}, {v(V_LAE)}
        v_add_u32 {v(V_KN)}, {s(t4)}, {v(V_LAD)}
        v_add_u32 {v(V_MT)}, {s(t8)}, {v(V_LAY)}
        v_lshl_add_u32 {v(V_SA)}, {v(V_HALF16)}, 2, {s(t4)}
        """)

    def tile_reads():
        A(f"""
        ds_read_b32 {v(V_EID)}, {v(V_EID)} offset:{L_EID}
        ds_read_b32 {v(V_KN)}, {v(V_KN)} offset:{L_EID}
        ds_read_b64 {v(YR, 2)}, {v(V_MT)} offset:{L_Y}
        """)

    def so_read(g):
        A(f"ds_read_b128 {v(SO + 4 * (g % 2), 4)}, {v(V_SA)} offset:{L_SRC + 16 * (g % 4)}")

    def xload(r):
        A(f"buffer_load_dwordx4 {v(X + 4 * (r % 4), 4)}, {v(SO + 4 * ((r // 4) % 2) + r % 4)}, {s(S_X, 4)}, 0 offen")

    def ef_load():
        A(f"v_mad_u32_u24 {v(V_EID)}, {v(V_EID)}, 32, {v(V_HALF16)}")
        A(f"buffer_load_dwordx4 {v(EF, 4)}, {v(V_EID)}, {s(S_EF, 4)}, 0 offen {efl}")

    key_ops = [f"v_mul_u32_u24_sdwa {v(V_KN)}, {s(S_C0)}, {v(V_KN)} dst_sel:DWORD dst_unused:UNUSED_PAD src0_sel:DWORD src1_sel:BYTE_3",
               f"v_xor_b32_dpp {v(V_MT)}, {v(V_KN)}, {v(V_KN)} row_shl:1 {DPP} bound_ctrl:0",
               f"v_cmp_ne_u32 {s(S_CMP, 2)}, 0, {v(V_MT)}"]

    A(f"""
    K2_NOSEC_C:
    s_mov_b64 exec, -1
    s_lshl_b32 {s(S_TMP)}, {s(S_WAVE)}, 7
    s_lshl_b32 {s(S_TMP2)}, {s(S_WAVE)}, 8
    """)
    tile_addr(S_TMP, S_TMP2)
    A(f"""
    s_movk_i32 {s(S_C0)}, {NS // 4}
    s_mov_b32 {s(S_NEXT)}, {s(S_WAVE)}
    s_lshr_b32 s65, s2, 3
    s_and_b32 s66, s65, {len(opt.get("vefs", [0])) - 1}
    s_lshl_b32 s65, s65, 11
    s_add_u32 s65, s65, {(opt.get("xt") or 0) * 128}
    s_mov_b32 s68, {s(S_XP)}
    s_or_b32 s69, {s(S_XP + 1)}, {32 << 16}
    s_mov_b32 s70, 64
    s_mov_b32 s71, 0x20000
    v_mov_b32 {v(V_KK)}, {40 * NS}
    s_waitcnt lgkmcnt(0)
    s_barrier
    """)
    stamp(A, opt, 3)
    if opt.get("trace"):
        A("v_mov_b32 v126, 0\ns_mov_b32 s64, 0")
    if opt.get("diag") == "sorted":
        A("s_memrealtime s[76:77]")
    NH = opt.get("helpers", 0)
    if NH:
        h0 = opt.get("h0", 0)
        A(f"""
        s_cmp_lt_u32 {s(S_WAVE)}, {NW - NH}
        s_cbranch_scc1 K2_START
        s_cmp_lg_u32 {s(S_K0)}, 0
        s_cbranch_scc1 K2_JOIN
        s_lshr_b32 s58, s2, 3
        s_and_b32 s59, s2, 7
        s_lshl_b32 s59, s59, 2
        s_add_u32 s58, s58, s59
        s_and_b32 s58, s58, 31
        s_mul_i32 s58, s58, {NH}
        s_add_u32 s58, s58, {s(S_WAVE)}
        s_sub_u32 s58, s58, {NW - NH}
        s_lshl_b32 s58, s58, 11
        s_add_u32 s58, s58, {h0 * 128}
        K2_SWEEP:
        """)
        for j in range(16):
            if opt.get("hx2", 1):
                A(f"s_buffer_load_dwordx2 s[60:61], {s(S_XP, 4)}, s58 offset:{128 * j + 60}")
            else:
                A(f"s_buffer_load_dword s60, {s(S_XP, 4)}, s58 offset:{128 * j}\ns_buffer_load_dword s60, {s(S_XP, 4)}, s58 offset:{128 * j + 64}")
        A(f"""
        s_add_u32 s58, s58, {32 * NH * 2048}
        s_cmp_lt_u32 s58, 5120000
        s_cbranch_scc1 K2_SWEEP
        K2_JOIN:
        s_mov_b64 exec, 1
        ds_add_rtn_u32 {v(V_FA)}, {v(V_CTRA)}, {v(V_ONE)}
        s_mov_b64 exec, -1
        s_waitcnt lgkmcnt(0)
        v_readfirstlane_b32 {s(S_NEXT)}, {v(V_FA)}
        s_nop 3
        s_cmp_ge_u32 {s(S_NEXT)}, {s(S_NT)}
        s_cbranch_scc1 K2_MAIN_DONE
        s_lshl_b32 {s(S_TMP)}, {s(S_NEXT)}, 7
        s_lshl_b32 {s(S_TMP2)}, {s(S_NEXT)}, 8
        """)
        tile_addr(S_TMP, S_TMP2)
        A("s_branch K2_FIRST\nK2_START:")
    A(f"s_cmp_ge_u32 {s(S_WAVE)}, {s(S_NT)}\ns_cbranch_scc1 K2_MAIN_DONE\nK2_FIRST:")
    A(f"ds_read_b32 {v(V_EID)}, {v(V_EID)} offset:{L_EID}")
    so_read(0)
    A(f"ds_read_b32 {v(V_KN)}, {v(V_KN)} offset:{L_EID}\nds_read_b64 {v(YR, 2)}, {v(V_MT)} offset:{L_Y}")
    so_read(1)
    A("s_waitcnt lgkmcnt(4)")
    ef_load()
    A("s_waitcnt lgkmcnt(3)")
    for r in range(4):
        xload(r)
    A("s_waitcnt lgkmcnt(0)")
    A(key_ops[0] + "\ns_nop 1\n" + key_ops[1] + "\n" + key_ops[2])
    A("s_waitcnt vmcnt(4)")
    stamp(A, opt, 4)

    def flush_ops(r):
        ops = [[f"v_add_u32_dpp {v(V_FA)}, {v(V_KK)}, {v(V_ACCL)} row_newbcast:{r} {DPP}"]]
        for j in range(8):
            st = STG + 2 * (j % 4)
            ops.append([f"v_cvt_f64_f32 {v(st, 2)}, {v(ACC + j)}", f"ds_add_f64 {v(V_FA)}, {v(st, 2)} offset:{RS * j}"])
        return ops

    def emit(groups):
        for g in groups:
            for op in ([g] if isinstance(g, str) else g):
                A(op)

    def acc_ops(r, first):
        ops = []
        for j in range(4):
            rr = D + 16 * (j // 2) + (r & ~1)
            o = r & 1
            if first:
                ops.append(f"v_pk_mul_f32 {v(ACC + 2 * j, 2)}, {v(rr, 2)}, {v(TP + 2 * j, 2)} op_sel:[{o},0] op_sel_hi:[{o},1]")
            else:
                ops.append(f"v_pk_fma_f32 {v(ACC + 2 * j, 2)}, {v(rr, 2)}, {v(TP + 2 * j, 2)}, {v(ACC + 2 * j, 2)} op_sel:[{o},0,0] op_sel_hi:[{o},1,1]")
        return ops

    def exp_ops(q):
        return [f"v_exp_f32 {v(E + j)}, {v(D + 16 * (j // 2) + q + j % 2)}" for j in range(4)]

    add_ops = [f"v_pk_add_f32 {v(E + 2 * j, 2)}, {v(E + 2 * j, 2)}, 1.0 op_sel_hi:[1,0]" for j in range(2)]
    rcp_ops = [f"v_rcp_f32 {v(E + j)}, {v(E + j)}" for j in range(4)]

    def mul_ops(q):
        return [f"v_pk_mul_f32 {v(D + 16 * j + q, 2)}, {v(D + 16 * j + q, 2)}, {v(E + 2 * j, 2)}" for j in range(2)]

    A(".p2align 6")
    loop_start = len(A.lines)
    A("K2_LOOP:")
    GRAB, EFS = opt.get("grab", 1), opt.get("efs", 8)
    if opt.get("prio") and -1 in opt["prio"]:
        A(f"s_setprio {opt['prio'][-1]}")
    fo = flush_ops(15)
    tm = [f"v_mfma_f32_4x4x4_16b_bf16 {v(D + 16 + 4 * i, 4)}, {v(YR, 2)}, {v(CG + 2 * i, 2)}, 0" for i in range(4)]
    tc = [f"v_cvt_pk_bf16_f32 {v(T + 2 * j + hh)}, {v(D + 16 + 8 * hh + j)}, {v(D + 20 + 8 * hh + j)}" for hh in range(2) for j in range(2)]
    ex = exp_ops(0)
    emit([tm[0], fo[0], tm[1], fo[1], tm[2], fo[2], tm[3], fo[3]])
    if opt.get("vefs") and max(opt["vefs"]) > 10:
        A(f"s_cmp_lt_u32 s66, {len([x for x in opt['vefs'] if x <= 10])}\ns_cbranch_scc1 K2_EFOK\ns_waitcnt vmcnt({15 - max(opt['vefs'])})\nK2_EFOK:")
    A(f"v_mfma_f32_32x32x16_bf16 {v(D, 16)}, {v(EF, 4)}, {v(W, 4)}, 0")
    emit([tc[0], tc[1], fo[4], fo[5], tc[2], tc[3]])
    A(f"v_mfma_f32_32x32x16_bf16 {v(D + 16, 16)}, {v(EF, 4)}, {v(W + 4, 4)}, 0")
    emit([fo[6], fo[7], fo[8], f"v_mov_b32 {v(V_KK)}, {v(V_KN)}", f"s_or_b32 {s(S_MASK)}, {s(S_CMP)}, {s(S_CMP + 1)}",
          ex[0], ex[1], "s_nop 1", ex[2], ex[3], "s_nop 0"] + add_ops)
    for r in range(16):
        tr = T + (2 if r >= 8 else 0)
        m4 = [f"v_mfma_f32_4x4x4_16b_bf16 {v(TP + 4 * h, 4)}, {v(tr, 2)}, {v(X + 4 * (r % 4) + 2 * h, 2)}, 0 cbsz:3 abid:{r % 8}" for h in range(2)]
        prio = opt.get("prio")
        if prio and r in prio:
            A(f"s_setprio {prio[r]}")
        nx = 2 if opt.get("xt") is not None else 1
        A(f"s_waitcnt vmcnt({3 + nx if (EFS < r <= EFS + 4 and not opt.get('vefs')) else 3})")
        if r == 15:
            emit([m4[0], key_ops[0], m4[1]])
            xload(r + 4)
            emit([key_ops[1], key_ops[2]])
            side = []
        else:
            trans = rcp_ops if r % 2 == 0 else exp_ops(r + 1)
            side = mul_ops(r) if r % 2 == 0 else add_ops
            emit([m4[0], trans[0], m4[1], trans[1], trans[2], trans[3]])
            if r % 4 == 0 and r > 0:
                A("s_waitcnt lgkmcnt(0)")
            xload(r + 4)
        if r % 4 == 0:
            so_read(r // 4 + 2)
        if opt.get("static"):
            if r == 0:
                A(f"s_add_u32 {s(S_NEXT)}, {s(S_NEXT)}, {NW}\ns_min_u32 {s(S_NEXT)}, {s(S_NEXT)}, {s(S_NT)}\ns_lshl_b32 s67, {s(S_NEXT)}, 7\ns_lshl_b32 {s(S_TMP2)}, {s(S_NEXT)}, 8")
                A(f"v_add_u32 {v(V_EID)}, s67, {v(V_LAE)}\nv_add_u32 {v(V_KN)}, s67, {v(V_LAD)}\nv_add_u32 {v(V_MT)}, {s(S_TMP2)}, {v(V_LAY)}")
                tile_reads()
            if r == 1:
                A("s_waitcnt lgkmcnt(0)")
            if r == 5:
                A(f"v_lshl_add_u32 {v(V_SA)}, {v(V_HALF16)}, 2, s67")
        elif r == GRAB:
            A(f"s_mov_b64 exec, 1\nds_add_rtn_u32 {v(V_MT)}, {v(V_CTRA)}, {v(V_ONE)}\ns_mov_b64 exec, -1")
        if r == max(4, GRAB + 1) and not opt.get("static"):
            if r != 4:
                A("s_waitcnt lgkmcnt(0)")
            A(f"v_readfirstlane_b32 {s(S_NEXT)}, {v(V_MT)}")
        if r == max(5, GRAB + 2) and not opt.get("static"):
            A(f"s_min_u32 {s(S_NEXT)}, {s(S_NEXT)}, {s(S_NT)}\ns_lshl_b32 {s(S_TMP)}, {s(S_NEXT)}, 7\ns_lshl_b32 {s(S_TMP2)}, {s(S_NEXT)}, 8")
            tile_addr(S_TMP, S_TMP2)
            tile_reads()
        def ef_block():
            ef_load()
            if opt.get("xt") is not None:
                A(f"""
                s_lshl_b32 {s(S_TMP)}, {s(S_NEXT)}, 16
                s_add_u32 {s(S_TMP)}, {s(S_TMP)}, s65
                s_min_u32 {s(S_TMP)}, {s(S_TMP)}, {5120000 - 2048}
                s_mov_b64 exec, 0xffff
                buffer_load_dword v127, {v(V_LAD)}, s[68:71], {s(S_TMP)} idxen
                s_mov_b64 exec, -1
                """)
        if opt.get("vefs"):
            if r in opt["vefs"]:
                A(f"s_cmp_lg_u32 s66, {opt['vefs'].index(r)}\ns_cbranch_scc1 K2_NOEF{r}")
                ef_block()
                A(f"K2_NOEF{r}:")
        elif r == EFS:
            ef_block()
        if r == 13 and opt.get("trace"):
            A("s_memrealtime s[62:63]")
        if r == 14:
            A("s_waitcnt lgkmcnt(0)")
            if opt.get("trace"):
                A("s_mov_b32 m0, s64\ns_add_u32 s64, s64, 1\nv_writelane_b32 v126, s62, m0")
        emit(side)
        if r > 0:
            A(f"s_bitcmp1_b32 {s(S_MASK)}, {r - 1}\ns_cbranch_scc1 K2_F{r}")
        emit(acc_ops(r, r == 0))
        if r > 0:
            A(f"K2_R{r}:")
    A(f"s_cmp_lt_u32 {s(S_NEXT)}, {s(S_NT)}\ns_cbranch_scc1 K2_LOOP")
    drop = opt.get("drop", [])
    if drop:
        A.lines[loop_start:] = [ln for ln in A.lines[loop_start:] if not any(d in ln for d in drop)]
    emit(flush_ops(15))
    A("s_branch K2_MAIN_DONE")
    for r in range(1, 16):
        A(f"K2_F{r}:")
        emit(flush_ops(r - 1))
        emit(acc_ops(r, True))
        A(f"s_branch K2_R{r}")
    WM, A64, AG, AF, OD, OP = 32, 80, 16, 8, 80, 96
    A("K2_MAIN_DONE:")
    stamp(A, opt, 5)
    A(f"""
    s_cmp_eq_u32 {s(S_MORE)}, 0
    s_cbranch_scc1 K2_EPI
    s_lshl_b32 {s(S_TMP)}, 16, {s(S_WIDE)}
    s_add_u32 {s(S_K0)}, {s(S_K0)}, {s(S_TMP)}
    s_waitcnt vmcnt(0) lgkmcnt(0)
    s_barrier
    s_branch K2_ROUND
    K2_EPI:
    s_cmp_ge_u32 {s(S_WAVE)}, 10
    s_cbranch_scc0 K2_MIX
    s_waitcnt lgkmcnt(0)
    s_barrier
    """)
    stamp(A, opt, 6)
    A(f"""
    s_branch K2_FIN
    K2_MIX:
    v_and_b32 v1, 63, v0
    v_lshlrev_b32 v2, 4, v1
    v_add_u32 v2, {WS_WF + 4096}, v2
    v_add_u32 v3, 4096, v2
    """)
    for f in range(8):
        A(f"global_load_dwordx4 {v(WM + 4 * f, 4)}, {'v2' if f < 4 else 'v3'}, {s(S_WS, 2)} offset:{1024 * (f % 4)} {WT}")
    A(f"""
    v_bfe_u32 v2, v1, 2, 2
    v_mul_u32_u24 v2, {NS}, v2
    v_and_b32 v3, 3, v1
    v_mul_u32_u24 v3, {RS}, v3
    v_lshrrev_b32 v4, 4, v1
    v_lshlrev_b32 v5, 6, v4
    v_add3_u32 v2, v2, v3, v5
    s_mul_i32 s70, {s(S_WAVE)}, {4 * NS}
    s_add_u32 s70, s70, {L_ACC}
    v_add_u32 v2, s70, v2
    v_and_b32 v3, 15, v1
    v_lshlrev_b32 v3, 4, v3
    v_lshl_add_u32 v3, v4, 17, v3
    s_lshl_b32 s70, {s(S_WAVE)}, 19
    s_lshl_b32 s71, {s(S_BETA)}, 9
    s_add_u32 s70, s70, s71
    v_add_u32 v3, s70, v3
    s_mov_b32 {s(S_SC)}, {fbits(-math.log(2.0))}
    s_mov_b32 {s(S_SC + 1)}, {fbits(-math.log(2.0))}
    s_waitcnt lgkmcnt(0)
    s_barrier
    """)
    stamp(A, opt, 6)
    for cpar in range(2):
        for hh in range(4):
            A(f"ds_read_b128 {v(A64 + 16 * cpar + 4 * hh, 4)}, v2 offset:{4 * RS * cpar + 16 * hh}")
    for j in range(8):
        A(f"s_waitcnt lgkmcnt({7 - j})")
        A(f"v_cvt_f32_f64 {v(AG + 2 * j)}, {v(A64 + 4 * j, 2)}")
        A(f"v_cvt_f32_f64 {v(AG + 2 * j + 1)}, {v(A64 + 4 * j + 2, 2)}")
    for j in range(8):
        A(f"v_pk_mul_f32 {v(AG + 2 * j, 2)}, {v(AG + 2 * j, 2)}, {s(S_SC, 2)}")
    for j in range(8):
        A(f"v_cvt_pk_bf16_f32 {v(AF + j)}, {v(AG + 2 * j)}, {v(AG + 2 * j + 1)}")
    A("s_waitcnt vmcnt(0)\ns_nop 0")
    for dt in range(4):
        A(f"v_mfma_f32_16x16x32_bf16 {v(OD + 4 * dt, 4)}, {v(AF, 4)}, {v(WM + 4 * dt, 4)}, 0")
    for dt in range(4):
        A(f"v_mfma_f32_16x16x32_bf16 {v(OD + 4 * dt, 4)}, {v(AF + 4, 4)}, {v(WM + 16 + 4 * dt, 4)}, {v(OD + 4 * dt, 4)}")
    A("s_nop 7")
    for j in range(8):
        A(f"v_cvt_pk_bf16_f32 {v(OP + j)}, {v(OD + 2 * j)}, {v(OD + 2 * j + 1)}")
    ost = opt.get("out_st", "")
    A(f"buffer_store_dwordx4 {v(OP, 4)}, v3, {s(S_OUT, 4)}, 0 offen {ost}")
    A(f"buffer_store_dwordx4 {v(OP + 4, 4)}, v3, {s(S_OUT, 4)}, 0 offen offset:256 {ost}")
    A("K2_FIN:")
    if opt.get("diag"):
        if opt["diag"] == "k1":
            A(f"s_lshl_b32 s76, s2, 2\ns_add_u32 s76, s76, {100 << 20}\ns_load_dword s76, {s(S_WS, 2)}, s76")
        A("""
        s_waitcnt lgkmcnt(0)
        K2_SPIN:
        s_memrealtime s[74:75]
        s_waitcnt lgkmcnt(0)
        s_sub_u32 s74, s74, s76
        s_cmp_lt_u32 s74, 10000
        s_cbranch_scc1 K2_SPIN
        """)
    if opt.get("trace"):
        A(f"s_lshl_b32 s78, s2, 12\ns_add_u32 s78, s78, {130 << 20}\nv_lshl_add_u32 v1, v0, 2, s78\nglobal_store_dword v1, v126, {s(S_WS, 2)}")
    if opt.get("prof"):
        A("s_waitcnt vmcnt(0)")
        stamp(A, opt, 7)
        stamp_out(A, opt, 10, S_WS, (128 << 20) + (1 << 20), S_WAVE)
    A("K2_END:\ns_endpgm")


def generate(opt):
    A = Asm()
    out = HEADER
    if opt.get("aslist"):
        out += f"; @launch kernel={NAME}_kernel grid=(256,1,1) block=(1024,1,1) lds={K2_LDS}\n"
    else:
        out += f"; @launch grid=(256,1,1) block=(1024,1,1) lds={K2_LDS}\n"
    out += '.amdgcn_target "amdgcn-amd-amdhsa--gfx950"\n.text\n'
    gen_k2(A, opt)
    out += A.text()
    out += '.section .rodata,"a"\n.p2align 6\n'
    out += descriptor(NAME + "_kernel", NVGPR2, 102)
    return out


if __name__ == "__main__":
    opt = eval("dict(" + (sys.argv[2] if len(sys.argv) > 2 else "") + ")")
    path = sys.argv[1] if len(sys.argv) > 1 else f"cdna_kernels/{NAME}.s"
    open(path, "w").write(generate(opt))
```

```python
import sys, struct, math

NAME = "standalone__tensor_product_equiv_tfn__graph"

HEADER = """; Kernarg layout for this problem (88 bytes, ptrs only, base s[0:1]):
"""

CHUNK = 2500
RECSTRIDE = 30080
WS_TAB = 256 * RECSTRIDE
WS_WF = WS_TAB + 256 * 2048

RS = 272
NS = 8 * RS
L_HIST = 0
L_PREF = 1024
L_CTR = 2048
CAP = 4096
L_SRC = 2304
L_EID = L_SRC + (CAP + 64) * 4
L_Y = L_EID + (CAP + 64) * 4
L_ACC = L_Y + (CAP + 64) * 8
K2_LDS = L_ACC + 41 * NS
L_STG = 2304
SPIN_MAX = 1 << 18
PSIZE = 2500

DPP = "row_mask:0xf bank_mask:0xf"


def fbits(x):
    return "0x%08x" % struct.unpack("<I", struct.pack("<f", x))[0]


class Asm:
    def __init__(self):
        self.lines = []

    def __call__(self, s):
        for ln in s.strip("\n").split("\n"):
            ln = ln.strip()
            if not ln:
                continue
            if ln.endswith(":") or ln.startswith("."):
                self.lines.append(ln)
            else:
                self.lines.append("    " + ln)

    def text(self):
        return "\n".join(self.lines) + "\n"


def v(a, n=1):
    return f"v{a}" if n == 1 else f"v[{a}:{a+n-1}]"


def s(a, n=1):
    return f"s{a}" if n == 1 else f"s[{a}:{a+n-1}]"


def wave_scan(A, regs):
    steps = ["row_shr:1 " + DPP + " bound_ctrl:0", "row_shr:2 " + DPP + " bound_ctrl:0",
             "row_shr:4 " + DPP + " bound_ctrl:0", "row_shr:8 " + DPP + " bound_ctrl:0",
             "row_bcast:15 row_mask:0xa bank_mask:0xf", "row_bcast:31 row_mask:0xc bank_mask:0xf"]
    for st in steps:
        A("s_nop 1")
        for r in regs:
            A(f"v_add_u32_dpp {v(r)}, {v(r)}, {v(r)} {st}")


def kernel_head(A, name):
    A(f".globl {name}\n.p2align 8\n.type {name},@function\n{name}:")


def descriptor(name, vgpr, sgpr):
    acc = (vgpr + 3) // 4 * 4
    return f""".amdhsa_kernel {name}
  .amdhsa_next_free_vgpr {vgpr}
  .amdhsa_next_free_sgpr {sgpr}
  .amdhsa_accum_offset {acc}
  .amdhsa_group_segment_fixed_size 0
  .amdhsa_kernarg_size 88
  .amdhsa_user_sgpr_count 2
  .amdhsa_user_sgpr_kernarg_segment_ptr 1
  .amdhsa_system_sgpr_workgroup_id_x 1
  .amdhsa_float_denorm_mode_32 3
.end_amdhsa_kernel
"""


def stamp(A, opt, slot):
    if opt.get("prof"):
        A(f"{'s_memtime' if opt['prof'] == 'clk' else 's_memrealtime'} {s(80 + 2 * slot, 2)}")
        if opt["prof"] == "both" and slot in (3, 5):
            A(f"s_waitcnt lgkmcnt(0)\ns_memtime {s(80 + (slot - 1), 2)}")


def stamp_out(A, opt, nslots, wsreg, base, wave_sgpr):
    if opt.get("prof"):
        A("s_waitcnt lgkmcnt(0)")
        A(f"s_lshl_b32 s78, s2, 4\ns_add_u32 s78, s78, {s(wave_sgpr)}\ns_lshl_b32 s78, s78, 6\ns_add_u32 s78, s78, {base}")
        A("s_mov_b64 exec, -1\nv_mov_b32 v1, s78")
        for i in range(nslots):
            A(f"v_mov_b32 v2, {s(80 + 2 * i)}\nglobal_store_dword v1, v2, {s(wsreg, 2)} offset:{4 * i}")


NW = 16
V_DBASE, V_DCNT, V_HALF16, V_ACCL, V_LAD, V_LAE, V_LAY = 1, 2, 3, 4, 5, 6, 7
V_ONE, V_CTRA, V_KK, V_KN, V_EID, V_SA, V_FA, V_MT = 8, 9, 10, 11, 12, 13, 14, 15
CG = 16
W = 24
D = 32
X = 64
TP = 80
ACC = 88
STG = 96
SO = 104
E = 112
T = 116
EF = 120
YR = 124
NVGPR2 = 128

S_X, S_EF, S_OUT, S_WS = 4, 8, 12, 16
S_BETA, S_WAVE, S_K0, S_WIDE, S_N, S_NT, S_NEXT, S_MASK = 18, 19, 20, 21, 22, 23, 24, 25
S_CMP = 26
S_MORE, S_TMP, S_C0, S_C1 = 28, 29, 30, 31
S_M1, S_M2 = 32, 40
S_ANY2 = 48
S_SC = 50
S_XP = 52
S_TMP2 = 56


def gen_k2(A, opt):
    name = NAME + "_kernel"
    efl = opt.get("ef_ld", "")
    P0, P1, P2, P3, P4, P5, P6 = 112, 113, 114, 115, 116, 117, 118
    kernel_head(A, name)
    stamp(A, opt, 0)
    if opt.get("diag") == "k2":
        A("s_memrealtime s[76:77]")
    WT = opt.get("wt", "sc0 sc1")
    KA = 32
    S_DBG = 58
    S_PM = 60
    QD, QS, QY, QH, QR, QT, QP = 32, 36, 40, 48, 52, 56, 60
    A(f"""
    s_cmp_ge_u32 s2, 256
    s_cbranch_scc1 K2_END
    s_load_dwordx16 {s(KA, 16)}, s[0:1], 0
    s_load_dwordx2 {s(S_WS, 2)}, s[0:1], 80
    s_load_dwordx2 {s(S_OUT, 2)}, s[0:1], 64
    s_load_dwordx2 {s(S_DBG, 2)}, s[0:1], 72
    v_lshrrev_b32 {v(P0)}, 6, v0
    v_and_b32 {v(P1)}, 63, v0
    v_readfirstlane_b32 {s(S_WAVE)}, {v(P0)}
    s_mul_i32 {s(S_TMP)}, s2, {CHUNK * 4}
    s_mul_i32 {s(S_TMP2)}, s2, {CHUNK * 8}
    v_lshl_add_u32 {v(P2)}, v0, 4, {s(S_TMP)}
    v_lshl_add_u32 {v(P3)}, v0, 5, {s(S_TMP2)}
    v_cmp_gt_u32 {s(S_PM, 2)}, {s(S_C0)}, v0
    """.replace(f"v_cmp_gt_u32 {s(S_PM, 2)}, {s(S_C0)}, v0", f"s_movk_i32 {s(S_C0)}, {CHUNK // 4}\nv_cmp_gt_u32 {s(S_PM, 2)}, {s(S_C0)}, v0"))
    A(f"""
    v_mov_b64 v[64:65], 0
    v_mov_b64 v[66:67], 0
    s_lshl_b32 s3, s2, 11
    s_add_u32 s3, s3, {WS_TAB}
    v_lshl_add_u32 {v(QP)}, {v(P1)}, 4, s3
    s_cmp_ge_u32 {s(S_WAVE)}, 10
    s_cbranch_scc1 KA_AUX0
    s_mov_b64 exec, {s(S_PM, 2)}
    s_waitcnt lgkmcnt(0)
    global_load_dwordx4 {v(QD, 4)}, {v(P2)}, {s(KA + 4, 2)}
    global_load_dwordx4 {v(QS, 4)}, {v(P2)}, {s(KA + 2, 2)}
    global_load_dwordx4 {v(QY, 4)}, {v(P3)}, {s(KA + 6, 2)}
    global_load_dwordx4 {v(QY + 4, 4)}, {v(P3)}, {s(KA + 6, 2)} offset:16
    s_mov_b64 exec, -1
    s_branch KA_JOIN0
    KA_AUX0:
    s_waitcnt lgkmcnt(0)
    s_cmp_eq_u32 {s(S_WAVE)}, 15
    s_cbranch_scc0 KA_AUX0B
    s_cmp_eq_u32 s2, {opt.get("nwg", 0)}
    s_cbranch_scc0 KA_JOIN0
    s_memrealtime s[62:63]
    s_waitcnt lgkmcnt(0)
    s_lshl_b32 s63, s63, 24
    s_or_b32 s63, s63, 1
    v_mov_b32 {v(QD)}, s63
    v_mov_b32 {v(QD + 1)}, s62
    s_mov_b64 exec, 1
    global_store_dwordx2 v64, {v(QD, 2)}, {s(S_DBG, 2)} {WT}
    s_mov_b64 exec, -1
    s_branch KA_JOIN0
    KA_AUX0B:
    s_cmp_eq_u32 {s(S_WAVE)}, 10
    s_cbranch_scc0 KA_JOIN0
    s_cmp_lt_u32 s2, 12
    s_cbranch_scc0 KA_JOIN0
    s_sub_u32 s62, s2, 4
    s_lshr_b32 s63, s62, 2
    s_lshl_b32 s63, s63, 7
    s_and_b32 s64, s62, 1
    s_lshl_b32 s64, s64, 1
    s_add_u32 s63, s63, s64
    s_and_b32 s64, s62, 2
    s_lshl_b32 s64, s64, 5
    s_add_u32 s63, s63, s64
    s_and_b32 s64, s2, 1
    s_lshl_b32 s65, s64, 6
    s_cmp_lt_u32 s2, 4
    s_cselect_b64 s[66:67], {s(KA + 12, 2)}, {s(KA + 14, 2)}
    s_cselect_b32 s63, s65, s63
    s_cselect_b32 s68, 6, 4
    s_cselect_b32 s69, 3, 15
    s_cselect_b32 s70, 1, 2
    s_cselect_b32 s71, 8, 256
    s_lshl_b32 s65, s64, 1
    s_cmp_lt_u32 s2, 2
    s_cselect_b64 s[66:67], {s(KA + 10, 2)}, s[66:67]
    s_cselect_b32 s63, s65, s63
    s_cselect_b32 s68, 5, s68
    s_cselect_b32 s69, 31, s69
    s_cselect_b32 s70, 2, s70
    s_cselect_b32 s71, 128, s71
    s_cselect_b32 s72, 10, 11
    v_lshrrev_b32 {v(P2)}, s68, {v(P1)}
    v_lshlrev_b32 {v(P2)}, s72, {v(P2)}
    v_and_b32 {v(P3)}, s69, {v(P1)}
    v_lshlrev_b32 {v(P3)}, s70, {v(P3)}
    v_add3_u32 {v(P2)}, {v(P2)}, {v(P3)}, s63
    """)
    for i in range(8):
        A(f"global_load_ushort {v(QD + i)}, {v(P2)}, s[66:67]\nv_add_u32 {v(P2)}, s71, {v(P2)}")
    A(f"""
    KA_JOIN0:
    v_and_b32 {v(P0)}, 0xff, v0
    v_lshlrev_b32 {v(P0)}, 2, {v(P0)}
    ds_write_b32 {v(P0)}, v64 offset:{L_HIST}
    s_and_b32 {s(S_BETA)}, s2, 7
    s_lshl_b32 {s(S_BETA)}, {s(S_BETA)}, 5
    s_lshr_b32 s3, s2, 3
    s_add_u32 {s(S_BETA)}, {s(S_BETA)}, s3
    s_sub_u32 {s(S_X)}, {s(KA)}, 512
    s_subb_u32 {s(S_X + 1)}, {s(KA + 1)}, 0
    s_and_b32 {s(S_X + 1)}, {s(S_X + 1)}, 0xffff
    s_or_b32 {s(S_X + 1)}, {s(S_X + 1)}, 0x100000
    s_mov_b32 {s(S_X + 2)}, 64
    s_mov_b32 {s(S_X + 3)}, 0x800000
    s_mov_b32 {s(S_XP)}, {s(KA)}
    s_and_b32 {s(S_XP + 1)}, {s(KA + 1)}, 0xffff
    s_mov_b32 {s(S_XP + 2)}, 5120000
    s_mov_b32 {s(S_XP + 3)}, 0x20000
    s_mov_b32 {s(S_EF)}, {s(KA + 8)}
    s_and_b32 {s(S_EF + 1)}, {s(KA + 9)}, 0xffff
    s_mov_b32 {s(S_EF + 2)}, 20480000
    s_mov_b32 {s(S_EF + 3)}, 0x20000
    s_and_b32 {s(S_OUT + 1)}, {s(S_OUT + 1)}, 0xffff
    s_mov_b32 {s(S_OUT + 2)}, 5120000
    s_mov_b32 {s(S_OUT + 3)}, 0x20000
    s_mov_b32 {s(S_K0)}, 0
    s_mov_b32 {s(S_WIDE)}, 1
    v_lshlrev_b32 {v(P6)}, 4, v0
    v_add_u32 {v(P6)}, {L_ACC}, {v(P6)}
    v_add_u32 {v(P0)}, {41 * NS - 16384}, {v(P6)}
    """)
    for i in range(4):
        A(f"ds_write_b128 {v(P6)}, v[64:67] offset:{16384 * i}")
    A(f"v_add_u32 {v(P6)}, 65536, {v(P6)}\nds_write_b128 {v(P0)}, v[64:67]\nds_write_b128 {v(P6)}, v[64:67]")
    assert 5 * 16384 <= 41 * NS <= 6 * 16384
    A(f"""
    v_lshrrev_b32 {v(P2)}, 4, v0
    v_lshlrev_b32 {v(P2)}, 2, {v(P2)}
    v_and_or_b32 {v(P3)}, v0, 3, {v(P2)}
    s_lshr_b32 s3, {s(S_BETA)}, 2
    s_lshl_b32 s3, s3, 4
    s_and_b32 {s(S_TMP)}, {s(S_BETA)}, 1
    s_lshl_b32 {s(S_TMP)}, {s(S_TMP)}, 3
    s_add_u32 s3, s3, {s(S_TMP)}
    s_and_b32 {s(S_TMP)}, {s(S_BETA)}, 2
    s_lshl_b32 {s(S_TMP)}, {s(S_TMP)}, 9
    s_add_u32 s3, s3, {s(S_TMP)}
    s_add_u32 s3, s3, {WS_TAB}
    v_lshl_add_u32 {v(V_FA)}, {v(P3)}, 11, s3
    v_mul_u32_u24 {v(V_DBASE)}, {RECSTRIDE}, {v(P3)}
    v_and_b32 {v(P4)}, 31, {v(P1)}
    v_lshrrev_b32 {v(P5)}, 5, {v(P1)}
    v_lshlrev_b32 {v(V_HALF16)}, 4, {v(P5)}
    v_lshlrev_b32 {v(V_ACCL)}, 3, {v(P4)}
    v_add_u32 {v(V_ACCL)}, {L_ACC}, {v(V_ACCL)}
    v_and_b32 {v(P6)}, 15, v0
    v_add_lshl_u32 {v(V_LAD)}, {v(P6)}, {v(V_HALF16)}, 2
    v_lshrrev_b32 {v(P6)}, 3, {v(P4)}
    v_lshlrev_b32 {v(P6)}, 2, {v(P6)}
    v_and_or_b32 {v(P6)}, {v(P4)}, 3, {v(P6)}
    v_lshlrev_b32 {v(P6)}, 2, {v(P6)}
    v_and_b32 {v(P0)}, 4, {v(P4)}
    v_lshl_add_u32 {v(V_LAE)}, {v(P0)}, 4, {v(P6)}
    v_lshrrev_b32 {v(P6)}, 2, {v(P4)}
    v_and_b32 {v(P0)}, 1, {v(P4)}
    v_lshl_add_u32 {v(P6)}, {v(P0)}, 3, {v(P6)}
    v_add_lshl_u32 {v(V_LAY)}, {v(P6)}, {v(V_HALF16)}, 3
    v_mov_b32 {v(V_ONE)}, 1
    v_mov_b32 {v(V_CTRA)}, {L_CTR}
    s_waitcnt lgkmcnt(0)
    s_barrier
    """)

    def xtouch(n, base, first_wave, reg):
        A(f"""
        s_lshr_b32 {s(S_TMP)}, s2, 3
        s_mul_i32 {s(S_TMP)}, {s(S_TMP)}, {n * 128}
        s_add_u32 {s(S_TMP)}, {s(S_TMP)}, {base * 128}
        v_subrev_u32 {v(P5)}, {64 * first_wave}, v0
        v_cmp_gt_u32 vcc, {n}, {v(P5)}
        v_lshl_add_u32 {v(P5)}, {v(P5)}, 7, {s(S_TMP)}
        v_mov_b32 {v(P6)}, 0x80000000
        v_cndmask_b32 {v(P5)}, {v(P6)}, {v(P5)}, vcc
        buffer_load_dword {v(reg)}, {v(P5)}, {s(S_XP, 4)}, 0 offen
        """)

    A(f"""
    s_cmp_ge_u32 {s(S_WAVE)}, 10
    s_cbranch_scc1 KA_AUX1
    s_mov_b64 exec, {s(S_PM, 2)}
    v_lshlrev_b32 {v(P0)}, 2, v0
    v_add_u32 {v(P0)}, 4096, {v(P0)}
    s_movk_i32 {s(S_C0)}, {4096 - PSIZE}
    s_waitcnt vmcnt(3)
    """)
    for k in range(4):
        A(f"v_lshlrev_b32_sdwa {v(QH + k)}, 2, {v(QD + k)} dst_sel:DWORD dst_unused:UNUSED_PAD src0_sel:DWORD src1_sel:BYTE_0")
        A(f"ds_add_rtn_u32 {v(QR + k)}, {v(QH + k)}, {v(V_ONE)} offset:{L_HIST}")
    A("s_waitcnt lgkmcnt(0)\ns_barrier\ns_waitcnt vmcnt(2)")
    for k in range(4):
        A(f"""
        v_mul_u32_u24 {v(P2)}, {(1 << 24) // PSIZE}, {v(QS + k)}
        v_lshrrev_b32 {v(P2)}, 24, {v(P2)}
        v_mad_u32_u24 {v(QS + k)}, {v(P2)}, {s(S_C0)}, {v(QS + k)}
        v_lshrrev_b32 {v(QD + k)}, 8, {v(QD + k)}
        v_lshl_or_b32 {v(QD + k)}, {v(QD + k)}, 14, {v(QS + k)}
        v_or_b32 {v(P3)}, {k}, {v(P0)}
        v_lshl_add_u32 {v(QD + k)}, {v(QD + k)}, 12, {v(P3)}
        """)
    A(f"s_movk_i32 {s(S_C0)}, {L_STG}\ns_barrier")
    for k in range(4):
        A(f"ds_read_b32 {v(QH + k)}, {v(QH + k)} offset:{L_PREF}")
    for k in range(4):
        A(f"""
        s_waitcnt lgkmcnt(3)
        v_add_u32 {v(QH + k)}, {v(QH + k)}, {v(QR + k)}
        v_mad_u32_u24 {v(QH + k)}, {v(QH + k)}, 12, {s(S_C0)}
        ds_write_b32 {v(QH + k)}, {v(QD + k)} offset:8
        """)
    A("s_waitcnt vmcnt(0)")
    for k in range(4):
        A(f"ds_write2_b32 {v(QH + k)}, {v(QY + 2 * k)}, {v(QY + 2 * k + 1)} offset0:0 offset1:1")
    A(f"""
    s_mov_b64 exec, -1
    s_branch KA_JOIN3
    KA_AUX1:
    s_cmp_eq_u32 {s(S_WAVE)}, 15
    s_cbranch_scc1 KA_SCAN
    """)
    if opt.get("w1"):
        A(f"s_cmp_eq_u32 {s(S_WAVE)}, 10\ns_cbranch_scc1 KA_NOW1")
        xtouch(opt["w1"], 0, 11, 127)
        A("KA_NOW1:")
    A(f"""
    s_barrier
    s_barrier
    s_cmp_eq_u32 {s(S_WAVE)}, 10
    s_cbranch_scc0 KA_JOIN3
    s_cmp_lt_u32 s2, 12
    s_cbranch_scc0 KA_JOIN3
    s_cmp_lt_u32 s2, 2
    s_cselect_b32 s62, {fbits(-math.log2(math.e))}, 1.0
    s_lshl_b32 s63, s2, 10
    s_add_u32 s63, s63, {WS_WF}
    v_lshl_add_u32 {v(P2)}, {v(P1)}, 4, s63
    s_waitcnt vmcnt(0)
    """)
    for i in range(8):
        A(f"v_lshlrev_b32 {v(QD + i)}, 16, {v(QD + i)}\nv_mul_f32 {v(QD + i)}, s62, {v(QD + i)}")
    for jj in range(4):
        A(f"v_cvt_pk_bf16_f32 {v(QY + jj)}, {v(QD + 2 * jj)}, {v(QD + 2 * jj + 1)}")
    A(f"""
    global_store_dwordx4 {v(P2)}, {v(QY, 4)}, {s(S_WS, 2)} {WT}
    s_branch KA_JOIN3
    KA_SCAN:
    v_lshlrev_b32 {v(P3)}, 4, {v(P1)}
    s_barrier
    global_load_dwordx2 {v(QD, 2)}, v64, {s(S_DBG, 2)} {WT}
    ds_read_b128 {v(QT, 4)}, {v(P3)} offset:{L_HIST}
    s_waitcnt lgkmcnt(0)
    v_add_u32 {v(QR + 2)}, {v(QT)}, {v(QT + 1)}
    v_add_u32 {v(QR + 3)}, {v(QR + 2)}, {v(QT + 2)}
    v_add_u32 {v(P4)}, {v(QR + 3)}, {v(QT + 3)}
    v_mov_b32 {v(QR)}, {v(P4)}
    """)
    wave_scan(A, [QR])
    A(f"""
    v_sub_u32 {v(QR)}, {v(QR)}, {v(P4)}
    v_add_u32 {v(QR + 1)}, {v(QR)}, {v(QT)}
    v_add_u32 {v(QR + 2)}, {v(QR)}, {v(QR + 2)}
    v_add_u32 {v(QR + 3)}, {v(QR)}, {v(QR + 3)}
    ds_write_b128 {v(P3)}, {v(QR, 4)} offset:{L_PREF}
    s_waitcnt lgkmcnt(0)
    s_barrier
    """)
    A(f"""
    s_mov_b32 {s(S_C1)}, {SPIN_MAX}
    KA_NONCE:
    s_waitcnt vmcnt(0)
    v_cmp_eq_u32 vcc, 0, {v(QD)}
    s_cbranch_vccz KA_GOTN
    s_sub_u32 {s(S_C1)}, {s(S_C1)}, 1
    s_cbranch_scc1 K2_END
    global_load_dwordx2 {v(QD, 2)}, v64, {s(S_DBG, 2)} {WT}
    s_branch KA_NONCE
    KA_GOTN:
    v_and_b32 {v(QD)}, 0xff000000, {v(QD)}
    ds_write_b64 {v(V_CTRA)}, {v(QD, 2)} offset:8
    """)
    for k in range(4):
        A(f"v_lshl_or_b32 {v(QT + k)}, {v(QT + k)}, 12, {v(QR + k)}\nv_or_b32 {v(QY + 2 * k)}, {v(QT + k)}, {v(QD)}\nv_mov_b32 {v(QY + 2 * k + 1)}, {v(QD + 1)}")
    A(f"""
    KA_JOIN3:
    v_lshlrev_b32 {v(P2)}, 4, v0
    s_mul_i32 {s(S_TMP)}, s2, {RECSTRIDE}
    v_add_u32 {v(P3)}, {s(S_TMP)}, {v(P2)}
    v_add_u32 {v(P4)}, 16384, {v(P3)}
    v_cmp_gt_u32 vcc, {CHUNK * 12 // 16 - 1024}, v0
    v_and_b32 {v(P0)}, 0xff, v0
    v_lshlrev_b32 {v(P0)}, 2, {v(P0)}
    v_mov_b32 {v(P5)}, {NW - opt.get("helpers", 0)}
    s_waitcnt lgkmcnt(0)
    s_barrier
    """)
    stamp(A, opt, 8)
    A(f"""
    ds_read_b128 {v(QD, 4)}, {v(P2)} offset:{L_STG}
    ds_read_b128 {v(QS, 4)}, {v(P2)} offset:{L_STG + 16384}
    ds_write_b32 {v(P0)}, v64 offset:{L_HIST}
    ds_write2_b32 {v(V_CTRA)}, {v(P5)}, v64 offset0:0 offset1:1
    s_waitcnt lgkmcnt(3)
    global_store_dwordx4 {v(P3)}, {v(QD, 4)}, {s(S_WS, 2)} {WT}
    s_and_saveexec_b64 {s(S_PM, 2)}, vcc
    s_cbranch_execz KA_NOST2
    s_waitcnt lgkmcnt(2)
    global_store_dwordx4 {v(P4)}, {v(QS, 4)}, {s(S_WS, 2)} {WT}
    KA_NOST2:
    s_mov_b64 exec, -1
    s_mov_b32 {s(S_C1)}, {SPIN_MAX}
    ds_read_b64 {v(QH, 2)}, {v(V_CTRA)} offset:8
    """)
    w2 = opt.get("w2", 0)
    if w2:
        xtouch(w2, 32 * opt.get("w1", 0), 0, 127)
    A(f"""
    s_waitcnt vmcnt({1 if w2 else 0}) lgkmcnt(0)
    s_barrier
    """)
    stamp(A, opt, 9)
    if opt.get("diag") == "nonce":
        A(f"v_readfirstlane_b32 s76, {v(QH + 1)}")
    if opt.get("diag") == "b4":
        A("s_memrealtime s[76:77]")
    A(f"""
    s_cmp_eq_u32 {s(S_WAVE)}, 15
    s_cbranch_scc0 KA_POLL
    global_store_dwordx4 {v(QP)}, {v(QY, 4)}, {s(S_WS, 2)} {WT}
    global_store_dwordx4 {v(QP)}, {v(QY + 4, 4)}, {s(S_WS, 2)} offset:1024 {WT}
    KA_POLL:
    """)
    if opt.get("pdelay"):
        A(f"s_sleep {opt['pdelay']}")
    if opt.get("w2b"):
        xtouch(opt["w2b"], 32 * opt.get("w1", 0), 0, 127)
        if opt.get("w2bar"):
            A("s_waitcnt vmcnt(0)\ns_barrier")
    A(f"""
    KA_POLL2:
    global_load_dwordx2 {v(QD, 2)}, {v(V_FA)}, {s(S_WS, 2)} {opt.get("pflag", WT)}
    s_waitcnt vmcnt(0)
    v_mov_b32 {v(V_DCNT)}, {v(QD)}
    v_and_b32 {v(QD)}, 0xff000000, {v(QD)}
    v_cmp_ne_u64 vcc, {v(QD, 2)}, {v(QH, 2)}
    s_cbranch_vccz KA_READY
    s_mov_b64 exec, vcc
    s_sub_u32 {s(S_C1)}, {s(S_C1)}, 1
    s_cbranch_scc1 K2_END
    """)
    if opt.get("psleep"):
        A(f"s_sleep {opt['psleep']}")
    A(f"""
    s_branch KA_POLL2
    KA_READY:
    s_mov_b64 exec, -1
    v_and_b32 {v(P0)}, 0xfff, {v(V_DCNT)}
    v_mad_u32_u24 {v(V_DBASE)}, {v(P0)}, 12, {v(V_DBASE)}
    v_bfe_u32 {v(V_DCNT)}, {v(V_DCNT)}, 12, 12
    """)
    stamp(A, opt, 1)
    if opt.get("diag") == "desc":
        A("s_memrealtime s[76:77]")
    NC = 4
    REC1, REC2, RK1, RK2, HA1, HA2, PB, SC = 32, 48, 64, 68, 72, 76, 80, 84
    A(f"""
    s_branch K2_ROUND0
    K2_ROUND:
    v_and_b32 {v(P0)}, 0xff, v0
    v_lshlrev_b32 {v(P0)}, 2, {v(P0)}
    v_mov_b32 {v(P1)}, 0
    v_mov_b32 {v(P2)}, {NW - opt.get("helpers", 0)}
    ds_write_b32 {v(P0)}, {v(P1)} offset:{L_HIST}
    ds_write2_b32 {v(V_CTRA)}, {v(P2)}, {v(P1)} offset0:0 offset1:1
    s_waitcnt lgkmcnt(0)
    s_barrier
    K2_ROUND0:
    v_and_b32 {v(P3)}, 15, v0
    v_add_u32 {v(P3)}, {s(S_K0)}, {v(P3)}
    v_mul_u32_u24 {v(P4)}, 12, {v(P3)}
    s_lshl_b32 {s(S_TMP)}, 16, {s(S_WIDE)}
    s_add_u32 {s(S_TMP)}, {s(S_TMP)}, {s(S_K0)}
    v_cmp_lt_u32 {s(S_CMP, 2)}, {s(S_TMP)}, {v(V_DCNT)}
    s_cmp_eq_u32 {s(S_WIDE)}, 1
    s_cselect_b32 {s(S_C1)}, 16, 0x7fffffff
    s_mov_b64 {s(S_ANY2, 2)}, 0
    """)
    for c in range(NC):
        A(f"""
        v_add_u32_dpp {v(HA2 + c)}, {v(V_DBASE)}, {v(P4)} row_newbcast:{c} {DPP}
        v_sub_u32_dpp {v(P5)}, {v(V_DCNT)}, {v(P3)} row_newbcast:{c} {DPP}
        v_cmp_lt_i32 {s(S_M1 + 2 * c, 2)}, 0, {v(P5)}
        v_cmp_lt_i32 {s(S_M2 + 2 * c, 2)}, {s(S_C1)}, {v(P5)}
        """)
    for c in range(NC):
        A(f"""
        s_mov_b64 exec, {s(S_M1 + 2 * c, 2)}
        s_or_b64 {s(S_ANY2, 2)}, {s(S_ANY2, 2)}, {s(S_M2 + 2 * c, 2)}
        global_load_dwordx3 {v(REC1 + 4 * c, 3)}, {v(HA2 + c)}, {s(S_WS, 2)} {WT}
        """)
    A(f"s_cmp_eq_u64 {s(S_ANY2, 2)}, 0\ns_cbranch_scc1 K2_NOSEC_A")
    for c in range(NC):
        A(f"""
        s_mov_b64 exec, {s(S_M2 + 2 * c, 2)}
        s_cbranch_execz K2_SA{c}
        global_load_dwordx3 {v(REC2 + 4 * c, 3)}, {v(HA2 + c)}, {s(S_WS, 2)} offset:192 {WT}
        K2_SA{c}:
        """)
    A(f"""
    K2_NOSEC_A:
    s_mov_b64 exec, -1
    v_lshrrev_b32 {v(PB)}, 4, v0
    v_mul_u32_u24 {v(PB)}, {4 * CHUNK}, {v(PB)}
    """)
    A(f"""
    s_cmp_eq_u64 {s(S_CMP, 2)}, 0
    s_cbranch_scc1 K2_NOMORE
    ds_write_b32 {v(V_CTRA)}, {v(V_ONE)} offset:4
    K2_NOMORE:
    s_mov_b32 {s(S_C0)}, {opt.get("abl_x", 0x7ffe00)}
    s_mov_b32 {s(S_C1)}, 0xfc000fff
    s_mov_b32 {s(S_TMP2)}, {-(4096 - PSIZE) * 512}
    s_waitcnt vmcnt(0)
    """)
    stamp(A, opt, 2)
    if opt.get("w3"):
        xtouch(opt["w3"], 32 * (opt.get("w1", 0) + opt.get("w2", 0) + opt.get("w2b", 0)), 0, 127)

    def hist(rec, rk, ha, c):
        idx = rec + 4 * c + 2
        A(f"""
        v_lshlrev_b32_sdwa {v(ha + c)}, 2, {v(idx)} dst_sel:DWORD dst_unused:UNUSED_PAD src0_sel:DWORD src1_sel:BYTE_3
        v_and_b32 {v(idx + 1)}, {s(S_C1)}, {v(idx)}
        ds_add_rtn_u32 {v(rk + c)}, {v(ha + c)}, {v(V_ONE)} offset:{L_HIST}
        v_bfe_u32 {v(P0)}, {v(idx)}, 24, 2
        v_lshrrev_b32 {v(idx)}, 3, {v(idx)}
        v_and_b32 {v(idx)}, {s(S_C0)}, {v(idx)}
        s_movk_i32 {s(S_TMP)}, {c * CHUNK}
        """)
        if not opt.get("abl_x"):
            A(f"v_mad_i32_i24 {v(idx)}, {v(P0)}, {s(S_TMP2)}, {v(idx)}")
        if opt.get("abl_x"):
            A(f"v_add_u32 {v(idx)}, 512, {v(idx)}")
        if not opt.get("abl_ef"):
            A(f"v_add3_u32 {v(idx + 1)}, {v(idx + 1)}, {v(PB)}, {s(S_TMP)}")

    def place(rec, rk, ha, c):
        A(f"""
        v_add_lshl_u32 {v(ha + c)}, {v(ha + c)}, {v(rk + c)}, 2
        v_and_b32 {v(P0)}, 64, {v(ha + c)}
        v_lshlrev_b32 {v(rk + c)}, 1, {v(ha + c)}
        v_mad_i32_i24 {v(rec + 4 * c + 2)}, {v(P0)}, -8, {v(rec + 4 * c + 2)}
        ds_write_b64 {v(rk + c)}, {v(rec + 4 * c, 2)} offset:{L_Y}
        ds_write2st64_b32 {v(ha + c)}, {v(rec + 4 * c + 2)}, {v(rec + 4 * c + 3)} offset0:{L_SRC // 256} offset1:{L_EID // 256}
        """)

    for c in range(NC):
        A(f"s_mov_b64 exec, {s(S_M1 + 2 * c, 2)}")
        hist(REC1, RK1, HA1, c)
    A(f"s_cmp_eq_u64 {s(S_ANY2, 2)}, 0\ns_cbranch_scc1 K2_NOSEC_B")
    for c in range(NC):
        A(f"s_mov_b64 exec, {s(S_M2 + 2 * c, 2)}\ns_cbranch_execz K2_SB{c}")
        hist(REC2, RK2, HA2, c)
        A(f"K2_SB{c}:")
    order = opt.get("order", [0, 1, 2, 3])
    A(f"""
    K2_NOSEC_B:
    s_mov_b64 exec, -1
    v_and_b32 {v(P1)}, 63, v0
    v_lshlrev_b32 {v(P2)}, 4, {v(P1)}
    v_add_u32 {v(P4)}, {WS_WF}, {v(P2)}
    s_waitcnt lgkmcnt(0)
    s_barrier
    ds_read_b128 {v(SC, 4)}, {v(P2)} offset:{L_HIST}
    """)
    if opt.get("w4"):
        xtouch(opt["w4"], 32 * (opt.get("w1", 0) + opt.get("w2", 0) + opt.get("w2b", 0) + opt.get("w3", 0)), 0, 127)
    A(f"""
    global_load_dwordx4 {v(W, 4)}, {v(P4)}, {s(S_WS, 2)} {WT}
    global_load_dwordx4 {v(W + 4, 4)}, {v(P4)}, {s(S_WS, 2)} offset:1024 {WT}
    global_load_dwordx4 {v(CG, 4)}, {v(P4)}, {s(S_WS, 2)} offset:2048 {WT}
    global_load_dwordx4 {v(CG + 4, 4)}, {v(P4)}, {s(S_WS, 2)} offset:3072 {WT}
    ds_read_b32 {v(P3)}, {v(V_CTRA)} offset:4
    s_waitcnt lgkmcnt(0)
    v_readfirstlane_b32 {s(S_MORE)}, {v(P3)}
    v_lshl_or_b32 {v(SC + 4)}, {v(SC + order[1])}, 16, {v(SC + order[0])}
    v_lshl_or_b32 {v(SC + 5)}, {v(SC + order[3])}, 16, {v(SC + order[2])}
    v_mov_b32 {v(SC + 6)}, {v(SC + 4)}
    v_mov_b32 {v(SC + 7)}, {v(SC + 5)}
    """)
    wave_scan(A, [SC + 6, SC + 7])
    A(f"""
    s_nop 0
    v_readlane_b32 s70, {v(SC + 6)}, 63
    v_readlane_b32 s71, {v(SC + 7)}, 63
    v_sub_u32 {v(SC + 6)}, {v(SC + 6)}, {v(SC + 4)}
    v_sub_u32 {v(SC + 7)}, {v(SC + 7)}, {v(SC + 5)}
    s_and_b32 s72, s70, 0xffff
    s_lshr_b32 s73, s70, 16
    s_add_u32 s73, s73, s72
    s_and_b32 s74, s71, 0xffff
    s_add_u32 s74, s74, s73
    s_lshr_b32 {s(S_N)}, s71, 16
    s_add_u32 {s(S_N)}, {s(S_N)}, s74
    s_cmp_le_u32 {s(S_N)}, {CAP}
    s_cbranch_scc1 K2_FITS
    s_mov_b32 {s(S_WIDE)}, 0
    s_waitcnt vmcnt(0)
    s_barrier
    s_branch K2_ROUND
    K2_FITS:
    v_and_b32 {v(SC + order[0])}, 0xffff, {v(SC + 6)}
    v_lshrrev_b32 {v(SC + 6)}, 16, {v(SC + 6)}
    v_add_u32 {v(SC + order[1])}, s72, {v(SC + 6)}
    v_and_b32 {v(SC + 6)}, 0xffff, {v(SC + 7)}
    v_add_u32 {v(SC + order[2])}, s73, {v(SC + 6)}
    v_lshrrev_b32 {v(SC + 7)}, 16, {v(SC + 7)}
    v_add_u32 {v(SC + order[3])}, s74, {v(SC + 7)}
    ds_write_b128 {v(P2)}, {v(SC, 4)} offset:{L_PREF}
    s_add_u32 {s(S_NT)}, {s(S_N)}, 31
    s_lshr_b32 {s(S_NT)}, {s(S_NT)}, 5
    """)
    for c in range(NC):
        A(f"s_mov_b64 exec, {s(S_M1 + 2 * c, 2)}\nds_read_b32 {v(HA1 + c)}, {v(HA1 + c)} offset:{L_PREF}")
    A(f"""
    s_mov_b64 exec, -1
    v_add_lshl_u32 {v(P1)}, {v(P1)}, {s(S_N)}, 2
    v_lshlrev_b32 {v(P2)}, 1, {v(P1)}
    v_mov_b64 {v(SC + 4, 2)}, 0
    v_mov_b32 {v(SC + 6)}, 512
    v_mov_b32 {v(SC + 7)}, {(40 << 26) | 0xfffff}
    ds_write_b64 {v(P2)}, {v(SC + 4, 2)} offset:{L_Y}
    ds_write2st64_b32 {v(P1)}, {v(SC + 6)}, {v(SC + 7)} offset0:{L_SRC // 256} offset1:{L_EID // 256}
    s_waitcnt lgkmcnt(2)
    """)
    for c in range(NC):
        A(f"s_mov_b64 exec, {s(S_M1 + 2 * c, 2)}")
        place(REC1, RK1, HA1, c)
    A(f"s_cmp_eq_u64 {s(S_ANY2, 2)}, 0\ns_cbranch_scc1 K2_NOSEC_C")
    for c in range(NC):
        A(f"""
        s_mov_b64 exec, {s(S_M2 + 2 * c, 2)}
        s_cbranch_execz K2_SC{c}
        ds_read_b32 {v(HA2 + c)}, {v(HA2 + c)} offset:{L_PREF}
        s_waitcnt lgkmcnt(0)
        """)
        place(REC2, RK2, HA2, c)
        A(f"K2_SC{c}:")

    def tile_addr(t4, t8):
        A(f"""
        v_add_u32 {v(V_EID)}, {s(t4)}, {v(V_LAE)}
        v_add_u32 {v(V_KN)}, {s(t4)}, {v(V_LAD)}
        v_add_u32 {v(V_MT)}, {s(t8)}, {v(V_LAY)}
        v_lshl_add_u32 {v(V_SA)}, {v(V_HALF16)}, 2, {s(t4)}
        """)

    def tile_reads():
        A(f"""
        ds_read_b32 {v(V_EID)}, {v(V_EID)} offset:{L_EID}
        ds_read_b32 {v(V_KN)}, {v(V_KN)} offset:{L_EID}
        ds_read_b64 {v(YR, 2)}, {v(V_MT)} offset:{L_Y}
        """)

    def so_read(g):
        A(f"ds_read_b128 {v(SO + 4 * (g % 2), 4)}, {v(V_SA)} offset:{L_SRC + 16 * (g % 4)}")

    def xload(r):
        A(f"buffer_load_dwordx4 {v(X + 4 * (r % 4), 4)}, {v(SO + 4 * ((r // 4) % 2) + r % 4)}, {s(S_X, 4)}, 0 offen")

    def ef_load():
        A(f"v_mad_u32_u24 {v(V_EID)}, {v(V_EID)}, 32, {v(V_HALF16)}")
        A(f"buffer_load_dwordx4 {v(EF, 4)}, {v(V_EID)}, {s(S_EF, 4)}, 0 offen {efl}")

    key_ops = [f"v_mul_u32_u24_sdwa {v(V_KN)}, {s(S_C0)}, {v(V_KN)} dst_sel:DWORD dst_unused:UNUSED_PAD src0_sel:DWORD src1_sel:BYTE_3",
               f"v_xor_b32_dpp {v(V_MT)}, {v(V_KN)}, {v(V_KN)} row_shl:1 {DPP} bound_ctrl:0",
               f"v_cmp_ne_u32 {s(S_CMP, 2)}, 0, {v(V_MT)}"]

    A(f"""
    K2_NOSEC_C:
    s_mov_b64 exec, -1
    s_lshl_b32 {s(S_TMP)}, {s(S_WAVE)}, 7
    s_lshl_b32 {s(S_TMP2)}, {s(S_WAVE)}, 8
    """)
    tile_addr(S_TMP, S_TMP2)
    A(f"""
    s_movk_i32 {s(S_C0)}, {NS // 4}
    s_mov_b32 {s(S_NEXT)}, {s(S_WAVE)}
    s_lshr_b32 s65, s2, 3
    s_and_b32 s66, s65, {len(opt.get("vefs", [0])) - 1}
    s_lshl_b32 s65, s65, 11
    s_add_u32 s65, s65, {(opt.get("xt") or 0) * 128}
    s_mov_b32 s68, {s(S_XP)}
    s_or_b32 s69, {s(S_XP + 1)}, {32 << 16}
    s_mov_b32 s70, 64
    s_mov_b32 s71, 0x20000
    v_mov_b32 {v(V_KK)}, {40 * NS}
    s_waitcnt lgkmcnt(0)
    s_barrier
    """)
    stamp(A, opt, 3)
    if opt.get("trace"):
        A("v_mov_b32 v126, 0\ns_mov_b32 s64, 0")
    if opt.get("diag") == "sorted":
        A("s_memrealtime s[76:77]")
    NH = opt.get("helpers", 0)
    if NH:
        h0 = opt.get("h0", 0)
        A(f"""
        s_cmp_lt_u32 {s(S_WAVE)}, {NW - NH}
        s_cbranch_scc1 K2_START
        s_cmp_lg_u32 {s(S_K0)}, 0
        s_cbranch_scc1 K2_JOIN
        s_lshr_b32 s58, s2, 3
        s_and_b32 s59, s2, 7
        s_lshl_b32 s59, s59, 2
        s_add_u32 s58, s58, s59
        s_and_b32 s58, s58, 31
        s_mul_i32 s58, s58, {NH}
        s_add_u32 s58, s58, {s(S_WAVE)}
        s_sub_u32 s58, s58, {NW - NH}
        s_lshl_b32 s58, s58, 11
        s_add_u32 s58, s58, {h0 * 128}
        K2_SWEEP:
        """)
        for j in range(16):
            if opt.get("hx2", 1):
                A(f"s_buffer_load_dwordx2 s[60:61], {s(S_XP, 4)}, s58 offset:{128 * j + 60}")
            else:
                A(f"s_buffer_load_dword s60, {s(S_XP, 4)}, s58 offset:{128 * j}\ns_buffer_load_dword s60, {s(S_XP, 4)}, s58 offset:{128 * j + 64}")
        A(f"""
        s_add_u32 s58, s58, {32 * NH * 2048}
        s_cmp_lt_u32 s58, 5120000
        s_cbranch_scc1 K2_SWEEP
        K2_JOIN:
        s_mov_b64 exec, 1
        ds_add_rtn_u32 {v(V_FA)}, {v(V_CTRA)}, {v(V_ONE)}
        s_mov_b64 exec, -1
        s_waitcnt lgkmcnt(0)
        v_readfirstlane_b32 {s(S_NEXT)}, {v(V_FA)}
        s_nop 3
        s_cmp_ge_u32 {s(S_NEXT)}, {s(S_NT)}
        s_cbranch_scc1 K2_MAIN_DONE
        s_lshl_b32 {s(S_TMP)}, {s(S_NEXT)}, 7
        s_lshl_b32 {s(S_TMP2)}, {s(S_NEXT)}, 8
        """)
        tile_addr(S_TMP, S_TMP2)
        A("s_branch K2_FIRST\nK2_START:")
    A(f"s_cmp_ge_u32 {s(S_WAVE)}, {s(S_NT)}\ns_cbranch_scc1 K2_MAIN_DONE\nK2_FIRST:")
    A(f"ds_read_b32 {v(V_EID)}, {v(V_EID)} offset:{L_EID}")
    so_read(0)
    A(f"ds_read_b32 {v(V_KN)}, {v(V_KN)} offset:{L_EID}\nds_read_b64 {v(YR, 2)}, {v(V_MT)} offset:{L_Y}")
    so_read(1)
    A("s_waitcnt lgkmcnt(4)")
    ef_load()
    A("s_waitcnt lgkmcnt(3)")
    for r in range(4):
        xload(r)
    A("s_waitcnt lgkmcnt(0)")
    A(key_ops[0] + "\ns_nop 1\n" + key_ops[1] + "\n" + key_ops[2])
    A("s_waitcnt vmcnt(4)")
    stamp(A, opt, 4)

    def flush_ops(r):
        ops = [[f"v_add_u32_dpp {v(V_FA)}, {v(V_KK)}, {v(V_ACCL)} row_newbcast:{r} {DPP}"]]
        for j in range(8):
            st = STG + 2 * (j % 4)
            ops.append([f"v_cvt_f64_f32 {v(st, 2)}, {v(ACC + j)}", f"ds_add_f64 {v(V_FA)}, {v(st, 2)} offset:{RS * j}"])
        return ops

    def emit(groups):
        for g in groups:
            for op in ([g] if isinstance(g, str) else g):
                A(op)

    def acc_ops(r, first):
        ops = []
        for j in range(4):
            rr = D + 16 * (j // 2) + (r & ~1)
            o = r & 1
            if first:
                ops.append(f"v_pk_mul_f32 {v(ACC + 2 * j, 2)}, {v(rr, 2)}, {v(TP + 2 * j, 2)} op_sel:[{o},0] op_sel_hi:[{o},1]")
            else:
                ops.append(f"v_pk_fma_f32 {v(ACC + 2 * j, 2)}, {v(rr, 2)}, {v(TP + 2 * j, 2)}, {v(ACC + 2 * j, 2)} op_sel:[{o},0,0] op_sel_hi:[{o},1,1]")
        return ops

    def exp_ops(q):
        return [f"v_exp_f32 {v(E + j)}, {v(D + 16 * (j // 2) + q + j % 2)}" for j in range(4)]

    add_ops = [f"v_pk_add_f32 {v(E + 2 * j, 2)}, {v(E + 2 * j, 2)}, 1.0 op_sel_hi:[1,0]" for j in range(2)]
    rcp_ops = [f"v_rcp_f32 {v(E + j)}, {v(E + j)}" for j in range(4)]

    def mul_ops(q):
        return [f"v_pk_mul_f32 {v(D + 16 * j + q, 2)}, {v(D + 16 * j + q, 2)}, {v(E + 2 * j, 2)}" for j in range(2)]

    A(".p2align 6")
    loop_start = len(A.lines)
    A("K2_LOOP:")
    GRAB, EFS = opt.get("grab", 1), opt.get("efs", 8)
    if opt.get("prio") and -1 in opt["prio"]:
        A(f"s_setprio {opt['prio'][-1]}")
    fo = flush_ops(15)
    tm = [f"v_mfma_f32_4x4x4_16b_bf16 {v(D + 16 + 4 * i, 4)}, {v(YR, 2)}, {v(CG + 2 * i, 2)}, 0" for i in range(4)]
    tc = [f"v_cvt_pk_bf16_f32 {v(T + 2 * j + hh)}, {v(D + 16 + 8 * hh + j)}, {v(D + 20 + 8 * hh + j)}" for hh in range(2) for j in range(2)]
    ex = exp_ops(0)
    emit([tm[0], fo[0], tm[1], fo[1], tm[2], fo[2], tm[3], fo[3]])
    if opt.get("vefs") and max(opt["vefs"]) > 10:
        A(f"s_cmp_lt_u32 s66, {len([x for x in opt['vefs'] if x <= 10])}\ns_cbranch_scc1 K2_EFOK\ns_waitcnt vmcnt({15 - max(opt['vefs'])})\nK2_EFOK:")
    A(f"v_mfma_f32_32x32x16_bf16 {v(D, 16)}, {v(EF, 4)}, {v(W, 4)}, 0")
    emit([tc[0], tc[1], fo[4], fo[5], tc[2], tc[3]])
    A(f"v_mfma_f32_32x32x16_bf16 {v(D + 16, 16)}, {v(EF, 4)}, {v(W + 4, 4)}, 0")
    emit([fo[6], fo[7], fo[8], f"v_mov_b32 {v(V_KK)}, {v(V_KN)}", f"s_or_b32 {s(S_MASK)}, {s(S_CMP)}, {s(S_CMP + 1)}",
          ex[0], ex[1], "s_nop 1", ex[2], ex[3], "s_nop 0"] + add_ops)
    for r in range(16):
        tr = T + (2 if r >= 8 else 0)
        m4 = [f"v_mfma_f32_4x4x4_16b_bf16 {v(TP + 4 * h, 4)}, {v(tr, 2)}, {v(X + 4 * (r % 4) + 2 * h, 2)}, 0 cbsz:3 abid:{r % 8}" for h in range(2)]
        prio = opt.get("prio")
        if prio and r in prio:
            A(f"s_setprio {prio[r]}")
        nx = 2 if opt.get("xt") is not None else 1
        A(f"s_waitcnt vmcnt({3 + nx if (EFS < r <= EFS + 4 and not opt.get('vefs')) else 3})")
        if r == 15:
            emit([m4[0], key_ops[0], m4[1]])
            xload(r + 4)
            emit([key_ops[1], key_ops[2]])
            side = []
        else:
            trans = rcp_ops if r % 2 == 0 else exp_ops(r + 1)
            side = mul_ops(r) if r % 2 == 0 else add_ops
            emit([m4[0], trans[0], m4[1], trans[1], trans[2], trans[3]])
            if r % 4 == 0 and r > 0:
                A("s_waitcnt lgkmcnt(0)")
            xload(r + 4)
        if r % 4 == 0:
            so_read(r // 4 + 2)
        if opt.get("static"):
            if r == 0:
                A(f"s_add_u32 {s(S_NEXT)}, {s(S_NEXT)}, {NW}\ns_min_u32 {s(S_NEXT)}, {s(S_NEXT)}, {s(S_NT)}\ns_lshl_b32 s67, {s(S_NEXT)}, 7\ns_lshl_b32 {s(S_TMP2)}, {s(S_NEXT)}, 8")
                A(f"v_add_u32 {v(V_EID)}, s67, {v(V_LAE)}\nv_add_u32 {v(V_KN)}, s67, {v(V_LAD)}\nv_add_u32 {v(V_MT)}, {s(S_TMP2)}, {v(V_LAY)}")
                tile_reads()
            if r == 1:
                A("s_waitcnt lgkmcnt(0)")
            if r == 5:
                A(f"v_lshl_add_u32 {v(V_SA)}, {v(V_HALF16)}, 2, s67")
        elif r == GRAB:
            A(f"s_mov_b64 exec, 1\nds_add_rtn_u32 {v(V_MT)}, {v(V_CTRA)}, {v(V_ONE)}\ns_mov_b64 exec, -1")
        if r == max(4, GRAB + 1) and not opt.get("static"):
            if r != 4:
                A("s_waitcnt lgkmcnt(0)")
            A(f"v_readfirstlane_b32 {s(S_NEXT)}, {v(V_MT)}")
        if r == max(5, GRAB + 2) and not opt.get("static"):
            A(f"s_min_u32 {s(S_NEXT)}, {s(S_NEXT)}, {s(S_NT)}\ns_lshl_b32 {s(S_TMP)}, {s(S_NEXT)}, 7\ns_lshl_b32 {s(S_TMP2)}, {s(S_NEXT)}, 8")
            tile_addr(S_TMP, S_TMP2)
            tile_reads()
        def ef_block():
            ef_load()
            if opt.get("xt") is not None:
                A(f"""
                s_lshl_b32 {s(S_TMP)}, {s(S_NEXT)}, 16
                s_add_u32 {s(S_TMP)}, {s(S_TMP)}, s65
                s_min_u32 {s(S_TMP)}, {s(S_TMP)}, {5120000 - 2048}
                s_mov_b64 exec, 0xffff
                buffer_load_dword v127, {v(V_LAD)}, s[68:71], {s(S_TMP)} idxen
                s_mov_b64 exec, -1
                """)
        if opt.get("vefs"):
            if r in opt["vefs"]:
                A(f"s_cmp_lg_u32 s66, {opt['vefs'].index(r)}\ns_cbranch_scc1 K2_NOEF{r}")
                ef_block()
                A(f"K2_NOEF{r}:")
        elif r == EFS:
            ef_block()
        if r == 13 and opt.get("trace"):
            A("s_memrealtime s[62:63]")
        if r == 14:
            A("s_waitcnt lgkmcnt(0)")
            if opt.get("trace"):
                A("s_mov_b32 m0, s64\ns_add_u32 s64, s64, 1\nv_writelane_b32 v126, s62, m0")
        emit(side)
        if r > 0:
            A(f"s_bitcmp1_b32 {s(S_MASK)}, {r - 1}\ns_cbranch_scc1 K2_F{r}")
        emit(acc_ops(r, r == 0))
        if r > 0:
            A(f"K2_R{r}:")
    A(f"s_cmp_lt_u32 {s(S_NEXT)}, {s(S_NT)}\ns_cbranch_scc1 K2_LOOP")
    drop = opt.get("drop", [])
    if drop:
        A.lines[loop_start:] = [ln for ln in A.lines[loop_start:] if not any(d in ln for d in drop)]
    emit(flush_ops(15))
    A("s_branch K2_MAIN_DONE")
    for r in range(1, 16):
        A(f"K2_F{r}:")
        emit(flush_ops(r - 1))
        emit(acc_ops(r, True))
        A(f"s_branch K2_R{r}")
    WM, A64, AG, AF, OD, OP = 32, 80, 16, 8, 80, 96
    A("K2_MAIN_DONE:")
    stamp(A, opt, 5)
    if opt.get("diag") == "done":
        A("s_memrealtime s[76:77]")
    A(f"""
    s_cmp_eq_u32 {s(S_MORE)}, 0
    s_cbranch_scc1 K2_EPI
    s_lshl_b32 {s(S_TMP)}, 16, {s(S_WIDE)}
    s_add_u32 {s(S_K0)}, {s(S_K0)}, {s(S_TMP)}
    s_waitcnt vmcnt(0) lgkmcnt(0)
    s_barrier
    s_branch K2_ROUND
    K2_EPI:
    s_cmp_ge_u32 {s(S_WAVE)}, 10
    s_cbranch_scc0 K2_MIX
    s_waitcnt lgkmcnt(0)
    s_barrier
    """)
    stamp(A, opt, 6)
    A(f"""
    s_branch K2_FIN
    K2_MIX:
    v_and_b32 v1, 63, v0
    v_lshlrev_b32 v2, 4, v1
    v_add_u32 v2, {WS_WF + 4096}, v2
    v_add_u32 v3, 4096, v2
    """)
    for f in range(8):
        A(f"global_load_dwordx4 {v(WM + 4 * f, 4)}, {'v2' if f < 4 else 'v3'}, {s(S_WS, 2)} offset:{1024 * (f % 4)} {WT}")
    A(f"""
    v_bfe_u32 v2, v1, 2, 2
    v_mul_u32_u24 v2, {NS}, v2
    v_and_b32 v3, 3, v1
    v_mul_u32_u24 v3, {RS}, v3
    v_lshrrev_b32 v4, 4, v1
    v_lshlrev_b32 v5, 6, v4
    v_add3_u32 v2, v2, v3, v5
    s_mul_i32 s70, {s(S_WAVE)}, {4 * NS}
    s_add_u32 s70, s70, {L_ACC}
    v_add_u32 v2, s70, v2
    v_and_b32 v3, 15, v1
    v_lshlrev_b32 v3, 4, v3
    v_lshl_add_u32 v3, v4, 17, v3
    s_lshl_b32 s70, {s(S_WAVE)}, 19
    s_lshl_b32 s71, {s(S_BETA)}, 9
    s_add_u32 s70, s70, s71
    v_add_u32 v3, s70, v3
    s_mov_b32 {s(S_SC)}, {fbits(-math.log(2.0))}
    s_mov_b32 {s(S_SC + 1)}, {fbits(-math.log(2.0))}
    s_waitcnt lgkmcnt(0)
    s_barrier
    """)
    stamp(A, opt, 6)
    for cpar in range(2):
        for hh in range(4):
            A(f"ds_read_b128 {v(A64 + 16 * cpar + 4 * hh, 4)}, v2 offset:{4 * RS * cpar + 16 * hh}")
    for j in range(8):
        A(f"s_waitcnt lgkmcnt({7 - j})")
        A(f"v_cvt_f32_f64 {v(AG + 2 * j)}, {v(A64 + 4 * j, 2)}")
        A(f"v_cvt_f32_f64 {v(AG + 2 * j + 1)}, {v(A64 + 4 * j + 2, 2)}")
    for j in range(8):
        A(f"v_pk_mul_f32 {v(AG + 2 * j, 2)}, {v(AG + 2 * j, 2)}, {s(S_SC, 2)}")
    for j in range(8):
        A(f"v_cvt_pk_bf16_f32 {v(AF + j)}, {v(AG + 2 * j)}, {v(AG + 2 * j + 1)}")
    A("s_waitcnt vmcnt(0)\ns_nop 0")
    for dt in range(4):
        A(f"v_mfma_f32_16x16x32_bf16 {v(OD + 4 * dt, 4)}, {v(AF, 4)}, {v(WM + 4 * dt, 4)}, 0")
    for dt in range(4):
        A(f"v_mfma_f32_16x16x32_bf16 {v(OD + 4 * dt, 4)}, {v(AF + 4, 4)}, {v(WM + 16 + 4 * dt, 4)}, {v(OD + 4 * dt, 4)}")
    A("s_nop 7")
    for j in range(8):
        A(f"v_cvt_pk_bf16_f32 {v(OP + j)}, {v(OD + 2 * j)}, {v(OD + 2 * j + 1)}")
    ost = opt.get("out_st", "")
    A(f"buffer_store_dwordx4 {v(OP, 4)}, v3, {s(S_OUT, 4)}, 0 offen {ost}")
    A(f"buffer_store_dwordx4 {v(OP + 4, 4)}, v3, {s(S_OUT, 4)}, 0 offen offset:256 {ost}")
    A("K2_FIN:")
    if opt.get("diag"):
        if opt["diag"] == "k1":
            A(f"s_lshl_b32 s76, s2, 2\ns_add_u32 s76, s76, {100 << 20}\ns_load_dword s76, {s(S_WS, 2)}, s76")
        A("""
        s_waitcnt lgkmcnt(0)
        K2_SPIN:
        s_memrealtime s[74:75]
        s_waitcnt lgkmcnt(0)
        s_sub_u32 s74, s74, s76
        s_cmp_lt_u32 s74, 10000
        s_cbranch_scc1 K2_SPIN
        """)
    if opt.get("trace"):
        A(f"s_lshl_b32 s78, s2, 12\ns_add_u32 s78, s78, {130 << 20}\nv_lshl_add_u32 v1, v0, 2, s78\nglobal_store_dword v1, v126, {s(S_WS, 2)}")
    if opt.get("prof"):
        A("s_waitcnt vmcnt(0)")
        stamp(A, opt, 7)
        stamp_out(A, opt, 10, S_WS, (128 << 20) + (1 << 20), S_WAVE)
    A("K2_END:\ns_endpgm")


def generate(opt):
    A = Asm()
    out = HEADER
    if opt.get("aslist"):
        out += f"; @launch kernel={NAME}_kernel grid=(256,1,1) block=(1024,1,1) lds={K2_LDS}\n"
    else:
        out += f"; @launch grid=(256,1,1) block=(1024,1,1) lds={K2_LDS}\n"
    out += '.amdgcn_target "amdgcn-amd-amdhsa--gfx950"\n.text\n'
    gen_k2(A, opt)
    out += A.text()
    out += '.section .rodata,"a"\n.p2align 6\n'
    out += descriptor(NAME + "_kernel", NVGPR2, 102)
    return out


if __name__ == "__main__":
    opt = eval("dict(" + (sys.argv[2] if len(sys.argv) > 2 else "") + ")")
    path = sys.argv[1] if len(sys.argv) > 1 else f"cdna_kernels/{NAME}.s"
    open(path, "w").write(generate(opt))
```

```python
import sys, struct, math

NAME = "standalone__tensor_product_equiv_tfn__graph"

HEADER = """; Kernarg layout for this problem (88 bytes, ptrs only, base s[0:1]):
"""

CHUNK = 2500
PSIZE = 2500
RECSTRIDE = 30080
WS_TAB = 256 * RECSTRIDE
WS_WF = WS_TAB + 256 * 2048
SPIN_MAX = 1 << 18

RS = 272
NS = 8 * RS
L_HIST = 0
L_PREF = 1024
L_CTR = 2048
CAP = 4096
L_LIST = 2304
L_ACC = L_LIST + (CAP + 64) * 16
LDS_BYTES = L_ACC + 41 * NS
L_STG = 2304
L_WF = 36864

DPP = "row_mask:0xf bank_mask:0xf"
SDWA = "dst_sel:DWORD dst_unused:UNUSED_PAD src0_sel:DWORD"

NW = 16
V_DBASE, V_DCNT, V_HALF16, V_ACCL, V_LAD, V_LAE, V_LAY = 1, 2, 3, 4, 5, 6, 7
V_ONE, V_CTRA, V_KK, V_KN, V_EID, V_SA, V_FA, V_MT = 8, 9, 10, 11, 12, 13, 14, 15
W = 16
CG = 24
D = 32
X = 64
TP = 80
ACC = 88
STG = 96
SO = 104
E = 112
T = 116
EF = 120
YR = 124
V_TRC, V_JUNK = 126, 127
NVGPR = 128

S_X, S_EF, S_OUT, S_WS = 4, 8, 12, 16
S_BETA, S_WAVE, S_K0, S_WIDE, S_N, S_NT, S_NEXT, S_MASK = 18, 19, 20, 21, 22, 23, 24, 25
S_CMP = 26
S_MORE, S_TMP, S_C0, S_C1 = 28, 29, 30, 31
S_M1, S_M2 = 32, 40
S_ANY2 = 48
S_SC = 50
S_XP = 52
S_TMP2 = 0
S_DBG = 58
S_PM = 60
KA = 32
S_ROT = 3
SMB = 32

DEFAULT_PTS = ["start", "desc", "rec", "sorted", "loop", "done", "bar", "fin", "b3", "b4"]


def fbits(x):
    return "0x%08x" % struct.unpack("<I", struct.pack("<f", x))[0]


class Asm:
    def __init__(self):
        self.lines = []

    def __call__(self, s):
        for ln in s.strip("\n").split("\n"):
            ln = ln.strip()
            if not ln:
                continue
            if ln.endswith(":") or ln.startswith("."):
                self.lines.append(ln)
            else:
                self.lines.append("    " + ln)

    def text(self):
        return "\n".join(self.lines) + "\n"


def v(a, n=1):
    return f"v{a}" if n == 1 else f"v[{a}:{a+n-1}]"


def s(a, n=1):
    return f"s{a}" if n == 1 else f"s[{a}:{a+n-1}]"


def wave_scan(A, regs):
    steps = ["row_shr:1 " + DPP + " bound_ctrl:0", "row_shr:2 " + DPP + " bound_ctrl:0",
             "row_shr:4 " + DPP + " bound_ctrl:0", "row_shr:8 " + DPP + " bound_ctrl:0",
             "row_bcast:15 row_mask:0xa bank_mask:0xf", "row_bcast:31 row_mask:0xc bank_mask:0xf"]
    for st in steps:
        A("s_nop 1" if len(regs) == 1 else "s_nop 0")
        for r in regs:
            A(f"v_add_u32_dpp {v(r)}, {v(r)}, {v(r)} {st}")


def gen(A, opt):
    name = NAME + "_kernel"
    WT = "sc1"
    P0, P1, P2, P3, P4, P5, P6 = 112, 113, 114, 115, 116, 117, 118
    QD, QS, QY, QH, QR, QT, QP, QZ = 32, 36, 40, 48, 52, 56, 60, 64
    pts = opt.get("pts", DEFAULT_PTS)
    SB = 102 - 2 * len(pts)

    def stamp(nm):
        if opt.get("prof") and nm in pts:
            A(f"s_memrealtime {s(SB + 2 * pts.index(nm), 2)}")
        if opt.get("diag") == nm:
            A("s_memrealtime s[76:77]")

    def xtouch(n, base):
        A(f"""
        s_lshr_b32 {s(S_TMP)}, s2, {0 if opt.get("xmall") else 3}
        s_mul_i32 {s(S_TMP)}, {s(S_TMP)}, {n * 128}
        s_add_u32 {s(S_TMP)}, {s(S_TMP)}, {base * 128}
        s_and_b32 s3, s2, {3 if opt.get("rot", 1) and not opt.get("xmall") else 0}
        s_mul_i32 s3, s3, {PSIZE * 512}
        s_add_u32 {s(S_TMP)}, {s(S_TMP)}, s3
        v_cmp_gt_u32 vcc, {n}, v0
        v_lshl_add_u32 {v(P5)}, v0, 7, {s(S_TMP)}
        s_and_saveexec_b64 {s(S_PM, 2)}, vcc
        s_cbranch_execz XT_{base}
        buffer_load_dword {v(V_JUNK)}, {v(P5)}, {s(S_XP, 4)}, 0 offen
        XT_{base}:
        s_mov_b64 exec, -1
        """)

    def scan256(cnt, pre, addr, tot):
        A(f"""
        ds_read_b128 {v(cnt, 4)}, {v(addr)} offset:{L_HIST}
        s_waitcnt lgkmcnt(0)
        v_add_u32 {v(pre + 2)}, {v(cnt)}, {v(cnt + 1)}
        v_add_u32 {v(pre + 3)}, {v(pre + 2)}, {v(cnt + 2)}
        v_add_u32 {v(pre)}, {v(pre + 3)}, {v(cnt + 3)}
        v_add_u32 {v(tot)}, {v(pre + 3)}, {v(cnt + 3)}
        """)
        wave_scan(A, [tot])
        A(f"""
        v_sub_u32 {v(pre)}, {v(tot)}, {v(pre)}
        v_add_u32 {v(pre + 1)}, {v(pre)}, {v(cnt)}
        v_add_u32 {v(pre + 2)}, {v(pre)}, {v(pre + 2)}
        v_add_u32 {v(pre + 3)}, {v(pre)}, {v(pre + 3)}
        ds_write_b128 {v(addr)}, {v(pre, 4)} offset:{L_PREF}
        """)

    A(f".globl {name}\n.p2align 8\n.type {name},@function\n{name}:")
    stamp("start")
    A(f"""
    s_cmp_ge_u32 s2, 256
    s_cbranch_scc1 K_END
    s_load_dwordx16 {s(KA, 16)}, s[0:1], 0
    s_load_dwordx2 {s(S_WS, 2)}, s[0:1], 80
    s_load_dwordx2 {s(S_OUT, 2)}, s[0:1], 64
    s_load_dwordx2 {s(S_DBG, 2)}, s[0:1], 72
    v_lshrrev_b32 {v(P0)}, 6, v0
    v_and_b32 {v(P1)}, 63, v0
    v_readfirstlane_b32 {s(S_WAVE)}, {v(P0)}
    s_mul_i32 {s(S_TMP)}, s2, {CHUNK * 4}
    s_mul_i32 {s(S_C1)}, s2, {CHUNK * 8}
    v_lshl_add_u32 {v(P2)}, v0, 4, {s(S_TMP)}
    v_lshl_add_u32 {v(P3)}, v0, 5, {s(S_C1)}
    s_movk_i32 {s(S_C0)}, {CHUNK // 4}
    v_cmp_gt_u32 {s(S_PM, 2)}, {s(S_C0)}, v0
    v_mov_b64 {v(QZ, 2)}, 0
    v_mov_b64 {v(QZ + 2, 2)}, 0
    v_and_b32 {v(P0)}, 0xff, v0
    v_lshlrev_b32 {v(P0)}, 2, {v(P0)}
    ds_write_b32 {v(P0)}, {v(QZ)} offset:{L_HIST}
    s_cmp_ge_u32 {s(S_WAVE)}, 10
    s_cbranch_scc1 KA_AUX0
    s_mov_b64 exec, {s(S_PM, 2)}
    s_waitcnt lgkmcnt(0)
    """)
    stamp("karg")
    A(f"""
    global_load_dwordx4 {v(QD, 4)}, {v(P2)}, {s(KA + 4, 2)}
    s_barrier
    global_load_dwordx4 {v(QS, 4)}, {v(P2)}, {s(KA + 2, 2)}
    global_load_dwordx4 {v(QY, 4)}, {v(P3)}, {s(KA + 6, 2)}
    global_load_dwordx4 {v(QY + 4, 4)}, {v(P3)}, {s(KA + 6, 2)} offset:16
    s_mov_b64 exec, -1
    s_branch KA_JOIN0
    KA_AUX0:
    s_waitcnt lgkmcnt(0)
    s_cmp_eq_u32 {s(S_WAVE)}, 15
    s_cbranch_scc0 KA_NOTAG
    s_cmp_eq_u32 s2, 0
    s_cbranch_scc0 KA_NOTAG
    s_memrealtime s[62:63]
    s_waitcnt lgkmcnt(0)
    s_lshl_b32 s63, s63, 24
    s_or_b32 s63, s63, 1
    v_mov_b32 {v(QD)}, s63
    v_mov_b32 {v(QD + 1)}, s62
    s_mov_b64 exec, 1
    global_store_dwordx2 {v(QZ)}, {v(QD, 2)}, {s(S_DBG, 2)} {WT}
    s_mov_b64 exec, -1
    KA_NOTAG:
    s_barrier
    KA_JOIN0:
    s_and_b32 {s(S_BETA)}, s2, 7
    s_lshl_b32 {s(S_BETA)}, {s(S_BETA)}, 5
    s_lshr_b32 s3, s2, 3
    s_add_u32 {s(S_BETA)}, {s(S_BETA)}, s3
    s_sub_u32 {s(S_X)}, {s(KA)}, 512
    s_subb_u32 {s(S_X + 1)}, {s(KA + 1)}, 0
    s_and_b32 {s(S_X + 1)}, {s(S_X + 1)}, 0xffff
    s_or_b32 {s(S_X + 1)}, {s(S_X + 1)}, 0x100000
    s_mov_b32 {s(S_X + 2)}, 64
    s_mov_b32 {s(S_X + 3)}, 0x800000
    s_mov_b32 {s(S_XP)}, {s(KA)}
    s_and_b32 {s(S_XP + 1)}, {s(KA + 1)}, 0xffff
    s_mov_b32 {s(S_XP + 2)}, 5120000
    s_mov_b32 {s(S_XP + 3)}, 0x20000
    s_mov_b32 {s(S_EF)}, {s(KA + 8)}
    s_and_b32 {s(S_EF + 1)}, {s(KA + 9)}, 0xffff
    s_mov_b32 {s(S_EF + 2)}, 20480000
    s_mov_b32 {s(S_EF + 3)}, 0x20000
    s_and_b32 {s(S_OUT + 1)}, {s(S_OUT + 1)}, 0xffff
    s_mov_b32 {s(S_OUT + 2)}, 5120000
    s_mov_b32 {s(S_OUT + 3)}, 0x20000
    s_mov_b32 {s(S_K0)}, 0
    s_mov_b32 {s(S_WIDE)}, 1
    s_lshr_b32 s3, {s(S_BETA)}, 2
    s_lshl_b32 s3, s3, 4
    s_and_b32 {s(S_TMP)}, {s(S_BETA)}, 1
    s_lshl_b32 {s(S_TMP)}, {s(S_TMP)}, 3
    s_add_u32 s3, s3, {s(S_TMP)}
    s_and_b32 {s(S_TMP)}, {s(S_BETA)}, 2
    s_lshl_b32 {s(S_TMP)}, {s(S_TMP)}, 9
    s_add_u32 s3, s3, {s(S_TMP)}
    s_add_u32 s3, s3, {WS_TAB}
    v_lshrrev_b32 {v(P2)}, 4, v0
    v_lshlrev_b32 {v(P2)}, 2, {v(P2)}
    v_and_or_b32 {v(P3)}, v0, 3, {v(P2)}
    v_lshl_add_u32 {v(V_FA)}, {v(P3)}, 11, s3
    v_mul_u32_u24 {v(V_DBASE)}, {RECSTRIDE}, {v(P3)}
    v_and_b32 {v(P4)}, 31, {v(P1)}
    v_lshrrev_b32 {v(P5)}, 5, {v(P1)}
    v_lshlrev_b32 {v(V_HALF16)}, 4, {v(P5)}
    v_lshlrev_b32 {v(V_ACCL)}, 3, {v(P4)}
    v_add_u32 {v(V_ACCL)}, {L_ACC}, {v(V_ACCL)}
    v_and_b32 {v(P6)}, 15, v0
    v_add_lshl_u32 {v(V_LAD)}, {v(P6)}, {v(V_HALF16)}, 4
    v_lshrrev_b32 {v(P6)}, 3, {v(P4)}
    v_lshlrev_b32 {v(P6)}, 2, {v(P6)}
    v_and_or_b32 {v(P6)}, {v(P4)}, 3, {v(P6)}
    v_lshlrev_b32 {v(P6)}, 4, {v(P6)}
    v_and_b32 {v(P0)}, 4, {v(P4)}
    v_lshl_add_u32 {v(V_LAE)}, {v(P0)}, 6, {v(P6)}
    v_lshrrev_b32 {v(P6)}, 2, {v(P4)}
    v_and_b32 {v(P0)}, 1, {v(P4)}
    v_lshl_add_u32 {v(P6)}, {v(P0)}, 3, {v(P6)}
    v_add_lshl_u32 {v(V_LAY)}, {v(P6)}, {v(V_HALF16)}, 4
    v_mov_b32 {v(V_ONE)}, 1
    v_mov_b32 {v(V_CTRA)}, {L_CTR}
    s_cmp_ge_u32 {s(S_WAVE)}, 10
    s_cbranch_scc1 KA_AUX1
    s_mov_b64 exec, {s(S_PM, 2)}
    v_lshlrev_b32 {v(P0)}, 2, v0
    v_add_u32 {v(P0)}, 4096, {v(P0)}
    s_movk_i32 {s(S_C0)}, {L_STG}
    s_movk_i32 {s(S_C1)}, {-PSIZE}
    s_waitcnt vmcnt(3)
    """)
    stamp("dst")
    for k in range(4):
        A(f"""
        v_add_u32 {v(P2)}, {16384 - 9984}, {v(QD + k)}
        v_lshrrev_b32 {v(P2)}, 12, {v(P2)}
        v_and_or_b32 {v(P2)}, {v(P2)}, 4, 2
        v_lshlrev_b32_sdwa {v(QH + k)}, {v(P2)}, {v(QD + k)} {SDWA} src1_sel:BYTE_0
        ds_add_rtn_u32 {v(QR + k)}, {v(QH + k)}, {v(V_ONE)} offset:{L_HIST}
        """)
    A("s_waitcnt lgkmcnt(0)\ns_barrier")
    stamp("b2")
    for k in range(4):
        A(f"""
        v_lshrrev_b32 {v(QD + k)}, 8, {v(QD + k)}
        v_or_b32 {v(P3)}, {k}, {v(P0)}
        v_lshl_or_b32 {v(QD + k)}, {v(QD + k)}, 24, {v(P3)}
        """)
    A("s_barrier")
    stamp("b2b")
    for k in range(4):
        A(f"ds_read_b32 {v(QH + k)}, {v(QH + k)} offset:{L_PREF}")
    for k in range(4):
        A(f"""
        s_waitcnt lgkmcnt({3 - k})
        v_add_u32 {v(QH + k)}, {v(QH + k)}, {v(QR + k)}
        v_mad_u32_u24 {v(QH + k)}, {v(QH + k)}, 12, {s(S_C0)}
        """)
    A("s_waitcnt vmcnt(2)")
    for k in range(4):
        A(f"""
        v_mul_u32_u24 {v(P2)}, {(1 << 24) // PSIZE}, {v(QS + k)}
        v_lshrrev_b32 {v(P2)}, 24, {v(P2)}
        v_mad_i32_i24 {v(QS + k)}, {v(P2)}, {s(S_C1)}, {v(QS + k)}
        v_lshl_or_b32 {v(QS + k)}, {v(P2)}, 18, {v(QS + k)}
        v_lshl_add_u32 {v(QD + k)}, {v(QS + k)}, 12, {v(QD + k)}
        ds_write_b32 {v(QH + k)}, {v(QD + k)} offset:8
        """)
    for k in range(4):
        if k % 2 == 0:
            A(f"s_waitcnt vmcnt({1 - k // 2})")
        if k == 2:
            stamp("y")
        A(f"ds_write2_b32 {v(QH + k)}, {v(QY + 2 * k)}, {v(QY + 2 * k + 1)} offset0:0 offset1:1")
    A(f"""
    s_mov_b64 exec, -1
    s_branch KA_JOIN3
    KA_AUX1:
    s_cmp_eq_u32 {s(S_WAVE)}, 15
    s_cbranch_scc1 KA_SCAN
    s_and_b32 s62, s2, 7
    s_lshr_b32 s63, s62, 2
    s_lshl_b32 s63, s63, 7
    s_and_b32 s64, s62, 1
    s_lshl_b32 s64, s64, 1
    s_add_u32 s63, s63, s64
    s_and_b32 s64, s62, 2
    s_lshl_b32 s64, s64, 5
    s_add_u32 s63, s63, s64
    s_and_b32 s64, {s(S_WAVE)}, 1
    s_lshl_b32 s65, s64, 6
    s_cmp_lt_u32 {s(S_WAVE)}, 14
    s_cselect_b64 s[66:67], {s(KA + 12, 2)}, {s(KA + 14, 2)}
    s_cselect_b32 s63, s65, s63
    s_cselect_b32 s68, 6, 4
    s_cselect_b32 s69, 3, 15
    s_cselect_b32 s70, 1, 2
    s_cselect_b32 s71, 8, 256
    s_lshl_b32 s65, s64, 1
    s_cmp_lt_u32 {s(S_WAVE)}, 12
    s_cselect_b64 s[66:67], {s(KA + 10, 2)}, s[66:67]
    s_cselect_b32 s63, s65, s63
    s_cselect_b32 s68, 5, s68
    s_cselect_b32 s69, 31, s69
    s_cselect_b32 s70, 2, s70
    s_cselect_b32 s71, 128, s71
    s_cselect_b32 s72, 10, 11
    v_lshrrev_b32 {v(P2)}, s68, {v(P1)}
    v_lshlrev_b32 {v(P2)}, s72, {v(P2)}
    v_and_b32 {v(P3)}, s69, {v(P1)}
    v_lshlrev_b32 {v(P3)}, s70, {v(P3)}
    v_add3_u32 {v(P2)}, {v(P2)}, {v(P3)}, s63
    s_barrier
    s_barrier
    s_cmp_lt_u32 {s(S_WAVE)}, 14
    s_cbranch_scc1 KA_PREP
    s_cmp_lt_u32 s2, 8
    s_cbranch_scc0 KA_JOIN3
    KA_PREP:
    """)
    for i in range(8):
        A(f"global_load_ushort {v(QY + i)}, {v(P2)}, s[66:67]\nv_add_u32 {v(P2)}, s71, {v(P2)}")
    A(f"""
    s_branch KA_JOIN3
    KA_SCAN:
    v_lshlrev_b32 {v(P3)}, 4, {v(P1)}
    s_setprio 3
    s_barrier
    """)
    scan256(QT, QR, P3, P4)
    A(f"""
    s_waitcnt lgkmcnt(0)
    s_barrier
    s_setprio 0
    global_load_dwordx2 {v(QH, 2)}, {v(QZ)}, {s(S_DBG, 2)} {WT}
    """)
    for k in range(4):
        A(f"v_lshl_or_b32 {v(QT + k)}, {v(QT + k)}, 12, {v(QR + k)}")
    NSTART = NW
    A(f"""
    KA_JOIN3:
    v_lshlrev_b32 {v(P2)}, 4, v0
    s_mul_i32 {s(S_TMP)}, s2, {RECSTRIDE}
    v_add_u32 {v(P3)}, {s(S_TMP)}, {v(P2)}
    v_add_u32 {v(P4)}, 16384, {v(P3)}
    v_cmp_gt_u32 vcc, {CHUNK * 12 // 16 - 1024}, v0
    v_and_b32 {v(P0)}, 0xff, v0
    v_lshlrev_b32 {v(P0)}, 2, {v(P0)}
    v_mov_b32 {v(P5)}, {NSTART}
    v_lshlrev_b32 {v(P6)}, 4, {v(P1)}
    s_waitcnt lgkmcnt(0)
    s_barrier
    """)
    stamp("b3")
    A(f"""
    ds_read_b128 {v(QD, 4)}, {v(P2)} offset:{L_STG}
    ds_read_b128 {v(QS, 4)}, {v(P2)} offset:{L_STG + 16384}
    s_waitcnt lgkmcnt(1)
    global_store_dwordx4 {v(P3)}, {v(QD, 4)}, {s(S_WS, 2)} {WT}
    s_and_saveexec_b64 {s(S_PM, 2)}, vcc
    s_cbranch_execz KA_NOST2
    s_waitcnt lgkmcnt(0)
    global_store_dwordx4 {v(P4)}, {v(QS, 4)}, {s(S_WS, 2)} {WT}
    KA_NOST2:
    s_mov_b64 exec, -1
    ds_write_b32 {v(P0)}, {v(QZ)} offset:{L_HIST}
    ds_write2_b32 {v(V_CTRA)}, {v(P5)}, {v(QZ)} offset0:0 offset1:1
    v_add_u32 {v(P3)}, {L_ACC}, {v(P2)}
    v_add_u32 {v(P4)}, {L_ACC + 41 * NS - 16384}, {v(P2)}
    """)
    for i in range(4):
        A(f"ds_write_b128 {v(P3)}, {v(QZ, 4)} offset:{16384 * i}")
    A(f"v_add_u32 {v(P3)}, 65536, {v(P3)}\nds_write_b128 {v(P4)}, {v(QZ, 4)}\nds_write_b128 {v(P3)}, {v(QZ, 4)}")
    assert 5 * 16384 <= 41 * NS <= 6 * 16384
    A(f"""
    s_mov_b32 {s(S_C1)}, {SPIN_MAX}
    s_lshl_b32 s3, s2, 11
    s_add_u32 s3, s3, {WS_TAB}
    v_add_u32 {v(QP)}, s3, {v(P6)}
    s_cmp_lt_u32 {s(S_WAVE)}, 10
    s_cbranch_scc1 KA_JOIN4
    s_cmp_eq_u32 {s(S_WAVE)}, 15
    s_cbranch_scc1 KA_TAG
    s_cmp_lt_u32 {s(S_WAVE)}, 12
    s_cselect_b32 s62, {fbits(-math.log2(math.e))}, 1.0
    s_cmp_eq_u32 {s(S_WAVE)}, 14
    s_cbranch_scc1 KA_PW1
    s_waitcnt vmcnt(2)
    s_branch KA_PW2
    KA_PW1:
    s_waitcnt vmcnt(1)
    KA_PW2:
    """)
    for i in range(8):
        A(f"v_lshlrev_b32 {v(QY + i)}, 16, {v(QY + i)}\nv_mul_f32 {v(QY + i)}, s62, {v(QY + i)}")
    for jj in range(4):
        A(f"v_cvt_pk_bf16_f32 {v(QH + jj)}, {v(QY + 2 * jj)}, {v(QY + 2 * jj + 1)}")
    A(f"""
    s_cbranch_scc1 KA_PREPWM
    ds_write_b128 {v(P2)}, {v(QH, 4)} offset:{L_WF - 10240}
    s_branch KA_JOIN4
    KA_PREPWM:
    s_cmp_lt_u32 s2, 8
    s_cbranch_scc0 KA_JOIN4
    s_lshl_b32 s63, s2, 10
    s_add_u32 s63, s63, {WS_WF}
    v_add_u32 {v(P3)}, s63, {v(P6)}
    global_store_dwordx4 {v(P3)}, {v(QH, 4)}, {s(S_WS, 2)} {WT}
    s_branch KA_JOIN4
    KA_TAG:
    s_waitcnt vmcnt(1)
    KA_TAG1:
    v_cmp_eq_u32 vcc, 0, {v(QH)}
    s_cbranch_vccz KA_GOTTAG
    s_sub_u32 {s(S_C1)}, {s(S_C1)}, 1
    s_cbranch_scc1 K_END
    global_load_dwordx2 {v(QH, 2)}, {v(QZ)}, {s(S_DBG, 2)} {WT}
    s_waitcnt vmcnt(0)
    s_branch KA_TAG1
    KA_GOTTAG:
    v_and_b32 {v(QH)}, 0xff000000, {v(QH)}
    ds_write_b64 {v(V_CTRA)}, {v(QH, 2)} offset:8
    """)
    for k in range(4):
        A(f"v_or_b32 {v(QY + 2 * k)}, {v(QT + k)}, {v(QH)}\nv_mov_b32 {v(QY + 2 * k + 1)}, {v(QH + 1)}")
    A(f"""
    KA_JOIN4:
    s_waitcnt vmcnt(0) lgkmcnt(0)
    s_barrier
    """)
    stamp("b4")
    A(f"""
    s_cmp_eq_u32 {s(S_WAVE)}, 15
    s_cbranch_scc0 KA_PUBD
    global_store_dwordx4 {v(QP)}, {v(QY, 4)}, {s(S_WS, 2)} {WT}
    global_store_dwordx4 {v(QP)}, {v(QY + 4, 4)}, {s(S_WS, 2)} offset:1024 {WT}
    KA_PUBD:
    """)
    w2 = opt.get("w2", 128)
    xtouch(w2, 0)
    A(f"ds_read_b64 {v(QH, 2)}, {v(V_CTRA)} offset:8")
    for f in range(4):
        A(f"ds_read_b128 {v(W + 4 * f, 4)}, {v(P6)} offset:{L_WF + 1024 * f}")
    A(f"""
    s_waitcnt vmcnt(0) lgkmcnt(0)
    s_barrier
    KA_POLL:
    global_load_dwordx2 {v(QD, 2)}, {v(V_FA)}, {s(S_WS, 2)} {WT}
    s_waitcnt vmcnt(0)
    v_mov_b32 {v(V_DCNT)}, {v(QD)}
    v_and_b32 {v(QD)}, 0xff000000, {v(QD)}
    v_cmp_ne_u64 vcc, {v(QD, 2)}, {v(QH, 2)}
    s_cbranch_vccz KA_READY
    s_mov_b64 exec, vcc
    s_sub_u32 {s(S_C1)}, {s(S_C1)}, 1
    s_cbranch_scc1 K_END
    s_branch KA_POLL
    KA_READY:
    s_mov_b64 exec, -1
    v_and_b32 {v(P0)}, 0xfff, {v(V_DCNT)}
    v_mad_u32_u24 {v(V_DBASE)}, {v(P0)}, 12, {v(V_DBASE)}
    v_bfe_u32 {v(V_DCNT)}, {v(V_DCNT)}, 12, 12
    """)
    stamp("desc")
    NC = 4
    REC1, REC2, RK1, RK2, HA1, HA2, PB, SC = 32, 48, 64, 68, 72, 76, 80, 84
    A(f"""
    KB_ROUND0:
    v_and_b32 {v(P3)}, 15, v0
    v_add_u32 {v(P3)}, {s(S_K0)}, {v(P3)}
    v_mul_u32_u24 {v(P4)}, 12, {v(P3)}
    s_cmp_eq_u32 {s(S_WIDE)}, 1
    s_cselect_b32 {s(S_C1)}, 16, 0x7fffffff
    """)
    for c in range(NC):
        A(f"""
        v_sub_u32_dpp {v(RK1 + c)}, {v(V_DCNT)}, {v(P3)} row_newbcast:{c} {DPP}
        v_add_u32_dpp {v(HA2 + c)}, {v(V_DBASE)}, {v(P4)} row_newbcast:{c} {DPP}
        v_cmp_lt_i32 {s(S_M1 + 2 * c, 2)}, 0, {v(RK1 + c)}
        s_mov_b64 exec, {s(S_M1 + 2 * c, 2)}
        global_load_dwordx3 {v(REC1 + 4 * c, 3)}, {v(HA2 + c)}, {s(S_WS, 2)} {WT}
        s_mov_b64 exec, -1
        """)
    for c in range(NC):
        A(f"v_cmp_lt_i32 {s(S_M2 + 2 * c, 2)}, {s(S_C1)}, {v(RK1 + c)}")
    A(f"""
    s_lshl_b32 {s(S_TMP)}, 16, {s(S_WIDE)}
    s_add_u32 {s(S_TMP)}, {s(S_TMP)}, {s(S_K0)}
    v_cmp_lt_u32 {s(S_CMP, 2)}, {s(S_TMP)}, {v(V_DCNT)}
    s_or_b64 {s(S_ANY2, 2)}, {s(S_M2, 2)}, {s(S_M2 + 2, 2)}
    s_or_b64 {s(S_ANY2, 2)}, {s(S_ANY2, 2)}, {s(S_M2 + 4, 2)}
    s_or_b64 {s(S_ANY2, 2)}, {s(S_ANY2, 2)}, {s(S_M2 + 6, 2)}
    s_cbranch_scc0 KB_NOSEC_A
    """)
    for c in range(NC):
        A(f"""
        s_mov_b64 exec, {s(S_M2 + 2 * c, 2)}
        s_cbranch_execz KB_SA{c}
        global_load_dwordx3 {v(REC2 + 4 * c, 3)}, {v(HA2 + c)}, {s(S_WS, 2)} offset:192 {WT}
        KB_SA{c}:
        """)
    def tile_addr(tile, sa=True):
        A(f"""
        s_lshl_b32 {s(S_TMP)}, {s(tile)}, 9
        s_add_u32 {s(S_TMP)}, {s(S_TMP)}, {L_LIST}
        v_add_u32 {v(V_EID)}, {s(S_TMP)}, {v(V_LAE)}
        v_add_u32 {v(V_KN)}, {s(S_TMP)}, {v(V_LAD)}
        v_add_u32 {v(V_MT)}, {s(S_TMP)}, {v(V_LAY)}
        """)
        if sa:
            A(f"v_lshl_add_u32 {v(V_SA)}, {v(V_HALF16)}, 4, {s(S_TMP)}")

    ROT = 3 if opt.get("rot", 1) else 0
    A(f"""
    s_mov_b64 exec, -1
    KB_NOSEC_A:
    s_cmp_eq_u64 {s(S_CMP, 2)}, 0
    s_cbranch_scc1 KB_NOMORE
    ds_write_b32 {v(V_CTRA)}, {v(V_ONE)} offset:4
    KB_NOMORE:
    v_lshrrev_b32 {v(PB)}, 4, v0
    v_mul_u32_u24 {v(PB)}, {4 * CHUNK}, {v(PB)}
    v_add_u32 {v(PB + 1)}, {CHUNK}, {v(PB)}
    v_add_u32 {v(PB + 2)}, {2 * CHUNK}, {v(PB)}
    v_add_u32 {v(PB + 3)}, {3 * CHUNK}, {v(PB)}
    s_and_b32 {s(S_ROT)}, s2, {ROT}
    s_lshl_b32 {s(S_ROT)}, {s(S_ROT)}, 8
    v_and_b32 {v(P1)}, 63, v0
    v_lshl_add_u32 {v(P2)}, {v(P1)}, 4, {s(S_ROT)}
    v_and_b32 {v(P2)}, 0x3ff, {v(P2)}
    v_mov_b32 {v(P5)}, 16
    v_mov_b32 {v(P6)}, 0x3f000fff
    v_mov_b32 {v(P3)}, {opt.get("abl_x", 0x1ffe00)}
    """)
    tile_addr(S_WAVE)
    A(f"""
    s_movk_i32 {s(S_C0)}, {NS}
    v_mov_b32 {v(V_KK)}, {40 * NS}
    s_mov_b32 {s(S_TMP2)}, {PSIZE * 512}
    s_waitcnt vmcnt(0)
    """)
    stamp("rec")

    def second(fns, tag):
        A(f"s_cmp_eq_u64 {s(S_ANY2, 2)}, 0\ns_cbranch_scc1 KB_N{tag}")
        for c in range(NC):
            A(f"s_mov_b64 exec, {s(S_M2 + 2 * c, 2)}\ns_cbranch_execz KB_{tag}{c}")
            for fn in fns:
                fn(REC2, RK2, HA2, c)
            A(f"KB_{tag}{c}:")
        A(f"KB_N{tag}:\ns_mov_b64 exec, -1")

    def keyof(rec, rk, ha, c):
        A(f"v_lshlrev_b32_sdwa {v(ha + c)}, 2, {v(rec + 4 * c + 2)} {SDWA} src1_sel:BYTE_3")

    def count(rec, rk, ha, c):
        A(f"ds_add_rtn_u32 {v(rk + c)}, {v(ha + c)}, {v(P5)} offset:{L_HIST}")

    def decode(rec, rk, ha, c):
        idx = rec + 4 * c + 2
        A(f"""
        v_and_b32 {v(idx + 1)}, {v(P6)}, {v(idx)}
        v_lshrrev_b32 {v(P0)}, 30, {v(idx)}
        v_lshrrev_b32 {v(idx)}, 3, {v(idx)}
        v_and_b32 {v(idx)}, {v(P3)}, {v(idx)}
        """)
        if not opt.get("abl_ef"):
            A(f"v_add_u32 {v(idx + 1)}, {v(idx + 1)}, {v(PB + c)}")
        if opt.get("abl_x"):
            A(f"v_add_u32 {v(idx)}, 512, {v(idx)}")
        else:
            A(f"v_mad_u32_u24 {v(idx)}, {v(P0)}, {s(S_TMP2)}, {v(idx)}")

    def prefread(rec, rk, ha, c):
        A(f"ds_read_b32 {v(ha + c)}, {v(ha + c)} offset:{L_PREF}")

    def place(rec, rk, ha, c):
        A(f"""
        v_add_u32 {v(ha + c)}, {v(ha + c)}, {v(rk + c)}
        v_and_b32 {v(P0)}, 0x100, {v(ha + c)}
        v_mad_i32_i24 {v(rec + 4 * c + 2)}, {v(P0)}, -2, {v(rec + 4 * c + 2)}
        ds_write_b128 {v(ha + c)}, {v(rec + 4 * c, 4)} offset:{L_LIST}
        """)

    for c in range(NC):
        keyof(REC1, RK1, HA1, c)
    for c in range(NC):
        A(f"s_mov_b64 exec, {s(S_M1 + 2 * c, 2)}")
        count(REC1, RK1, HA1, c)
    second([keyof, count, decode], "H")
    for c in range(NC):
        decode(REC1, RK1, HA1, c)
    A("s_waitcnt lgkmcnt(0)\ns_barrier")
    stamp("b5")
    A(f"""
    s_cmp_eq_u32 {s(S_WAVE)}, 0
    s_cbranch_scc0 KB_NOSCAN
    s_setprio 3
    """)
    scan256(SC, SC + 4, P2, P4)
    A(f"""
    s_mov_b32 exec_lo, 0
    s_brev_b32 exec_hi, 1
    ds_write_b32 {v(V_CTRA)}, {v(P4)} offset:16
    s_mov_b64 exec, -1
    s_waitcnt lgkmcnt(0)
    s_barrier
    s_setprio 0
    v_readlane_b32 {s(S_N)}, {v(P4)}, 63
    v_mov_b64 {v(SC + 4, 2)}, 0
    v_mov_b32 {v(SC + 6)}, 512
    v_mov_b32 {v(SC + 7)}, {(40 << 24) | 0xfffff}
    s_min_u32 {s(S_N)}, {s(S_N)}, {16 * CAP}
    v_lshl_add_u32 {v(P3)}, {v(P1)}, 4, {s(S_N)}
    ds_write_b128 {v(P3)}, {v(SC + 4, 4)} offset:{L_LIST}
    s_branch KB_PLACE
    KB_NOSCAN:
    """)
    if opt.get("efpre"):
        for c in range(NC):
            A(f"""
            v_xor_b32 {v(P0)}, {s(S_ROT)}, {v(HA1 + c)}
            v_cmp_gt_u32 vcc, {4 * opt["efpre"]}, {v(P0)}
            v_mul_u32_u24 {v(P0)}, 32, {v(REC1 + 4 * c + 3)}
            s_and_b64 exec, vcc, {s(S_M1 + 2 * c, 2)}
            buffer_load_dword {v(V_JUNK)}, {v(P0)}, {s(S_EF, 4)}, 0 offen
            s_mov_b64 exec, -1
            """)
    A("s_barrier\nKB_PLACE:")
    stamp("b6")
    A(f"ds_read2_b32 {v(SC, 2)}, {v(V_CTRA)} offset0:1 offset1:4")
    for c in range(NC):
        A(f"s_mov_b64 exec, {s(S_M1 + 2 * c, 2)}")
        prefread(REC1, RK1, HA1, c)
    second([prefread], "R")
    A(f"""
    s_waitcnt lgkmcnt(0)
    v_readfirstlane_b32 {s(S_N)}, {v(SC + 1)}
    v_readfirstlane_b32 {s(S_MORE)}, {v(SC)}
    s_nop 1
    s_cmp_le_u32 {s(S_N)}, {16 * CAP}
    s_cbranch_scc0 KB_NARROW
    s_add_u32 {s(S_NT)}, {s(S_N)}, 511
    s_lshr_b32 {s(S_NT)}, {s(S_NT)}, 9
    """)
    for c in range(NC):
        A(f"s_mov_b64 exec, {s(S_M1 + 2 * c, 2)}")
        place(REC1, RK1, HA1, c)
    second([place], "P")
    A("s_waitcnt lgkmcnt(0)\ns_barrier")
    stamp("sorted")
    if opt.get("trace"):
        A(f"v_mov_b32 {v(V_TRC)}, 0\ns_mov_b32 s64, 0")

    def tile_reads():
        A(f"""
        ds_read_b32 {v(V_EID)}, {v(V_EID)} offset:12
        ds_read_b32 {v(V_KN)}, {v(V_KN)} offset:12
        ds_read_b64 {v(YR, 2)}, {v(V_MT)}
        """)

    def so_read(g):
        for q in range(2):
            o = 16 * (g % 4) + 8 * q + 2
            A(f"ds_read2_b32 {v(SO + 4 * (g % 2) + 2 * q, 2)}, {v(V_SA)} offset0:{o} offset1:{o + 4}")

    def xload(r):
        A(f"buffer_load_dwordx4 {v(X + 4 * (r % 4), 4)}, {v(SO + 4 * ((r // 4) % 2) + r % 4)}, {s(S_X, 4)}, 0 offen")

    def ef_load(skip=0):
        A(f"v_mad_u32_u24 {v(V_EID)}, {v(V_EID)}, 32, {v(V_HALF16)}")
        m = (0xffffffff << skip) & 0xffffffff
        if skip:
            A(f"s_mov_b32 exec_lo, {m}\ns_mov_b32 exec_hi, {m}")
        A(f"buffer_load_dwordx4 {v(EF, 4)}, {v(V_EID)}, {s(S_EF, 4)}, 0 offen")
        if skip:
            A("s_mov_b64 exec, -1")

    def sm_issue(base, n):
        for j in range(n):
            A(f"v_readlane_b32 {s(SMB + 8 * j)}, {v(V_EID)}, {base + j}")
        if n < 5:
            A(f"s_nop {4 - n}")
        for j in range(n):
            A(f"s_buffer_load_dwordx8 {s(SMB + 8 * j, 8)}, {s(S_EF, 4)}, {s(SMB + 8 * j)}")

    def sm_move(base, n):
        for half in range(2):
            for j in range(n):
                if j == 0:
                    A(f"s_mov_b32 exec_{'hi' if half else 'lo'}, {1 << base}\ns_mov_b32 exec_{'lo' if half else 'hi'}, 0")
                else:
                    A("s_lshl_b64 exec, exec, 1")
                for q in range(2):
                    A(f"v_mov_b64 {v(EF + 2 * q, 2)}, {s(SMB + 8 * j + 4 * half + 2 * q, 2)}")
        A("s_mov_b64 exec, -1")

    def grab(reg):
        A(f"s_mov_b64 exec, 1\nds_add_rtn_u32 {v(reg)}, {v(V_CTRA)}, {v(V_ONE)}\ns_mov_b64 exec, -1")

    key_ops = [f"v_mul_u32_u24_sdwa {v(V_KN)}, {s(S_C0)}, {v(V_KN)} {SDWA} src1_sel:BYTE_3",
               f"v_xor_b32_dpp {v(V_MT)}, {v(V_KN)}, {v(V_KN)} row_shl:1 {DPP} bound_ctrl:0",
               f"v_cmp_ne_u32 {s(S_CMP, 2)}, 0, {v(V_MT)}"]

    sm0 = opt.get("sm0", 0)
    A(f"s_cmp_ge_u32 {s(S_WAVE)}, {s(S_NT)}\ns_cbranch_scc1 KM_DONE")
    A(f"ds_read_b32 {v(V_EID)}, {v(V_EID)} offset:12")
    so_read(0)
    A(f"ds_read_b32 {v(V_KN)}, {v(V_KN)} offset:12\nds_read_b64 {v(YR, 2)}, {v(V_MT)}")
    so_read(1)
    A("s_waitcnt lgkmcnt(6)")
    ef_load(sm0)
    A("s_waitcnt lgkmcnt(4)")
    for r in range(4):
        xload(r)
    A("s_waitcnt lgkmcnt(0)")
    if sm0:
        sm_issue(0, sm0)
    A(key_ops[0] + "\ns_nop 1\n" + key_ops[1] + "\n" + key_ops[2])
    if sm0:
        A("s_waitcnt lgkmcnt(0)")
        sm_move(0, sm0)
    A("s_waitcnt vmcnt(4)")
    stamp("loop")

    def flush_ops(r):
        ops = [[f"v_add_u32_dpp {v(V_FA)}, {v(V_KK)}, {v(V_ACCL)} row_newbcast:{r} {DPP}"]]
        for j in range(8):
            st = STG + 2 * (j % 4)
            ops.append([f"v_cvt_f64_f32 {v(st, 2)}, {v(ACC + j)}", f"ds_add_f64 {v(V_FA)}, {v(st, 2)} offset:{RS * j}"])
        return ops

    def emit(groups):
        for g in groups:
            for op in ([g] if isinstance(g, str) else g):
                A(op)

    def acc_ops(r, first):
        ops = []
        for j in range(4):
            rr = D + 16 * (j // 2) + (r & ~1)
            o = r & 1
            if first:
                ops.append(f"v_pk_mul_f32 {v(ACC + 2 * j, 2)}, {v(rr, 2)}, {v(TP + 2 * j, 2)} op_sel:[{o},0] op_sel_hi:[{o},1]")
            else:
                ops.append(f"v_pk_fma_f32 {v(ACC + 2 * j, 2)}, {v(rr, 2)}, {v(TP + 2 * j, 2)}, {v(ACC + 2 * j, 2)} op_sel:[{o},0,0] op_sel_hi:[{o},1,1]")
        return ops

    def exp_ops(q):
        return [f"v_exp_f32 {v(E + j)}, {v(D + 16 * (j // 2) + q + j % 2)}" for j in range(4)]

    add_ops = [f"v_pk_add_f32 {v(E + 2 * j, 2)}, {v(E + 2 * j, 2)}, 1.0 op_sel_hi:[1,0]" for j in range(2)]
    rcp_ops = [f"v_rcp_f32 {v(E + j)}, {v(E + j)}" for j in range(4)]

    def mul_ops(q):
        return [f"v_pk_mul_f32 {v(D + 16 * j + q, 2)}, {v(D + 16 * j + q, 2)}, {v(E + 2 * j, 2)}" for j in range(2)]

    GRAB, EFS = opt.get("grab", 5), opt.get("efs", 8)
    prio = opt.get("prio", {-1: 0, 4: 1, 8: 2, 12: 3})
    sm = opt.get("sm", {})
    smbase = {st: sum(sm[q] for q in sm if q < st) for st in sm}
    assert set(sm) <= {4, 8, 12} and all(st >= EFS for st in sm)
    A(".p2align 6")
    loop_start = len(A.lines)
    A("KM_LOOP:")
    if -1 in prio:
        A(f"s_setprio {prio[-1]}")
    fo = flush_ops(15)
    tm = [f"v_mfma_f32_4x4x4_16b_bf16 {v(D + 16 + 4 * i, 4)}, {v(YR, 2)}, {v(CG + 2 * i, 2)}, 0" for i in range(4)]
    tc = [f"v_cvt_pk_bf16_f32 {v(T + 2 * j + hh)}, {v(D + 16 + 8 * hh + j)}, {v(D + 20 + 8 * hh + j)}" for hh in range(2) for j in range(2)]
    ex = exp_ops(0)
    emit([tm[0], fo[0], tm[1], fo[1], tm[2], fo[2], tm[3], fo[3]])
    A(f"v_mfma_f32_32x32x16_bf16 {v(D, 16)}, {v(EF, 4)}, {v(W, 4)}, 0")
    emit([tc[0], tc[1], fo[4], fo[5], tc[2], tc[3]])
    A(f"v_mfma_f32_32x32x16_bf16 {v(D + 16, 16)}, {v(EF, 4)}, {v(W + 4, 4)}, 0")
    emit([fo[6], fo[7], fo[8], f"v_mov_b32 {v(V_KK)}, {v(V_KN)}", f"s_or_b32 {s(S_MASK)}, {s(S_CMP)}, {s(S_CMP + 1)}",
          ex[0], ex[1], "s_nop 1", ex[2], ex[3], "s_nop 0"] + add_ops)
    for r in range(16):
        tr = T + (2 if r >= 8 else 0)
        m4 = [f"v_mfma_f32_4x4x4_16b_bf16 {v(TP + 4 * h, 4)}, {v(tr, 2)}, {v(X + 4 * (r % 4) + 2 * h, 2)}, 0 cbsz:3 abid:{r % 8}" for h in range(2)]
        if r in prio:
            A(f"s_setprio {prio[r]}")
        A(f"s_waitcnt vmcnt(3)")
        if r == 15:
            emit([m4[0], key_ops[0], m4[1]])
            xload(r + 4)
            emit([key_ops[1], key_ops[2]])
            side = []
        else:
            trans = rcp_ops if r % 2 == 0 else exp_ops(r + 1)
            side = mul_ops(r) if r % 2 == 0 else add_ops
            emit([m4[0], trans[0], m4[1], trans[1], trans[2], trans[3]])
            if r % 4 == 0 and r > 0:
                A("s_waitcnt lgkmcnt(0)")
            xload(r + 4)
        if r % 4 == 0:
            so_read(r // 4 + 2)
        if r == GRAB:
            grab(V_MT)
        if r == GRAB + 1:
            if r % 4:
                A("s_waitcnt lgkmcnt(0)")
            A(f"v_readfirstlane_b32 {s(S_NEXT)}, {v(V_MT)}")
        if r == GRAB + 2:
            A(f"s_min_u32 {s(S_NEXT)}, {s(S_NEXT)}, {s(S_NT)}")
            tile_addr(S_NEXT, r >= 5)
            tile_reads()
        if r == 5 and GRAB + 2 < 5:
            A(f"v_lshl_add_u32 {v(V_SA)}, {v(V_HALF16)}, 4, {s(S_TMP)}")
        if r == EFS or r in sm or r - 4 in sm:
            A(f"s_cmp_ge_u32 {s(S_NEXT)}, {s(S_NT)}\ns_cbranch_scc1 KM_NOEF{r}")
            if r - 4 in sm:
                sm_move(smbase[r - 4], sm[r - 4])
            if r == EFS:
                ef_load(sum(sm.values()))
            if r in sm:
                sm_issue(smbase[r], sm[r])
            A(f"KM_NOEF{r}:")
        if r == 13 and opt.get("trace"):
            A("s_memrealtime s[62:63]")
        if r == 14 and 12 not in sm:
            A("s_waitcnt lgkmcnt(0)")
            if opt.get("trace"):
                A(f"s_mov_b32 m0, s64\ns_add_u32 s64, s64, 1\nv_writelane_b32 {v(V_TRC)}, s62, m0")
        emit(side)
        if r > 0:
            A(f"s_bitcmp1_b32 {s(S_MASK)}, {r - 1}\ns_cbranch_scc1 KM_F{r}")
        emit(acc_ops(r, r == 0))
        if r > 0:
            A(f"KM_R{r}:")
    if 12 in sm:
        A(f"s_cmp_ge_u32 {s(S_NEXT)}, {s(S_NT)}\ns_cbranch_scc1 KM_LAST")
        if -1 in prio and opt.get("lowmove", 1):
            A(f"s_setprio {prio[-1]}")
        A("s_waitcnt lgkmcnt(0)")
        sm_move(smbase[12], sm[12])
        A("s_branch KM_LOOP\nKM_LAST:")
    else:
        A(f"s_cmp_lt_u32 {s(S_NEXT)}, {s(S_NT)}\ns_cbranch_scc1 KM_LOOP")
    drop = opt.get("drop", [])
    if drop:
        A.lines[loop_start:] = [ln for ln in A.lines[loop_start:] if not any(d in ln for d in drop)]
    emit(flush_ops(15))
    A("s_branch KM_DONE")
    for r in range(1, 16):
        A(f"KM_F{r}:")
        emit(flush_ops(r - 1))
        emit(acc_ops(r, True))
        A(f"s_branch KM_R{r}")
    A(f"""
    KB_NARROW:
    s_mov_b32 {s(S_WIDE)}, 0
    s_branch KB_ROUND
    KB_NEXT:
    s_lshl_b32 {s(S_TMP)}, 16, {s(S_WIDE)}
    s_add_u32 {s(S_K0)}, {s(S_K0)}, {s(S_TMP)}
    KB_ROUND:
    s_waitcnt vmcnt(0) lgkmcnt(0)
    s_barrier
    v_and_b32 {v(P0)}, 0xff, v0
    v_lshlrev_b32 {v(P0)}, 2, {v(P0)}
    v_mov_b32 {v(P1)}, 0
    v_mov_b32 {v(P2)}, {NSTART}
    ds_write_b32 {v(P0)}, {v(P1)} offset:{L_HIST}
    ds_write2_b32 {v(V_CTRA)}, {v(P2)}, {v(P1)} offset0:0 offset1:1
    s_waitcnt lgkmcnt(0)
    s_barrier
    s_branch KB_ROUND0
    """)
    WM, A64, AG, AF, OD, OP = 32, 80, 16, 8, 80, 96
    A("KM_DONE:")
    stamp("done")
    A(f"""
    s_setprio 0
    s_cmp_eq_u32 {s(S_MORE)}, 0
    s_cbranch_scc0 KB_NEXT
    s_cmp_ge_u32 {s(S_WAVE)}, 10
    s_cbranch_scc0 KE_MIX
    s_waitcnt lgkmcnt(0)
    s_barrier
    """)
    stamp("bar")
    A(f"""
    s_branch KE_FIN
    KE_MIX:
    v_and_b32 v1, 63, v0
    v_lshlrev_b32 v2, 4, v1
    v_add_u32 v2, {WS_WF}, v2
    v_add_u32 v3, 4096, v2
    """)
    for f in range(8):
        A(f"global_load_dwordx4 {v(WM + 4 * f, 4)}, {'v2' if f < 4 else 'v3'}, {s(S_WS, 2)} offset:{1024 * (f % 4)} {WT}")
    A(f"""
    v_bfe_u32 v2, v1, 2, 2
    v_mul_u32_u24 v2, {NS}, v2
    v_and_b32 v3, 3, v1
    v_mul_u32_u24 v3, {RS}, v3
    v_lshrrev_b32 v4, 4, v1
    v_lshlrev_b32 v5, 6, v4
    v_add3_u32 v2, v2, v3, v5
    s_mul_i32 s70, {s(S_WAVE)}, {4 * NS}
    s_add_u32 s70, s70, {L_ACC}
    v_add_u32 v2, s70, v2
    v_and_b32 v3, 15, v1
    v_lshlrev_b32 v3, 4, v3
    v_lshl_add_u32 v3, v4, 17, v3
    s_lshl_b32 s70, {s(S_WAVE)}, 19
    s_lshl_b32 s71, {s(S_BETA)}, 9
    s_add_u32 s70, s70, s71
    v_add_u32 v3, s70, v3
    s_lshr_b32 s72, {s(S_BETA)}, 4
    s_lshl_b32 s72, s72, 9
    s_sub_u32 s72, s72, s71
    s_and_b32 s73, {s(S_BETA)}, 15
    s_cselect_b32 s72, 0x40000000, s72
    v_cmp_le_u32 vcc, {9 * 64 + 48}, v0
    v_add_u32 v4, s72, v3
    s_nop 0
    v_cndmask_b32 v3, v3, v4, vcc
    s_mov_b32 {s(S_SC)}, {fbits(-math.log(2.0))}
    s_mov_b32 {s(S_SC + 1)}, {fbits(-math.log(2.0))}
    s_waitcnt lgkmcnt(0)
    s_barrier
    """)
    stamp("bar")
    for cpar in range(2):
        for hh in range(4):
            A(f"ds_read_b128 {v(A64 + 16 * cpar + 4 * hh, 4)}, v2 offset:{4 * RS * cpar + 16 * hh}")
    for j in range(8):
        A(f"s_waitcnt lgkmcnt({7 - j})")
        A(f"v_cvt_f32_f64 {v(AG + 2 * j)}, {v(A64 + 4 * j, 2)}")
        A(f"v_cvt_f32_f64 {v(AG + 2 * j + 1)}, {v(A64 + 4 * j + 2, 2)}")
    for j in range(8):
        A(f"v_pk_mul_f32 {v(AG + 2 * j, 2)}, {v(AG + 2 * j, 2)}, {s(S_SC, 2)}")
    for j in range(8):
        A(f"v_cvt_pk_bf16_f32 {v(AF + j)}, {v(AG + 2 * j)}, {v(AG + 2 * j + 1)}")
    A("s_waitcnt vmcnt(0)\ns_nop 0")
    for dt in range(4):
        A(f"v_mfma_f32_16x16x32_bf16 {v(OD + 4 * dt, 4)}, {v(AF, 4)}, {v(WM + 4 * dt, 4)}, 0")
    for dt in range(4):
        A(f"v_mfma_f32_16x16x32_bf16 {v(OD + 4 * dt, 4)}, {v(AF + 4, 4)}, {v(WM + 16 + 4 * dt, 4)}, {v(OD + 4 * dt, 4)}")
    A("s_nop 7")
    for j in range(8):
        A(f"v_cvt_pk_bf16_f32 {v(OP + j)}, {v(OD + 2 * j)}, {v(OD + 2 * j + 1)}")
    ost = opt.get("out_st", "")
    A(f"buffer_store_dwordx4 {v(OP, 4)}, v3, {s(S_OUT, 4)}, 0 offen {ost}")
    A(f"buffer_store_dwordx4 {v(OP + 4, 4)}, v3, {s(S_OUT, 4)}, 0 offen offset:256 {ost}")
    A("KE_FIN:")
    if opt.get("diag"):
        A("""
        s_waitcnt lgkmcnt(0)
        KE_SPIN:
        s_memrealtime s[74:75]
        s_waitcnt lgkmcnt(0)
        s_sub_u32 s74, s74, s76
        s_cmp_lt_u32 s74, 10000
        s_cbranch_scc1 KE_SPIN
        """)
    if opt.get("trace"):
        A(f"s_lshl_b32 s78, s2, 12\ns_add_u32 s78, s78, {130 << 20}\nv_lshl_add_u32 v1, v0, 2, s78\nglobal_store_dword v1, {v(V_TRC)}, {s(S_WS, 2)}")
    if opt.get("prof"):
        A("s_waitcnt vmcnt(0)")
        stamp("fin")
        A("s_waitcnt lgkmcnt(0)")
        A(f"s_lshl_b32 s3, s2, 4\ns_add_u32 s3, s3, {s(S_WAVE)}\ns_lshl_b32 s3, s3, 6\ns_add_u32 s3, s3, {(128 << 20) + (1 << 20)}")
        A("v_mov_b32 v1, s3")
        for i in range(len(pts)):
            A(f"v_mov_b32 v2, {s(SB + 2 * i)}\nglobal_store_dword v1, v2, {s(S_WS, 2)} offset:{4 * i}")
    A("K_END:\ns_endpgm")


def generate(opt):
    A = Asm()
    out = HEADER
    if opt.get("aslist"):
        out += f"; @launch kernel={NAME}_kernel grid=(256,1,1) block=(1024,1,1) lds={LDS_BYTES}\n"
    else:
        out += f"; @launch grid=(256,1,1) block=(1024,1,1) lds={LDS_BYTES}\n"
    out += '.amdgcn_target "amdgcn-amd-amdhsa--gfx950"\n.text\n'
    gen(A, opt)
    out += A.text()
    out += f""".section .rodata,"a"
.p2align 6
.amdhsa_kernel {NAME}_kernel
  .amdhsa_next_free_vgpr {NVGPR}
  .amdhsa_next_free_sgpr 102
  .amdhsa_accum_offset {NVGPR}
  .amdhsa_group_segment_fixed_size 0
  .amdhsa_kernarg_size 88
  .amdhsa_user_sgpr_count 2
  .amdhsa_user_sgpr_kernarg_segment_ptr 1
  .amdhsa_system_sgpr_workgroup_id_x 1
  .amdhsa_float_denorm_mode_32 3
.end_amdhsa_kernel
"""
    return out


if __name__ == "__main__":
    opt = eval("dict(" + (sys.argv[2] if len(sys.argv) > 2 else "") + ")")
    path = sys.argv[1] if len(sys.argv) > 1 else f"cdna_kernels/{NAME}.s"
    open(path, "w").write(generate(opt))
```

```python
import sys, struct, math

NAME = "standalone__tensor_product_equiv_tfn__graph"

HEADER = """; Kernarg layout for this problem (88 bytes, ptrs only, base s[0:1]):
"""

CHUNK = 2500
PSIZE = 2500
RECSTRIDE = 30208
YOFF = 10112
WS_TAB = 256 * RECSTRIDE
WS_WF = WS_TAB + 256 * 2048
SPIN_MAX = 1 << 18

RS = 272
NS = 8 * RS
L_HIST = 0
L_PREF = 1024
L_CTR = 2048
CAP = 4096
L_LIST = 2304
L_ACC = L_LIST + (CAP + 64) * 16
LDS_BYTES = L_ACC + 41 * NS
L_STG = 2304
L_WF = 36864

DPP = "row_mask:0xf bank_mask:0xf"
SDWA = "dst_sel:DWORD dst_unused:UNUSED_PAD src0_sel:DWORD"

NW = 16
V_DBASE, V_DCNT, V_HALF16, V_ACCL, V_LAD, V_LAE, V_LAY = 1, 2, 3, 4, 5, 6, 7
V_ONE, V_CTRA, V_KK, V_KN, V_EID, V_SA, V_FA, V_MT = 8, 9, 10, 11, 12, 13, 14, 15
W = 16
CG = 24
D = 32
X = 64
TP = 80
ACC = 88
STG = 96
SO = 104
E = 112
T = 116
EF = 120
YR = 124
V_TRC, V_JUNK = 126, 127
NVGPR = 128

S_X, S_EF, S_OUT, S_WS = 4, 8, 12, 16
S_BETA, S_WAVE, S_K0, S_WIDE, S_N, S_NT, S_NEXT, S_MASK = 18, 19, 20, 21, 22, 23, 24, 25
S_CMP = 26
S_MORE, S_TMP, S_C0, S_C1 = 28, 29, 30, 31
S_M1, S_M2 = 32, 40
S_ANY2 = 48
S_SC = 50
S_XP = 52
S_TMP2 = 0
S_DBG = 58
S_PM = 60
KA = 32
S_ROT = 3
S_WY = 56
SMB = 32

DEFAULT_PTS = ["start", "desc", "rec", "sorted", "loop", "done", "bar", "fin", "b3", "b4"]


def fbits(x):
    return "0x%08x" % struct.unpack("<I", struct.pack("<f", x))[0]


class Asm:
    def __init__(self):
        self.lines = []

    def __call__(self, s):
        for ln in s.strip("\n").split("\n"):
            ln = ln.strip()
            if not ln:
                continue
            if ln.endswith(":") or ln.startswith("."):
                self.lines.append(ln)
            else:
                self.lines.append("    " + ln)

    def text(self):
        return "\n".join(self.lines) + "\n"


def v(a, n=1):
    return f"v{a}" if n == 1 else f"v[{a}:{a+n-1}]"


def s(a, n=1):
    return f"s{a}" if n == 1 else f"s[{a}:{a+n-1}]"


def wave_scan(A, regs):
    steps = ["row_shr:1 " + DPP + " bound_ctrl:0", "row_shr:2 " + DPP + " bound_ctrl:0",
             "row_shr:4 " + DPP + " bound_ctrl:0", "row_shr:8 " + DPP + " bound_ctrl:0",
             "row_bcast:15 row_mask:0xa bank_mask:0xf", "row_bcast:31 row_mask:0xc bank_mask:0xf"]
    for st in steps:
        A("s_nop 1" if len(regs) == 1 else "s_nop 0")
        for r in regs:
            A(f"v_add_u32_dpp {v(r)}, {v(r)}, {v(r)} {st}")


def gen(A, opt):
    name = NAME + "_kernel"
    WT = "sc1"
    P0, P1, P2, P3, P4, P5, P6 = 112, 113, 114, 115, 116, 117, 118
    QD, QS, QY, QH, QR, QT, QP, QZ = 32, 36, 40, 48, 52, 56, 60, 64
    pts = opt.get("pts", DEFAULT_PTS)
    SB = 102 - 2 * len(pts)

    def stamp(nm):
        if opt.get("prof") and nm in pts:
            A(f"s_memrealtime {s(SB + 2 * pts.index(nm), 2)}")
        if opt.get("diag") == nm:
            A("s_memrealtime s[76:77]")

    def xtouch(n, base):
        A(f"""
        s_lshr_b32 {s(S_TMP)}, s2, {0 if opt.get("xmall") else 3}
        s_mul_i32 {s(S_TMP)}, {s(S_TMP)}, {n * 128}
        s_add_u32 {s(S_TMP)}, {s(S_TMP)}, {base * 128}
        s_and_b32 s3, s2, {3 if opt.get("rot", 1) and not opt.get("xmall") else 0}
        s_mul_i32 s3, s3, {PSIZE * 512}
        s_add_u32 {s(S_TMP)}, {s(S_TMP)}, s3
        v_cmp_gt_u32 vcc, {n}, v0
        v_lshl_add_u32 {v(P5)}, v0, 7, {s(S_TMP)}
        s_and_saveexec_b64 {s(S_PM, 2)}, vcc
        s_cbranch_execz XT_{base}
        buffer_load_dword {v(V_JUNK)}, {v(P5)}, {s(S_XP, 4)}, 0 offen
        XT_{base}:
        s_mov_b64 exec, -1
        """)

    def scan256(cnt, pre, addr, tot):
        A(f"""
        ds_read_b128 {v(cnt, 4)}, {v(addr)} offset:{L_HIST}
        s_waitcnt lgkmcnt(0)
        v_add_u32 {v(pre + 2)}, {v(cnt)}, {v(cnt + 1)}
        v_add_u32 {v(pre + 3)}, {v(pre + 2)}, {v(cnt + 2)}
        v_add_u32 {v(pre)}, {v(pre + 3)}, {v(cnt + 3)}
        v_add_u32 {v(tot)}, {v(pre + 3)}, {v(cnt + 3)}
        """)
        wave_scan(A, [tot])
        A(f"""
        v_sub_u32 {v(pre)}, {v(tot)}, {v(pre)}
        v_add_u32 {v(pre + 1)}, {v(pre)}, {v(cnt)}
        v_add_u32 {v(pre + 2)}, {v(pre)}, {v(pre + 2)}
        v_add_u32 {v(pre + 3)}, {v(pre)}, {v(pre + 3)}
        ds_write_b128 {v(addr)}, {v(pre, 4)} offset:{L_PREF}
        """)

    def round_consts():
        A(f"""
        v_and_b32 {v(P3)}, 15, v0
        v_add_u32 {v(P3)}, {s(S_K0)}, {v(P3)}
        v_lshrrev_b32 v92, 4, v0
        v_mul_u32_u24 v92, {4 * RECSTRIDE}, v92
        v_add_u32 v93, {RECSTRIDE}, v92
        v_add_u32 v94, {2 * RECSTRIDE}, v92
        v_add_u32 v95, {3 * RECSTRIDE}, v92
        """)

    A(f".globl {name}\n.p2align 8\n.type {name},@function\n{name}:")
    stamp("start")
    A(f"""
    s_cmp_ge_u32 s2, 256
    s_cbranch_scc1 K_END
    s_load_dwordx16 {s(KA, 16)}, s[0:1], 0
    s_load_dwordx2 {s(S_WS, 2)}, s[0:1], 80
    s_load_dwordx2 {s(S_OUT, 2)}, s[0:1], 64
    s_load_dwordx2 {s(S_DBG, 2)}, s[0:1], 72
    v_lshrrev_b32 {v(P0)}, 6, v0
    v_and_b32 {v(P1)}, 63, v0
    v_readfirstlane_b32 {s(S_WAVE)}, {v(P0)}
    s_mul_i32 {s(S_TMP)}, s2, {CHUNK * 4}
    s_mul_i32 {s(S_C1)}, s2, {CHUNK * 8}
    v_lshl_add_u32 {v(P2)}, v0, 4, {s(S_TMP)}
    v_lshl_add_u32 {v(P3)}, v0, 5, {s(S_C1)}
    s_movk_i32 {s(S_C0)}, {CHUNK // 4}
    v_cmp_gt_u32 {s(S_PM, 2)}, {s(S_C0)}, v0
    v_mov_b64 {v(QZ, 2)}, 0
    v_mov_b64 {v(QZ + 2, 2)}, 0
    v_and_b32 {v(P0)}, 0xff, v0
    v_lshlrev_b32 {v(P0)}, 2, {v(P0)}
    ds_write_b32 {v(P0)}, {v(QZ)} offset:{L_HIST}
    s_cmp_ge_u32 {s(S_WAVE)}, 10
    s_cbranch_scc1 KA_AUX0
    s_mov_b64 exec, {s(S_PM, 2)}
    s_waitcnt lgkmcnt(0)
    """)
    stamp("karg")
    A(f"""
    global_load_dwordx4 {v(QD, 4)}, {v(P2)}, {s(KA + 4, 2)}
    s_barrier
    global_load_dwordx4 {v(QS, 4)}, {v(P2)}, {s(KA + 2, 2)}
    global_load_dwordx4 {v(QY, 4)}, {v(P3)}, {s(KA + 6, 2)}
    global_load_dwordx4 {v(QY + 4, 4)}, {v(P3)}, {s(KA + 6, 2)} offset:16
    s_mov_b64 exec, -1
    s_branch KA_JOIN0
    KA_AUX0:
    s_waitcnt lgkmcnt(0)
    s_cmp_eq_u32 {s(S_WAVE)}, 15
    s_cbranch_scc0 KA_NOTAG
    s_cmp_eq_u32 s2, 0
    s_cbranch_scc0 KA_NOTAG
    s_memrealtime s[62:63]
    s_waitcnt lgkmcnt(0)
    s_lshl_b32 s63, s63, 24
    s_or_b32 s63, s63, 1
    v_mov_b32 {v(QD)}, s63
    v_mov_b32 {v(QD + 1)}, s62
    s_mov_b64 exec, 1
    global_store_dwordx2 {v(QZ)}, {v(QD, 2)}, {s(S_DBG, 2)} {WT}
    s_mov_b64 exec, -1
    KA_NOTAG:
    s_barrier
    KA_JOIN0:
    s_and_b32 {s(S_BETA)}, s2, 7
    s_lshl_b32 {s(S_BETA)}, {s(S_BETA)}, 5
    s_lshr_b32 s3, s2, 3
    s_add_u32 {s(S_BETA)}, {s(S_BETA)}, s3
    s_sub_u32 {s(S_X)}, {s(KA)}, 512
    s_subb_u32 {s(S_X + 1)}, {s(KA + 1)}, 0
    s_and_b32 {s(S_X + 1)}, {s(S_X + 1)}, 0xffff
    s_or_b32 {s(S_X + 1)}, {s(S_X + 1)}, 0x100000
    s_mov_b32 {s(S_X + 2)}, 64
    s_mov_b32 {s(S_X + 3)}, 0x800000
    s_mov_b32 {s(S_XP)}, {s(KA)}
    s_and_b32 {s(S_XP + 1)}, {s(KA + 1)}, 0xffff
    s_mov_b32 {s(S_XP + 2)}, 5120000
    s_mov_b32 {s(S_XP + 3)}, 0x20000
    s_mov_b32 {s(S_EF)}, {s(KA + 8)}
    s_and_b32 {s(S_EF + 1)}, {s(KA + 9)}, 0xffff
    s_mov_b32 {s(S_EF + 2)}, 20480000
    s_mov_b32 {s(S_EF + 3)}, 0x20000
    s_and_b32 {s(S_OUT + 1)}, {s(S_OUT + 1)}, 0xffff
    s_mov_b32 {s(S_OUT + 2)}, 5120000
    s_mov_b32 {s(S_OUT + 3)}, 0x20000
    s_mov_b32 {s(S_K0)}, 0
    s_mov_b32 {s(S_WIDE)}, 1
    s_lshr_b32 s3, {s(S_BETA)}, 2
    s_lshl_b32 s3, s3, 4
    s_and_b32 {s(S_TMP)}, {s(S_BETA)}, 1
    s_lshl_b32 {s(S_TMP)}, {s(S_TMP)}, 3
    s_add_u32 s3, s3, {s(S_TMP)}
    s_and_b32 {s(S_TMP)}, {s(S_BETA)}, 2
    s_lshl_b32 {s(S_TMP)}, {s(S_TMP)}, 9
    s_add_u32 s3, s3, {s(S_TMP)}
    s_add_u32 s3, s3, {WS_TAB}
    v_lshrrev_b32 {v(P2)}, 4, v0
    v_lshlrev_b32 {v(P2)}, 2, {v(P2)}
    v_and_or_b32 {v(P3)}, v0, 3, {v(P2)}
    v_lshl_add_u32 {v(V_FA)}, {v(P3)}, 11, s3
    v_and_b32 {v(P4)}, 31, {v(P1)}
    v_lshrrev_b32 {v(P5)}, 5, {v(P1)}
    v_lshlrev_b32 {v(V_HALF16)}, 4, {v(P5)}
    v_lshlrev_b32 {v(V_ACCL)}, 3, {v(P4)}
    v_add_u32 {v(V_ACCL)}, {L_ACC}, {v(V_ACCL)}
    v_and_b32 {v(P6)}, 15, v0
    v_add_lshl_u32 {v(V_LAD)}, {v(P6)}, {v(V_HALF16)}, 4
    v_lshrrev_b32 {v(P6)}, 3, {v(P4)}
    v_lshlrev_b32 {v(P6)}, 2, {v(P6)}
    v_and_or_b32 {v(P6)}, {v(P4)}, 3, {v(P6)}
    v_lshlrev_b32 {v(P6)}, 4, {v(P6)}
    v_and_b32 {v(P0)}, 4, {v(P4)}
    v_lshl_add_u32 {v(V_LAE)}, {v(P0)}, 6, {v(P6)}
    v_lshrrev_b32 {v(P6)}, 2, {v(P4)}
    v_and_b32 {v(P0)}, 1, {v(P4)}
    v_lshl_add_u32 {v(P6)}, {v(P0)}, 3, {v(P6)}
    v_add_lshl_u32 {v(V_LAY)}, {v(P6)}, {v(V_HALF16)}, 4
    v_mov_b32 {v(V_ONE)}, 1
    v_mov_b32 {v(V_CTRA)}, {L_CTR}
    s_cmp_ge_u32 {s(S_WAVE)}, 10
    s_cbranch_scc1 KA_AUX1
    s_mov_b64 exec, {s(S_PM, 2)}
    v_lshlrev_b32 {v(P0)}, 2, v0
    v_add_u32 {v(P0)}, 4096, {v(P0)}
    s_movk_i32 {s(S_C1)}, {-PSIZE}
    s_waitcnt vmcnt(3)
    """)
    stamp("dst")
    for k in range(4):
        A(f"""
        v_add_u32 {v(P2)}, {16384 - 9984}, {v(QD + k)}
        v_lshrrev_b32 {v(P2)}, 12, {v(P2)}
        v_and_or_b32 {v(P2)}, {v(P2)}, 4, 2
        v_lshlrev_b32_sdwa {v(QH + k)}, {v(P2)}, {v(QD + k)} {SDWA} src1_sel:BYTE_0
        ds_add_rtn_u32 {v(QR + k)}, {v(QH + k)}, {v(V_ONE)} offset:{L_HIST}
        """)
    A("s_waitcnt lgkmcnt(0)\ns_barrier")
    stamp("b2")
    for k in range(4):
        A(f"""
        v_lshrrev_b32 {v(QD + k)}, 8, {v(QD + k)}
        v_or_b32 {v(P3)}, {k}, {v(P0)}
        v_lshl_or_b32 {v(QD + k)}, {v(QD + k)}, 24, {v(P3)}
        """)
    A("s_barrier")
    stamp("b2b")
    for k in range(4):
        A(f"ds_read_b32 {v(QH + k)}, {v(QH + k)} offset:{L_PREF}")
    for k in range(4):
        A(f"""
        s_waitcnt lgkmcnt({3 - k})
        v_add_lshl_u32 {v(QH + k)}, {v(QH + k)}, {v(QR + k)}, 2
        v_add_u32 {v(QR + k)}, {v(QH + k)}, {v(QH + k)}
        """)
    A("s_waitcnt vmcnt(2)")
    for k in range(4):
        A(f"""
        v_mul_u32_u24 {v(P2)}, {(1 << 24) // PSIZE}, {v(QS + k)}
        v_lshrrev_b32 {v(P2)}, 24, {v(P2)}
        v_mad_i32_i24 {v(QS + k)}, {v(P2)}, {s(S_C1)}, {v(QS + k)}
        v_lshl_or_b32 {v(QS + k)}, {v(P2)}, 18, {v(QS + k)}
        v_lshl_add_u32 {v(QD + k)}, {v(QS + k)}, 12, {v(QD + k)}
        ds_write_b32 {v(QH + k)}, {v(QD + k)} offset:{L_STG}
        """)
    for k in range(4):
        if k % 2 == 0:
            A(f"s_waitcnt vmcnt({1 - k // 2})")
        if k == 2:
            stamp("y")
        A(f"ds_write_b64 {v(QR + k)}, {v(QY + 2 * k, 2)} offset:{L_STG + YOFF}")
    A(f"""
    s_mov_b64 exec, -1
    s_branch KA_JOIN3
    KA_AUX1:
    s_cmp_eq_u32 {s(S_WAVE)}, 15
    s_cbranch_scc1 KA_SCAN
    s_and_b32 s62, s2, 7
    s_lshr_b32 s63, s62, 2
    s_lshl_b32 s63, s63, 7
    s_and_b32 s64, s62, 1
    s_lshl_b32 s64, s64, 1
    s_add_u32 s63, s63, s64
    s_and_b32 s64, s62, 2
    s_lshl_b32 s64, s64, 5
    s_add_u32 s63, s63, s64
    s_and_b32 s64, {s(S_WAVE)}, 1
    s_lshl_b32 s65, s64, 6
    s_cmp_lt_u32 {s(S_WAVE)}, 14
    s_cselect_b64 s[66:67], {s(KA + 12, 2)}, {s(KA + 14, 2)}
    s_cselect_b32 s63, s65, s63
    s_cselect_b32 s68, 6, 4
    s_cselect_b32 s69, 3, 15
    s_cselect_b32 s70, 1, 2
    s_cselect_b32 s71, 8, 256
    s_lshl_b32 s65, s64, 1
    s_cmp_lt_u32 {s(S_WAVE)}, 12
    s_cselect_b64 s[66:67], {s(KA + 10, 2)}, s[66:67]
    s_cselect_b32 s63, s65, s63
    s_cselect_b32 s68, 5, s68
    s_cselect_b32 s69, 31, s69
    s_cselect_b32 s70, 2, s70
    s_cselect_b32 s71, 128, s71
    s_cselect_b32 s72, 10, 11
    v_lshrrev_b32 {v(P2)}, s68, {v(P1)}
    v_lshlrev_b32 {v(P2)}, s72, {v(P2)}
    v_and_b32 {v(P3)}, s69, {v(P1)}
    v_lshlrev_b32 {v(P3)}, s70, {v(P3)}
    v_add3_u32 {v(P2)}, {v(P2)}, {v(P3)}, s63
    s_barrier
    s_barrier
    s_cmp_lt_u32 {s(S_WAVE)}, 14
    s_cbranch_scc1 KA_PREP
    s_cmp_lt_u32 s2, 8
    s_cbranch_scc0 KA_JOIN3
    KA_PREP:
    """)
    for i in range(8):
        A(f"global_load_ushort {v(QY + i)}, {v(P2)}, s[66:67]\nv_add_u32 {v(P2)}, s71, {v(P2)}")
    A(f"""
    s_branch KA_JOIN3
    KA_SCAN:
    v_lshlrev_b32 {v(P3)}, 4, {v(P1)}
    s_setprio 3
    s_barrier
    """)
    scan256(QT, QR, P3, P4)
    A(f"""
    s_waitcnt lgkmcnt(0)
    s_barrier
    s_setprio 0
    global_load_dwordx2 {v(QH, 2)}, {v(QZ)}, {s(S_DBG, 2)} {WT}
    """)
    for k in range(4):
        A(f"v_lshl_or_b32 {v(QT + k)}, {v(QT + k)}, 12, {v(QR + k)}")
    NSTART = NW
    A(f"""
    KA_JOIN3:
    v_lshlrev_b32 {v(P2)}, 4, v0
    s_mul_i32 {s(S_TMP)}, s2, {RECSTRIDE}
    v_add_u32 {v(P3)}, {s(S_TMP)}, {v(P2)}
    v_add_u32 {v(P4)}, 16384, {v(P3)}
    v_cmp_gt_u32 vcc, {(YOFF + CHUNK * 8) // 16 - 1024}, v0
    v_and_b32 {v(P0)}, 0xff, v0
    v_lshlrev_b32 {v(P0)}, 2, {v(P0)}
    v_mov_b32 {v(P5)}, {NSTART}
    v_lshlrev_b32 {v(P6)}, 4, {v(P1)}
    s_waitcnt lgkmcnt(0)
    s_barrier
    """)
    stamp("b3")
    A(f"""
    ds_read_b128 {v(QD, 4)}, {v(P2)} offset:{L_STG}
    ds_read_b128 {v(QS, 4)}, {v(P2)} offset:{L_STG + 16384}
    s_waitcnt lgkmcnt(1)
    global_store_dwordx4 {v(P3)}, {v(QD, 4)}, {s(S_WS, 2)} {WT}
    s_and_saveexec_b64 {s(S_PM, 2)}, vcc
    s_cbranch_execz KA_NOST2
    s_waitcnt lgkmcnt(0)
    global_store_dwordx4 {v(P4)}, {v(QS, 4)}, {s(S_WS, 2)} {WT}
    KA_NOST2:
    s_mov_b64 exec, -1
    ds_write_b32 {v(P0)}, {v(QZ)} offset:{L_HIST}
    ds_write2_b32 {v(V_CTRA)}, {v(P5)}, {v(QZ)} offset0:0 offset1:1
    v_add_u32 {v(P3)}, {L_ACC}, {v(P2)}
    v_add_u32 {v(P4)}, {L_ACC + 41 * NS - 16384}, {v(P2)}
    """)
    for i in range(4):
        A(f"ds_write_b128 {v(P3)}, {v(QZ, 4)} offset:{16384 * i}")
    A(f"v_add_u32 {v(P3)}, 65536, {v(P3)}\nds_write_b128 {v(P4)}, {v(QZ, 4)}\nds_write_b128 {v(P3)}, {v(QZ, 4)}")
    assert 5 * 16384 <= 41 * NS <= 6 * 16384
    A(f"""
    s_mov_b32 {s(S_C1)}, {SPIN_MAX}
    s_lshl_b32 s3, s2, 11
    s_add_u32 s3, s3, {WS_TAB}
    v_add_u32 {v(QP)}, s3, {v(P6)}
    s_cmp_lt_u32 {s(S_WAVE)}, 10
    s_cbranch_scc1 KA_JOIN4
    s_cmp_eq_u32 {s(S_WAVE)}, 15
    s_cbranch_scc1 KA_TAG
    s_cmp_lt_u32 {s(S_WAVE)}, 12
    s_cselect_b32 s62, {fbits(-math.log2(math.e))}, 1.0
    s_cmp_eq_u32 {s(S_WAVE)}, 14
    s_cbranch_scc1 KA_PW1
    s_waitcnt vmcnt(2)
    s_branch KA_PW2
    KA_PW1:
    s_waitcnt vmcnt(1)
    KA_PW2:
    """)
    for i in range(8):
        A(f"v_lshlrev_b32 {v(QY + i)}, 16, {v(QY + i)}\nv_mul_f32 {v(QY + i)}, s62, {v(QY + i)}")
    for jj in range(4):
        A(f"v_cvt_pk_bf16_f32 {v(QH + jj)}, {v(QY + 2 * jj)}, {v(QY + 2 * jj + 1)}")
    A(f"""
    s_cbranch_scc1 KA_PREPWM
    ds_write_b128 {v(P2)}, {v(QH, 4)} offset:{L_WF - 10240}
    s_branch KA_JOIN4
    KA_PREPWM:
    s_cmp_lt_u32 s2, 8
    s_cbranch_scc0 KA_JOIN4
    s_lshl_b32 s63, s2, 10
    s_add_u32 s63, s63, {WS_WF}
    v_add_u32 {v(P3)}, s63, {v(P6)}
    global_store_dwordx4 {v(P3)}, {v(QH, 4)}, {s(S_WS, 2)} {WT}
    s_branch KA_JOIN4
    KA_TAG:
    s_waitcnt vmcnt(1)
    KA_TAG1:
    v_cmp_eq_u32 vcc, 0, {v(QH)}
    s_cbranch_vccz KA_GOTTAG
    s_sub_u32 {s(S_C1)}, {s(S_C1)}, 1
    s_cbranch_scc1 K_END
    global_load_dwordx2 {v(QH, 2)}, {v(QZ)}, {s(S_DBG, 2)} {WT}
    s_waitcnt vmcnt(0)
    s_branch KA_TAG1
    KA_GOTTAG:
    v_and_b32 {v(QH)}, 0xff000000, {v(QH)}
    ds_write_b64 {v(V_CTRA)}, {v(QH, 2)} offset:8
    """)
    for k in range(4):
        A(f"v_or_b32 {v(QY + 2 * k)}, {v(QT + k)}, {v(QH)}\nv_mov_b32 {v(QY + 2 * k + 1)}, {v(QH + 1)}")
    A(f"""
    KA_JOIN4:
    s_waitcnt vmcnt(0) lgkmcnt(0)
    s_barrier
    """)
    stamp("b4")
    A(f"""
    s_cmp_eq_u32 {s(S_WAVE)}, 15
    s_cbranch_scc0 KA_PUBD
    global_store_dwordx4 {v(QP)}, {v(QY, 4)}, {s(S_WS, 2)} {WT}
    global_store_dwordx4 {v(QP)}, {v(QY + 4, 4)}, {s(S_WS, 2)} offset:1024 {WT}
    KA_PUBD:
    """)
    w2 = opt.get("w2", 128)
    xtouch(w2, 0)
    A(f"ds_read_b64 {v(QH, 2)}, {v(V_CTRA)} offset:8")
    for f in range(4):
        A(f"ds_read_b128 {v(W + 4 * f, 4)}, {v(P6)} offset:{L_WF + 1024 * f}")
    round_consts()
    A(f"""
    s_waitcnt vmcnt(0) lgkmcnt(0)
    s_barrier
    KA_POLL:
    global_load_dwordx2 {v(QD, 2)}, {v(V_FA)}, {s(S_WS, 2)} {WT}
    s_waitcnt vmcnt(0)
    v_mov_b32 {v(V_DCNT)}, {v(QD)}
    v_and_b32 {v(QD)}, 0xff000000, {v(QD)}
    v_cmp_ne_u64 vcc, {v(QD, 2)}, {v(QH, 2)}
    s_cbranch_vccz KA_READY
    s_mov_b64 exec, vcc
    s_sub_u32 {s(S_C1)}, {s(S_C1)}, 1
    s_cbranch_scc1 K_END
    s_branch KA_POLL
    KA_READY:
    s_mov_b64 exec, -1
    v_and_b32 {v(V_DBASE)}, 0xfff, {v(V_DCNT)}
    v_bfe_u32 {v(V_DCNT)}, {v(V_DCNT)}, 12, 12
    """)
    stamp("desc")
    NC = 4
    REC1, REC2, RK1, RK2, HA1, HA2, PB, SC, CB, YA = 32, 48, 64, 68, 72, 76, 80, 84, 92, 96
    A(f"""
    KB_ROUND0:
    s_cmp_eq_u32 {s(S_WIDE)}, 1
    s_cselect_b32 {s(S_C1)}, 16, 0x7fffffff
    """)
    for c in range(NC):
        A(f"""
        v_sub_u32_dpp {v(RK1 + c)}, {v(V_DCNT)}, {v(P3)} row_newbcast:{c} {DPP}
        v_add_u32_dpp {v(HA1 + c)}, {v(V_DBASE)}, {v(P3)} row_newbcast:{c} {DPP}
        v_cmp_lt_i32 {s(S_M1 + 2 * c, 2)}, 0, {v(RK1 + c)}
        v_lshl_add_u32 {v(HA2 + c)}, {v(HA1 + c)}, 2, {v(CB + c)}
        s_mov_b64 exec, {s(S_M1 + 2 * c, 2)}
        global_load_dword {v(REC1 + 4 * c + 2)}, {v(HA2 + c)}, {s(S_WS, 2)} {WT}
        s_mov_b64 exec, -1
        """)
    for c in range(NC):
        A(f"v_cmp_lt_i32 {s(S_M2 + 2 * c, 2)}, {s(S_C1)}, {v(RK1 + c)}")
    for c in range(NC):
        A(f"v_lshl_add_u32 {v(HA1 + c)}, {v(HA1 + c)}, 3, {v(CB + c)}")
    A(f"""
    s_lshl_b32 {s(S_TMP)}, 16, {s(S_WIDE)}
    s_add_u32 {s(S_TMP)}, {s(S_TMP)}, {s(S_K0)}
    v_cmp_lt_u32 {s(S_CMP, 2)}, {s(S_TMP)}, {v(V_DCNT)}
    s_add_u32 {s(S_WY)}, {s(S_WS)}, {YOFF}
    s_addc_u32 {s(S_WY + 1)}, {s(S_WS + 1)}, 0
    s_or_b64 {s(S_ANY2, 2)}, {s(S_M2, 2)}, {s(S_M2 + 2, 2)}
    s_or_b64 {s(S_ANY2, 2)}, {s(S_ANY2, 2)}, {s(S_M2 + 4, 2)}
    s_or_b64 {s(S_ANY2, 2)}, {s(S_ANY2, 2)}, {s(S_M2 + 6, 2)}
    s_cbranch_scc0 KB_NOSEC_A
    """)
    for c in range(NC):
        A(f"""
        s_mov_b64 exec, {s(S_M2 + 2 * c, 2)}
        s_cbranch_execz KB_SA{c}
        global_load_dword {v(REC2 + 4 * c + 2)}, {v(HA2 + c)}, {s(S_WS, 2)} offset:64 {WT}
        global_load_dwordx2 {v(REC2 + 4 * c, 2)}, {v(HA1 + c)}, {s(S_WY, 2)} offset:128 {WT}
        KB_SA{c}:
        """)

    def tile_addr(tile, sa=True):
        A(f"""
        s_lshl_b32 {s(S_TMP)}, {s(tile)}, 9
        s_add_u32 {s(S_TMP)}, {s(S_TMP)}, {L_LIST}
        v_add_u32 {v(V_EID)}, {s(S_TMP)}, {v(V_LAE)}
        v_add_u32 {v(V_KN)}, {s(S_TMP)}, {v(V_LAD)}
        v_add_u32 {v(V_MT)}, {s(S_TMP)}, {v(V_LAY)}
        """)
        if sa:
            A(f"v_lshl_add_u32 {v(V_SA)}, {v(V_HALF16)}, 4, {s(S_TMP)}")

    ROT = 3 if opt.get("rot", 1) else 0
    A(f"""
    s_mov_b64 exec, -1
    KB_NOSEC_A:
    s_cmp_eq_u64 {s(S_CMP, 2)}, 0
    s_cbranch_scc1 KB_NOMORE
    ds_write_b32 {v(V_CTRA)}, {v(V_ONE)} offset:4
    KB_NOMORE:
    v_lshrrev_b32 {v(PB)}, 4, v0
    v_mul_u32_u24 {v(PB)}, {4 * CHUNK}, {v(PB)}
    v_add_u32 {v(PB + 1)}, {CHUNK}, {v(PB)}
    v_add_u32 {v(PB + 2)}, {2 * CHUNK}, {v(PB)}
    v_add_u32 {v(PB + 3)}, {3 * CHUNK}, {v(PB)}
    s_and_b32 {s(S_ROT)}, s2, {ROT}
    s_lshl_b32 {s(S_ROT)}, {s(S_ROT)}, 8
    v_and_b32 {v(P1)}, 63, v0
    v_lshl_add_u32 {v(P2)}, {v(P1)}, 4, {s(S_ROT)}
    v_and_b32 {v(P2)}, 0x3ff, {v(P2)}
    v_mov_b32 {v(P5)}, 16
    v_mov_b32 {v(P6)}, 0x3f000fff
    v_mov_b32 {v(P3)}, {opt.get("abl_x", 0x1ffe00)}
    """)
    tile_addr(S_WAVE)
    A(f"""
    s_movk_i32 {s(S_C0)}, {NS}
    v_mov_b32 {v(V_KK)}, {40 * NS}
    s_mov_b32 {s(S_TMP2)}, {PSIZE * 512}
    """)

    def yloads(addr):
        for c in range(NC):
            A(f"s_or_b64 exec, {s(S_M1 + 2 * c, 2)}, 1\nglobal_load_dwordx2 {v(REC1 + 4 * c, 2)}, {v(addr + c)}, {s(S_WY, 2)} {WT}")
        A("s_mov_b64 exec, -1")

    ylate = opt.get("ylate", 0)
    if ylate == 0:
        yloads(HA1)
        A("s_waitcnt vmcnt(4)")
    elif ylate == 1:
        A("s_waitcnt vmcnt(0)")
        yloads(HA1)
    else:
        for c in range(NC):
            A(f"v_mov_b32 {v(YA + c)}, {v(HA1 + c)}")
        A("s_waitcnt vmcnt(0)")
    stamp("rec")

    def second(fns, tag):
        A(f"s_cmp_eq_u64 {s(S_ANY2, 2)}, 0\ns_cbranch_scc1 KB_N{tag}")
        for c in range(NC):
            A(f"s_mov_b64 exec, {s(S_M2 + 2 * c, 2)}\ns_cbranch_execz KB_{tag}{c}")
            for fn in fns:
                fn(REC2, RK2, HA2, c)
            A(f"KB_{tag}{c}:")
        A(f"KB_N{tag}:\ns_mov_b64 exec, -1")

    def keyof(rec, rk, ha, c):
        A(f"v_lshlrev_b32_sdwa {v(ha + c)}, 2, {v(rec + 4 * c + 2)} {SDWA} src1_sel:BYTE_3")

    def count(rec, rk, ha, c):
        A(f"ds_add_rtn_u32 {v(rk + c)}, {v(ha + c)}, {v(P5)} offset:{L_HIST}")

    def decode(rec, rk, ha, c):
        idx = rec + 4 * c + 2
        A(f"""
        v_and_b32 {v(idx + 1)}, {v(P6)}, {v(idx)}
        v_lshrrev_b32 {v(P0)}, 30, {v(idx)}
        v_lshrrev_b32 {v(idx)}, 3, {v(idx)}
        v_and_b32 {v(idx)}, {v(P3)}, {v(idx)}
        """)
        if not opt.get("abl_ef"):
            A(f"v_add_u32 {v(idx + 1)}, {v(idx + 1)}, {v(PB + c)}")
        if opt.get("abl_x"):
            A(f"v_add_u32 {v(idx)}, 512, {v(idx)}")
        else:
            A(f"v_mad_u32_u24 {v(idx)}, {v(P0)}, {s(S_TMP2)}, {v(idx)}")

    def prefread(rec, rk, ha, c):
        A(f"ds_read_b32 {v(ha + c)}, {v(ha + c)} offset:{L_PREF}")

    def place(rec, rk, ha, c):
        A(f"""
        v_add_u32 {v(ha + c)}, {v(ha + c)}, {v(rk + c)}
        v_and_b32 {v(P0)}, 0x100, {v(ha + c)}
        v_mad_i32_i24 {v(rec + 4 * c + 2)}, {v(P0)}, -2, {v(rec + 4 * c + 2)}
        ds_write_b128 {v(ha + c)}, {v(rec + 4 * c, 4)} offset:{L_LIST}
        """)

    for c in range(NC):
        keyof(REC1, RK1, HA1, c)
    for c in range(NC):
        A(f"s_mov_b64 exec, {s(S_M1 + 2 * c, 2)}")
        count(REC1, RK1, HA1, c)
    second([keyof, count, decode], "H")
    for c in range(NC):
        decode(REC1, RK1, HA1, c)
    A("s_waitcnt lgkmcnt(0)\ns_barrier")
    stamp("b5")
    if ylate == 2:
        yloads(YA)
    A(f"""
    s_cmp_eq_u32 {s(S_WAVE)}, 0
    s_cbranch_scc0 KB_NOSCAN
    s_setprio 3
    """)
    scan256(SC, SC + 4, P2, P4)
    A(f"""
    s_mov_b32 exec_lo, 0
    s_brev_b32 exec_hi, 1
    ds_write_b32 {v(V_CTRA)}, {v(P4)} offset:16
    s_mov_b64 exec, -1
    s_waitcnt lgkmcnt(0)
    s_barrier
    s_setprio 0
    v_readlane_b32 {s(S_N)}, {v(P4)}, 63
    v_mov_b64 {v(SC + 4, 2)}, 0
    v_mov_b32 {v(SC + 6)}, 512
    v_mov_b32 {v(SC + 7)}, {(40 << 24) | 0xfffff}
    s_min_u32 {s(S_N)}, {s(S_N)}, {16 * CAP}
    v_lshl_add_u32 {v(P3)}, {v(P1)}, 4, {s(S_N)}
    ds_write_b128 {v(P3)}, {v(SC + 4, 4)} offset:{L_LIST}
    s_waitcnt vmcnt(0)
    s_branch KB_PLACE
    KB_NOSCAN:
    """)
    if opt.get("efpre"):
        for c in range(NC):
            A(f"""
            v_xor_b32 {v(P0)}, {s(S_ROT)}, {v(HA1 + c)}
            v_cmp_gt_u32 vcc, {4 * opt["efpre"]}, {v(P0)}
            v_mul_u32_u24 {v(P0)}, 32, {v(REC1 + 4 * c + 3)}
            s_and_b64 vcc, vcc, {s(S_M1 + 2 * c, 2)}
            s_or_b64 exec, vcc, 1
            buffer_load_dword {v(V_JUNK)}, {v(P0)}, {s(S_EF, 4)}, 0 offen
            s_mov_b64 exec, -1
            """)
    A("s_barrier\nKB_PLACE:")
    stamp("b6")
    A(f"ds_read2_b32 {v(SC, 2)}, {v(V_CTRA)} offset0:1 offset1:4")
    for c in range(NC):
        A(f"s_mov_b64 exec, {s(S_M1 + 2 * c, 2)}")
        prefread(REC1, RK1, HA1, c)
    second([prefread], "R")
    A(f"""
    s_waitcnt lgkmcnt(0)
    v_readfirstlane_b32 {s(S_N)}, {v(SC + 1)}
    v_readfirstlane_b32 {s(S_MORE)}, {v(SC)}
    s_nop 1
    s_cmp_le_u32 {s(S_N)}, {16 * CAP}
    s_cbranch_scc0 KB_NARROW
    s_add_u32 {s(S_NT)}, {s(S_N)}, 511
    s_lshr_b32 {s(S_NT)}, {s(S_NT)}, 9
    s_waitcnt vmcnt({4 if opt.get("efpre") else 0})
    """)
    for c in range(NC):
        A(f"s_mov_b64 exec, {s(S_M1 + 2 * c, 2)}")
        place(REC1, RK1, HA1, c)
    second([place], "P")
    A("s_waitcnt lgkmcnt(0)\ns_barrier")
    stamp("sorted")
    if opt.get("trace"):
        A(f"v_mov_b32 {v(V_TRC)}, 0\ns_mov_b32 s1, 0")

    def tile_reads():
        A(f"""
        ds_read_b32 {v(V_EID)}, {v(V_EID)} offset:12
        ds_read_b32 {v(V_KN)}, {v(V_KN)} offset:12
        ds_read_b64 {v(YR, 2)}, {v(V_MT)}
        """)

    def so_read(g):
        for q in range(2):
            o = 16 * (g % 4) + 8 * q + 2
            A(f"ds_read2_b32 {v(SO + 4 * (g % 2) + 2 * q, 2)}, {v(V_SA)} offset0:{o} offset1:{o + 4}")

    def xload(r):
        A(f"buffer_load_dwordx4 {v(X + 4 * (r % 4), 4)}, {v(SO + 4 * ((r // 4) % 2) + r % 4)}, {s(S_X, 4)}, 0 offen")

    def ef_load(skip=0):
        A(f"v_mad_u32_u24 {v(V_EID)}, {v(V_EID)}, 32, {v(V_HALF16)}")
        m = (0xffffffff << skip) & 0xffffffff
        if skip:
            A(f"s_mov_b32 exec_lo, {m}\ns_mov_b32 exec_hi, {m}")
        A(f"buffer_load_dwordx4 {v(EF, 4)}, {v(V_EID)}, {s(S_EF, 4)}, 0 offen")
        if skip:
            A("s_mov_b64 exec, -1")

    def sm_issue(base, n):
        for j in range(n):
            A(f"v_readlane_b32 {s(SMB + 8 * j)}, {v(V_EID)}, {base + j}")
        if n < 5:
            A(f"s_nop {4 - n}")
        for j in range(n):
            A(f"s_buffer_load_dwordx8 {s(SMB + 8 * j, 8)}, {s(S_EF, 4)}, {s(SMB + 8 * j)}")

    def sm_move(base, n):
        for half in range(2):
            for j in range(n):
                if j == 0:
                    A(f"s_mov_b32 exec_{'hi' if half else 'lo'}, {1 << base}\ns_mov_b32 exec_{'lo' if half else 'hi'}, 0")
                else:
                    A("s_lshl_b64 exec, exec, 1")
                for q in range(2):
                    A(f"v_mov_b64 {v(EF + 2 * q, 2)}, {s(SMB + 8 * j + 4 * half + 2 * q, 2)}")
        A("s_mov_b64 exec, -1")

    def grab(reg):
        A(f"s_mov_b64 exec, 1\nds_add_rtn_u32 {v(reg)}, {v(V_CTRA)}, {v(V_ONE)}\ns_mov_b64 exec, -1")

    key_ops = [f"v_mul_u32_u24_sdwa {v(V_KN)}, {s(S_C0)}, {v(V_KN)} {SDWA} src1_sel:BYTE_3",
               f"v_xor_b32_dpp {v(V_MT)}, {v(V_KN)}, {v(V_KN)} row_shl:1 {DPP} bound_ctrl:0",
               f"v_cmp_ne_u32 {s(S_CMP, 2)}, 0, {v(V_MT)}"]

    sm0 = opt.get("sm0", 0)
    A(f"s_mov_b32 {s(S_NEXT)}, {s(S_WAVE)}\ns_cmp_ge_u32 {s(S_WAVE)}, {s(S_NT)}\ns_cbranch_scc1 KM_DONE")
    A(f"ds_read_b32 {v(V_EID)}, {v(V_EID)} offset:12")
    so_read(0)
    A(f"ds_read_b32 {v(V_KN)}, {v(V_KN)} offset:12\nds_read_b64 {v(YR, 2)}, {v(V_MT)}")
    so_read(1)
    A("s_waitcnt lgkmcnt(6)")
    ef_load(sm0)
    A("s_waitcnt lgkmcnt(4)")
    for r in range(4):
        xload(r)
    A("s_waitcnt lgkmcnt(0)")
    if sm0:
        sm_issue(0, sm0)
    A(key_ops[0] + "\ns_nop 1\n" + key_ops[1] + "\n" + key_ops[2])
    if sm0:
        A("s_waitcnt lgkmcnt(0)")
        sm_move(0, sm0)
    A("s_waitcnt vmcnt(4)")
    stamp("loop")

    def flush_ops(r):
        ops = [[f"v_add_u32_dpp {v(V_FA)}, {v(V_KK)}, {v(V_ACCL)} row_newbcast:{r} {DPP}"]]
        for j in range(8):
            st = STG + 2 * (j % 4)
            ops.append([f"v_cvt_f64_f32 {v(st, 2)}, {v(ACC + j)}", f"ds_add_f64 {v(V_FA)}, {v(st, 2)} offset:{RS * j}"])
        return ops

    def emit(groups):
        for g in groups:
            for op in ([g] if isinstance(g, str) else g):
                A(op)

    def acc_ops(r, first):
        ops = []
        for j in range(4):
            rr = D + 16 * (j // 2) + (r & ~1)
            o = r & 1
            if first:
                ops.append(f"v_pk_mul_f32 {v(ACC + 2 * j, 2)}, {v(rr, 2)}, {v(TP + 2 * j, 2)} op_sel:[{o},0] op_sel_hi:[{o},1]")
            else:
                ops.append(f"v_pk_fma_f32 {v(ACC + 2 * j, 2)}, {v(rr, 2)}, {v(TP + 2 * j, 2)}, {v(ACC + 2 * j, 2)} op_sel:[{o},0,0] op_sel_hi:[{o},1,1]")
        return ops

    def exp_ops(q):
        return [f"v_exp_f32 {v(E + j)}, {v(D + 16 * (j // 2) + q + j % 2)}" for j in range(4)]

    add_ops = [f"v_pk_add_f32 {v(E + 2 * j, 2)}, {v(E + 2 * j, 2)}, 1.0 op_sel_hi:[1,0]" for j in range(2)]
    rcp_ops = [f"v_rcp_f32 {v(E + j)}, {v(E + j)}" for j in range(4)]

    def mul_ops(q):
        return [f"v_pk_mul_f32 {v(D + 16 * j + q, 2)}, {v(D + 16 * j + q, 2)}, {v(E + 2 * j, 2)}" for j in range(2)]

    GRAB, EFS = opt.get("grab", 5), opt.get("efs", 8)
    prio = opt.get("prio", {-1: 0, 4: 1, 8: 2, 12: 3})
    sm = opt.get("sm", {})
    smbase = {st: sum(sm[q] for q in sm if q < st) for st in sm}
    assert set(sm) <= {4, 8, 12} and all(st >= EFS for st in sm)
    smlim = opt.get("smlim", {})
    S_LIM = {st: S_NT for st in sm}
    for st, reg in zip(smlim, (S_N, S_C1, 1)):
        S_LIM[st] = reg
        A(f"s_min_u32 {s(reg)}, {s(S_NT)}, {smlim[st]}")
    A(".p2align 6")
    loop_start = len(A.lines)
    A("KM_LOOP:")
    endprio = opt.get("endprio")

    def setprio(k):
        A(f"s_setprio {prio[k]}")
        if endprio and endprio[k] != prio[k]:
            A(f"s_cbranch_vccz KM_P{k + 1}\ns_setprio {endprio[k]}\nKM_P{k + 1}:")

    if endprio:
        A(f"s_add_u32 s3, {s(S_NEXT)}, {opt.get('endn', 16)}\ns_cmp_ge_u32 s3, {s(S_NT)}\ns_cselect_b64 vcc, -1, 0")
    if -1 in prio:
        setprio(-1)
    fo = flush_ops(15)
    tm = [f"v_mfma_f32_4x4x4_16b_bf16 {v(D + 16 + 4 * i, 4)}, {v(YR, 2)}, {v(CG + 2 * i, 2)}, 0" for i in range(4)]
    tc = [f"v_cvt_pk_bf16_f32 {v(T + 2 * j + hh)}, {v(D + 16 + 8 * hh + j)}, {v(D + 20 + 8 * hh + j)}" for hh in range(2) for j in range(2)]
    ex = exp_ops(0)
    emit([tm[0], fo[0], tm[1], fo[1], tm[2], fo[2], tm[3], fo[3]])
    A(f"v_mfma_f32_32x32x16_bf16 {v(D, 16)}, {v(EF, 4)}, {v(W, 4)}, 0")
    emit([tc[0], tc[1], fo[4], fo[5], tc[2], tc[3]])
    A(f"v_mfma_f32_32x32x16_bf16 {v(D + 16, 16)}, {v(EF, 4)}, {v(W + 4, 4)}, 0")
    emit([fo[6], fo[7], fo[8], f"v_mov_b32 {v(V_KK)}, {v(V_KN)}", f"s_or_b32 {s(S_MASK)}, {s(S_CMP)}, {s(S_CMP + 1)}",
          ex[0], ex[1], "s_nop 1", ex[2], ex[3], "s_nop 0"] + add_ops)
    for r in range(16):
        tr = T + (2 if r >= 8 else 0)
        m4 = [f"v_mfma_f32_4x4x4_16b_bf16 {v(TP + 4 * h, 4)}, {v(tr, 2)}, {v(X + 4 * (r % 4) + 2 * h, 2)}, 0 cbsz:3 abid:{r % 8}" for h in range(2)]
        if r in prio:
            setprio(r)
        A(f"s_waitcnt vmcnt(3)")
        if r == 15:
            emit([m4[0], key_ops[0], m4[1]])
            xload(r + 4)
            emit([key_ops[1], key_ops[2]])
            side = []
        else:
            trans = rcp_ops if r % 2 == 0 else exp_ops(r + 1)
            side = mul_ops(r) if r % 2 == 0 else add_ops
            emit([m4[0], trans[0], m4[1], trans[1], trans[2], trans[3]])
            if r % 4 == 0 and r > 0:
                A("s_waitcnt lgkmcnt(0)")
            xload(r + 4)
        if r % 4 == 0:
            so_read(r // 4 + 2)
        if r == GRAB:
            grab(V_MT)
        if r == GRAB + 1:
            if r % 4:
                A("s_waitcnt lgkmcnt(0)")
            A(f"v_readfirstlane_b32 {s(S_NEXT)}, {v(V_MT)}")
        if r == GRAB + 2:
            A(f"s_min_u32 {s(S_NEXT)}, {s(S_NEXT)}, {s(S_NT)}")
            tile_addr(S_NEXT, r >= 5)
            tile_reads()
        if r == 5 and GRAB + 2 < 5:
            A(f"v_lshl_add_u32 {v(V_SA)}, {v(V_HALF16)}, 4, {s(S_TMP)}")
        if r - 4 in sm:
            A(f"s_cmp_ge_u32 {s(S_NEXT)}, {s(S_LIM[r - 4])}\ns_cbranch_scc1 KM_NOMV{r}")
            sm_move(smbase[r - 4], sm[r - 4])
            A(f"KM_NOMV{r}:")
        if r == EFS:
            A(f"s_cmp_ge_u32 {s(S_NEXT)}, {s(S_NT)}\ns_cbranch_scc1 KM_NOEF")
            A(f"v_mad_u32_u24 {v(V_EID)}, {v(V_EID)}, 32, {v(V_HALF16)}")
            m = (0xffffffff << sum(sm.values())) & 0xffffffff
            A(f"s_mov_b32 {s(S_TMP2)}, {m}")
            for st in smlim:
                A(f"s_cmp_ge_u32 {s(S_NEXT)}, {s(S_LIM[st])}\ns_cselect_b32 s3, {((1 << sm[st]) - 1) << smbase[st]}, 0\ns_or_b32 {s(S_TMP2)}, {s(S_TMP2)}, s3")
            A(f"""
            s_mov_b32 exec_lo, {s(S_TMP2)}
            s_mov_b32 exec_hi, {s(S_TMP2)}
            buffer_load_dwordx4 {v(EF, 4)}, {v(V_EID)}, {s(S_EF, 4)}, 0 offen
            s_mov_b64 exec, -1
            KM_NOEF:
            """)
        if r in sm:
            A(f"s_cmp_ge_u32 {s(S_NEXT)}, {s(S_LIM[r])}\ns_cbranch_scc1 KM_NOIS{r}")
            sm_issue(smbase[r], sm[r])
            A(f"KM_NOIS{r}:")
        if r == 11 and opt.get("trace"):
            A("s_memrealtime s[90:91]\ns_memtime s[88:89]")
        if r == 13 and opt.get("trace"):
            A(f"s_mov_b32 m0, s1\ns_add_u32 s1, s1, 1\nv_writelane_b32 {v(V_TRC)}, s90, m0\ns_add_u32 m0, m0, 32\ns_nop 0\nv_writelane_b32 {v(V_TRC)}, s88, m0")
        if r == 14 and 12 not in sm:
            A("s_waitcnt lgkmcnt(0)")
        emit(side)
        if r > 0:
            A(f"s_bitcmp1_b32 {s(S_MASK)}, {r - 1}\ns_cbranch_scc1 KM_F{r}")
        emit(acc_ops(r, r == 0))
        if r > 0:
            A(f"KM_R{r}:")
    if 12 in sm:
        A(f"s_cmp_ge_u32 {s(S_NEXT)}, {s(S_NT)}\ns_cbranch_scc1 KM_LAST")
        if -1 in prio and opt.get("lowmove", 1):
            A(f"s_setprio {prio[-1]}")
        A("s_waitcnt lgkmcnt(0)")
        if 12 in smlim:
            A(f"s_cmp_ge_u32 {s(S_NEXT)}, {s(S_LIM[12])}\ns_cbranch_scc1 KM_LOOP")
        sm_move(smbase[12], sm[12])
        A("s_branch KM_LOOP\nKM_LAST:")
    else:
        A(f"s_cmp_lt_u32 {s(S_NEXT)}, {s(S_NT)}\ns_cbranch_scc1 KM_LOOP")
    drop = opt.get("drop", [])
    if drop:
        A.lines[loop_start:] = [ln for ln in A.lines[loop_start:] if not any(d in ln for d in drop)]
    emit(flush_ops(15))
    A("s_branch KM_DONE")
    for r in range(1, 16):
        A(f"KM_F{r}:")
        emit(flush_ops(r - 1))
        emit(acc_ops(r, True))
        A(f"s_branch KM_R{r}")
    A(f"""
    KB_NARROW:
    s_mov_b32 {s(S_WIDE)}, 0
    s_branch KB_ROUND
    KB_NEXT:
    s_lshl_b32 {s(S_TMP)}, 16, {s(S_WIDE)}
    s_add_u32 {s(S_K0)}, {s(S_K0)}, {s(S_TMP)}
    KB_ROUND:
    s_waitcnt vmcnt(0) lgkmcnt(0)
    s_barrier
    v_and_b32 {v(P0)}, 0xff, v0
    v_lshlrev_b32 {v(P0)}, 2, {v(P0)}
    v_mov_b32 {v(P1)}, 0
    v_mov_b32 {v(P2)}, {NSTART}
    ds_write_b32 {v(P0)}, {v(P1)} offset:{L_HIST}
    ds_write2_b32 {v(V_CTRA)}, {v(P2)}, {v(P1)} offset0:0 offset1:1
    """)
    round_consts()
    A("""
    s_waitcnt lgkmcnt(0)
    s_barrier
    s_branch KB_ROUND0
    """)
    WM, A64, AG, AF, OD, OP = 32, 80, 16, 8, 80, 96
    A("KM_DONE:")
    stamp("done")
    A(f"""
    s_setprio 0
    s_cmp_eq_u32 {s(S_MORE)}, 0
    s_cbranch_scc0 KB_NEXT
    s_cmp_ge_u32 {s(S_WAVE)}, 10
    s_cbranch_scc0 KE_MIX
    s_waitcnt lgkmcnt(0)
    s_barrier
    """)
    stamp("bar")
    A(f"""
    s_branch KE_FIN
    KE_MIX:
    v_and_b32 v1, 63, v0
    v_lshlrev_b32 v2, 4, v1
    v_add_u32 v2, {WS_WF}, v2
    v_add_u32 v3, 4096, v2
    """)
    for f in range(8):
        A(f"global_load_dwordx4 {v(WM + 4 * f, 4)}, {'v2' if f < 4 else 'v3'}, {s(S_WS, 2)} offset:{1024 * (f % 4)} {WT}")
    A(f"""
    v_bfe_u32 v2, v1, 2, 2
    v_mul_u32_u24 v2, {NS}, v2
    v_and_b32 v3, 3, v1
    v_mul_u32_u24 v3, {RS}, v3
    v_lshrrev_b32 v4, 4, v1
    v_lshlrev_b32 v5, 6, v4
    v_add3_u32 v2, v2, v3, v5
    s_mul_i32 s70, {s(S_WAVE)}, {4 * NS}
    s_add_u32 s70, s70, {L_ACC}
    v_add_u32 v2, s70, v2
    v_and_b32 v3, 15, v1
    v_lshlrev_b32 v3, 4, v3
    v_lshl_add_u32 v3, v4, 17, v3
    s_lshl_b32 s70, {s(S_WAVE)}, 19
    s_lshl_b32 s71, {s(S_BETA)}, 9
    s_add_u32 s70, s70, s71
    v_add_u32 v3, s70, v3
    s_lshr_b32 s72, {s(S_BETA)}, 4
    s_lshl_b32 s72, s72, 9
    s_sub_u32 s72, s72, s71
    s_and_b32 s73, {s(S_BETA)}, 15
    s_cselect_b32 s72, 0x40000000, s72
    v_cmp_le_u32 vcc, {9 * 64 + 48}, v0
    v_add_u32 v4, s72, v3
    s_nop 0
    v_cndmask_b32 v3, v3, v4, vcc
    s_mov_b32 {s(S_SC)}, {fbits(-math.log(2.0) * opt.get('oscale', 1.0))}
    s_mov_b32 {s(S_SC + 1)}, {fbits(-math.log(2.0) * opt.get('oscale', 1.0))}
    s_waitcnt lgkmcnt(0)
    s_barrier
    """)
    stamp("bar")
    for cpar in range(2):
        for hh in range(4):
            A(f"ds_read_b128 {v(A64 + 16 * cpar + 4 * hh, 4)}, v2 offset:{4 * RS * cpar + 16 * hh}")
    for j in range(8):
        A(f"s_waitcnt lgkmcnt({7 - j})")
        A(f"v_cvt_f32_f64 {v(AG + 2 * j)}, {v(A64 + 4 * j, 2)}")
        A(f"v_cvt_f32_f64 {v(AG + 2 * j + 1)}, {v(A64 + 4 * j + 2, 2)}")
    for j in range(8):
        A(f"v_pk_mul_f32 {v(AG + 2 * j, 2)}, {v(AG + 2 * j, 2)}, {s(S_SC, 2)}")
    for j in range(8):
        A(f"v_cvt_pk_bf16_f32 {v(AF + j)}, {v(AG + 2 * j)}, {v(AG + 2 * j + 1)}")
    A("s_waitcnt vmcnt(0)\ns_nop 0")
    for dt in range(4):
        A(f"v_mfma_f32_16x16x32_bf16 {v(OD + 4 * dt, 4)}, {v(AF, 4)}, {v(WM + 4 * dt, 4)}, 0")
    for dt in range(4):
        A(f"v_mfma_f32_16x16x32_bf16 {v(OD + 4 * dt, 4)}, {v(AF + 4, 4)}, {v(WM + 16 + 4 * dt, 4)}, {v(OD + 4 * dt, 4)}")
    A("s_nop 7")
    for j in range(8):
        A(f"v_cvt_pk_bf16_f32 {v(OP + j)}, {v(OD + 2 * j)}, {v(OD + 2 * j + 1)}")
    ost = opt.get("out_st", "")
    A(f"buffer_store_dwordx4 {v(OP, 4)}, v3, {s(S_OUT, 4)}, 0 offen {ost}")
    A(f"buffer_store_dwordx4 {v(OP + 4, 4)}, v3, {s(S_OUT, 4)}, 0 offen offset:256 {ost}")
    A("KE_FIN:")
    if opt.get("diag"):
        A("""
        s_waitcnt lgkmcnt(0)
        KE_SPIN:
        s_memrealtime s[74:75]
        s_waitcnt lgkmcnt(0)
        s_sub_u32 s74, s74, s76
        s_cmp_lt_u32 s74, 10000
        s_cbranch_scc1 KE_SPIN
        """)
    if opt.get("trace"):
        A(f"s_lshl_b32 s78, s2, 12\ns_add_u32 s78, s78, {130 << 20}\nv_lshl_add_u32 v1, v0, 2, s78\nglobal_store_dword v1, {v(V_TRC)}, {s(S_WS, 2)}")
    if opt.get("prof"):
        A("s_waitcnt vmcnt(0)")
        stamp("fin")
        A("s_waitcnt lgkmcnt(0)")
        A(f"s_lshl_b32 s3, s2, 4\ns_add_u32 s3, s3, {s(S_WAVE)}\ns_lshl_b32 s3, s3, 6\ns_add_u32 s3, s3, {(128 << 20) + (1 << 20)}")
        A("v_mov_b32 v1, s3")
        for i in range(len(pts)):
            A(f"v_mov_b32 v2, {s(SB + 2 * i)}\nglobal_store_dword v1, v2, {s(S_WS, 2)} offset:{4 * i}")
    A("K_END:\ns_endpgm")


def generate(opt):
    A = Asm()
    out = HEADER
    if opt.get("aslist"):
        out += f"; @launch kernel={NAME}_kernel grid=(256,1,1) block=(1024,1,1) lds={LDS_BYTES}\n"
    else:
        out += f"; @launch grid=(256,1,1) block=(1024,1,1) lds={LDS_BYTES}\n"
    out += '.amdgcn_target "amdgcn-amd-amdhsa--gfx950"\n.text\n'
    gen(A, opt)
    out += A.text()
    out += f""".section .rodata,"a"
.p2align 6
.amdhsa_kernel {NAME}_kernel
  .amdhsa_next_free_vgpr {NVGPR}
  .amdhsa_next_free_sgpr 102
  .amdhsa_accum_offset {NVGPR}
  .amdhsa_group_segment_fixed_size 0
  .amdhsa_kernarg_size 88
  .amdhsa_user_sgpr_count 2
  .amdhsa_user_sgpr_kernarg_segment_ptr 1
  .amdhsa_system_sgpr_workgroup_id_x 1
  .amdhsa_float_denorm_mode_32 3
.end_amdhsa_kernel
"""
    return out


if __name__ == "__main__":
    opt = eval("dict(" + (sys.argv[2] if len(sys.argv) > 2 else "") + ")")
    path = sys.argv[1] if len(sys.argv) > 1 else f"cdna_kernels/{NAME}.s"
    open(path, "w").write(generate(opt))
```

```python
import sys, struct, math

NAME = "standalone__tensor_product_equiv_tfn__graph"

HEADER = """; Kernarg layout for this problem (88 bytes, ptrs only, base s[0:1]):
"""

CHUNK = 2500
PSIZE = 2500
RECSTRIDE = 30208
YOFF = 10112
WS_TAB = 256 * RECSTRIDE
WS_WF = WS_TAB + 256 * 2048
SPIN_MAX = 1 << 18

RS = 272
NS = 8 * RS
L_HIST = 0
L_PREF = 1024
L_CTR = 2048
CAP = 4096
L_LIST = 2304
L_ACC = L_LIST + (CAP + 64) * 16
LDS_BYTES = L_ACC + 41 * NS
L_STG = 2304
L_WF = 36864

DPP = "row_mask:0xf bank_mask:0xf"
SDWA = "dst_sel:DWORD dst_unused:UNUSED_PAD src0_sel:DWORD"

NW = 16
V_DBASE, V_DCNT, V_HALF16, V_ACCL, V_LAD, V_LAE, V_LAY = 1, 2, 3, 4, 5, 6, 7
V_ONE, V_CTRA, V_KK, V_KN, V_EID, V_SA, V_FA, V_MT = 8, 9, 10, 11, 12, 13, 14, 15
W = 16
CG = 24
D = 32
X = 64
TP = 80
ACC = 88
STG = 96
SO = 104
E = 112
T = 116
EF = 120
YR = 124
V_TRC, V_JUNK = 126, 127
NVGPR = 128

S_X, S_EF, S_OUT, S_WS = 4, 8, 12, 16
S_BETA, S_WAVE, S_K0, S_WIDE, S_N, S_NT, S_NEXT, S_MASK = 18, 19, 20, 21, 22, 23, 24, 25
S_CMP = 26
S_MORE, S_TMP, S_C0, S_C1 = 28, 29, 30, 31
S_M1, S_M2 = 32, 40
S_ANY2 = 48
S_SC = 50
S_XP = 52
S_TMP2 = 0
S_DBG = 58
S_PM = 60
KA = 32
S_ROT = 3
S_WY = 56
SMB = 32

DEFAULT_PTS = ["start", "desc", "rec", "sorted", "loop", "done", "bar", "fin", "b3", "b4"]


def fbits(x):
    return "0x%08x" % struct.unpack("<I", struct.pack("<f", x))[0]


class Asm:
    def __init__(self):
        self.lines = []

    def __call__(self, s):
        for ln in s.strip("\n").split("\n"):
            ln = ln.strip()
            if not ln:
                continue
            if ln.endswith(":") or ln.startswith("."):
                self.lines.append(ln)
            else:
                self.lines.append("    " + ln)

    def text(self):
        return "\n".join(self.lines) + "\n"


def v(a, n=1):
    return f"v{a}" if n == 1 else f"v[{a}:{a+n-1}]"


def s(a, n=1):
    return f"s{a}" if n == 1 else f"s[{a}:{a+n-1}]"


def wave_scan(A, regs):
    steps = ["row_shr:1 " + DPP + " bound_ctrl:0", "row_shr:2 " + DPP + " bound_ctrl:0",
             "row_shr:4 " + DPP + " bound_ctrl:0", "row_shr:8 " + DPP + " bound_ctrl:0",
             "row_bcast:15 row_mask:0xa bank_mask:0xf", "row_bcast:31 row_mask:0xc bank_mask:0xf"]
    for st in steps:
        A("s_nop 1" if len(regs) == 1 else "s_nop 0")
        for r in regs:
            A(f"v_add_u32_dpp {v(r)}, {v(r)}, {v(r)} {st}")


def gen(A, opt):
    name = NAME + "_kernel"
    WT = "sc1"
    P0, P1, P2, P3, P4, P5, P6 = 112, 113, 114, 115, 116, 117, 118
    QD, QS, QY, QH, QR, QT, QP, QZ = 32, 36, 40, 48, 52, 56, 60, 64
    pts = opt.get("pts", DEFAULT_PTS)
    SB = 102 - 2 * len(pts)

    def stamp(nm):
        if opt.get("prof") and nm in pts:
            A(f"s_memrealtime {s(SB + 2 * pts.index(nm), 2)}")
        if opt.get("diag") == nm:
            A("s_memrealtime s[76:77]")

    def xtouch(n, base):
        A(f"""
        s_lshr_b32 {s(S_TMP)}, s2, {0 if opt.get("xmall") else 3}
        s_mul_i32 {s(S_TMP)}, {s(S_TMP)}, {n * 128}
        s_add_u32 {s(S_TMP)}, {s(S_TMP)}, {base * 128}
        s_and_b32 s3, s2, {3 if opt.get("rot", 1) and not opt.get("xmall") else 0}
        s_mul_i32 s3, s3, {PSIZE * 512}
        s_add_u32 {s(S_TMP)}, {s(S_TMP)}, s3
        v_cmp_gt_u32 vcc, {n}, v0
        v_lshl_add_u32 {v(P5)}, v0, 7, {s(S_TMP)}
        s_and_saveexec_b64 {s(S_PM, 2)}, vcc
        s_cbranch_execz XT_{base}
        buffer_load_dword {v(V_JUNK)}, {v(P5)}, {s(S_XP, 4)}, 0 offen
        XT_{base}:
        s_mov_b64 exec, -1
        """)

    def scan256(cnt, pre, addr, tot):
        A(f"""
        ds_read_b128 {v(cnt, 4)}, {v(addr)} offset:{L_HIST}
        s_waitcnt lgkmcnt(0)
        v_add_u32 {v(pre + 2)}, {v(cnt)}, {v(cnt + 1)}
        v_add_u32 {v(pre + 3)}, {v(pre + 2)}, {v(cnt + 2)}
        v_add_u32 {v(pre)}, {v(pre + 3)}, {v(cnt + 3)}
        v_add_u32 {v(tot)}, {v(pre + 3)}, {v(cnt + 3)}
        """)
        wave_scan(A, [tot])
        A(f"""
        v_sub_u32 {v(pre)}, {v(tot)}, {v(pre)}
        v_add_u32 {v(pre + 1)}, {v(pre)}, {v(cnt)}
        v_add_u32 {v(pre + 2)}, {v(pre)}, {v(pre + 2)}
        v_add_u32 {v(pre + 3)}, {v(pre)}, {v(pre + 3)}
        ds_write_b128 {v(addr)}, {v(pre, 4)} offset:{L_PREF}
        """)

    def round_consts():
        A(f"""
        v_and_b32 {v(P3)}, 15, v0
        v_add_u32 {v(P3)}, {s(S_K0)}, {v(P3)}
        v_lshrrev_b32 v92, 4, v0
        v_mul_u32_u24 v92, {4 * RECSTRIDE}, v92
        v_add_u32 v93, {RECSTRIDE}, v92
        v_add_u32 v94, {2 * RECSTRIDE}, v92
        v_add_u32 v95, {3 * RECSTRIDE}, v92
        """)

    A(f".globl {name}\n.p2align 8\n.type {name},@function\n{name}:")
    stamp("start")
    A(f"""
    s_cmp_ge_u32 s2, 256
    s_cbranch_scc1 K_END
    s_load_dwordx16 {s(KA, 16)}, s[0:1], 0
    s_load_dwordx2 {s(S_WS, 2)}, s[0:1], 80
    s_load_dwordx2 {s(S_OUT, 2)}, s[0:1], 64
    s_load_dwordx2 {s(S_DBG, 2)}, s[0:1], 72
    v_lshrrev_b32 {v(P0)}, 6, v0
    v_and_b32 {v(P1)}, 63, v0
    v_readfirstlane_b32 {s(S_WAVE)}, {v(P0)}
    s_mul_i32 {s(S_TMP)}, s2, {CHUNK * 4}
    s_mul_i32 {s(S_C1)}, s2, {CHUNK * 8}
    v_lshl_add_u32 {v(P2)}, v0, 4, {s(S_TMP)}
    v_lshl_add_u32 {v(P3)}, v0, 5, {s(S_C1)}
    s_movk_i32 {s(S_C0)}, {CHUNK // 4}
    v_cmp_gt_u32 {s(S_PM, 2)}, {s(S_C0)}, v0
    v_mov_b64 {v(QZ, 2)}, 0
    v_mov_b64 {v(QZ + 2, 2)}, 0
    v_and_b32 {v(P0)}, 0xff, v0
    v_lshlrev_b32 {v(P0)}, 2, {v(P0)}
    ds_write_b32 {v(P0)}, {v(QZ)} offset:{L_HIST}
    s_cmp_ge_u32 {s(S_WAVE)}, 10
    s_cbranch_scc1 KA_AUX0
    s_mov_b64 exec, {s(S_PM, 2)}
    s_waitcnt lgkmcnt(0)
    """)
    stamp("karg")
    A(f"""
    global_load_dwordx4 {v(QD, 4)}, {v(P2)}, {s(KA + 4, 2)}
    s_barrier
    global_load_dwordx4 {v(QS, 4)}, {v(P2)}, {s(KA + 2, 2)}
    global_load_dwordx4 {v(QY, 4)}, {v(P3)}, {s(KA + 6, 2)}
    global_load_dwordx4 {v(QY + 4, 4)}, {v(P3)}, {s(KA + 6, 2)} offset:16
    s_mov_b64 exec, -1
    s_branch KA_JOIN0
    KA_AUX0:
    """)
    if opt.get("tcode"):
        A(f"""
        s_cmp_lt_u32 s2, {opt["tcode"]}
        s_cbranch_scc0 KA_NOCODE
        s_getpc_b64 s[62:63]
        KA_PC:
        v_subrev_u32 {v(P4)}, 640, v0
        v_min_u32 {v(P4)}, (K_END - KA_PC) / 64, {v(P4)}
        v_lshlrev_b32 {v(P4)}, 6, {v(P4)}
        global_load_dword {v(V_JUNK)}, {v(P4)}, s[62:63]
        KA_NOCODE:
        """)
    A(f"""
    s_waitcnt lgkmcnt(0)
    s_cmp_eq_u32 {s(S_WAVE)}, 15
    s_cbranch_scc0 KA_NOTAG
    s_cmp_eq_u32 s2, 0
    s_cbranch_scc0 KA_NOTAG
    s_memrealtime s[62:63]
    s_waitcnt lgkmcnt(0)
    s_lshl_b32 s63, s63, 24
    s_or_b32 s63, s63, 1
    v_mov_b32 {v(QD)}, s63
    v_mov_b32 {v(QD + 1)}, s62
    s_mov_b64 exec, 1
    global_store_dwordx2 {v(QZ)}, {v(QD, 2)}, {s(S_DBG, 2)} {WT}
    s_mov_b64 exec, -1
    KA_NOTAG:
    s_barrier
    KA_JOIN0:
    s_and_b32 {s(S_BETA)}, s2, 7
    s_lshl_b32 {s(S_BETA)}, {s(S_BETA)}, 5
    s_lshr_b32 s3, s2, 3
    s_add_u32 {s(S_BETA)}, {s(S_BETA)}, s3
    s_sub_u32 {s(S_X)}, {s(KA)}, 512
    s_subb_u32 {s(S_X + 1)}, {s(KA + 1)}, 0
    s_and_b32 {s(S_X + 1)}, {s(S_X + 1)}, 0xffff
    s_or_b32 {s(S_X + 1)}, {s(S_X + 1)}, 0x100000
    s_mov_b32 {s(S_X + 2)}, 64
    s_mov_b32 {s(S_X + 3)}, 0x800000
    s_mov_b32 {s(S_XP)}, {s(KA)}
    s_and_b32 {s(S_XP + 1)}, {s(KA + 1)}, 0xffff
    s_mov_b32 {s(S_XP + 2)}, 5120000
    s_mov_b32 {s(S_XP + 3)}, 0x20000
    s_mov_b32 {s(S_EF)}, {s(KA + 8)}
    s_and_b32 {s(S_EF + 1)}, {s(KA + 9)}, 0xffff
    s_mov_b32 {s(S_EF + 2)}, 20480000
    s_mov_b32 {s(S_EF + 3)}, 0x20000
    s_and_b32 {s(S_OUT + 1)}, {s(S_OUT + 1)}, 0xffff
    s_mov_b32 {s(S_OUT + 2)}, 5120000
    s_mov_b32 {s(S_OUT + 3)}, 0x20000
    s_mov_b32 {s(S_K0)}, 0
    s_mov_b32 {s(S_WIDE)}, 1
    s_lshr_b32 s3, {s(S_BETA)}, 2
    s_lshl_b32 s3, s3, 4
    s_and_b32 {s(S_TMP)}, {s(S_BETA)}, 1
    s_lshl_b32 {s(S_TMP)}, {s(S_TMP)}, 3
    s_add_u32 s3, s3, {s(S_TMP)}
    s_and_b32 {s(S_TMP)}, {s(S_BETA)}, 2
    s_lshl_b32 {s(S_TMP)}, {s(S_TMP)}, 9
    s_add_u32 s3, s3, {s(S_TMP)}
    s_add_u32 s3, s3, {WS_TAB}
    v_lshrrev_b32 {v(P2)}, 4, v0
    v_lshlrev_b32 {v(P2)}, 2, {v(P2)}
    v_and_or_b32 {v(P3)}, v0, 3, {v(P2)}
    v_lshl_add_u32 {v(V_FA)}, {v(P3)}, 11, s3
    v_and_b32 {v(P4)}, 31, {v(P1)}
    v_lshrrev_b32 {v(P5)}, 5, {v(P1)}
    v_lshlrev_b32 {v(V_HALF16)}, 4, {v(P5)}
    v_lshlrev_b32 {v(V_ACCL)}, 3, {v(P4)}
    v_add_u32 {v(V_ACCL)}, {L_ACC}, {v(V_ACCL)}
    v_and_b32 {v(P6)}, 15, v0
    v_add_lshl_u32 {v(V_LAD)}, {v(P6)}, {v(V_HALF16)}, 4
    v_lshrrev_b32 {v(P6)}, 3, {v(P4)}
    v_lshlrev_b32 {v(P6)}, 2, {v(P6)}
    v_and_or_b32 {v(P6)}, {v(P4)}, 3, {v(P6)}
    v_lshlrev_b32 {v(P6)}, 4, {v(P6)}
    v_and_b32 {v(P0)}, 4, {v(P4)}
    v_lshl_add_u32 {v(V_LAE)}, {v(P0)}, 6, {v(P6)}
    v_lshrrev_b32 {v(P6)}, 2, {v(P4)}
    v_and_b32 {v(P0)}, 1, {v(P4)}
    v_lshl_add_u32 {v(P6)}, {v(P0)}, 3, {v(P6)}
    v_add_lshl_u32 {v(V_LAY)}, {v(P6)}, {v(V_HALF16)}, 4
    v_mov_b32 {v(V_ONE)}, 1
    v_mov_b32 {v(V_CTRA)}, {L_CTR}
    s_cmp_ge_u32 {s(S_WAVE)}, 10
    s_cbranch_scc1 KA_AUX1
    s_mov_b64 exec, {s(S_PM, 2)}
    v_lshlrev_b32 {v(P0)}, 2, v0
    v_add_u32 {v(P0)}, 4096, {v(P0)}
    s_movk_i32 {s(S_C1)}, {-PSIZE}
    s_waitcnt vmcnt(3)
    """)
    stamp("dst")
    for k in range(4):
        A(f"""
        v_add_u32 {v(P2)}, {16384 - 9984}, {v(QD + k)}
        v_lshrrev_b32 {v(P2)}, 12, {v(P2)}
        v_and_or_b32 {v(P2)}, {v(P2)}, 4, 2
        v_lshlrev_b32_sdwa {v(QH + k)}, {v(P2)}, {v(QD + k)} {SDWA} src1_sel:BYTE_0
        ds_add_rtn_u32 {v(QR + k)}, {v(QH + k)}, {v(V_ONE)} offset:{L_HIST}
        """)
    A("s_waitcnt lgkmcnt(0)\ns_barrier")
    stamp("b2")
    for k in range(4):
        A(f"""
        v_lshrrev_b32 {v(QD + k)}, 8, {v(QD + k)}
        v_or_b32 {v(P3)}, {k}, {v(P0)}
        v_lshl_or_b32 {v(QD + k)}, {v(QD + k)}, 24, {v(P3)}
        """)
    A("s_barrier")
    stamp("b2b")
    for k in range(4):
        A(f"ds_read_b32 {v(QH + k)}, {v(QH + k)} offset:{L_PREF}")
    for k in range(4):
        A(f"""
        s_waitcnt lgkmcnt({3 - k})
        v_add_lshl_u32 {v(QH + k)}, {v(QH + k)}, {v(QR + k)}, 2
        v_add_u32 {v(QR + k)}, {v(QH + k)}, {v(QH + k)}
        """)
    A("s_waitcnt vmcnt(2)")
    for k in range(4):
        A(f"""
        v_mul_u32_u24 {v(P2)}, {(1 << 24) // PSIZE}, {v(QS + k)}
        v_lshrrev_b32 {v(P2)}, 24, {v(P2)}
        v_mad_i32_i24 {v(QS + k)}, {v(P2)}, {s(S_C1)}, {v(QS + k)}
        v_lshl_or_b32 {v(QS + k)}, {v(P2)}, 18, {v(QS + k)}
        v_lshl_add_u32 {v(QD + k)}, {v(QS + k)}, 12, {v(QD + k)}
        ds_write_b32 {v(QH + k)}, {v(QD + k)} offset:{L_STG}
        """)
    for k in range(4):
        if k % 2 == 0:
            A(f"s_waitcnt vmcnt({1 - k // 2})")
        if k == 2:
            stamp("y")
        A(f"ds_write_b64 {v(QR + k)}, {v(QY + 2 * k, 2)} offset:{L_STG + YOFF}")
    A(f"""
    s_mov_b64 exec, -1
    s_branch KA_JOIN3
    KA_AUX1:
    s_cmp_eq_u32 {s(S_WAVE)}, 15
    s_cbranch_scc1 KA_SCAN
    s_and_b32 s62, s2, 7
    s_lshr_b32 s63, s62, 2
    s_lshl_b32 s63, s63, 7
    s_and_b32 s64, s62, 1
    s_lshl_b32 s64, s64, 1
    s_add_u32 s63, s63, s64
    s_and_b32 s64, s62, 2
    s_lshl_b32 s64, s64, 5
    s_add_u32 s63, s63, s64
    s_and_b32 s64, {s(S_WAVE)}, 1
    s_lshl_b32 s65, s64, 6
    s_cmp_lt_u32 {s(S_WAVE)}, 14
    s_cselect_b64 s[66:67], {s(KA + 12, 2)}, {s(KA + 14, 2)}
    s_cselect_b32 s63, s65, s63
    s_cselect_b32 s68, 6, 4
    s_cselect_b32 s69, 3, 15
    s_cselect_b32 s70, 1, 2
    s_cselect_b32 s71, 8, 256
    s_lshl_b32 s65, s64, 1
    s_cmp_lt_u32 {s(S_WAVE)}, 12
    s_cselect_b64 s[66:67], {s(KA + 10, 2)}, s[66:67]
    s_cselect_b32 s63, s65, s63
    s_cselect_b32 s68, 5, s68
    s_cselect_b32 s69, 31, s69
    s_cselect_b32 s70, 2, s70
    s_cselect_b32 s71, 128, s71
    s_cselect_b32 s72, 10, 11
    v_lshrrev_b32 {v(P2)}, s68, {v(P1)}
    v_lshlrev_b32 {v(P2)}, s72, {v(P2)}
    v_and_b32 {v(P3)}, s69, {v(P1)}
    v_lshlrev_b32 {v(P3)}, s70, {v(P3)}
    v_add3_u32 {v(P2)}, {v(P2)}, {v(P3)}, s63
    s_barrier
    s_barrier
    s_cmp_lt_u32 {s(S_WAVE)}, 14
    s_cbranch_scc1 KA_PREP
    s_cmp_lt_u32 s2, 8
    s_cbranch_scc0 KA_JOIN3
    KA_PREP:
    """)
    for i in range(8):
        A(f"global_load_ushort {v(QY + i)}, {v(P2)}, s[66:67]\nv_add_u32 {v(P2)}, s71, {v(P2)}")
    A(f"""
    s_branch KA_JOIN3
    KA_SCAN:
    v_lshlrev_b32 {v(P3)}, 4, {v(P1)}
    s_setprio 3
    s_barrier
    """)
    scan256(QT, QR, P3, P4)
    A(f"""
    s_waitcnt lgkmcnt(0)
    s_barrier
    s_setprio 0
    global_load_dwordx2 {v(QH, 2)}, {v(QZ)}, {s(S_DBG, 2)} {WT}
    """)
    for k in range(4):
        A(f"v_lshl_or_b32 {v(QT + k)}, {v(QT + k)}, 12, {v(QR + k)}")
    NSTART = NW
    A(f"""
    KA_JOIN3:
    v_lshlrev_b32 {v(P2)}, 4, v0
    s_mul_i32 {s(S_TMP)}, s2, {RECSTRIDE}
    v_add_u32 {v(P3)}, {s(S_TMP)}, {v(P2)}
    v_add_u32 {v(P4)}, 16384, {v(P3)}
    v_cmp_gt_u32 vcc, {(YOFF + CHUNK * 8) // 16 - 1024}, v0
    v_and_b32 {v(P0)}, 0xff, v0
    v_lshlrev_b32 {v(P0)}, 2, {v(P0)}
    v_mov_b32 {v(P5)}, {NSTART}
    v_lshlrev_b32 {v(P6)}, 4, {v(P1)}
    s_waitcnt lgkmcnt(0)
    s_barrier
    """)
    stamp("b3")
    A(f"""
    ds_read_b128 {v(QD, 4)}, {v(P2)} offset:{L_STG}
    ds_read_b128 {v(QS, 4)}, {v(P2)} offset:{L_STG + 16384}
    s_waitcnt lgkmcnt(1)
    global_store_dwordx4 {v(P3)}, {v(QD, 4)}, {s(S_WS, 2)} {WT}
    s_and_saveexec_b64 {s(S_PM, 2)}, vcc
    s_cbranch_execz KA_NOST2
    s_waitcnt lgkmcnt(0)
    global_store_dwordx4 {v(P4)}, {v(QS, 4)}, {s(S_WS, 2)} {WT}
    KA_NOST2:
    s_mov_b64 exec, -1
    ds_write_b32 {v(P0)}, {v(QZ)} offset:{L_HIST}
    ds_write2_b32 {v(V_CTRA)}, {v(P5)}, {v(QZ)} offset0:0 offset1:1
    v_add_u32 {v(P3)}, {L_ACC}, {v(P2)}
    v_add_u32 {v(P4)}, {L_ACC + 41 * NS - 16384}, {v(P2)}
    """)
    for i in range(4):
        A(f"ds_write_b128 {v(P3)}, {v(QZ, 4)} offset:{16384 * i}")
    A(f"v_add_u32 {v(P3)}, 65536, {v(P3)}\nds_write_b128 {v(P4)}, {v(QZ, 4)}\nds_write_b128 {v(P3)}, {v(QZ, 4)}")
    assert 5 * 16384 <= 41 * NS <= 6 * 16384
    A(f"""
    s_mov_b32 {s(S_C1)}, {SPIN_MAX}
    s_lshl_b32 s3, s2, 11
    s_add_u32 s3, s3, {WS_TAB}
    v_add_u32 {v(QP)}, s3, {v(P6)}
    s_cmp_lt_u32 {s(S_WAVE)}, 10
    s_cbranch_scc1 KA_JOIN4
    s_cmp_eq_u32 {s(S_WAVE)}, 15
    s_cbranch_scc1 KA_TAG
    s_cmp_lt_u32 {s(S_WAVE)}, 12
    s_cselect_b32 s62, {fbits(-math.log2(math.e))}, 1.0
    s_cmp_eq_u32 {s(S_WAVE)}, 14
    s_cbranch_scc1 KA_PW1
    s_waitcnt vmcnt(2)
    s_branch KA_PW2
    KA_PW1:
    s_waitcnt vmcnt(1)
    KA_PW2:
    """)
    for i in range(8):
        A(f"v_lshlrev_b32 {v(QY + i)}, 16, {v(QY + i)}\nv_mul_f32 {v(QY + i)}, s62, {v(QY + i)}")
    for jj in range(4):
        A(f"v_cvt_pk_bf16_f32 {v(QH + jj)}, {v(QY + 2 * jj)}, {v(QY + 2 * jj + 1)}")
    A(f"""
    s_cbranch_scc1 KA_PREPWM
    ds_write_b128 {v(P2)}, {v(QH, 4)} offset:{L_WF - 10240}
    s_branch KA_JOIN4
    KA_PREPWM:
    s_cmp_lt_u32 s2, 8
    s_cbranch_scc0 KA_JOIN4
    s_lshl_b32 s63, s2, 10
    s_add_u32 s63, s63, {WS_WF}
    v_add_u32 {v(P3)}, s63, {v(P6)}
    global_store_dwordx4 {v(P3)}, {v(QH, 4)}, {s(S_WS, 2)} {WT}
    s_branch KA_JOIN4
    KA_TAG:
    s_waitcnt vmcnt(1)
    KA_TAG1:
    v_cmp_eq_u32 vcc, 0, {v(QH)}
    s_cbranch_vccz KA_GOTTAG
    s_sub_u32 {s(S_C1)}, {s(S_C1)}, 1
    s_cbranch_scc1 K_END
    global_load_dwordx2 {v(QH, 2)}, {v(QZ)}, {s(S_DBG, 2)} {WT}
    s_waitcnt vmcnt(0)
    s_branch KA_TAG1
    KA_GOTTAG:
    v_and_b32 {v(QH)}, 0xff000000, {v(QH)}
    ds_write_b64 {v(V_CTRA)}, {v(QH, 2)} offset:8
    """)
    for k in range(4):
        A(f"v_or_b32 {v(QY + 2 * k)}, {v(QT + k)}, {v(QH)}\nv_mov_b32 {v(QY + 2 * k + 1)}, {v(QH + 1)}")
    A(f"""
    KA_JOIN4:
    s_waitcnt vmcnt(0) lgkmcnt(0)
    s_barrier
    """)
    stamp("b4")
    A(f"""
    s_cmp_eq_u32 {s(S_WAVE)}, 15
    s_cbranch_scc0 KA_PUBD
    global_store_dwordx4 {v(QP)}, {v(QY, 4)}, {s(S_WS, 2)} {WT}
    global_store_dwordx4 {v(QP)}, {v(QY + 4, 4)}, {s(S_WS, 2)} offset:1024 {WT}
    KA_PUBD:
    """)
    w2 = opt.get("w2", 128)
    xtouch(w2, 0)
    A(f"ds_read_b64 {v(QH, 2)}, {v(V_CTRA)} offset:8")
    for f in range(4):
        A(f"ds_read_b128 {v(W + 4 * f, 4)}, {v(P6)} offset:{L_WF + 1024 * f}")
    round_consts()
    A(f"""
    s_waitcnt vmcnt(0) lgkmcnt(0)
    s_barrier
    KA_POLL:
    global_load_dwordx2 {v(QD, 2)}, {v(V_FA)}, {s(S_WS, 2)} {WT}
    s_waitcnt vmcnt(0)
    v_mov_b32 {v(V_DCNT)}, {v(QD)}
    v_and_b32 {v(QD)}, 0xff000000, {v(QD)}
    v_cmp_ne_u64 vcc, {v(QD, 2)}, {v(QH, 2)}
    s_cbranch_vccz KA_READY
    s_mov_b64 exec, vcc
    s_sub_u32 {s(S_C1)}, {s(S_C1)}, 1
    s_cbranch_scc1 K_END
    s_branch KA_POLL
    KA_READY:
    s_mov_b64 exec, -1
    v_and_b32 {v(V_DBASE)}, 0xfff, {v(V_DCNT)}
    v_bfe_u32 {v(V_DCNT)}, {v(V_DCNT)}, 12, 12
    """)
    stamp("desc")
    NC = 4
    REC1, REC2, RK1, RK2, HA1, HA2, PB, SC, CB, YA = 32, 48, 64, 68, 72, 76, 80, 84, 92, 96
    A(f"""
    KB_ROUND0:
    s_cmp_eq_u32 {s(S_WIDE)}, 1
    s_cselect_b32 {s(S_C1)}, 16, 0x7fffffff
    """)
    for c in range(NC):
        A(f"""
        v_sub_u32_dpp {v(RK1 + c)}, {v(V_DCNT)}, {v(P3)} row_newbcast:{c} {DPP}
        v_add_u32_dpp {v(HA1 + c)}, {v(V_DBASE)}, {v(P3)} row_newbcast:{c} {DPP}
        v_cmp_lt_i32 {s(S_M1 + 2 * c, 2)}, 0, {v(RK1 + c)}
        v_lshl_add_u32 {v(HA2 + c)}, {v(HA1 + c)}, 2, {v(CB + c)}
        s_mov_b64 exec, {s(S_M1 + 2 * c, 2)}
        global_load_dword {v(REC1 + 4 * c + 2)}, {v(HA2 + c)}, {s(S_WS, 2)} {WT}
        s_mov_b64 exec, -1
        """)
    for c in range(NC):
        A(f"v_cmp_lt_i32 {s(S_M2 + 2 * c, 2)}, {s(S_C1)}, {v(RK1 + c)}")
    for c in range(NC):
        A(f"v_lshl_add_u32 {v(HA1 + c)}, {v(HA1 + c)}, 3, {v(CB + c)}")
    A(f"""
    s_lshl_b32 {s(S_TMP)}, 16, {s(S_WIDE)}
    s_add_u32 {s(S_TMP)}, {s(S_TMP)}, {s(S_K0)}
    v_cmp_lt_u32 {s(S_CMP, 2)}, {s(S_TMP)}, {v(V_DCNT)}
    s_add_u32 {s(S_WY)}, {s(S_WS)}, {YOFF}
    s_addc_u32 {s(S_WY + 1)}, {s(S_WS + 1)}, 0
    s_or_b64 {s(S_ANY2, 2)}, {s(S_M2, 2)}, {s(S_M2 + 2, 2)}
    s_or_b64 {s(S_ANY2, 2)}, {s(S_ANY2, 2)}, {s(S_M2 + 4, 2)}
    s_or_b64 {s(S_ANY2, 2)}, {s(S_ANY2, 2)}, {s(S_M2 + 6, 2)}
    s_cbranch_scc0 KB_NOSEC_A
    """)
    for c in range(NC):
        A(f"""
        s_mov_b64 exec, {s(S_M2 + 2 * c, 2)}
        s_cbranch_execz KB_SA{c}
        global_load_dword {v(REC2 + 4 * c + 2)}, {v(HA2 + c)}, {s(S_WS, 2)} offset:64 {WT}
        global_load_dwordx2 {v(REC2 + 4 * c, 2)}, {v(HA1 + c)}, {s(S_WY, 2)} offset:128 {WT}
        KB_SA{c}:
        """)

    def tile_addr(tile, sa=True):
        A(f"""
        s_lshl_b32 {s(S_TMP)}, {s(tile)}, 9
        s_add_u32 {s(S_TMP)}, {s(S_TMP)}, {L_LIST}
        v_add_u32 {v(V_EID)}, {s(S_TMP)}, {v(V_LAE)}
        v_add_u32 {v(V_KN)}, {s(S_TMP)}, {v(V_LAD)}
        v_add_u32 {v(V_MT)}, {s(S_TMP)}, {v(V_LAY)}
        """)
        if sa:
            A(f"v_lshl_add_u32 {v(V_SA)}, {v(V_HALF16)}, 4, {s(S_TMP)}")

    ROT = 3 if opt.get("rot", 1) else 0
    A(f"""
    s_mov_b64 exec, -1
    KB_NOSEC_A:
    s_cmp_eq_u64 {s(S_CMP, 2)}, 0
    s_cbranch_scc1 KB_NOMORE
    ds_write_b32 {v(V_CTRA)}, {v(V_ONE)} offset:4
    KB_NOMORE:
    v_lshrrev_b32 {v(PB)}, 4, v0
    v_mul_u32_u24 {v(PB)}, {4 * CHUNK}, {v(PB)}
    v_add_u32 {v(PB + 1)}, {CHUNK}, {v(PB)}
    v_add_u32 {v(PB + 2)}, {2 * CHUNK}, {v(PB)}
    v_add_u32 {v(PB + 3)}, {3 * CHUNK}, {v(PB)}
    s_and_b32 {s(S_ROT)}, s2, {ROT}
    s_lshl_b32 {s(S_ROT)}, {s(S_ROT)}, 8
    v_and_b32 {v(P1)}, 63, v0
    v_lshl_add_u32 {v(P2)}, {v(P1)}, 4, {s(S_ROT)}
    v_and_b32 {v(P2)}, 0x3ff, {v(P2)}
    v_mov_b32 {v(P5)}, 16
    v_mov_b32 {v(P6)}, 0x3f000fff
    v_mov_b32 {v(P3)}, {opt.get("abl_x", 0x1ffe00)}
    """)
    tile_addr(S_WAVE)
    A(f"""
    s_movk_i32 {s(S_C0)}, {NS}
    v_mov_b32 {v(V_KK)}, {40 * NS}
    s_mov_b32 {s(S_TMP2)}, {PSIZE * 512}
    """)

    def yloads(addr):
        for c in range(NC):
            A(f"s_or_b64 exec, {s(S_M1 + 2 * c, 2)}, 1\nglobal_load_dwordx2 {v(REC1 + 4 * c, 2)}, {v(addr + c)}, {s(S_WY, 2)} {WT}")
        A("s_mov_b64 exec, -1")

    ylate = opt.get("ylate", 0)
    if ylate == 0:
        yloads(HA1)
        A("s_waitcnt vmcnt(4)")
    elif ylate == 1:
        A("s_waitcnt vmcnt(0)")
        yloads(HA1)
    else:
        for c in range(NC):
            A(f"v_mov_b32 {v(YA + c)}, {v(HA1 + c)}")
        A("s_waitcnt vmcnt(0)")
    stamp("rec")

    def second(fns, tag):
        A(f"s_cmp_eq_u64 {s(S_ANY2, 2)}, 0\ns_cbranch_scc1 KB_N{tag}")
        for c in range(NC):
            A(f"s_mov_b64 exec, {s(S_M2 + 2 * c, 2)}\ns_cbranch_execz KB_{tag}{c}")
            for fn in fns:
                fn(REC2, RK2, HA2, c)
            A(f"KB_{tag}{c}:")
        A(f"KB_N{tag}:\ns_mov_b64 exec, -1")

    def keyof(rec, rk, ha, c):
        A(f"v_lshlrev_b32_sdwa {v(ha + c)}, 2, {v(rec + 4 * c + 2)} {SDWA} src1_sel:BYTE_3")

    def count(rec, rk, ha, c):
        A(f"ds_add_rtn_u32 {v(rk + c)}, {v(ha + c)}, {v(P5)} offset:{L_HIST}")

    def decode(rec, rk, ha, c):
        idx = rec + 4 * c + 2
        A(f"""
        v_and_b32 {v(idx + 1)}, {v(P6)}, {v(idx)}
        v_lshrrev_b32 {v(P0)}, 30, {v(idx)}
        v_lshrrev_b32 {v(idx)}, 3, {v(idx)}
        v_and_b32 {v(idx)}, {v(P3)}, {v(idx)}
        """)
        if not opt.get("abl_ef"):
            A(f"v_add_u32 {v(idx + 1)}, {v(idx + 1)}, {v(PB + c)}")
        if opt.get("abl_x"):
            A(f"v_add_u32 {v(idx)}, 512, {v(idx)}")
        else:
            A(f"v_mad_u32_u24 {v(idx)}, {v(P0)}, {s(S_TMP2)}, {v(idx)}")

    def prefread(rec, rk, ha, c):
        A(f"ds_read_b32 {v(ha + c)}, {v(ha + c)} offset:{L_PREF}")

    def place(rec, rk, ha, c):
        A(f"""
        v_add_u32 {v(ha + c)}, {v(ha + c)}, {v(rk + c)}
        v_and_b32 {v(P0)}, 0x100, {v(ha + c)}
        v_mad_i32_i24 {v(rec + 4 * c + 2)}, {v(P0)}, -2, {v(rec + 4 * c + 2)}
        ds_write_b128 {v(ha + c)}, {v(rec + 4 * c, 4)} offset:{L_LIST}
        """)

    for c in range(NC):
        keyof(REC1, RK1, HA1, c)
    for c in range(NC):
        A(f"s_mov_b64 exec, {s(S_M1 + 2 * c, 2)}")
        count(REC1, RK1, HA1, c)
    second([keyof, count, decode], "H")
    for c in range(NC):
        decode(REC1, RK1, HA1, c)
    A("s_waitcnt lgkmcnt(0)\ns_barrier")
    stamp("b5")
    if ylate == 2:
        yloads(YA)
    A(f"""
    s_cmp_eq_u32 {s(S_WAVE)}, 0
    s_cbranch_scc0 KB_NOSCAN
    s_setprio 3
    """)
    scan256(SC, SC + 4, P2, P4)
    A(f"""
    s_mov_b32 exec_lo, 0
    s_brev_b32 exec_hi, 1
    ds_write_b32 {v(V_CTRA)}, {v(P4)} offset:16
    s_mov_b64 exec, -1
    s_waitcnt lgkmcnt(0)
    s_barrier
    s_setprio 0
    v_readlane_b32 {s(S_N)}, {v(P4)}, 63
    v_mov_b64 {v(SC + 4, 2)}, 0
    v_mov_b32 {v(SC + 6)}, 512
    v_mov_b32 {v(SC + 7)}, {(40 << 24) | 0xfffff}
    s_min_u32 {s(S_N)}, {s(S_N)}, {16 * CAP}
    v_lshl_add_u32 {v(P3)}, {v(P1)}, 4, {s(S_N)}
    ds_write_b128 {v(P3)}, {v(SC + 4, 4)} offset:{L_LIST}
    s_waitcnt vmcnt(0)
    s_branch KB_PLACE
    KB_NOSCAN:
    """)
    if opt.get("efpre"):
        for c in range(NC):
            A(f"""
            v_xor_b32 {v(P0)}, {s(S_ROT)}, {v(HA1 + c)}
            v_cmp_gt_u32 vcc, {4 * opt["efpre"]}, {v(P0)}
            v_mul_u32_u24 {v(P0)}, 32, {v(REC1 + 4 * c + 3)}
            s_and_b64 vcc, vcc, {s(S_M1 + 2 * c, 2)}
            s_or_b64 exec, vcc, 1
            buffer_load_dword {v(V_JUNK)}, {v(P0)}, {s(S_EF, 4)}, 0 offen
            s_mov_b64 exec, -1
            """)
    A("s_barrier\nKB_PLACE:")
    stamp("b6")
    A(f"ds_read2_b32 {v(SC, 2)}, {v(V_CTRA)} offset0:1 offset1:4")
    for c in range(NC):
        A(f"s_mov_b64 exec, {s(S_M1 + 2 * c, 2)}")
        prefread(REC1, RK1, HA1, c)
    second([prefread], "R")
    A(f"""
    s_waitcnt lgkmcnt(0)
    v_readfirstlane_b32 {s(S_N)}, {v(SC + 1)}
    v_readfirstlane_b32 {s(S_MORE)}, {v(SC)}
    s_nop 1
    s_cmp_le_u32 {s(S_N)}, {16 * CAP}
    s_cbranch_scc0 KB_NARROW
    s_add_u32 {s(S_NT)}, {s(S_N)}, 511
    s_lshr_b32 {s(S_NT)}, {s(S_NT)}, 9
    s_waitcnt vmcnt({4 if opt.get("efpre") else 0})
    """)
    for c in range(NC):
        A(f"s_mov_b64 exec, {s(S_M1 + 2 * c, 2)}")
        place(REC1, RK1, HA1, c)
    second([place], "P")
    A("s_waitcnt lgkmcnt(0)\ns_barrier")
    stamp("sorted")
    if opt.get("trace"):
        A(f"v_mov_b32 {v(V_TRC)}, 0\ns_mov_b32 s1, 0")

    def tile_reads():
        A(f"""
        ds_read_b32 {v(V_EID)}, {v(V_EID)} offset:12
        ds_read_b32 {v(V_KN)}, {v(V_KN)} offset:12
        ds_read_b64 {v(YR, 2)}, {v(V_MT)}
        """)

    def so_read(g):
        for q in range(2):
            o = 16 * (g % 4) + 8 * q + 2
            A(f"ds_read2_b32 {v(SO + 4 * (g % 2) + 2 * q, 2)}, {v(V_SA)} offset0:{o} offset1:{o + 4}")

    def xload(r):
        A(f"buffer_load_dwordx4 {v(X + 4 * (r % 4), 4)}, {v(SO + 4 * ((r // 4) % 2) + r % 4)}, {s(S_X, 4)}, 0 offen")

    def ef_load(skip=0):
        A(f"v_mad_u32_u24 {v(V_EID)}, {v(V_EID)}, 32, {v(V_HALF16)}")
        m = (0xffffffff << skip) & 0xffffffff
        if skip:
            A(f"s_mov_b32 exec_lo, {m}\ns_mov_b32 exec_hi, {m}")
        A(f"buffer_load_dwordx4 {v(EF, 4)}, {v(V_EID)}, {s(S_EF, 4)}, 0 offen")
        if skip:
            A("s_mov_b64 exec, -1")

    def sm_issue(base, n):
        for j in range(n):
            A(f"v_readlane_b32 {s(SMB + 8 * j)}, {v(V_EID)}, {base + j}")
        if n < 5:
            A(f"s_nop {4 - n}")
        for j in range(n):
            A(f"s_buffer_load_dwordx8 {s(SMB + 8 * j, 8)}, {s(S_EF, 4)}, {s(SMB + 8 * j)}")

    def sm_move(base, n):
        for half in range(2):
            for j in range(n):
                if j == 0:
                    A(f"s_mov_b32 exec_{'hi' if half else 'lo'}, {1 << base}\ns_mov_b32 exec_{'lo' if half else 'hi'}, 0")
                else:
                    A("s_lshl_b64 exec, exec, 1")
                for q in range(2):
                    A(f"v_mov_b64 {v(EF + 2 * q, 2)}, {s(SMB + 8 * j + 4 * half + 2 * q, 2)}")
        A("s_mov_b64 exec, -1")

    def grab(reg):
        A(f"s_mov_b64 exec, 1\nds_add_rtn_u32 {v(reg)}, {v(V_CTRA)}, {v(V_ONE)}\ns_mov_b64 exec, -1")

    key_ops = [f"v_mul_u32_u24_sdwa {v(V_KN)}, {s(S_C0)}, {v(V_KN)} {SDWA} src1_sel:BYTE_3",
               f"v_xor_b32_dpp {v(V_MT)}, {v(V_KN)}, {v(V_KN)} row_shl:1 {DPP} bound_ctrl:0",
               f"v_cmp_ne_u32 {s(S_CMP, 2)}, 0, {v(V_MT)}"]

    sm0 = opt.get("sm0", 0)
    A(f"s_mov_b32 {s(S_NEXT)}, {s(S_WAVE)}\ns_cmp_ge_u32 {s(S_WAVE)}, {s(S_NT)}\ns_cbranch_scc1 KM_DONE")
    A(f"ds_read_b32 {v(V_EID)}, {v(V_EID)} offset:12")
    so_read(0)
    A(f"ds_read_b32 {v(V_KN)}, {v(V_KN)} offset:12\nds_read_b64 {v(YR, 2)}, {v(V_MT)}")
    so_read(1)
    A("s_waitcnt lgkmcnt(6)")
    ef_load(sm0)
    A("s_waitcnt lgkmcnt(4)")
    for r in range(4):
        xload(r)
    A("s_waitcnt lgkmcnt(0)")
    if sm0:
        sm_issue(0, sm0)
    A(key_ops[0] + "\ns_nop 1\n" + key_ops[1] + "\n" + key_ops[2])
    if sm0:
        A("s_waitcnt lgkmcnt(0)")
        sm_move(0, sm0)
    A("s_waitcnt vmcnt(4)")
    stamp("loop")

    def flush_ops(r):
        ops = [[f"v_add_u32_dpp {v(V_FA)}, {v(V_KK)}, {v(V_ACCL)} row_newbcast:{r} {DPP}"]]
        for j in range(8):
            st = STG + 2 * (j % 4)
            ops.append([f"v_cvt_f64_f32 {v(st, 2)}, {v(ACC + j)}", f"ds_add_f64 {v(V_FA)}, {v(st, 2)} offset:{RS * j}"])
        return ops

    def emit(groups):
        for g in groups:
            for op in ([g] if isinstance(g, str) else g):
                A(op)

    def acc_ops(r, first):
        ops = []
        for j in range(4):
            rr = D + 16 * (j // 2) + (r & ~1)
            o = r & 1
            if first:
                ops.append(f"v_pk_mul_f32 {v(ACC + 2 * j, 2)}, {v(rr, 2)}, {v(TP + 2 * j, 2)} op_sel:[{o},0] op_sel_hi:[{o},1]")
            else:
                ops.append(f"v_pk_fma_f32 {v(ACC + 2 * j, 2)}, {v(rr, 2)}, {v(TP + 2 * j, 2)}, {v(ACC + 2 * j, 2)} op_sel:[{o},0,0] op_sel_hi:[{o},1,1]")
        return ops

    def exp_ops(q):
        return [f"v_exp_f32 {v(E + j)}, {v(D + 16 * (j // 2) + q + j % 2)}" for j in range(4)]

    add_ops = [f"v_pk_add_f32 {v(E + 2 * j, 2)}, {v(E + 2 * j, 2)}, 1.0 op_sel_hi:[1,0]" for j in range(2)]
    rcp_ops = [f"v_rcp_f32 {v(E + j)}, {v(E + j)}" for j in range(4)]

    def mul_ops(q):
        return [f"v_pk_mul_f32 {v(D + 16 * j + q, 2)}, {v(D + 16 * j + q, 2)}, {v(E + 2 * j, 2)}" for j in range(2)]

    GRAB, EFS = opt.get("grab", 5), opt.get("efs", 8)
    prio = opt.get("prio", {-1: 0, 4: 1, 8: 2, 12: 3})
    sm = opt.get("sm", {})
    smbase = {st: sum(sm[q] for q in sm if q < st) for st in sm}
    assert set(sm) <= {4, 8, 12} and all(st >= EFS for st in sm)
    smlim = opt.get("smlim", {})
    S_LIM = {st: S_NT for st in sm}
    for st, reg in zip(smlim, (S_N, S_C1, 1)):
        S_LIM[st] = reg
        A(f"s_min_u32 {s(reg)}, {s(S_NT)}, {smlim[st]}")
    A(".p2align 6")
    loop_start = len(A.lines)
    A("KM_LOOP:")
    endprio = opt.get("endprio")

    def setprio(k):
        A(f"s_setprio {prio[k]}")
        if endprio and endprio[k] != prio[k]:
            A(f"s_cbranch_vccz KM_P{k + 1}\ns_setprio {endprio[k]}\nKM_P{k + 1}:")

    if endprio:
        A(f"s_add_u32 s3, {s(S_NEXT)}, {opt.get('endn', 16)}\ns_cmp_ge_u32 s3, {s(S_NT)}\ns_cselect_b64 vcc, -1, 0")
    if -1 in prio:
        setprio(-1)
    fo = flush_ops(15)
    tm = [f"v_mfma_f32_4x4x4_16b_bf16 {v(D + 16 + 4 * i, 4)}, {v(YR, 2)}, {v(CG + 2 * i, 2)}, 0" for i in range(4)]
    tc = [f"v_cvt_pk_bf16_f32 {v(T + 2 * j + hh)}, {v(D + 16 + 8 * hh + j)}, {v(D + 20 + 8 * hh + j)}" for hh in range(2) for j in range(2)]
    ex = exp_ops(0)
    emit([tm[0], fo[0], tm[1], fo[1], tm[2], fo[2], tm[3], fo[3]])
    A(f"v_mfma_f32_32x32x16_bf16 {v(D, 16)}, {v(EF, 4)}, {v(W, 4)}, 0")
    emit([tc[0], tc[1], fo[4], fo[5], tc[2], tc[3]])
    A(f"v_mfma_f32_32x32x16_bf16 {v(D + 16, 16)}, {v(EF, 4)}, {v(W + 4, 4)}, 0")
    emit([fo[6], fo[7], fo[8], f"v_mov_b32 {v(V_KK)}, {v(V_KN)}", f"s_or_b32 {s(S_MASK)}, {s(S_CMP)}, {s(S_CMP + 1)}",
          ex[0], ex[1], "s_nop 1", ex[2], ex[3], "s_nop 0"] + add_ops)
    for r in range(16):
        tr = T + (2 if r >= 8 else 0)
        m4 = [f"v_mfma_f32_4x4x4_16b_bf16 {v(TP + 4 * h, 4)}, {v(tr, 2)}, {v(X + 4 * (r % 4) + 2 * h, 2)}, 0 cbsz:3 abid:{r % 8}" for h in range(2)]
        if r in prio:
            setprio(r)
        A(f"s_waitcnt vmcnt(3)")
        if r == 15:
            emit([m4[0], key_ops[0], m4[1]])
            xload(r + 4)
            emit([key_ops[1], key_ops[2]])
            side = []
        else:
            trans = rcp_ops if r % 2 == 0 else exp_ops(r + 1)
            side = mul_ops(r) if r % 2 == 0 else add_ops
            emit([m4[0], trans[0], m4[1], trans[1], trans[2], trans[3]])
            if r % 4 == 0 and r > 0:
                A("s_waitcnt lgkmcnt(0)")
            xload(r + 4)
        if r % 4 == 0:
            so_read(r // 4 + 2)
        if r == GRAB:
            grab(V_MT)
        if r == GRAB + 1:
            if r % 4:
                A("s_waitcnt lgkmcnt(0)")
            A(f"v_readfirstlane_b32 {s(S_NEXT)}, {v(V_MT)}")
        if r == GRAB + 2:
            A(f"s_min_u32 {s(S_NEXT)}, {s(S_NEXT)}, {s(S_NT)}")
            tile_addr(S_NEXT, r >= 5)
            tile_reads()
        if r == 5 and GRAB + 2 < 5:
            A(f"v_lshl_add_u32 {v(V_SA)}, {v(V_HALF16)}, 4, {s(S_TMP)}")
        if r - 4 in sm:
            A(f"s_cmp_ge_u32 {s(S_NEXT)}, {s(S_LIM[r - 4])}\ns_cbranch_scc1 KM_NOMV{r}")
            sm_move(smbase[r - 4], sm[r - 4])
            A(f"KM_NOMV{r}:")
        if r == EFS:
            A(f"s_cmp_ge_u32 {s(S_NEXT)}, {s(S_NT)}\ns_cbranch_scc1 KM_NOEF")
            A(f"v_mad_u32_u24 {v(V_EID)}, {v(V_EID)}, 32, {v(V_HALF16)}")
            m = (0xffffffff << sum(sm.values())) & 0xffffffff
            A(f"s_mov_b32 {s(S_TMP2)}, {m}")
            for st in smlim:
                A(f"s_cmp_ge_u32 {s(S_NEXT)}, {s(S_LIM[st])}\ns_cselect_b32 s3, {((1 << sm[st]) - 1) << smbase[st]}, 0\ns_or_b32 {s(S_TMP2)}, {s(S_TMP2)}, s3")
            if opt.get("hackB"):
                B = opt["hackB"]
                A(f"""
                s_lshr_b32 s3, s2, 3
                s_add_u32 s3, s3, {s(S_NEXT)}
                s_and_b32 s3, s3, {B - 1}
                s_cbranch_scc1 KM_NOEF
                """)
                for j in range(B):
                    A(f"""
                    s_add_u32 s3, {s(S_NEXT)}, {j + opt.get("hlead", 0)}
                    s_min_u32 s3, s3, {s(S_NT)}
                    s_lshl_b32 s3, s3, 9
                    v_add_u32 {v(STG + j)}, s3, {v(V_LAE)}
                    ds_read_b32 {v(STG + j)}, {v(STG + j)} offset:{L_LIST + 12}
                    """)
                A(f"s_waitcnt lgkmcnt(0)\ns_mov_b32 exec_lo, {s(S_TMP2)}\ns_mov_b32 exec_hi, {s(S_TMP2)}")
                for j in range(B):
                    A(f"v_mad_u32_u24 {v(STG + j)}, {v(STG + j)}, 32, {v(V_HALF16)}")
                    A(f"buffer_load_dwordx4 {v(EF, 4)}, {v(STG + j)}, {s(S_EF, 4)}, 0 offen")
                A("s_mov_b64 exec, -1\nKM_NOEF:")
            else:
                A(f"""
                s_mov_b32 exec_lo, {s(S_TMP2)}
                s_mov_b32 exec_hi, {s(S_TMP2)}
                buffer_load_dwordx4 {v(EF, 4)}, {v(V_EID)}, {s(S_EF, 4)}, 0 offen
                s_mov_b64 exec, -1
                KM_NOEF:
                """)
        if r in sm:
            A(f"s_cmp_ge_u32 {s(S_NEXT)}, {s(S_LIM[r])}\ns_cbranch_scc1 KM_NOIS{r}")
            sm_issue(smbase[r], sm[r])
            A(f"KM_NOIS{r}:")
        if r == 11 and opt.get("trace"):
            A("s_memrealtime s[90:91]\ns_memtime s[88:89]")
        if r == 13 and opt.get("trace"):
            A(f"s_mov_b32 m0, s1\ns_add_u32 s1, s1, 1\nv_writelane_b32 {v(V_TRC)}, s90, m0\ns_add_u32 m0, m0, 32\ns_nop 0\nv_writelane_b32 {v(V_TRC)}, s88, m0")
        if r == 14 and 12 not in sm:
            A("s_waitcnt lgkmcnt(0)")
        emit(side)
        if r > 0:
            A(f"s_bitcmp1_b32 {s(S_MASK)}, {r - 1}\ns_cbranch_scc1 KM_F{r}")
        emit(acc_ops(r, r == 0))
        if r > 0:
            A(f"KM_R{r}:")
    if 12 in sm:
        A(f"s_cmp_ge_u32 {s(S_NEXT)}, {s(S_NT)}\ns_cbranch_scc1 KM_LAST")
        if -1 in prio and opt.get("lowmove", 1):
            A(f"s_setprio {prio[-1]}")
        A("s_waitcnt lgkmcnt(0)")
        if 12 in smlim:
            A(f"s_cmp_ge_u32 {s(S_NEXT)}, {s(S_LIM[12])}\ns_cbranch_scc1 KM_LOOP")
        sm_move(smbase[12], sm[12])
        A("s_branch KM_LOOP\nKM_LAST:")
    else:
        A(f"s_cmp_lt_u32 {s(S_NEXT)}, {s(S_NT)}\ns_cbranch_scc1 KM_LOOP")
    drop = opt.get("drop", [])
    if drop:
        A.lines[loop_start:] = [ln for ln in A.lines[loop_start:] if not any(d in ln for d in drop)]
    emit(flush_ops(15))
    A("s_branch KM_DONE")
    for r in range(1, 16):
        A(f"KM_F{r}:")
        emit(flush_ops(r - 1))
        emit(acc_ops(r, True))
        A(f"s_branch KM_R{r}")
    A(f"""
    KB_NARROW:
    s_mov_b32 {s(S_WIDE)}, 0
    s_branch KB_ROUND
    KB_NEXT:
    s_lshl_b32 {s(S_TMP)}, 16, {s(S_WIDE)}
    s_add_u32 {s(S_K0)}, {s(S_K0)}, {s(S_TMP)}
    KB_ROUND:
    s_waitcnt vmcnt(0) lgkmcnt(0)
    s_barrier
    v_and_b32 {v(P0)}, 0xff, v0
    v_lshlrev_b32 {v(P0)}, 2, {v(P0)}
    v_mov_b32 {v(P1)}, 0
    v_mov_b32 {v(P2)}, {NSTART}
    ds_write_b32 {v(P0)}, {v(P1)} offset:{L_HIST}
    ds_write2_b32 {v(V_CTRA)}, {v(P2)}, {v(P1)} offset0:0 offset1:1
    """)
    round_consts()
    A("""
    s_waitcnt lgkmcnt(0)
    s_barrier
    s_branch KB_ROUND0
    """)
    WM, A64, AG, AF, OD, OP = 32, 80, 16, 8, 80, 96
    A("KM_DONE:")
    stamp("done")
    A(f"""
    s_setprio 0
    s_cmp_eq_u32 {s(S_MORE)}, 0
    s_cbranch_scc0 KB_NEXT
    s_cmp_ge_u32 {s(S_WAVE)}, 10
    s_cbranch_scc0 KE_MIX
    s_waitcnt lgkmcnt(0)
    s_barrier
    """)
    stamp("bar")
    A(f"""
    s_branch KE_FIN
    KE_MIX:
    v_and_b32 v1, 63, v0
    v_lshlrev_b32 v2, 4, v1
    v_add_u32 v2, {WS_WF}, v2
    v_add_u32 v3, 4096, v2
    """)
    for f in range(8):
        A(f"global_load_dwordx4 {v(WM + 4 * f, 4)}, {'v2' if f < 4 else 'v3'}, {s(S_WS, 2)} offset:{1024 * (f % 4)} {WT}")
    A(f"""
    v_bfe_u32 v2, v1, 2, 2
    v_mul_u32_u24 v2, {NS}, v2
    v_and_b32 v3, 3, v1
    v_mul_u32_u24 v3, {RS}, v3
    v_lshrrev_b32 v4, 4, v1
    v_lshlrev_b32 v5, 6, v4
    v_add3_u32 v2, v2, v3, v5
    s_mul_i32 s70, {s(S_WAVE)}, {4 * NS}
    s_add_u32 s70, s70, {L_ACC}
    v_add_u32 v2, s70, v2
    v_and_b32 v3, 15, v1
    v_lshlrev_b32 v3, 4, v3
    v_lshl_add_u32 v3, v4, 17, v3
    s_lshl_b32 s70, {s(S_WAVE)}, 19
    s_lshl_b32 s71, {s(S_BETA)}, 9
    s_add_u32 s70, s70, s71
    v_add_u32 v3, s70, v3
    s_lshr_b32 s72, {s(S_BETA)}, 4
    s_lshl_b32 s72, s72, 9
    s_sub_u32 s72, s72, s71
    s_and_b32 s73, {s(S_BETA)}, 15
    s_cselect_b32 s72, 0x40000000, s72
    v_cmp_le_u32 vcc, {9 * 64 + 48}, v0
    v_add_u32 v4, s72, v3
    s_nop 0
    v_cndmask_b32 v3, v3, v4, vcc
    s_mov_b32 {s(S_SC)}, {fbits(-math.log(2.0) * opt.get('oscale', 1.0))}
    s_mov_b32 {s(S_SC + 1)}, {fbits(-math.log(2.0) * opt.get('oscale', 1.0))}
    s_waitcnt lgkmcnt(0)
    s_barrier
    """)
    stamp("bar")
    for cpar in range(2):
        for hh in range(4):
            A(f"ds_read_b128 {v(A64 + 16 * cpar + 4 * hh, 4)}, v2 offset:{4 * RS * cpar + 16 * hh}")
    for j in range(8):
        A(f"s_waitcnt lgkmcnt({7 - j})")
        A(f"v_cvt_f32_f64 {v(AG + 2 * j)}, {v(A64 + 4 * j, 2)}")
        A(f"v_cvt_f32_f64 {v(AG + 2 * j + 1)}, {v(A64 + 4 * j + 2, 2)}")
    for j in range(8):
        A(f"v_pk_mul_f32 {v(AG + 2 * j, 2)}, {v(AG + 2 * j, 2)}, {s(S_SC, 2)}")
    for j in range(8):
        A(f"v_cvt_pk_bf16_f32 {v(AF + j)}, {v(AG + 2 * j)}, {v(AG + 2 * j + 1)}")
    A("s_waitcnt vmcnt(0)\ns_nop 0")
    for dt in range(4):
        A(f"v_mfma_f32_16x16x32_bf16 {v(OD + 4 * dt, 4)}, {v(AF, 4)}, {v(WM + 4 * dt, 4)}, 0")
    for dt in range(4):
        A(f"v_mfma_f32_16x16x32_bf16 {v(OD + 4 * dt, 4)}, {v(AF + 4, 4)}, {v(WM + 16 + 4 * dt, 4)}, {v(OD + 4 * dt, 4)}")
    A("s_nop 7")
    for j in range(8):
        A(f"v_cvt_pk_bf16_f32 {v(OP + j)}, {v(OD + 2 * j)}, {v(OD + 2 * j + 1)}")
    ost = opt.get("out_st", "")
    A(f"buffer_store_dwordx4 {v(OP, 4)}, v3, {s(S_OUT, 4)}, 0 offen {ost}")
    A(f"buffer_store_dwordx4 {v(OP + 4, 4)}, v3, {s(S_OUT, 4)}, 0 offen offset:256 {ost}")
    A("KE_FIN:")
    if opt.get("diag"):
        A("""
        s_waitcnt lgkmcnt(0)
        KE_SPIN:
        s_memrealtime s[74:75]
        s_waitcnt lgkmcnt(0)
        s_sub_u32 s74, s74, s76
        s_cmp_lt_u32 s74, 10000
        s_cbranch_scc1 KE_SPIN
        """)
    if opt.get("trace"):
        A(f"s_lshl_b32 s78, s2, 12\ns_add_u32 s78, s78, {130 << 20}\nv_lshl_add_u32 v1, v0, 2, s78\nglobal_store_dword v1, {v(V_TRC)}, {s(S_WS, 2)}")
    if opt.get("prof"):
        A("s_waitcnt vmcnt(0)")
        stamp("fin")
        A("s_waitcnt lgkmcnt(0)")
        A(f"s_lshl_b32 s3, s2, 4\ns_add_u32 s3, s3, {s(S_WAVE)}\ns_lshl_b32 s3, s3, 6\ns_add_u32 s3, s3, {(128 << 20) + (1 << 20)}")
        A("v_mov_b32 v1, s3")
        for i in range(len(pts)):
            A(f"v_mov_b32 v2, {s(SB + 2 * i)}\nglobal_store_dword v1, v2, {s(S_WS, 2)} offset:{4 * i}")
    A("K_END:\ns_endpgm")


def generate(opt):
    A = Asm()
    out = HEADER
    if opt.get("aslist"):
        out += f"; @launch kernel={NAME}_kernel grid=(256,1,1) block=(1024,1,1) lds={LDS_BYTES}\n"
    else:
        out += f"; @launch grid=(256,1,1) block=(1024,1,1) lds={LDS_BYTES}\n"
    out += '.amdgcn_target "amdgcn-amd-amdhsa--gfx950"\n.text\n'
    gen(A, opt)
    out += A.text()
    out += f""".section .rodata,"a"
.p2align 6
.amdhsa_kernel {NAME}_kernel
  .amdhsa_next_free_vgpr {NVGPR}
  .amdhsa_next_free_sgpr 102
  .amdhsa_accum_offset {NVGPR}
  .amdhsa_group_segment_fixed_size 0
  .amdhsa_kernarg_size 88
  .amdhsa_user_sgpr_count 2
  .amdhsa_user_sgpr_kernarg_segment_ptr 1
  .amdhsa_system_sgpr_workgroup_id_x 1
  .amdhsa_float_denorm_mode_32 3
.end_amdhsa_kernel
"""
    return out


if __name__ == "__main__":
    opt = eval("dict(" + (sys.argv[2] if len(sys.argv) > 2 else "") + ")")
    path = sys.argv[1] if len(sys.argv) > 1 else f"cdna_kernels/{NAME}.s"
    open(path, "w").write(generate(opt))
```

```python
import sys, struct, math

NAME = "standalone__tensor_product_equiv_tfn__graph"

HEADER = """; Kernarg layout for this problem (88 bytes, ptrs only, base s[0:1]):
"""

CHUNK = 2500
PSIZE = 2500
RECSTRIDE = 30336
YOFF = 10112
WS_TAB = 256 * RECSTRIDE
WS_WF = WS_TAB + 256 * 2048
SPIN_MAX = 1 << 18

RS = 272
NS = 8 * RS
L_HIST = 0
L_PREF = 1024
L_CTR = 2048
CAP = 4096
L_LIST = 2304
L_ACC = L_LIST + (CAP + 64) * 16
LDS_BYTES = L_ACC + 41 * NS
L_STG = 2304
L_WF = 36864

DPP = "row_mask:0xf bank_mask:0xf"
SDWA = "dst_sel:DWORD dst_unused:UNUSED_PAD src0_sel:DWORD"

NW = 16
V_DBASE, V_DCNT, V_HALF16, V_ACCL, V_LAD, V_LAE, V_LAY = 1, 2, 3, 4, 5, 6, 7
V_ONE, V_CTRA, V_KK, V_KN, V_EID, V_SA, V_FA, V_MT = 8, 9, 10, 11, 12, 13, 14, 15
W = 16
CG = 24
D = 32
X = 64
TP = 80
ACC = 88
STG = 96
SO = 104
E = 112
T = 116
EF = 120
YR = 124
V_TRC, V_JUNK = 126, 127
NVGPR = 128

S_X, S_EF, S_OUT, S_WS = 4, 8, 12, 16
S_BETA, S_WAVE, S_K0, S_WIDE, S_N, S_NT, S_NEXT, S_MASK = 18, 19, 20, 21, 22, 23, 24, 25
S_CMP = 26
S_MORE, S_TMP, S_C0, S_C1 = 28, 29, 30, 31
S_M1, S_M2 = 32, 40
S_ANY2 = 48
S_SC = 50
S_XP = 52
S_TMP2 = 0
S_DBG = 58
S_PM = 60
KA = 32
S_ROT = 3
S_WY = 56
SMB = 32

DEFAULT_PTS = ["start", "desc", "rec", "sorted", "loop", "done", "bar", "fin", "b3", "b4"]


def fbits(x):
    return "0x%08x" % struct.unpack("<I", struct.pack("<f", x))[0]


class Asm:
    def __init__(self):
        self.lines = []

    def __call__(self, s):
        for ln in s.strip("\n").split("\n"):
            ln = ln.strip()
            if not ln:
                continue
            if ln.endswith(":") or ln.startswith("."):
                self.lines.append(ln)
            else:
                self.lines.append("    " + ln)

    def text(self):
        return "\n".join(self.lines) + "\n"


def v(a, n=1):
    return f"v{a}" if n == 1 else f"v[{a}:{a+n-1}]"


def s(a, n=1):
    return f"s{a}" if n == 1 else f"s[{a}:{a+n-1}]"


def wave_scan(A, regs):
    steps = ["row_shr:1 " + DPP + " bound_ctrl:0", "row_shr:2 " + DPP + " bound_ctrl:0",
             "row_shr:4 " + DPP + " bound_ctrl:0", "row_shr:8 " + DPP + " bound_ctrl:0",
             "row_bcast:15 row_mask:0xa bank_mask:0xf", "row_bcast:31 row_mask:0xc bank_mask:0xf"]
    for st in steps:
        A("s_nop 1" if len(regs) == 1 else "s_nop 0")
        for r in regs:
            A(f"v_add_u32_dpp {v(r)}, {v(r)}, {v(r)} {st}")


def gen(A, opt):
    name = NAME + "_kernel"
    WT = "sc1"
    P0, P1, P2, P3, P4, P5, P6 = 112, 113, 114, 115, 116, 117, 118
    QD, QS, QY, QH, QR, QT, QP, QZ = 32, 36, 40, 48, 52, 56, 60, 64
    pts = opt.get("pts", DEFAULT_PTS)
    SB = 102 - 2 * len(pts)

    def stamp(nm):
        if opt.get("prof") and nm in pts:
            A(f"s_memrealtime {s(SB + 2 * pts.index(nm), 2)}")
        if opt.get("diag") == nm:
            A("s_memrealtime s[76:77]")

    def xtouch(n, base):
        A(f"""
        s_lshr_b32 {s(S_TMP)}, s2, {0 if opt.get("xmall") else 3}
        s_mul_i32 {s(S_TMP)}, {s(S_TMP)}, {n * 128}
        s_add_u32 {s(S_TMP)}, {s(S_TMP)}, {base * 128}
        s_getreg_b32 s3, hwreg(HW_REG_XCC_ID, 0, 4)
        s_and_b32 s3, s3, {3 if opt.get("rot", 1) and not opt.get("xmall") else 0}
        s_mul_i32 s3, s3, {PSIZE * 512}
        s_add_u32 {s(S_TMP)}, {s(S_TMP)}, s3
        v_cmp_gt_u32 vcc, {n}, v0
        v_lshl_add_u32 {v(P5)}, v0, 7, {s(S_TMP)}
        s_and_saveexec_b64 {s(S_PM, 2)}, vcc
        s_cbranch_execz XT_{base}
        buffer_load_dword {v(V_JUNK)}, {v(P5)}, {s(S_XP, 4)}, 0 offen
        XT_{base}:
        s_mov_b64 exec, -1
        """)

    def scan256(cnt, pre, addr, tot):
        A(f"""
        ds_read_b128 {v(cnt, 4)}, {v(addr)} offset:{L_HIST}
        s_waitcnt lgkmcnt(0)
        v_add_u32 {v(pre + 2)}, {v(cnt)}, {v(cnt + 1)}
        v_add_u32 {v(pre + 3)}, {v(pre + 2)}, {v(cnt + 2)}
        v_add_u32 {v(pre)}, {v(pre + 3)}, {v(cnt + 3)}
        v_add_u32 {v(tot)}, {v(pre + 3)}, {v(cnt + 3)}
        """)
        wave_scan(A, [tot])
        A(f"""
        v_sub_u32 {v(pre)}, {v(tot)}, {v(pre)}
        v_add_u32 {v(pre + 1)}, {v(pre)}, {v(cnt)}
        v_add_u32 {v(pre + 2)}, {v(pre)}, {v(pre + 2)}
        v_add_u32 {v(pre + 3)}, {v(pre)}, {v(pre + 3)}
        ds_write_b128 {v(addr)}, {v(pre, 4)} offset:{L_PREF}
        """)

    def round_consts():
        A(f"""
        v_and_b32 {v(P3)}, 15, v0
        v_add_u32 {v(P3)}, {s(S_K0)}, {v(P3)}
        v_lshrrev_b32 v92, 4, v0
        v_mul_u32_u24 v92, {4 * RECSTRIDE}, v92
        v_add_u32 v93, {RECSTRIDE}, v92
        v_add_u32 v94, {2 * RECSTRIDE}, v92
        v_add_u32 v95, {3 * RECSTRIDE}, v92
        """)

    A(f".globl {name}\n.p2align 8\n.type {name},@function\n{name}:")
    stamp("start")
    A(f"""
    s_cmp_ge_u32 s2, 256
    s_cbranch_scc1 K_END
    s_load_dwordx16 {s(KA, 16)}, s[0:1], 0
    s_load_dwordx2 {s(S_WS, 2)}, s[0:1], 80
    s_load_dwordx2 {s(S_OUT, 2)}, s[0:1], 64
    s_load_dwordx2 {s(S_DBG, 2)}, s[0:1], 72
    v_lshrrev_b32 {v(P0)}, 6, v0
    v_and_b32 {v(P1)}, 63, v0
    v_readfirstlane_b32 {s(S_WAVE)}, {v(P0)}
    s_mul_i32 {s(S_TMP)}, s2, {CHUNK * 4}
    s_mul_i32 {s(S_C1)}, s2, {CHUNK * 8}
    v_lshl_add_u32 {v(P2)}, v0, 4, {s(S_TMP)}
    v_lshl_add_u32 {v(P3)}, v0, 5, {s(S_C1)}
    s_movk_i32 {s(S_C0)}, {CHUNK // 4}
    v_cmp_gt_u32 {s(S_PM, 2)}, {s(S_C0)}, v0
    v_mov_b64 {v(QZ, 2)}, 0
    v_mov_b64 {v(QZ + 2, 2)}, 0
    v_and_b32 {v(P0)}, 0xff, v0
    v_lshlrev_b32 {v(P0)}, 2, {v(P0)}
    ds_write_b32 {v(P0)}, {v(QZ)} offset:{L_HIST}
    s_cmp_ge_u32 {s(S_WAVE)}, 10
    s_cbranch_scc1 KA_AUX0
    s_mov_b64 exec, {s(S_PM, 2)}
    s_waitcnt lgkmcnt(0)
    """)
    stamp("karg")
    A(f"""
    global_load_dwordx4 {v(QD, 4)}, {v(P2)}, {s(KA + 4, 2)}
    s_barrier
    global_load_dwordx4 {v(QS, 4)}, {v(P2)}, {s(KA + 2, 2)}
    global_load_dwordx4 {v(QY, 4)}, {v(P3)}, {s(KA + 6, 2)}
    global_load_dwordx4 {v(QY + 4, 4)}, {v(P3)}, {s(KA + 6, 2)} offset:16
    s_mov_b64 exec, -1
    s_branch KA_JOIN0
    KA_AUX0:
    """)
    if opt.get("tcode"):
        A(f"""
        s_cmp_lt_u32 s2, {opt["tcode"]}
        s_cbranch_scc0 KA_NOCODE
        s_getpc_b64 s[62:63]
        KA_PC:
        v_subrev_u32 {v(P4)}, 640, v0
        v_min_u32 {v(P4)}, (K_END - KA_PC) / 64, {v(P4)}
        v_lshlrev_b32 {v(P4)}, 6, {v(P4)}
        global_load_dword {v(V_JUNK)}, {v(P4)}, s[62:63]
        KA_NOCODE:
        """)
    A(f"""
    s_waitcnt lgkmcnt(0)
    s_cmp_eq_u32 {s(S_WAVE)}, 15
    s_cbranch_scc0 KA_NOTAG
    s_cmp_eq_u32 s2, 0
    s_cbranch_scc0 KA_NOTAG
    s_memrealtime s[62:63]
    s_waitcnt lgkmcnt(0)
    s_lshl_b32 s63, s63, 24
    s_or_b32 s63, s63, 1
    v_mov_b32 {v(QD)}, s63
    v_mov_b32 {v(QD + 1)}, s62
    s_mov_b64 exec, 1
    global_store_dwordx2 {v(QZ)}, {v(QD, 2)}, {s(S_DBG, 2)} {WT}
    s_mov_b64 exec, -1
    KA_NOTAG:
    s_barrier
    """)
    if opt.get("ttlb"):
        sh = opt["ttlb"]
        A(f"""
        s_cmp_eq_u32 {s(S_WAVE)}, 14
        s_cbranch_scc0 KA_JOIN0
        v_min_u32 {v(P4)}, {255 >> sh}, {v(P1)}
        v_mul_u32_u24 {v(P4)}, {RECSTRIDE << sh}, {v(P4)}
        v_add_u32 {v(P4)}, {RECSTRIDE - 128}, {v(P4)}
        global_load_dword {v(V_JUNK)}, {v(P4)}, {s(S_WS, 2)}
        v_lshlrev_b32 {v(P4)}, 19, {v(P1)}
        v_min_u32 {v(P5)}, {20480000 - 4}, {v(P4)}
        global_load_dword {v(V_JUNK)}, {v(P5)}, {s(KA + 8, 2)}
        v_min_u32 {v(P5)}, {5120000 - 4}, {v(P4)}
        global_load_dword {v(V_JUNK)}, {v(P5)}, {s(KA, 2)}
        """)
    A(f"""
    KA_JOIN0:
    s_and_b32 {s(S_BETA)}, s2, 7
    s_lshl_b32 {s(S_BETA)}, {s(S_BETA)}, 5
    s_lshr_b32 s3, s2, 3
    s_add_u32 {s(S_BETA)}, {s(S_BETA)}, s3
    s_sub_u32 {s(S_X)}, {s(KA)}, 512
    s_subb_u32 {s(S_X + 1)}, {s(KA + 1)}, 0
    s_and_b32 {s(S_X + 1)}, {s(S_X + 1)}, 0xffff
    s_or_b32 {s(S_X + 1)}, {s(S_X + 1)}, 0x100000
    s_mov_b32 {s(S_X + 2)}, 64
    s_mov_b32 {s(S_X + 3)}, 0x800000
    s_mov_b32 {s(S_XP)}, {s(KA)}
    s_and_b32 {s(S_XP + 1)}, {s(KA + 1)}, 0xffff
    s_mov_b32 {s(S_XP + 2)}, 5120000
    s_mov_b32 {s(S_XP + 3)}, 0x20000
    s_mov_b32 {s(S_EF)}, {s(KA + 8)}
    s_and_b32 {s(S_EF + 1)}, {s(KA + 9)}, 0xffff
    s_mov_b32 {s(S_EF + 2)}, 20480000
    s_mov_b32 {s(S_EF + 3)}, 0x20000
    s_and_b32 {s(S_OUT + 1)}, {s(S_OUT + 1)}, 0xffff
    s_mov_b32 {s(S_OUT + 2)}, 5120000
    s_mov_b32 {s(S_OUT + 3)}, 0x20000
    s_mov_b32 {s(S_K0)}, 0
    s_mov_b32 {s(S_WIDE)}, 1
    s_lshr_b32 s3, {s(S_BETA)}, 2
    s_lshl_b32 s3, s3, 4
    s_and_b32 {s(S_TMP)}, {s(S_BETA)}, 1
    s_lshl_b32 {s(S_TMP)}, {s(S_TMP)}, 3
    s_add_u32 s3, s3, {s(S_TMP)}
    s_and_b32 {s(S_TMP)}, {s(S_BETA)}, 2
    s_lshl_b32 {s(S_TMP)}, {s(S_TMP)}, 9
    s_add_u32 s3, s3, {s(S_TMP)}
    s_add_u32 s3, s3, {WS_TAB}
    v_lshrrev_b32 {v(P2)}, 4, v0
    v_lshlrev_b32 {v(P2)}, 2, {v(P2)}
    v_and_or_b32 {v(P3)}, v0, 3, {v(P2)}
    v_lshl_add_u32 {v(V_FA)}, {v(P3)}, 11, s3
    v_and_b32 {v(P4)}, 31, {v(P1)}
    v_lshrrev_b32 {v(P5)}, 5, {v(P1)}
    v_lshlrev_b32 {v(V_HALF16)}, 4, {v(P5)}
    v_lshlrev_b32 {v(V_ACCL)}, 3, {v(P4)}
    v_add_u32 {v(V_ACCL)}, {L_ACC}, {v(V_ACCL)}
    v_and_b32 {v(P6)}, 15, v0
    v_add_lshl_u32 {v(V_LAD)}, {v(P6)}, {v(V_HALF16)}, 4
    v_lshrrev_b32 {v(P6)}, 3, {v(P4)}
    v_lshlrev_b32 {v(P6)}, 2, {v(P6)}
    v_and_or_b32 {v(P6)}, {v(P4)}, 3, {v(P6)}
    v_lshlrev_b32 {v(P6)}, 4, {v(P6)}
    v_and_b32 {v(P0)}, 4, {v(P4)}
    v_lshl_add_u32 {v(V_LAE)}, {v(P0)}, 6, {v(P6)}
    v_lshrrev_b32 {v(P6)}, 2, {v(P4)}
    v_and_b32 {v(P0)}, 1, {v(P4)}
    v_lshl_add_u32 {v(P6)}, {v(P0)}, 3, {v(P6)}
    v_add_lshl_u32 {v(V_LAY)}, {v(P6)}, {v(V_HALF16)}, 4
    v_mov_b32 {v(V_ONE)}, 1
    v_mov_b32 {v(V_CTRA)}, {L_CTR}
    s_cmp_ge_u32 {s(S_WAVE)}, 10
    s_cbranch_scc1 KA_AUX1
    s_mov_b64 exec, {s(S_PM, 2)}
    v_lshlrev_b32 {v(P0)}, 2, v0
    v_add_u32 {v(P0)}, 4096, {v(P0)}
    s_movk_i32 {s(S_C1)}, {-PSIZE}
    s_waitcnt vmcnt(3)
    """)
    stamp("dst")
    for k in range(4):
        A(f"""
        v_add_u32 {v(P2)}, {16384 - 9984}, {v(QD + k)}
        v_lshrrev_b32 {v(P2)}, 12, {v(P2)}
        v_and_or_b32 {v(P2)}, {v(P2)}, 4, 2
        v_lshlrev_b32_sdwa {v(QH + k)}, {v(P2)}, {v(QD + k)} {SDWA} src1_sel:BYTE_0
        ds_add_rtn_u32 {v(QR + k)}, {v(QH + k)}, {v(V_ONE)} offset:{L_HIST}
        """)
    A("s_waitcnt lgkmcnt(0)\ns_barrier")
    stamp("b2")
    for k in range(4):
        A(f"""
        v_lshrrev_b32 {v(QD + k)}, 8, {v(QD + k)}
        v_or_b32 {v(P3)}, {k}, {v(P0)}
        v_lshl_or_b32 {v(QD + k)}, {v(QD + k)}, 24, {v(P3)}
        """)
    A("s_barrier")
    stamp("b2b")
    for k in range(4):
        A(f"ds_read_b32 {v(QH + k)}, {v(QH + k)} offset:{L_PREF}")
    for k in range(4):
        A(f"""
        s_waitcnt lgkmcnt({3 - k})
        v_add_lshl_u32 {v(QH + k)}, {v(QH + k)}, {v(QR + k)}, 2
        v_add_u32 {v(QR + k)}, {v(QH + k)}, {v(QH + k)}
        """)
    A("s_waitcnt vmcnt(2)")
    for k in range(4):
        A(f"""
        v_mul_u32_u24 {v(P2)}, {(1 << 24) // PSIZE}, {v(QS + k)}
        v_lshrrev_b32 {v(P2)}, 24, {v(P2)}
        v_mad_i32_i24 {v(QS + k)}, {v(P2)}, {s(S_C1)}, {v(QS + k)}
        v_lshl_or_b32 {v(QS + k)}, {v(P2)}, 18, {v(QS + k)}
        v_lshl_add_u32 {v(QD + k)}, {v(QS + k)}, 12, {v(QD + k)}
        ds_write_b32 {v(QH + k)}, {v(QD + k)} offset:{L_STG}
        """)
    for k in range(4):
        if k % 2 == 0:
            A(f"s_waitcnt vmcnt({1 - k // 2})")
        if k == 2:
            stamp("y")
        A(f"ds_write_b64 {v(QR + k)}, {v(QY + 2 * k, 2)} offset:{L_STG + YOFF}")
    A(f"""
    s_mov_b64 exec, -1
    s_branch KA_JOIN3
    KA_AUX1:
    s_cmp_eq_u32 {s(S_WAVE)}, 15
    s_cbranch_scc1 KA_SCAN
    s_and_b32 s62, s2, 7
    s_lshr_b32 s63, s62, 2
    s_lshl_b32 s63, s63, 7
    s_and_b32 s64, s62, 1
    s_lshl_b32 s64, s64, 1
    s_add_u32 s63, s63, s64
    s_and_b32 s64, s62, 2
    s_lshl_b32 s64, s64, 5
    s_add_u32 s63, s63, s64
    s_and_b32 s64, {s(S_WAVE)}, 1
    s_lshl_b32 s65, s64, 6
    s_cmp_lt_u32 {s(S_WAVE)}, 14
    s_cselect_b64 s[66:67], {s(KA + 12, 2)}, {s(KA + 14, 2)}
    s_cselect_b32 s63, s65, s63
    s_cselect_b32 s68, 6, 4
    s_cselect_b32 s69, 3, 15
    s_cselect_b32 s70, 1, 2
    s_cselect_b32 s71, 8, 256
    s_lshl_b32 s65, s64, 1
    s_cmp_lt_u32 {s(S_WAVE)}, 12
    s_cselect_b64 s[66:67], {s(KA + 10, 2)}, s[66:67]
    s_cselect_b32 s63, s65, s63
    s_cselect_b32 s68, 5, s68
    s_cselect_b32 s69, 31, s69
    s_cselect_b32 s70, 2, s70
    s_cselect_b32 s71, 128, s71
    s_cselect_b32 s72, 10, 11
    v_lshrrev_b32 {v(P2)}, s68, {v(P1)}
    v_lshlrev_b32 {v(P2)}, s72, {v(P2)}
    v_and_b32 {v(P3)}, s69, {v(P1)}
    v_lshlrev_b32 {v(P3)}, s70, {v(P3)}
    v_add3_u32 {v(P2)}, {v(P2)}, {v(P3)}, s63
    s_barrier
    s_barrier
    s_cmp_lt_u32 {s(S_WAVE)}, 14
    s_cbranch_scc1 KA_PREP
    s_cmp_lt_u32 s2, 8
    s_cbranch_scc0 KA_JOIN3
    KA_PREP:
    """)
    for i in range(8):
        A(f"global_load_ushort {v(QY + i)}, {v(P2)}, s[66:67]\nv_add_u32 {v(P2)}, s71, {v(P2)}")
    A(f"""
    s_branch KA_JOIN3
    KA_SCAN:
    v_lshlrev_b32 {v(P3)}, 4, {v(P1)}
    s_setprio 3
    s_barrier
    """)
    scan256(QT, QR, P3, P4)
    A(f"""
    s_waitcnt lgkmcnt(0)
    s_barrier
    s_setprio 0
    global_load_dwordx2 {v(QH, 2)}, {v(QZ)}, {s(S_DBG, 2)} {WT}
    """)
    for k in range(4):
        A(f"v_lshl_or_b32 {v(QT + k)}, {v(QT + k)}, 12, {v(QR + k)}")
    NSTART = NW
    A(f"""
    KA_JOIN3:
    v_lshlrev_b32 {v(P2)}, 4, v0
    s_mul_i32 {s(S_TMP)}, s2, {RECSTRIDE}
    v_add_u32 {v(P3)}, {s(S_TMP)}, {v(P2)}
    v_add_u32 {v(P4)}, 16384, {v(P3)}
    v_cmp_gt_u32 vcc, {(YOFF + CHUNK * 8) // 16 - 1024}, v0
    v_and_b32 {v(P0)}, 0xff, v0
    v_lshlrev_b32 {v(P0)}, 2, {v(P0)}
    v_mov_b32 {v(P5)}, {NSTART}
    v_lshlrev_b32 {v(P6)}, 4, {v(P1)}
    s_waitcnt lgkmcnt(0)
    s_barrier
    """)
    stamp("b3")
    A(f"""
    ds_read_b128 {v(QD, 4)}, {v(P2)} offset:{L_STG}
    ds_read_b128 {v(QS, 4)}, {v(P2)} offset:{L_STG + 16384}
    s_waitcnt lgkmcnt(1)
    global_store_dwordx4 {v(P3)}, {v(QD, 4)}, {s(S_WS, 2)} {WT}
    s_and_saveexec_b64 {s(S_PM, 2)}, vcc
    s_cbranch_execz KA_NOST2
    s_waitcnt lgkmcnt(0)
    global_store_dwordx4 {v(P4)}, {v(QS, 4)}, {s(S_WS, 2)} {WT}
    KA_NOST2:
    s_mov_b64 exec, -1
    ds_write_b32 {v(P0)}, {v(QZ)} offset:{L_HIST}
    ds_write2_b32 {v(V_CTRA)}, {v(P5)}, {v(QZ)} offset0:0 offset1:1
    v_add_u32 {v(P3)}, {L_ACC}, {v(P2)}
    v_add_u32 {v(P4)}, {L_ACC + 41 * NS - 16384}, {v(P2)}
    """)
    for i in range(4):
        A(f"ds_write_b128 {v(P3)}, {v(QZ, 4)} offset:{16384 * i}")
    A(f"v_add_u32 {v(P3)}, 65536, {v(P3)}\nds_write_b128 {v(P4)}, {v(QZ, 4)}\nds_write_b128 {v(P3)}, {v(QZ, 4)}")
    assert 5 * 16384 <= 41 * NS <= 6 * 16384
    A(f"""
    s_mov_b32 {s(S_C1)}, {SPIN_MAX}
    s_lshl_b32 s3, s2, 11
    s_add_u32 s3, s3, {WS_TAB}
    v_add_u32 {v(QP)}, s3, {v(P6)}
    s_cmp_lt_u32 {s(S_WAVE)}, 10
    s_cbranch_scc1 KA_JOIN4
    s_cmp_eq_u32 {s(S_WAVE)}, 15
    s_cbranch_scc1 KA_TAG
    s_cmp_lt_u32 {s(S_WAVE)}, 12
    s_cselect_b32 s62, {fbits(-math.log2(math.e))}, 1.0
    s_cmp_eq_u32 {s(S_WAVE)}, 14
    s_cbranch_scc1 KA_PW1
    s_waitcnt vmcnt(2)
    s_branch KA_PW2
    KA_PW1:
    s_waitcnt vmcnt(1)
    KA_PW2:
    """)
    for i in range(8):
        A(f"v_lshlrev_b32 {v(QY + i)}, 16, {v(QY + i)}\nv_mul_f32 {v(QY + i)}, s62, {v(QY + i)}")
    for jj in range(4):
        A(f"v_cvt_pk_bf16_f32 {v(QH + jj)}, {v(QY + 2 * jj)}, {v(QY + 2 * jj + 1)}")
    A(f"""
    s_cbranch_scc1 KA_PREPWM
    ds_write_b128 {v(P2)}, {v(QH, 4)} offset:{L_WF - 10240}
    s_branch KA_JOIN4
    KA_PREPWM:
    s_cmp_lt_u32 s2, 8
    s_cbranch_scc0 KA_JOIN4
    s_lshl_b32 s63, s2, 10
    s_add_u32 s63, s63, {WS_WF}
    v_add_u32 {v(P3)}, s63, {v(P6)}
    global_store_dwordx4 {v(P3)}, {v(QH, 4)}, {s(S_WS, 2)} {WT}
    s_branch KA_JOIN4
    KA_TAG:
    s_waitcnt vmcnt(1)
    KA_TAG1:
    v_cmp_eq_u32 vcc, 0, {v(QH)}
    s_cbranch_vccz KA_GOTTAG
    s_sub_u32 {s(S_C1)}, {s(S_C1)}, 1
    s_cbranch_scc1 K_END
    global_load_dwordx2 {v(QH, 2)}, {v(QZ)}, {s(S_DBG, 2)} {WT}
    s_waitcnt vmcnt(0)
    s_branch KA_TAG1
    KA_GOTTAG:
    v_and_b32 {v(QH)}, 0xff000000, {v(QH)}
    ds_write_b64 {v(V_CTRA)}, {v(QH, 2)} offset:8
    """)
    for k in range(4):
        A(f"v_or_b32 {v(QY + 2 * k)}, {v(QT + k)}, {v(QH)}\nv_mov_b32 {v(QY + 2 * k + 1)}, {v(QH + 1)}")
    A(f"""
    KA_JOIN4:
    s_waitcnt vmcnt(0) lgkmcnt(0)
    s_barrier
    """)
    stamp("b4")
    A(f"""
    s_cmp_eq_u32 {s(S_WAVE)}, 15
    s_cbranch_scc0 KA_PUBD
    global_store_dwordx4 {v(QP)}, {v(QY, 4)}, {s(S_WS, 2)} {WT}
    global_store_dwordx4 {v(QP)}, {v(QY + 4, 4)}, {s(S_WS, 2)} offset:1024 {WT}
    KA_PUBD:
    """)
    w2 = opt.get("w2", 128)
    xtouch(w2, 0)
    A(f"ds_read_b64 {v(QH, 2)}, {v(V_CTRA)} offset:8")
    for f in range(4):
        A(f"ds_read_b128 {v(W + 4 * f, 4)}, {v(P6)} offset:{L_WF + 1024 * f}")
    round_consts()
    A(f"""
    s_waitcnt vmcnt(0) lgkmcnt(0)
    s_barrier
    KA_POLL:
    global_load_dwordx2 {v(QD, 2)}, {v(V_FA)}, {s(S_WS, 2)} {WT}
    s_waitcnt vmcnt(0)
    v_mov_b32 {v(V_DCNT)}, {v(QD)}
    v_and_b32 {v(QD)}, 0xff000000, {v(QD)}
    v_cmp_ne_u64 vcc, {v(QD, 2)}, {v(QH, 2)}
    s_cbranch_vccz KA_READY
    s_mov_b64 exec, vcc
    s_sub_u32 {s(S_C1)}, {s(S_C1)}, 1
    s_cbranch_scc1 K_END
    s_branch KA_POLL
    KA_READY:
    s_mov_b64 exec, -1
    v_and_b32 {v(V_DBASE)}, 0xfff, {v(V_DCNT)}
    v_bfe_u32 {v(V_DCNT)}, {v(V_DCNT)}, 12, 12
    """)
    stamp("desc")
    NC = 4
    REC1, REC2, RK1, RK2, HA1, HA2, PB, SC, CB, YA = 32, 48, 64, 68, 72, 76, 80, 84, 92, 96
    A(f"""
    KB_ROUND0:
    s_cmp_eq_u32 {s(S_WIDE)}, 1
    s_cselect_b32 {s(S_C1)}, 16, 0x7fffffff
    """)
    for c in range(NC):
        A(f"""
        v_sub_u32_dpp {v(RK1 + c)}, {v(V_DCNT)}, {v(P3)} row_newbcast:{c} {DPP}
        v_add_u32_dpp {v(HA1 + c)}, {v(V_DBASE)}, {v(P3)} row_newbcast:{c} {DPP}
        v_cmp_lt_i32 {s(S_M1 + 2 * c, 2)}, 0, {v(RK1 + c)}
        v_lshl_add_u32 {v(HA2 + c)}, {v(HA1 + c)}, 2, {v(CB + c)}
        s_mov_b64 exec, {s(S_M1 + 2 * c, 2)}
        global_load_dword {v(REC1 + 4 * c + 2)}, {v(HA2 + c)}, {s(S_WS, 2)} {WT}
        s_mov_b64 exec, -1
        """)
    for c in range(NC):
        A(f"v_cmp_lt_i32 {s(S_M2 + 2 * c, 2)}, {s(S_C1)}, {v(RK1 + c)}")
    for c in range(NC):
        A(f"v_lshl_add_u32 {v(HA1 + c)}, {v(HA1 + c)}, 3, {v(CB + c)}")
    A(f"""
    s_lshl_b32 {s(S_TMP)}, 16, {s(S_WIDE)}
    s_add_u32 {s(S_TMP)}, {s(S_TMP)}, {s(S_K0)}
    v_cmp_lt_u32 {s(S_CMP, 2)}, {s(S_TMP)}, {v(V_DCNT)}
    s_add_u32 {s(S_WY)}, {s(S_WS)}, {YOFF}
    s_addc_u32 {s(S_WY + 1)}, {s(S_WS + 1)}, 0
    s_or_b64 {s(S_ANY2, 2)}, {s(S_M2, 2)}, {s(S_M2 + 2, 2)}
    s_or_b64 {s(S_ANY2, 2)}, {s(S_ANY2, 2)}, {s(S_M2 + 4, 2)}
    s_or_b64 {s(S_ANY2, 2)}, {s(S_ANY2, 2)}, {s(S_M2 + 6, 2)}
    s_cbranch_scc0 KB_NOSEC_A
    """)
    for c in range(NC):
        A(f"""
        s_mov_b64 exec, {s(S_M2 + 2 * c, 2)}
        s_cbranch_execz KB_SA{c}
        global_load_dword {v(REC2 + 4 * c + 2)}, {v(HA2 + c)}, {s(S_WS, 2)} offset:64 {WT}
        global_load_dwordx2 {v(REC2 + 4 * c, 2)}, {v(HA1 + c)}, {s(S_WY, 2)} offset:128 {WT}
        KB_SA{c}:
        """)

    def tile_addr(tile, sa=True):
        A(f"""
        s_lshl_b32 {s(S_TMP)}, {s(tile)}, 9
        s_add_u32 {s(S_TMP)}, {s(S_TMP)}, {L_LIST}
        v_add_u32 {v(V_EID)}, {s(S_TMP)}, {v(V_LAE)}
        v_add_u32 {v(V_KN)}, {s(S_TMP)}, {v(V_LAD)}
        v_add_u32 {v(V_MT)}, {s(S_TMP)}, {v(V_LAY)}
        """)
        if sa:
            A(f"v_lshl_add_u32 {v(V_SA)}, {v(V_HALF16)}, 4, {s(S_TMP)}")

    ROT = 3 if opt.get("rot", 1) else 0
    A(f"""
    s_mov_b64 exec, -1
    KB_NOSEC_A:
    s_cmp_eq_u64 {s(S_CMP, 2)}, 0
    s_cbranch_scc1 KB_NOMORE
    ds_write_b32 {v(V_CTRA)}, {v(V_ONE)} offset:4
    KB_NOMORE:
    v_lshrrev_b32 {v(PB)}, 4, v0
    v_mul_u32_u24 {v(PB)}, {4 * CHUNK}, {v(PB)}
    v_add_u32 {v(PB + 1)}, {CHUNK}, {v(PB)}
    v_add_u32 {v(PB + 2)}, {2 * CHUNK}, {v(PB)}
    v_add_u32 {v(PB + 3)}, {3 * CHUNK}, {v(PB)}
    s_getreg_b32 {s(S_ROT)}, hwreg(HW_REG_XCC_ID, 0, 4)
    s_and_b32 {s(S_ROT)}, {s(S_ROT)}, {ROT}
    s_lshl_b32 {s(S_ROT)}, {s(S_ROT)}, 8
    v_and_b32 {v(P1)}, 63, v0
    v_lshl_add_u32 {v(P2)}, {v(P1)}, 4, {s(S_ROT)}
    v_and_b32 {v(P2)}, 0x3ff, {v(P2)}
    v_mov_b32 {v(P5)}, 16
    v_mov_b32 {v(P6)}, 0x3f000fff
    v_mov_b32 {v(P3)}, {opt.get("abl_x", 0x1ffe00)}
    """)
    tile_addr(S_WAVE)
    A(f"""
    s_movk_i32 {s(S_C0)}, {NS}
    v_mov_b32 {v(V_KK)}, {40 * NS}
    s_mov_b32 {s(S_TMP2)}, {PSIZE * 512}
    """)

    def yloads(addr):
        for c in range(NC):
            A(f"s_or_b64 exec, {s(S_M1 + 2 * c, 2)}, 1\nglobal_load_dwordx2 {v(REC1 + 4 * c, 2)}, {v(addr + c)}, {s(S_WY, 2)} {WT}")
        A("s_mov_b64 exec, -1")

    ylate = opt.get("ylate", 0)
    if ylate == 0:
        yloads(HA1)
        A("s_waitcnt vmcnt(4)")
    elif ylate == 1:
        A("s_waitcnt vmcnt(0)")
        yloads(HA1)
    else:
        for c in range(NC):
            A(f"v_mov_b32 {v(YA + c)}, {v(HA1 + c)}")
        A("s_waitcnt vmcnt(0)")
    stamp("rec")

    def second(fns, tag):
        A(f"s_cmp_eq_u64 {s(S_ANY2, 2)}, 0\ns_cbranch_scc1 KB_N{tag}")
        for c in range(NC):
            A(f"s_mov_b64 exec, {s(S_M2 + 2 * c, 2)}\ns_cbranch_execz KB_{tag}{c}")
            for fn in fns:
                fn(REC2, RK2, HA2, c)
            A(f"KB_{tag}{c}:")
        A(f"KB_N{tag}:\ns_mov_b64 exec, -1")

    def keyof(rec, rk, ha, c):
        A(f"v_lshlrev_b32_sdwa {v(ha + c)}, 2, {v(rec + 4 * c + 2)} {SDWA} src1_sel:BYTE_3")

    def count(rec, rk, ha, c):
        A(f"ds_add_rtn_u32 {v(rk + c)}, {v(ha + c)}, {v(P5)} offset:{L_HIST}")

    def decode(rec, rk, ha, c):
        idx = rec + 4 * c + 2
        A(f"""
        v_and_b32 {v(idx + 1)}, {v(P6)}, {v(idx)}
        v_lshrrev_b32 {v(P0)}, 30, {v(idx)}
        v_lshrrev_b32 {v(idx)}, 3, {v(idx)}
        v_and_b32 {v(idx)}, {v(P3)}, {v(idx)}
        """)
        if not opt.get("abl_ef"):
            A(f"v_add_u32 {v(idx + 1)}, {v(idx + 1)}, {v(PB + c)}")
        if opt.get("abl_x"):
            A(f"v_add_u32 {v(idx)}, 512, {v(idx)}")
        else:
            A(f"v_mad_u32_u24 {v(idx)}, {v(P0)}, {s(S_TMP2)}, {v(idx)}")

    def prefread(rec, rk, ha, c):
        A(f"ds_read_b32 {v(ha + c)}, {v(ha + c)} offset:{L_PREF}")

    def place(rec, rk, ha, c):
        A(f"""
        v_add_u32 {v(ha + c)}, {v(ha + c)}, {v(rk + c)}
        v_and_b32 {v(P0)}, 0x100, {v(ha + c)}
        v_mad_i32_i24 {v(rec + 4 * c + 2)}, {v(P0)}, -2, {v(rec + 4 * c + 2)}
        ds_write_b128 {v(ha + c)}, {v(rec + 4 * c, 4)} offset:{L_LIST}
        """)

    for c in range(NC):
        keyof(REC1, RK1, HA1, c)
    for c in range(NC):
        A(f"s_mov_b64 exec, {s(S_M1 + 2 * c, 2)}")
        count(REC1, RK1, HA1, c)
    second([keyof, count, decode], "H")
    for c in range(NC):
        decode(REC1, RK1, HA1, c)
    A("s_waitcnt lgkmcnt(0)\ns_barrier")
    stamp("b5")
    if ylate == 2:
        yloads(YA)
    A(f"""
    s_cmp_eq_u32 {s(S_WAVE)}, 0
    s_cbranch_scc0 KB_NOSCAN
    s_setprio 3
    """)
    scan256(SC, SC + 4, P2, P4)
    A(f"""
    s_mov_b32 exec_lo, 0
    s_brev_b32 exec_hi, 1
    ds_write_b32 {v(V_CTRA)}, {v(P4)} offset:16
    s_mov_b64 exec, -1
    s_waitcnt lgkmcnt(0)
    s_barrier
    s_setprio 0
    v_readlane_b32 {s(S_N)}, {v(P4)}, 63
    v_mov_b64 {v(SC + 4, 2)}, 0
    v_mov_b32 {v(SC + 6)}, 512
    v_mov_b32 {v(SC + 7)}, {(40 << 24) | 0xfffff}
    s_min_u32 {s(S_N)}, {s(S_N)}, {16 * CAP}
    v_lshl_add_u32 {v(P3)}, {v(P1)}, 4, {s(S_N)}
    ds_write_b128 {v(P3)}, {v(SC + 4, 4)} offset:{L_LIST}
    s_waitcnt vmcnt(0)
    s_branch KB_PLACE
    KB_NOSCAN:
    """)
    if opt.get("efpre"):
        for c in range(NC):
            A(f"""
            v_xor_b32 {v(P0)}, {s(S_ROT)}, {v(HA1 + c)}
            v_cmp_gt_u32 vcc, {4 * opt["efpre"]}, {v(P0)}
            v_mul_u32_u24 {v(P0)}, 32, {v(REC1 + 4 * c + 3)}
            s_and_b64 vcc, vcc, {s(S_M1 + 2 * c, 2)}
            s_or_b64 exec, vcc, 1
            buffer_load_dword {v(V_JUNK)}, {v(P0)}, {s(S_EF, 4)}, 0 offen
            s_mov_b64 exec, -1
            """)
    A("s_barrier\nKB_PLACE:")
    stamp("b6")
    A(f"ds_read2_b32 {v(SC, 2)}, {v(V_CTRA)} offset0:1 offset1:4")
    for c in range(NC):
        A(f"s_mov_b64 exec, {s(S_M1 + 2 * c, 2)}")
        prefread(REC1, RK1, HA1, c)
    second([prefread], "R")
    A(f"""
    s_waitcnt lgkmcnt(0)
    v_readfirstlane_b32 {s(S_N)}, {v(SC + 1)}
    v_readfirstlane_b32 {s(S_MORE)}, {v(SC)}
    s_nop 1
    s_cmp_le_u32 {s(S_N)}, {16 * CAP}
    s_cbranch_scc0 KB_NARROW
    s_add_u32 {s(S_NT)}, {s(S_N)}, 511
    s_lshr_b32 {s(S_NT)}, {s(S_NT)}, 9
    s_waitcnt vmcnt({4 if opt.get("efpre") else 0})
    """)
    for c in range(NC):
        A(f"s_mov_b64 exec, {s(S_M1 + 2 * c, 2)}")
        place(REC1, RK1, HA1, c)
    second([place], "P")
    A("s_waitcnt lgkmcnt(0)\ns_barrier")
    stamp("sorted")
    if opt.get("trace"):
        A(f"v_mov_b32 {v(V_TRC)}, 0\ns_mov_b32 s1, 0")

    def tile_reads():
        A(f"""
        ds_read_b32 {v(V_EID)}, {v(V_EID)} offset:12
        ds_read_b32 {v(V_KN)}, {v(V_KN)} offset:12
        ds_read_b64 {v(YR, 2)}, {v(V_MT)}
        """)

    def so_read(g):
        for q in range(2):
            o = 16 * (g % 4) + 8 * q + 2
            A(f"ds_read2_b32 {v(SO + 4 * (g % 2) + 2 * q, 2)}, {v(V_SA)} offset0:{o} offset1:{o + 4}")

    def xload(r):
        A(f"buffer_load_dwordx4 {v(X + 4 * (r % 4), 4)}, {v(SO + 4 * ((r // 4) % 2) + r % 4)}, {s(S_X, 4)}, 0 offen")

    def ef_load(skip=0):
        A(f"v_mad_u32_u24 {v(V_EID)}, {v(V_EID)}, 32, {v(V_HALF16)}")
        m = (0xffffffff << skip) & 0xffffffff
        if skip:
            A(f"s_mov_b32 exec_lo, {m}\ns_mov_b32 exec_hi, {m}")
        A(f"buffer_load_dwordx4 {v(EF, 4)}, {v(V_EID)}, {s(S_EF, 4)}, 0 offen")
        if skip:
            A("s_mov_b64 exec, -1")

    def sm_issue(base, n):
        for j in range(n):
            A(f"v_readlane_b32 {s(SMB + 8 * j)}, {v(V_EID)}, {base + j}")
        if n < 5:
            A(f"s_nop {4 - n}")
        for j in range(n):
            A(f"s_buffer_load_dwordx8 {s(SMB + 8 * j, 8)}, {s(S_EF, 4)}, {s(SMB + 8 * j)}")

    def sm_move(base, n):
        for half in range(2):
            for j in range(n):
                if j == 0:
                    A(f"s_mov_b32 exec_{'hi' if half else 'lo'}, {1 << base}\ns_mov_b32 exec_{'lo' if half else 'hi'}, 0")
                else:
                    A("s_lshl_b64 exec, exec, 1")
                for q in range(2):
                    A(f"v_mov_b64 {v(EF + 2 * q, 2)}, {s(SMB + 8 * j + 4 * half + 2 * q, 2)}")
        A("s_mov_b64 exec, -1")

    def grab(reg):
        A(f"s_mov_b64 exec, 1\nds_add_rtn_u32 {v(reg)}, {v(V_CTRA)}, {v(V_ONE)}\ns_mov_b64 exec, -1")

    key_ops = [f"v_mul_u32_u24_sdwa {v(V_KN)}, {s(S_C0)}, {v(V_KN)} {SDWA} src1_sel:BYTE_3",
               f"v_xor_b32_dpp {v(V_MT)}, {v(V_KN)}, {v(V_KN)} row_shl:1 {DPP} bound_ctrl:0",
               f"v_cmp_ne_u32 {s(S_CMP, 2)}, 0, {v(V_MT)}"]

    sm0 = opt.get("sm0", 0)
    A(f"s_mov_b32 {s(S_NEXT)}, {s(S_WAVE)}\ns_cmp_ge_u32 {s(S_WAVE)}, {s(S_NT)}\ns_cbranch_scc1 KM_DONE")
    A(f"ds_read_b32 {v(V_EID)}, {v(V_EID)} offset:12")
    so_read(0)
    A(f"ds_read_b32 {v(V_KN)}, {v(V_KN)} offset:12\nds_read_b64 {v(YR, 2)}, {v(V_MT)}")
    so_read(1)
    A("s_waitcnt lgkmcnt(6)")
    ef_load(sm0)
    A("s_waitcnt lgkmcnt(4)")
    for r in range(4):
        xload(r)
    A("s_waitcnt lgkmcnt(0)")
    if sm0:
        sm_issue(0, sm0)
    A(key_ops[0] + "\ns_nop 1\n" + key_ops[1] + "\n" + key_ops[2])
    if sm0:
        A("s_waitcnt lgkmcnt(0)")
        sm_move(0, sm0)
    A("s_waitcnt vmcnt(4)")
    stamp("loop")

    def flush_ops(r):
        ops = [[f"v_add_u32_dpp {v(V_FA)}, {v(V_KK)}, {v(V_ACCL)} row_newbcast:{r} {DPP}"]]
        for j in range(8):
            st = STG + 2 * (j % 4)
            ops.append([f"v_cvt_f64_f32 {v(st, 2)}, {v(ACC + j)}", f"ds_add_f64 {v(V_FA)}, {v(st, 2)} offset:{RS * j}"])
        return ops

    def emit(groups):
        for g in groups:
            for op in ([g] if isinstance(g, str) else g):
                A(op)

    def acc_ops(r, first):
        ops = []
        for j in range(4):
            rr = D + 16 * (j // 2) + (r & ~1)
            o = r & 1
            if first:
                ops.append(f"v_pk_mul_f32 {v(ACC + 2 * j, 2)}, {v(rr, 2)}, {v(TP + 2 * j, 2)} op_sel:[{o},0] op_sel_hi:[{o},1]")
            else:
                ops.append(f"v_pk_fma_f32 {v(ACC + 2 * j, 2)}, {v(rr, 2)}, {v(TP + 2 * j, 2)}, {v(ACC + 2 * j, 2)} op_sel:[{o},0,0] op_sel_hi:[{o},1,1]")
        return ops

    def exp_ops(q):
        return [f"v_exp_f32 {v(E + j)}, {v(D + 16 * (j // 2) + q + j % 2)}" for j in range(4)]

    add_ops = [f"v_pk_add_f32 {v(E + 2 * j, 2)}, {v(E + 2 * j, 2)}, 1.0 op_sel_hi:[1,0]" for j in range(2)]
    rcp_ops = [f"v_rcp_f32 {v(E + j)}, {v(E + j)}" for j in range(4)]

    def mul_ops(q):
        return [f"v_pk_mul_f32 {v(D + 16 * j + q, 2)}, {v(D + 16 * j + q, 2)}, {v(E + 2 * j, 2)}" for j in range(2)]

    GRAB, EFS = opt.get("grab", 5), opt.get("efs", 8)
    prio = opt.get("prio", {-1: 0, 4: 1, 8: 2, 12: 3})
    sm = opt.get("sm", {})
    smbase = {st: sum(sm[q] for q in sm if q < st) for st in sm}
    assert set(sm) <= {4, 8, 12} and all(st >= EFS for st in sm)
    smlim = opt.get("smlim", {})
    S_LIM = {st: S_NT for st in sm}
    for st, reg in zip(smlim, (S_N, S_C1, 1)):
        S_LIM[st] = reg
        A(f"s_min_u32 {s(reg)}, {s(S_NT)}, {smlim[st]}")
    A(".p2align 6")
    loop_start = len(A.lines)
    A("KM_LOOP:")
    endprio = opt.get("endprio")

    def setprio(k):
        A(f"s_setprio {prio[k]}")
        if endprio and endprio[k] != prio[k]:
            A(f"s_cbranch_vccz KM_P{k + 1}\ns_setprio {endprio[k]}\nKM_P{k + 1}:")

    if endprio:
        A(f"s_add_u32 s3, {s(S_NEXT)}, {opt.get('endn', 16)}\ns_cmp_ge_u32 s3, {s(S_NT)}\ns_cselect_b64 vcc, -1, 0")
    if -1 in prio:
        setprio(-1)
    fo = flush_ops(15)
    tm = [f"v_mfma_f32_4x4x4_16b_bf16 {v(D + 16 + 4 * i, 4)}, {v(YR, 2)}, {v(CG + 2 * i, 2)}, 0" for i in range(4)]
    tc = [f"v_cvt_pk_bf16_f32 {v(T + 2 * j + hh)}, {v(D + 16 + 8 * hh + j)}, {v(D + 20 + 8 * hh + j)}" for hh in range(2) for j in range(2)]
    ex = exp_ops(0)
    emit([tm[0], fo[0], tm[1], fo[1], tm[2], fo[2], tm[3], fo[3]])
    A(f"v_mfma_f32_32x32x16_bf16 {v(D, 16)}, {v(EF, 4)}, {v(W, 4)}, 0")
    emit([tc[0], tc[1], fo[4], fo[5], tc[2], tc[3]])
    A(f"v_mfma_f32_32x32x16_bf16 {v(D + 16, 16)}, {v(EF, 4)}, {v(W + 4, 4)}, 0")
    emit([fo[6], fo[7], fo[8], f"v_mov_b32 {v(V_KK)}, {v(V_KN)}", f"s_or_b32 {s(S_MASK)}, {s(S_CMP)}, {s(S_CMP + 1)}",
          ex[0], ex[1], "s_nop 1", ex[2], ex[3], "s_nop 0"] + add_ops)
    for r in range(16):
        tr = T + (2 if r >= 8 else 0)
        m4 = [f"v_mfma_f32_4x4x4_16b_bf16 {v(TP + 4 * h, 4)}, {v(tr, 2)}, {v(X + 4 * (r % 4) + 2 * h, 2)}, 0 cbsz:3 abid:{r % 8}" for h in range(2)]
        if r in prio:
            setprio(r)
        A(f"s_waitcnt vmcnt(3)")
        if r == 15:
            emit([m4[0], key_ops[0], m4[1]])
            xload(r + 4)
            emit([key_ops[1], key_ops[2]])
            side = []
        else:
            trans = rcp_ops if r % 2 == 0 else exp_ops(r + 1)
            side = mul_ops(r) if r % 2 == 0 else add_ops
            emit([m4[0], trans[0], m4[1], trans[1], trans[2], trans[3]])
            if r % 4 == 0 and r > 0:
                A("s_waitcnt lgkmcnt(0)")
            xload(r + 4)
        if r % 4 == 0:
            so_read(r // 4 + 2)
        if r == GRAB:
            grab(V_MT)
        if r == GRAB + 1:
            if r % 4:
                A("s_waitcnt lgkmcnt(0)")
            A(f"v_readfirstlane_b32 {s(S_NEXT)}, {v(V_MT)}")
        if r == GRAB + 2:
            A(f"s_min_u32 {s(S_NEXT)}, {s(S_NEXT)}, {s(S_NT)}")
            tile_addr(S_NEXT, r >= 5)
            tile_reads()
        if r == 5 and GRAB + 2 < 5:
            A(f"v_lshl_add_u32 {v(V_SA)}, {v(V_HALF16)}, 4, {s(S_TMP)}")
        if r - 4 in sm:
            A(f"s_cmp_ge_u32 {s(S_NEXT)}, {s(S_LIM[r - 4])}\ns_cbranch_scc1 KM_NOMV{r}")
            sm_move(smbase[r - 4], sm[r - 4])
            A(f"KM_NOMV{r}:")
        if r == EFS:
            A(f"s_cmp_ge_u32 {s(S_NEXT)}, {s(S_NT)}\ns_cbranch_scc1 KM_NOEF")
            A(f"v_mad_u32_u24 {v(V_EID)}, {v(V_EID)}, 32, {v(V_HALF16)}")
            m = (0xffffffff << sum(sm.values())) & 0xffffffff
            A(f"s_mov_b32 {s(S_TMP2)}, {m}")
            for st in smlim:
                A(f"s_cmp_ge_u32 {s(S_NEXT)}, {s(S_LIM[st])}\ns_cselect_b32 s3, {((1 << sm[st]) - 1) << smbase[st]}, 0\ns_or_b32 {s(S_TMP2)}, {s(S_TMP2)}, s3")
            if opt.get("hackB"):
                B = opt["hackB"]
                A(f"""
                s_lshr_b32 s3, s2, 3
                s_add_u32 s3, s3, {s(S_NEXT)}
                s_and_b32 s3, s3, {B - 1}
                s_cbranch_scc1 KM_NOEF
                """)
                for j in range(B):
                    A(f"""
                    s_add_u32 s3, {s(S_NEXT)}, {j + opt.get("hlead", 0)}
                    s_min_u32 s3, s3, {s(S_NT)}
                    s_lshl_b32 s3, s3, 9
                    v_add_u32 {v(STG + j)}, s3, {v(V_LAE)}
                    ds_read_b32 {v(STG + j)}, {v(STG + j)} offset:{L_LIST + 12}
                    """)
                A(f"s_waitcnt lgkmcnt(0)\ns_mov_b32 exec_lo, {s(S_TMP2)}\ns_mov_b32 exec_hi, {s(S_TMP2)}")
                for j in range(B):
                    A(f"v_mad_u32_u24 {v(STG + j)}, {v(STG + j)}, 32, {v(V_HALF16)}")
                    A(f"buffer_load_dwordx4 {v(EF, 4)}, {v(STG + j)}, {s(S_EF, 4)}, 0 offen")
                A("s_mov_b64 exec, -1\nKM_NOEF:")
            else:
                A(f"""
                s_mov_b32 exec_lo, {s(S_TMP2)}
                s_mov_b32 exec_hi, {s(S_TMP2)}
                buffer_load_dwordx4 {v(EF, 4)}, {v(V_EID)}, {s(S_EF, 4)}, 0 offen
                s_mov_b64 exec, -1
                KM_NOEF:
                """)
        if r in sm:
            A(f"s_cmp_ge_u32 {s(S_NEXT)}, {s(S_LIM[r])}\ns_cbranch_scc1 KM_NOIS{r}")
            sm_issue(smbase[r], sm[r])
            A(f"KM_NOIS{r}:")
        if r == 11 and opt.get("trace"):
            A("s_memrealtime s[90:91]\ns_memtime s[88:89]")
        if r == 13 and opt.get("trace"):
            A(f"s_mov_b32 m0, s1\ns_add_u32 s1, s1, 1\nv_writelane_b32 {v(V_TRC)}, s90, m0\ns_add_u32 m0, m0, 32\ns_nop 0\nv_writelane_b32 {v(V_TRC)}, s88, m0")
        if r == 14 and 12 not in sm:
            A("s_waitcnt lgkmcnt(0)")
        emit(side)
        if r > 0:
            A(f"s_bitcmp1_b32 {s(S_MASK)}, {r - 1}\ns_cbranch_scc1 KM_F{r}")
        emit(acc_ops(r, r == 0))
        if r > 0:
            A(f"KM_R{r}:")
    if 12 in sm:
        A(f"s_cmp_ge_u32 {s(S_NEXT)}, {s(S_NT)}\ns_cbranch_scc1 KM_LAST")
        if -1 in prio and opt.get("lowmove", 1):
            A(f"s_setprio {prio[-1]}")
        A("s_waitcnt lgkmcnt(0)")
        if 12 in smlim:
            A(f"s_cmp_ge_u32 {s(S_NEXT)}, {s(S_LIM[12])}\ns_cbranch_scc1 KM_LOOP")
        sm_move(smbase[12], sm[12])
        A("s_branch KM_LOOP\nKM_LAST:")
    else:
        A(f"s_cmp_lt_u32 {s(S_NEXT)}, {s(S_NT)}\ns_cbranch_scc1 KM_LOOP")
    drop = opt.get("drop", [])
    if drop:
        A.lines[loop_start:] = [ln for ln in A.lines[loop_start:] if not any(d in ln for d in drop)]
    emit(flush_ops(15))
    A("s_branch KM_DONE")
    for r in range(1, 16):
        A(f"KM_F{r}:")
        emit(flush_ops(r - 1))
        emit(acc_ops(r, True))
        A(f"s_branch KM_R{r}")
    A(f"""
    KB_NARROW:
    s_mov_b32 {s(S_WIDE)}, 0
    s_branch KB_ROUND
    KB_NEXT:
    s_lshl_b32 {s(S_TMP)}, 16, {s(S_WIDE)}
    s_add_u32 {s(S_K0)}, {s(S_K0)}, {s(S_TMP)}
    KB_ROUND:
    s_waitcnt vmcnt(0) lgkmcnt(0)
    s_barrier
    v_and_b32 {v(P0)}, 0xff, v0
    v_lshlrev_b32 {v(P0)}, 2, {v(P0)}
    v_mov_b32 {v(P1)}, 0
    v_mov_b32 {v(P2)}, {NSTART}
    ds_write_b32 {v(P0)}, {v(P1)} offset:{L_HIST}
    ds_write2_b32 {v(V_CTRA)}, {v(P2)}, {v(P1)} offset0:0 offset1:1
    """)
    round_consts()
    A("""
    s_waitcnt lgkmcnt(0)
    s_barrier
    s_branch KB_ROUND0
    """)
    WM, A64, AG, AF, OD, OP = 32, 80, 16, 8, 80, 96
    A("KM_DONE:")
    stamp("done")
    A(f"""
    s_setprio 0
    s_cmp_eq_u32 {s(S_MORE)}, 0
    s_cbranch_scc0 KB_NEXT
    s_cmp_ge_u32 {s(S_WAVE)}, 10
    s_cbranch_scc0 KE_MIX
    s_waitcnt lgkmcnt(0)
    s_barrier
    """)
    stamp("bar")
    A(f"""
    s_branch KE_FIN
    KE_MIX:
    v_and_b32 v1, 63, v0
    v_lshlrev_b32 v2, 4, v1
    v_add_u32 v2, {WS_WF}, v2
    v_add_u32 v3, 4096, v2
    """)
    for f in range(8):
        A(f"global_load_dwordx4 {v(WM + 4 * f, 4)}, {'v2' if f < 4 else 'v3'}, {s(S_WS, 2)} offset:{1024 * (f % 4)} {WT}")
    A(f"""
    v_bfe_u32 v2, v1, 2, 2
    v_mul_u32_u24 v2, {NS}, v2
    v_and_b32 v3, 3, v1
    v_mul_u32_u24 v3, {RS}, v3
    v_lshrrev_b32 v4, 4, v1
    v_lshlrev_b32 v5, 6, v4
    v_add3_u32 v2, v2, v3, v5
    s_mul_i32 s70, {s(S_WAVE)}, {4 * NS}
    s_add_u32 s70, s70, {L_ACC}
    v_add_u32 v2, s70, v2
    v_and_b32 v3, 15, v1
    v_lshlrev_b32 v3, 4, v3
    v_lshl_add_u32 v3, v4, 17, v3
    s_lshl_b32 s70, {s(S_WAVE)}, 19
    s_lshl_b32 s71, {s(S_BETA)}, 9
    s_add_u32 s70, s70, s71
    v_add_u32 v3, s70, v3
    s_lshr_b32 s72, {s(S_BETA)}, 4
    s_lshl_b32 s72, s72, 9
    s_sub_u32 s72, s72, s71
    s_and_b32 s73, {s(S_BETA)}, 15
    s_cselect_b32 s72, 0x40000000, s72
    v_cmp_le_u32 vcc, {9 * 64 + 48}, v0
    v_add_u32 v4, s72, v3
    s_nop 0
    v_cndmask_b32 v3, v3, v4, vcc
    s_mov_b32 {s(S_SC)}, {fbits(-math.log(2.0) * opt.get('oscale', 1.0))}
    s_mov_b32 {s(S_SC + 1)}, {fbits(-math.log(2.0) * opt.get('oscale', 1.0))}
    s_waitcnt lgkmcnt(0)
    s_barrier
    """)
    stamp("bar")
    for cpar in range(2):
        for hh in range(4):
            A(f"ds_read_b128 {v(A64 + 16 * cpar + 4 * hh, 4)}, v2 offset:{4 * RS * cpar + 16 * hh}")
    for j in range(8):
        A(f"s_waitcnt lgkmcnt({7 - j})")
        A(f"v_cvt_f32_f64 {v(AG + 2 * j)}, {v(A64 + 4 * j, 2)}")
        A(f"v_cvt_f32_f64 {v(AG + 2 * j + 1)}, {v(A64 + 4 * j + 2, 2)}")
    for j in range(8):
        A(f"v_pk_mul_f32 {v(AG + 2 * j, 2)}, {v(AG + 2 * j, 2)}, {s(S_SC, 2)}")
    for j in range(8):
        A(f"v_cvt_pk_bf16_f32 {v(AF + j)}, {v(AG + 2 * j)}, {v(AG + 2 * j + 1)}")
    A("s_waitcnt vmcnt(0)\ns_nop 0")
    for dt in range(4):
        A(f"v_mfma_f32_16x16x32_bf16 {v(OD + 4 * dt, 4)}, {v(AF, 4)}, {v(WM + 4 * dt, 4)}, 0")
    for dt in range(4):
        A(f"v_mfma_f32_16x16x32_bf16 {v(OD + 4 * dt, 4)}, {v(AF + 4, 4)}, {v(WM + 16 + 4 * dt, 4)}, {v(OD + 4 * dt, 4)}")
    A("s_nop 7")
    for j in range(8):
        A(f"v_cvt_pk_bf16_f32 {v(OP + j)}, {v(OD + 2 * j)}, {v(OD + 2 * j + 1)}")
    ost = opt.get("out_st", "")
    A(f"buffer_store_dwordx4 {v(OP, 4)}, v3, {s(S_OUT, 4)}, 0 offen {ost}")
    A(f"buffer_store_dwordx4 {v(OP + 4, 4)}, v3, {s(S_OUT, 4)}, 0 offen offset:256 {ost}")
    A("KE_FIN:")
    if opt.get("diag"):
        A("""
        s_waitcnt lgkmcnt(0)
        KE_SPIN:
        s_memrealtime s[74:75]
        s_waitcnt lgkmcnt(0)
        s_sub_u32 s74, s74, s76
        s_cmp_lt_u32 s74, 10000
        s_cbranch_scc1 KE_SPIN
        """)
    if opt.get("trace"):
        A(f"s_lshl_b32 s78, s2, 12\ns_add_u32 s78, s78, {130 << 20}\nv_lshl_add_u32 v1, v0, 2, s78\nglobal_store_dword v1, {v(V_TRC)}, {s(S_WS, 2)}")
    if opt.get("prof"):
        A("s_waitcnt vmcnt(0)")
        stamp("fin")
        A("s_waitcnt lgkmcnt(0)")
        A(f"s_lshl_b32 s3, s2, 4\ns_add_u32 s3, s3, {s(S_WAVE)}\ns_lshl_b32 s3, s3, 6\ns_add_u32 s3, s3, {(128 << 20) + (1 << 20)}")
        A("v_mov_b32 v1, s3")
        for i in range(len(pts)):
            A(f"v_mov_b32 v2, {s(SB + 2 * i)}\nglobal_store_dword v1, v2, {s(S_WS, 2)} offset:{4 * i}")
    A("K_END:\ns_endpgm")


def generate(opt):
    A = Asm()
    out = HEADER
    if opt.get("aslist"):
        out += f"; @launch kernel={NAME}_kernel grid=(256,1,1) block=(1024,1,1) lds={LDS_BYTES}\n"
    else:
        out += f"; @launch grid=(256,1,1) block=(1024,1,1) lds={LDS_BYTES}\n"
    out += '.amdgcn_target "amdgcn-amd-amdhsa--gfx950"\n.text\n'
    gen(A, opt)
    out += A.text()
    out += f""".section .rodata,"a"
.p2align 6
.amdhsa_kernel {NAME}_kernel
  .amdhsa_next_free_vgpr {NVGPR}
  .amdhsa_next_free_sgpr 102
  .amdhsa_accum_offset {NVGPR}
  .amdhsa_group_segment_fixed_size 0
  .amdhsa_kernarg_size 88
  .amdhsa_user_sgpr_count 2
  .amdhsa_user_sgpr_kernarg_segment_ptr 1
  .amdhsa_system_sgpr_workgroup_id_x 1
  .amdhsa_float_denorm_mode_32 3
.end_amdhsa_kernel
"""
    return out


if __name__ == "__main__":
    opt = eval("dict(" + (sys.argv[2] if len(sys.argv) > 2 else "") + ")")
    path = sys.argv[1] if len(sys.argv) > 1 else f"cdna_kernels/{NAME}.s"
    open(path, "w").write(generate(opt))
```

```python
import sys, struct, math

NAME = "standalone__tensor_product_equiv_tfn__graph"

HEADER = """; Kernarg layout for this problem (88 bytes, ptrs only, base s[0:1]):
"""

CHUNK = 2500
PSIZE = 2500
RECSTRIDE = 30336
YOFF = 10112
WS_TAB = 256 * RECSTRIDE
SPIN_MAX = 1 << 18

RS = 272
NS = 8 * RS
L_HIST = 0
L_PREF = 1024
L_CTR = 2048
CAP = 3936
L_WM = 2304
L_LIST = L_WM + 8192
L_ACC = L_LIST + (CAP + 64) * 16
LDS_BYTES = L_ACC + 41 * NS
L_STG = L_LIST
L_WF = L_STG + 32768

DPP = "row_mask:0xf bank_mask:0xf"
SDWA = "dst_sel:DWORD dst_unused:UNUSED_PAD src0_sel:DWORD"

NW = 16
V_DBASE, V_DCNT, V_HALF16, V_ACCL, V_LAD, V_LAE, V_LAY = 1, 2, 3, 4, 5, 6, 7
V_ONE, V_CTRA, V_KK, V_KN, V_EID, V_SA, V_FA, V_MT = 8, 9, 10, 11, 12, 13, 14, 15
W = 16
CG = 24
D = 32
X = 64
TP = 80
ACC = 88
STG = 96
SO = 104
E = 112
T = 116
EF = 120
YR = 124
V_TRC, V_JUNK = 126, 127
NVGPR = 128

S_X, S_EF, S_OUT, S_WS = 4, 8, 12, 16
S_BETA, S_WAVE, S_K0, S_WIDE, S_N, S_NT, S_NEXT, S_MASK = 18, 19, 20, 21, 22, 23, 24, 25
S_CMP = 26
S_MORE, S_TMP, S_C0, S_C1 = 28, 29, 30, 31
S_M1, S_M2 = 32, 40
S_ANY2 = 48
S_SC = 50
S_XP = 52
S_TMP2 = 0
S_DBG = 58
S_PM = 60
KA = 32
S_ROT = 3
S_WY = 56
SMB = 32

DEFAULT_PTS = ["start", "desc", "rec", "sorted", "loop", "done", "bar", "fin", "b3", "b4"]


def fbits(x):
    return "0x%08x" % struct.unpack("<I", struct.pack("<f", x))[0]


class Asm:
    def __init__(self):
        self.lines = []

    def __call__(self, s):
        for ln in s.strip("\n").split("\n"):
            ln = ln.strip()
            if not ln:
                continue
            if ln.endswith(":") or ln.startswith("."):
                self.lines.append(ln)
            else:
                self.lines.append("    " + ln)

    def text(self):
        return "\n".join(self.lines) + "\n"


def v(a, n=1):
    return f"v{a}" if n == 1 else f"v[{a}:{a+n-1}]"


def s(a, n=1):
    return f"s{a}" if n == 1 else f"s[{a}:{a+n-1}]"


def wave_scan(A, regs):
    steps = ["row_shr:1 " + DPP + " bound_ctrl:0", "row_shr:2 " + DPP + " bound_ctrl:0",
             "row_shr:4 " + DPP + " bound_ctrl:0", "row_shr:8 " + DPP + " bound_ctrl:0",
             "row_bcast:15 row_mask:0xa bank_mask:0xf", "row_bcast:31 row_mask:0xc bank_mask:0xf"]
    for st in steps:
        A("s_nop 1" if len(regs) == 1 else "s_nop 0")
        for r in regs:
            A(f"v_add_u32_dpp {v(r)}, {v(r)}, {v(r)} {st}")


def gen(A, opt):
    name = NAME + "_kernel"
    WT = "sc1"
    P0, P1, P2, P3, P4, P5, P6 = 112, 113, 114, 115, 116, 117, 118
    QD, QS, QY, QH, QR, QT, QP, QZ, QW = 32, 36, 40, 48, 52, 56, 60, 64, 68
    pts = opt.get("pts", DEFAULT_PTS)
    SB = 102 - 2 * len(pts)

    def stamp(nm):
        if opt.get("prof") and nm in pts:
            A(f"s_memrealtime {s(SB + 2 * pts.index(nm), 2)}")
        if opt.get("diag") == nm or (opt.get("diag") and nm == "start"):
            A("s_memrealtime s[76:77]")

    def xtouch(n, base):
        A(f"""
        s_lshr_b32 {s(S_TMP)}, s2, {0 if opt.get("xmall") else 3}
        s_mul_i32 {s(S_TMP)}, {s(S_TMP)}, {n * 128}
        s_add_u32 {s(S_TMP)}, {s(S_TMP)}, {base * 128}
        s_getreg_b32 s3, hwreg(HW_REG_XCC_ID, 0, 4)
        s_and_b32 s3, s3, {3 if opt.get("rot", 1) and not opt.get("xmall") else 0}
        s_mul_i32 s3, s3, {PSIZE * 512}
        s_add_u32 {s(S_TMP)}, {s(S_TMP)}, s3
        v_cmp_gt_u32 vcc, {n}, v0
        v_lshl_add_u32 {v(P5)}, v0, 7, {s(S_TMP)}
        s_and_saveexec_b64 {s(S_PM, 2)}, vcc
        s_cbranch_execz XT_{base}
        buffer_load_dword {v(V_JUNK)}, {v(P5)}, {s(S_XP, 4)}, 0 offen
        XT_{base}:
        s_mov_b64 exec, -1
        """)

    def scan256(cnt, pre, addr, tot):
        A(f"""
        ds_read_b128 {v(cnt, 4)}, {v(addr)} offset:{L_HIST}
        s_waitcnt lgkmcnt(0)
        v_add_u32 {v(pre + 2)}, {v(cnt)}, {v(cnt + 1)}
        v_add_u32 {v(pre + 3)}, {v(pre + 2)}, {v(cnt + 2)}
        v_add_u32 {v(pre)}, {v(pre + 3)}, {v(cnt + 3)}
        v_add_u32 {v(tot)}, {v(pre + 3)}, {v(cnt + 3)}
        """)
        wave_scan(A, [tot])
        A(f"""
        v_sub_u32 {v(pre)}, {v(tot)}, {v(pre)}
        v_add_u32 {v(pre + 1)}, {v(pre)}, {v(cnt)}
        v_add_u32 {v(pre + 2)}, {v(pre)}, {v(pre + 2)}
        v_add_u32 {v(pre + 3)}, {v(pre)}, {v(pre + 3)}
        ds_write_b128 {v(addr)}, {v(pre, 4)} offset:{L_PREF}
        """)

    def round_consts():
        A(f"""
        v_and_b32 {v(P3)}, 15, v0
        s_add_u32 {s(S_TMP)}, {s(S_WIDE)}, 3
        v_lshrrev_b32 {v(P4)}, {s(S_TMP)}, {v(P3)}
        v_lshl_add_u32 {v(P3)}, {v(P4)}, 20, {v(P3)}
        v_add_u32 {v(P3)}, {s(S_K0)}, {v(P3)}
        v_lshrrev_b32 v92, 4, v0
        v_mul_u32_u24 v92, {4 * RECSTRIDE}, v92
        v_add_u32 v93, {RECSTRIDE}, v92
        v_add_u32 v94, {2 * RECSTRIDE}, v92
        v_add_u32 v95, {3 * RECSTRIDE}, v92
        """)

    A(f".globl {name}\n.p2align 8\n.type {name},@function\n{name}:")
    stamp("start")
    A(f"""
    s_cmp_ge_u32 s2, 256
    s_cbranch_scc1 K_END
    s_load_dwordx16 {s(KA, 16)}, s[0:1], 0
    s_load_dwordx2 {s(S_WS, 2)}, s[0:1], 80
    s_load_dwordx2 {s(S_OUT, 2)}, s[0:1], 64
    s_load_dwordx2 {s(S_DBG, 2)}, s[0:1], 72
    v_lshrrev_b32 {v(P0)}, 6, v0
    v_and_b32 {v(P1)}, 63, v0
    v_readfirstlane_b32 {s(S_WAVE)}, {v(P0)}
    s_mul_i32 {s(S_TMP)}, s2, {CHUNK * 4}
    s_mul_i32 {s(S_C1)}, s2, {CHUNK * 8}
    v_lshl_add_u32 {v(P2)}, v0, 4, {s(S_TMP)}
    v_lshl_add_u32 {v(P3)}, v0, 5, {s(S_C1)}
    s_movk_i32 {s(S_C0)}, {CHUNK // 4}
    v_cmp_gt_u32 {s(S_PM, 2)}, {s(S_C0)}, v0
    v_mov_b64 {v(QZ, 2)}, 0
    v_mov_b64 {v(QZ + 2, 2)}, 0
    v_and_b32 {v(P0)}, 0xff, v0
    v_lshlrev_b32 {v(P0)}, 2, {v(P0)}
    ds_write_b32 {v(P0)}, {v(QZ)} offset:{L_HIST}
    s_cmp_ge_u32 {s(S_WAVE)}, 10
    s_cbranch_scc1 KA_AUX0
    s_mov_b64 exec, {s(S_PM, 2)}
    s_waitcnt lgkmcnt(0)
    """)
    stamp("karg")
    A(f"""
    global_load_dwordx4 {v(QD, 4)}, {v(P2)}, {s(KA + 4, 2)}
    s_barrier
    global_load_dwordx4 {v(QS, 4)}, {v(P2)}, {s(KA + 2, 2)}
    global_load_dwordx4 {v(QY, 4)}, {v(P3)}, {s(KA + 6, 2)}
    global_load_dwordx4 {v(QY + 4, 4)}, {v(P3)}, {s(KA + 6, 2)} offset:16
    s_mov_b64 exec, -1
    s_branch KA_JOIN0
    KA_AUX0:
    """)
    if opt.get("tcode"):
        A(f"""
        s_cmp_lt_u32 s2, {opt["tcode"]}
        s_cbranch_scc0 KA_NOCODE
        s_getpc_b64 s[62:63]
        KA_PC:
        v_subrev_u32 {v(P4)}, 640, v0
        v_min_u32 {v(P4)}, (K_END - KA_PC) / 64, {v(P4)}
        v_lshlrev_b32 {v(P4)}, 6, {v(P4)}
        global_load_dword {v(V_JUNK)}, {v(P4)}, s[62:63]
        KA_NOCODE:
        """)
    A(f"""
    s_waitcnt lgkmcnt(0)
    s_cmp_eq_u32 {s(S_WAVE)}, 15
    s_cbranch_scc0 KA_NOTAG
    s_cmp_eq_u32 s2, 0
    s_cbranch_scc0 KA_NOTAG
    s_memrealtime s[62:63]
    s_waitcnt lgkmcnt(0)
    s_lshl_b32 s63, s63, 24
    s_or_b32 s63, s63, 1
    v_mov_b32 {v(QD)}, s63
    v_mov_b32 {v(QD + 1)}, s62
    s_mov_b64 exec, 1
    global_store_dwordx2 {v(QZ)}, {v(QD, 2)}, {s(S_DBG, 2)} {WT}
    s_mov_b64 exec, -1
    KA_NOTAG:
    s_barrier
    """)
    if opt.get("ttlb"):
        sh = opt["ttlb"]
        A(f"""
        s_cmp_eq_u32 {s(S_WAVE)}, 14
        s_cbranch_scc0 KA_JOIN0
        v_min_u32 {v(P4)}, {255 >> sh}, {v(P1)}
        v_mul_u32_u24 {v(P4)}, {RECSTRIDE << sh}, {v(P4)}
        v_add_u32 {v(P4)}, {RECSTRIDE - 128}, {v(P4)}
        global_load_dword {v(V_JUNK)}, {v(P4)}, {s(S_WS, 2)}
        v_lshlrev_b32 {v(P4)}, 19, {v(P1)}
        v_min_u32 {v(P5)}, {20480000 - 4}, {v(P4)}
        global_load_dword {v(V_JUNK)}, {v(P5)}, {s(KA + 8, 2)}
        v_min_u32 {v(P5)}, {5120000 - 4}, {v(P4)}
        global_load_dword {v(V_JUNK)}, {v(P5)}, {s(KA, 2)}
        """)
    A(f"""
    KA_JOIN0:
    s_and_b32 {s(S_BETA)}, s2, 7
    s_lshl_b32 {s(S_BETA)}, {s(S_BETA)}, 5
    s_lshr_b32 s3, s2, 3
    s_add_u32 {s(S_BETA)}, {s(S_BETA)}, s3
    s_sub_u32 {s(S_X)}, {s(KA)}, 512
    s_subb_u32 {s(S_X + 1)}, {s(KA + 1)}, 0
    s_and_b32 {s(S_X + 1)}, {s(S_X + 1)}, 0xffff
    s_or_b32 {s(S_X + 1)}, {s(S_X + 1)}, 0x100000
    s_mov_b32 {s(S_X + 2)}, 64
    s_mov_b32 {s(S_X + 3)}, 0x800000
    s_mov_b32 {s(S_XP)}, {s(KA)}
    s_and_b32 {s(S_XP + 1)}, {s(KA + 1)}, 0xffff
    s_mov_b32 {s(S_XP + 2)}, 5120000
    s_mov_b32 {s(S_XP + 3)}, 0x20000
    s_mov_b32 {s(S_EF)}, {s(KA + 8)}
    s_and_b32 {s(S_EF + 1)}, {s(KA + 9)}, 0xffff
    s_mov_b32 {s(S_EF + 2)}, 20480000
    s_mov_b32 {s(S_EF + 3)}, 0x20000
    s_and_b32 {s(S_OUT + 1)}, {s(S_OUT + 1)}, 0xffff
    s_mov_b32 {s(S_OUT + 2)}, 5120000
    s_mov_b32 {s(S_OUT + 3)}, 0x20000
    s_mov_b32 {s(S_K0)}, 0
    s_mov_b32 {s(S_WIDE)}, 2
    s_lshr_b32 s3, {s(S_BETA)}, 2
    s_lshl_b32 s3, s3, 4
    s_and_b32 {s(S_TMP)}, {s(S_BETA)}, 1
    s_lshl_b32 {s(S_TMP)}, {s(S_TMP)}, 3
    s_add_u32 s3, s3, {s(S_TMP)}
    s_and_b32 {s(S_TMP)}, {s(S_BETA)}, 2
    s_lshl_b32 {s(S_TMP)}, {s(S_TMP)}, 9
    s_add_u32 s3, s3, {s(S_TMP)}
    s_add_u32 s3, s3, {WS_TAB}
    v_lshrrev_b32 {v(P2)}, 4, v0
    v_lshlrev_b32 {v(P2)}, 2, {v(P2)}
    v_and_or_b32 {v(P3)}, v0, 3, {v(P2)}
    v_lshl_add_u32 {v(V_FA)}, {v(P3)}, 11, s3
    v_and_b32 {v(P4)}, 31, {v(P1)}
    v_lshrrev_b32 {v(P5)}, 5, {v(P1)}
    v_lshlrev_b32 {v(V_HALF16)}, 4, {v(P5)}
    v_lshlrev_b32 {v(V_ACCL)}, 3, {v(P4)}
    v_add_u32 {v(V_ACCL)}, {L_ACC}, {v(V_ACCL)}
    v_and_b32 {v(P6)}, 15, v0
    v_add_lshl_u32 {v(V_LAD)}, {v(P6)}, {v(V_HALF16)}, 4
    v_lshrrev_b32 {v(P6)}, 3, {v(P4)}
    v_lshlrev_b32 {v(P6)}, 2, {v(P6)}
    v_and_or_b32 {v(P6)}, {v(P4)}, 3, {v(P6)}
    v_lshlrev_b32 {v(P6)}, 4, {v(P6)}
    v_and_b32 {v(P0)}, 4, {v(P4)}
    v_lshl_add_u32 {v(V_LAE)}, {v(P0)}, 6, {v(P6)}
    v_lshrrev_b32 {v(P6)}, 2, {v(P4)}
    v_and_b32 {v(P0)}, 1, {v(P4)}
    v_lshl_add_u32 {v(P6)}, {v(P0)}, 3, {v(P6)}
    v_add_lshl_u32 {v(V_LAY)}, {v(P6)}, {v(V_HALF16)}, 4
    v_mov_b32 {v(V_ONE)}, 1
    v_mov_b32 {v(V_CTRA)}, {L_CTR}
    s_cmp_ge_u32 {s(S_WAVE)}, 10
    s_cbranch_scc1 KA_AUX1
    s_mov_b64 exec, {s(S_PM, 2)}
    v_lshlrev_b32 {v(P0)}, 2, v0
    v_add_u32 {v(P0)}, 4096, {v(P0)}
    s_movk_i32 {s(S_C1)}, {-PSIZE}
    s_waitcnt vmcnt(3)
    """)
    stamp("dst")
    for k in range(4):
        A(f"""
        v_add_u32 {v(P2)}, {16384 - 9984}, {v(QD + k)}
        v_lshrrev_b32 {v(P2)}, 12, {v(P2)}
        v_and_or_b32 {v(P2)}, {v(P2)}, 4, 2
        v_lshlrev_b32_sdwa {v(QH + k)}, {v(P2)}, {v(QD + k)} {SDWA} src1_sel:BYTE_0
        ds_add_rtn_u32 {v(QR + k)}, {v(QH + k)}, {v(V_ONE)} offset:{L_HIST}
        """)
    A("s_waitcnt lgkmcnt(0)\ns_barrier")
    stamp("b2")
    for k in range(4):
        A(f"""
        v_lshrrev_b32 {v(QD + k)}, 8, {v(QD + k)}
        v_or_b32 {v(P3)}, {k}, {v(P0)}
        v_lshl_or_b32 {v(QD + k)}, {v(QD + k)}, 24, {v(P3)}
        """)
    A("s_barrier")
    stamp("b2b")
    for k in range(4):
        A(f"ds_read_b32 {v(QH + k)}, {v(QH + k)} offset:{L_PREF}")
    for k in range(4):
        A(f"""
        s_waitcnt lgkmcnt({3 - k})
        v_add_lshl_u32 {v(QH + k)}, {v(QH + k)}, {v(QR + k)}, 2
        v_add_u32 {v(QR + k)}, {v(QH + k)}, {v(QH + k)}
        """)
    A("s_waitcnt vmcnt(2)")
    for k in range(4):
        A(f"""
        v_mul_u32_u24 {v(P2)}, {(1 << 24) // PSIZE}, {v(QS + k)}
        v_lshrrev_b32 {v(P2)}, 24, {v(P2)}
        v_mad_i32_i24 {v(QS + k)}, {v(P2)}, {s(S_C1)}, {v(QS + k)}
        v_lshl_or_b32 {v(QS + k)}, {v(P2)}, 18, {v(QS + k)}
        v_lshl_add_u32 {v(QD + k)}, {v(QS + k)}, 12, {v(QD + k)}
        ds_write_b32 {v(QH + k)}, {v(QD + k)} offset:{L_STG}
        """)
    for k in range(4):
        if k % 2 == 0:
            A(f"s_waitcnt vmcnt({1 - k // 2})")
        if k == 2:
            stamp("y")
        A(f"ds_write_b64 {v(QR + k)}, {v(QY + 2 * k, 2)} offset:{L_STG + YOFF}")
    A(f"""
    s_mov_b64 exec, -1
    s_branch KA_JOIN3
    KA_AUX1:
    s_cmp_eq_u32 {s(S_WAVE)}, 15
    s_cbranch_scc1 KA_SCAN
    s_and_b32 s64, {s(S_WAVE)}, 1
    s_lshl_b32 s63, s64, 6
    s_lshl_b32 s65, s64, 1
    s_cmp_lt_u32 {s(S_WAVE)}, 12
    s_cselect_b64 s[66:67], {s(KA + 10, 2)}, {s(KA + 12, 2)}
    s_cselect_b32 s65, s65, s63
    s_cselect_b32 s68, 5, 6
    s_cselect_b32 s69, 31, 3
    s_cselect_b32 s70, 2, 1
    s_cselect_b32 s71, 128, 8
    s_cselect_b32 s72, 0, 128
    s_add_u32 s63, s63, s72
    v_lshrrev_b32 {v(P2)}, s68, {v(P1)}
    v_lshlrev_b32 {v(P2)}, 10, {v(P2)}
    v_and_b32 {v(P3)}, s69, {v(P1)}
    v_lshlrev_b32 {v(P3)}, s70, {v(P3)}
    v_add3_u32 {v(P2)}, {v(P2)}, {v(P3)}, s65
    v_lshrrev_b32 {v(P3)}, 4, {v(P1)}
    v_lshlrev_b32 {v(P3)}, 11, {v(P3)}
    v_and_b32 {v(P4)}, 15, {v(P1)}
    v_lshlrev_b32 {v(P4)}, 2, {v(P4)}
    v_add3_u32 {v(P3)}, {v(P3)}, {v(P4)}, s63
    s_barrier
    s_barrier
    s_cmp_lt_u32 {s(S_WAVE)}, 14
    s_cbranch_scc0 KA_JOIN3
    """)
    for i in range(8):
        A(f"global_load_ushort {v(QY + i)}, {v(P2)}, s[66:67]\nv_add_u32 {v(P2)}, s71, {v(P2)}")
    for i in range(8):
        A(f"global_load_dword {v(QW + i)}, {v(P3)}, {s(KA + 14, 2)} offset:{256 * i}")
    A(f"""
    s_branch KA_JOIN3
    KA_SCAN:
    v_lshlrev_b32 {v(P3)}, 4, {v(P1)}
    s_setprio 3
    s_barrier
    """)
    scan256(QT, QR, P3, P4)
    A(f"""
    s_waitcnt lgkmcnt(0)
    s_barrier
    s_setprio 0
    global_load_dwordx2 {v(QH, 2)}, {v(QZ)}, {s(S_DBG, 2)} {WT}
    """)
    for k in range(4):
        A(f"v_lshl_or_b32 {v(QT + k)}, {v(QT + k)}, 12, {v(QR + k)}")
    NSTART = NW
    A(f"""
    KA_JOIN3:
    v_lshlrev_b32 {v(P2)}, 4, v0
    s_mul_i32 {s(S_TMP)}, s2, {RECSTRIDE}
    v_add_u32 {v(P3)}, {s(S_TMP)}, {v(P2)}
    v_add_u32 {v(P4)}, 16384, {v(P3)}
    v_cmp_gt_u32 vcc, {(YOFF + CHUNK * 8) // 16 - 1024}, v0
    v_and_b32 {v(P0)}, 0xff, v0
    v_lshlrev_b32 {v(P0)}, 2, {v(P0)}
    v_mov_b32 {v(P5)}, {NSTART}
    v_lshlrev_b32 {v(P6)}, 4, {v(P1)}
    s_waitcnt lgkmcnt(0)
    s_barrier
    """)
    stamp("b3")
    A(f"""
    ds_read_b128 {v(QD, 4)}, {v(P2)} offset:{L_STG}
    ds_read_b128 {v(QS, 4)}, {v(P2)} offset:{L_STG + 16384}
    s_waitcnt lgkmcnt(1)
    global_store_dwordx4 {v(P3)}, {v(QD, 4)}, {s(S_WS, 2)} {WT}
    s_and_saveexec_b64 {s(S_PM, 2)}, vcc
    s_cbranch_execz KA_NOST2
    s_waitcnt lgkmcnt(0)
    global_store_dwordx4 {v(P4)}, {v(QS, 4)}, {s(S_WS, 2)} {WT}
    KA_NOST2:
    s_mov_b64 exec, -1
    ds_write_b32 {v(P0)}, {v(QZ)} offset:{L_HIST}
    ds_write2_b32 {v(V_CTRA)}, {v(P5)}, {v(QZ)} offset0:0 offset1:1
    v_add_u32 {v(P3)}, {L_ACC}, {v(P2)}
    v_add_u32 {v(P4)}, {L_ACC + 41 * NS - 16384}, {v(P2)}
    """)
    for i in range(4):
        A(f"ds_write_b128 {v(P3)}, {v(QZ, 4)} offset:{16384 * i}")
    A(f"v_add_u32 {v(P3)}, 65536, {v(P3)}\nds_write_b128 {v(P4)}, {v(QZ, 4)}\nds_write_b128 {v(P3)}, {v(QZ, 4)}")
    assert 5 * 16384 <= 41 * NS <= 6 * 16384
    A(f"""
    s_mov_b32 {s(S_C1)}, {SPIN_MAX}
    s_lshl_b32 s3, s2, 11
    s_add_u32 s3, s3, {WS_TAB}
    v_add_u32 {v(QP)}, s3, {v(P6)}
    s_cmp_lt_u32 {s(S_WAVE)}, 10
    s_cbranch_scc1 KA_JOIN4
    s_cmp_eq_u32 {s(S_WAVE)}, 15
    s_cbranch_scc1 KA_TAG
    s_cmp_eq_u32 {s(S_WAVE)}, 14
    s_cbranch_scc1 KA_JOIN4
    s_cmp_lt_u32 {s(S_WAVE)}, 12
    s_cselect_b32 s62, {fbits(-math.log2(math.e))}, 1.0
    s_mov_b32 s63, 0x05040100
    s_mov_b32 s64, 0x07060302
    s_sub_u32 s65, {s(S_WAVE)}, 10
    s_lshl_b32 s65, s65, 11
    v_add_u32 {v(P3)}, s65, {v(P6)}
    s_waitcnt vmcnt(2)
    """)
    for i in range(8):
        A(f"v_lshlrev_b32 {v(QY + i)}, 16, {v(QY + i)}\nv_mul_f32 {v(QY + i)}, s62, {v(QY + i)}")
    for jj in range(4):
        A(f"v_cvt_pk_bf16_f32 {v(QH + jj)}, {v(QY + 2 * jj)}, {v(QY + 2 * jj + 1)}")
    for jj in range(4):
        A(f"v_perm_b32 {v(QR + jj)}, {v(QW + 2 * jj + 1)}, {v(QW + 2 * jj)}, s63")
        A(f"v_perm_b32 {v(QT + jj)}, {v(QW + 2 * jj + 1)}, {v(QW + 2 * jj)}, s64")
    A(f"""
    ds_write_b128 {v(P2)}, {v(QH, 4)} offset:{L_WF - 10240}
    ds_write_b128 {v(P3)}, {v(QR, 4)} offset:{L_WM}
    ds_write_b128 {v(P3)}, {v(QT, 4)} offset:{L_WM + 1024}
    s_branch KA_JOIN4
    KA_TAG:
    s_waitcnt vmcnt(1)
    KA_TAG1:
    v_cmp_eq_u32 vcc, 0, {v(QH)}
    s_cbranch_vccz KA_GOTTAG
    s_sub_u32 {s(S_C1)}, {s(S_C1)}, 1
    s_cbranch_scc1 K_END
    global_load_dwordx2 {v(QH, 2)}, {v(QZ)}, {s(S_DBG, 2)} {WT}
    s_waitcnt vmcnt(0)
    s_branch KA_TAG1
    KA_GOTTAG:
    v_and_b32 {v(QH)}, 0xff000000, {v(QH)}
    ds_write_b64 {v(V_CTRA)}, {v(QH, 2)} offset:8
    """)
    for k in range(4):
        A(f"v_or_b32 {v(QY + 2 * k)}, {v(QT + k)}, {v(QH)}\nv_mov_b32 {v(QY + 2 * k + 1)}, {v(QH + 1)}")
    A(f"""
    KA_JOIN4:
    s_waitcnt vmcnt(0) lgkmcnt(0)
    s_barrier
    """)
    stamp("b4")
    A(f"""
    s_cmp_eq_u32 {s(S_WAVE)}, 15
    s_cbranch_scc0 KA_PUBD
    global_store_dwordx4 {v(QP)}, {v(QY, 4)}, {s(S_WS, 2)} {WT}
    global_store_dwordx4 {v(QP)}, {v(QY + 4, 4)}, {s(S_WS, 2)} offset:1024 {WT}
    KA_PUBD:
    """)
    w2 = opt.get("w2", 128)
    xtouch(w2, 0)
    A(f"ds_read_b64 {v(QH, 2)}, {v(V_CTRA)} offset:8")
    for f in range(4):
        A(f"ds_read_b128 {v(W + 4 * f, 4)}, {v(P6)} offset:{L_WF + 1024 * f}")
    round_consts()
    A(f"""
    s_waitcnt vmcnt(0) lgkmcnt(0)
    s_barrier
    KA_POLL:
    global_load_dwordx2 {v(QD, 2)}, {v(V_FA)}, {s(S_WS, 2)} {WT}
    s_waitcnt vmcnt(0)
    v_mov_b32 {v(V_DCNT)}, {v(QD)}
    v_and_b32 {v(QD)}, 0xff000000, {v(QD)}
    v_cmp_ne_u64 vcc, {v(QD, 2)}, {v(QH, 2)}
    s_cbranch_vccz KA_READY
    s_mov_b64 exec, vcc
    s_sub_u32 {s(S_C1)}, {s(S_C1)}, 1
    s_cbranch_scc1 K_END
    s_branch KA_POLL
    KA_READY:
    s_mov_b64 exec, -1
    v_and_b32 {v(V_DBASE)}, 0xfff, {v(V_DCNT)}
    v_bfe_u32 {v(V_DCNT)}, {v(V_DCNT)}, 12, 12
    """)
    stamp("desc")
    NC = 4
    REC1, REC2, RK1, RK2, HA1, HA2, PB, SC, CB, YA = 32, 48, 64, 68, 72, 76, 80, 84, 92, 96
    A(f"""
    KB_ROUND0:
    s_cmp_eq_u32 {s(S_WIDE)}, 2
    s_cselect_b32 {s(S_C1)}, 16, 0x7fffffff
    """)
    for c in range(NC):
        A(f"""
        v_sub_u32_dpp {v(RK1 + c)}, {v(V_DCNT)}, {v(P3)} row_newbcast:{c} {DPP}
        v_add_u32_dpp {v(HA1 + c)}, {v(V_DBASE)}, {v(P3)} row_newbcast:{c} {DPP}
        v_cmp_lt_i32 {s(S_M1 + 2 * c, 2)}, 0, {v(RK1 + c)}
        v_lshl_add_u32 {v(HA2 + c)}, {v(HA1 + c)}, 2, {v(CB + c)}
        s_mov_b64 exec, {s(S_M1 + 2 * c, 2)}
        global_load_dword {v(REC1 + 4 * c + 2)}, {v(HA2 + c)}, {s(S_WS, 2)} {WT}
        s_mov_b64 exec, -1
        """)
    for c in range(NC):
        A(f"v_cmp_lt_i32 {s(S_M2 + 2 * c, 2)}, {s(S_C1)}, {v(RK1 + c)}")
    for c in range(NC):
        A(f"v_lshl_add_u32 {v(HA1 + c)}, {v(HA1 + c)}, 3, {v(CB + c)}")
    A(f"""
    s_lshl_b32 {s(S_TMP)}, 8, {s(S_WIDE)}
    s_add_u32 {s(S_TMP)}, {s(S_TMP)}, {s(S_K0)}
    v_cmp_lt_u32 {s(S_CMP, 2)}, {s(S_TMP)}, {v(V_DCNT)}
    s_add_u32 {s(S_WY)}, {s(S_WS)}, {YOFF}
    s_addc_u32 {s(S_WY + 1)}, {s(S_WS + 1)}, 0
    s_or_b64 {s(S_ANY2, 2)}, {s(S_M2, 2)}, {s(S_M2 + 2, 2)}
    s_or_b64 {s(S_ANY2, 2)}, {s(S_ANY2, 2)}, {s(S_M2 + 4, 2)}
    s_or_b64 {s(S_ANY2, 2)}, {s(S_ANY2, 2)}, {s(S_M2 + 6, 2)}
    s_cbranch_scc0 KB_NOSEC_A
    """)
    for c in range(NC):
        A(f"""
        s_mov_b64 exec, {s(S_M2 + 2 * c, 2)}
        s_cbranch_execz KB_SA{c}
        global_load_dword {v(REC2 + 4 * c + 2)}, {v(HA2 + c)}, {s(S_WS, 2)} offset:64 {WT}
        global_load_dwordx2 {v(REC2 + 4 * c, 2)}, {v(HA1 + c)}, {s(S_WY, 2)} offset:128 {WT}
        KB_SA{c}:
        """)

    def tile_addr(tile, sa=True):
        A(f"""
        s_lshl_b32 {s(S_TMP)}, {s(tile)}, 9
        s_add_u32 {s(S_TMP)}, {s(S_TMP)}, {L_LIST}
        v_add_u32 {v(V_EID)}, {s(S_TMP)}, {v(V_LAE)}
        v_add_u32 {v(V_KN)}, {s(S_TMP)}, {v(V_LAD)}
        v_add_u32 {v(V_MT)}, {s(S_TMP)}, {v(V_LAY)}
        """)
        if sa:
            A(f"v_lshl_add_u32 {v(V_SA)}, {v(V_HALF16)}, 4, {s(S_TMP)}")

    ROT = 3 if opt.get("rot", 1) else 0
    A(f"""
    s_mov_b64 exec, -1
    KB_NOSEC_A:
    s_cmp_eq_u64 {s(S_CMP, 2)}, 0
    s_cbranch_scc1 KB_NOMORE
    ds_write_b32 {v(V_CTRA)}, {v(V_ONE)} offset:4
    KB_NOMORE:
    v_lshrrev_b32 {v(PB)}, 4, v0
    v_mul_u32_u24 {v(PB)}, {4 * CHUNK}, {v(PB)}
    v_add_u32 {v(PB + 1)}, {CHUNK}, {v(PB)}
    v_add_u32 {v(PB + 2)}, {2 * CHUNK}, {v(PB)}
    v_add_u32 {v(PB + 3)}, {3 * CHUNK}, {v(PB)}
    s_getreg_b32 {s(S_ROT)}, hwreg(HW_REG_XCC_ID, 0, 4)
    s_and_b32 {s(S_ROT)}, {s(S_ROT)}, {ROT}
    s_lshl_b32 {s(S_ROT)}, {s(S_ROT)}, 8
    v_and_b32 {v(P1)}, 63, v0
    v_lshl_add_u32 {v(P2)}, {v(P1)}, 4, {s(S_ROT)}
    v_and_b32 {v(P2)}, 0x3ff, {v(P2)}
    v_mov_b32 {v(P5)}, 16
    v_mov_b32 {v(P6)}, 0x3f000fff
    v_mov_b32 {v(P3)}, {opt.get("abl_x", 0x1ffe00)}
    """)
    tile_addr(S_WAVE)
    A(f"""
    s_movk_i32 {s(S_C0)}, {NS}
    v_mov_b32 {v(V_KK)}, {40 * NS}
    s_mov_b32 {s(S_TMP2)}, {PSIZE * 512}
    """)

    def yloads(addr):
        for c in range(NC):
            A(f"s_or_b64 exec, {s(S_M1 + 2 * c, 2)}, 1\nglobal_load_dwordx2 {v(REC1 + 4 * c, 2)}, {v(addr + c)}, {s(S_WY, 2)} {WT}")
        A("s_mov_b64 exec, -1")

    ylate = opt.get("ylate", 0)
    if ylate == 0:
        yloads(HA1)
        A("s_waitcnt vmcnt(4)")
    elif ylate == 1:
        A("s_waitcnt vmcnt(0)")
        yloads(HA1)
    else:
        for c in range(NC):
            A(f"v_mov_b32 {v(YA + c)}, {v(HA1 + c)}")
        A("s_waitcnt vmcnt(0)")
    stamp("rec")

    def second(fns, tag):
        A(f"s_cmp_eq_u64 {s(S_ANY2, 2)}, 0\ns_cbranch_scc1 KB_N{tag}")
        for c in range(NC):
            A(f"s_mov_b64 exec, {s(S_M2 + 2 * c, 2)}\ns_cbranch_execz KB_{tag}{c}")
            for fn in fns:
                fn(REC2, RK2, HA2, c)
            A(f"KB_{tag}{c}:")
        A(f"KB_N{tag}:\ns_mov_b64 exec, -1")

    def keyof(rec, rk, ha, c):
        A(f"v_lshlrev_b32_sdwa {v(ha + c)}, 2, {v(rec + 4 * c + 2)} {SDWA} src1_sel:BYTE_3")

    def count(rec, rk, ha, c):
        A(f"ds_add_rtn_u32 {v(rk + c)}, {v(ha + c)}, {v(P5)} offset:{L_HIST}")

    def decode(rec, rk, ha, c):
        idx = rec + 4 * c + 2
        A(f"""
        v_and_b32 {v(idx + 1)}, {v(P6)}, {v(idx)}
        v_lshrrev_b32 {v(P0)}, 30, {v(idx)}
        v_lshrrev_b32 {v(idx)}, 3, {v(idx)}
        v_and_b32 {v(idx)}, {v(P3)}, {v(idx)}
        """)
        if not opt.get("abl_ef"):
            A(f"v_add_u32 {v(idx + 1)}, {v(idx + 1)}, {v(PB + c)}")
        if opt.get("abl_x"):
            A(f"v_add_u32 {v(idx)}, 512, {v(idx)}")
        else:
            A(f"v_mad_u32_u24 {v(idx)}, {v(P0)}, {s(S_TMP2)}, {v(idx)}")

    def prefread(rec, rk, ha, c):
        A(f"ds_read_b32 {v(ha + c)}, {v(ha + c)} offset:{L_PREF}")

    def place(rec, rk, ha, c):
        A(f"""
        v_add_u32 {v(ha + c)}, {v(ha + c)}, {v(rk + c)}
        v_and_b32 {v(P0)}, 0x100, {v(ha + c)}
        v_mad_i32_i24 {v(rec + 4 * c + 2)}, {v(P0)}, -2, {v(rec + 4 * c + 2)}
        ds_write_b128 {v(ha + c)}, {v(rec + 4 * c, 4)} offset:{L_LIST}
        """)

    for c in range(NC):
        keyof(REC1, RK1, HA1, c)
    for c in range(NC):
        A(f"s_mov_b64 exec, {s(S_M1 + 2 * c, 2)}")
        count(REC1, RK1, HA1, c)
    second([keyof, count, decode], "H")
    for c in range(NC):
        decode(REC1, RK1, HA1, c)
    A("s_waitcnt lgkmcnt(0)\ns_barrier")
    stamp("b5")
    if ylate == 2:
        yloads(YA)
    A(f"""
    s_cmp_eq_u32 {s(S_WAVE)}, 0
    s_cbranch_scc0 KB_NOSCAN
    s_setprio 3
    """)
    scan256(SC, SC + 4, P2, P4)
    A(f"""
    s_mov_b32 exec_lo, 0
    s_brev_b32 exec_hi, 1
    ds_write_b32 {v(V_CTRA)}, {v(P4)} offset:16
    s_mov_b64 exec, -1
    s_waitcnt lgkmcnt(0)
    s_barrier
    s_setprio 0
    v_readlane_b32 {s(S_N)}, {v(P4)}, 63
    v_mov_b64 {v(SC + 4, 2)}, 0
    v_mov_b32 {v(SC + 6)}, 512
    v_mov_b32 {v(SC + 7)}, {(40 << 24) | 0xfffff}
    s_min_u32 {s(S_N)}, {s(S_N)}, {16 * CAP}
    v_lshl_add_u32 {v(P3)}, {v(P1)}, 4, {s(S_N)}
    ds_write_b128 {v(P3)}, {v(SC + 4, 4)} offset:{L_LIST}
    s_waitcnt vmcnt(0)
    s_branch KB_PLACE
    KB_NOSCAN:
    """)
    if opt.get("efpre"):
        for c in range(NC):
            A(f"""
            v_xor_b32 {v(P0)}, {s(S_ROT)}, {v(HA1 + c)}
            v_cmp_gt_u32 vcc, {4 * opt["efpre"]}, {v(P0)}
            v_mul_u32_u24 {v(P0)}, 32, {v(REC1 + 4 * c + 3)}
            s_and_b64 vcc, vcc, {s(S_M1 + 2 * c, 2)}
            s_or_b64 exec, vcc, 1
            buffer_load_dword {v(V_JUNK)}, {v(P0)}, {s(S_EF, 4)}, 0 offen
            s_mov_b64 exec, -1
            """)
    A("s_barrier\nKB_PLACE:")
    stamp("b6")
    A(f"ds_read2_b32 {v(SC, 2)}, {v(V_CTRA)} offset0:1 offset1:4")
    for c in range(NC):
        A(f"s_mov_b64 exec, {s(S_M1 + 2 * c, 2)}")
        prefread(REC1, RK1, HA1, c)
    second([prefread], "R")
    A(f"""
    s_waitcnt lgkmcnt(0)
    v_readfirstlane_b32 {s(S_N)}, {v(SC + 1)}
    v_readfirstlane_b32 {s(S_MORE)}, {v(SC)}
    s_nop 1
    s_cmp_le_u32 {s(S_N)}, {16 * CAP}
    s_cbranch_scc0 KB_NARROW
    s_add_u32 {s(S_NT)}, {s(S_N)}, 511
    s_lshr_b32 {s(S_NT)}, {s(S_NT)}, 9
    s_waitcnt vmcnt({4 if opt.get("efpre") else 0})
    """)
    for c in range(NC):
        A(f"s_mov_b64 exec, {s(S_M1 + 2 * c, 2)}")
        place(REC1, RK1, HA1, c)
    second([place], "P")
    A("s_waitcnt lgkmcnt(0)\ns_barrier")
    stamp("sorted")
    if opt.get("trace"):
        A(f"v_mov_b32 {v(V_TRC)}, 0\ns_mov_b32 s1, 0")

    def tile_reads():
        A(f"""
        ds_read_b32 {v(V_EID)}, {v(V_EID)} offset:12
        ds_read_b32 {v(V_KN)}, {v(V_KN)} offset:12
        ds_read_b64 {v(YR, 2)}, {v(V_MT)}
        """)

    def so_read(g):
        for q in range(2):
            o = 16 * (g % 4) + 8 * q + 2
            A(f"ds_read2_b32 {v(SO + 4 * (g % 2) + 2 * q, 2)}, {v(V_SA)} offset0:{o} offset1:{o + 4}")

    def xload(r):
        if r >= 16 and opt.get("xskip", 1):
            A(f"s_cmp_ge_u32 {s(S_NEXT)}, {s(S_NT)}\ns_cselect_b64 exec, 1, -1")
        A(f"buffer_load_dwordx4 {v(X + 4 * (r % 4), 4)}, {v(SO + 4 * ((r // 4) % 2) + r % 4)}, {s(S_X, 4)}, 0 offen")
        if r >= 16 and opt.get("xskip", 1):
            A("s_mov_b64 exec, -1")

    def ef_load(skip=0):
        A(f"v_mad_u32_u24 {v(V_EID)}, {v(V_EID)}, 32, {v(V_HALF16)}")
        m = (0xffffffff << skip) & 0xffffffff
        if skip:
            A(f"s_mov_b32 exec_lo, {m}\ns_mov_b32 exec_hi, {m}")
        A(f"buffer_load_dwordx4 {v(EF, 4)}, {v(V_EID)}, {s(S_EF, 4)}, 0 offen")
        if skip:
            A("s_mov_b64 exec, -1")

    def sm_issue(base, n):
        for j in range(n):
            A(f"v_readlane_b32 {s(SMB + 8 * j)}, {v(V_EID)}, {base + j}")
        if n < 5:
            A(f"s_nop {4 - n}")
        for j in range(n):
            A(f"s_buffer_load_dwordx8 {s(SMB + 8 * j, 8)}, {s(S_EF, 4)}, {s(SMB + 8 * j)}")

    def sm_move(base, n):
        for half in range(2):
            for j in range(n):
                if j == 0:
                    A(f"s_mov_b32 exec_{'hi' if half else 'lo'}, {1 << base}\ns_mov_b32 exec_{'lo' if half else 'hi'}, 0")
                else:
                    A("s_lshl_b64 exec, exec, 1")
                for q in range(2):
                    A(f"v_mov_b64 {v(EF + 2 * q, 2)}, {s(SMB + 8 * j + 4 * half + 2 * q, 2)}")
        A("s_mov_b64 exec, -1")

    def grab(reg):
        A(f"s_mov_b64 exec, 1\nds_add_rtn_u32 {v(reg)}, {v(V_CTRA)}, {v(V_ONE)}\ns_mov_b64 exec, -1")

    key_ops = [f"v_mul_u32_u24_sdwa {v(V_KN)}, {s(S_C0)}, {v(V_KN)} {SDWA} src1_sel:BYTE_3",
               f"v_xor_b32_dpp {v(V_MT)}, {v(V_KN)}, {v(V_KN)} row_shl:1 {DPP} bound_ctrl:0",
               f"v_cmp_ne_u32 {s(S_CMP, 2)}, 0, {v(V_MT)}"]

    sm0 = opt.get("sm0", 0)
    A(f"s_mov_b32 {s(S_NEXT)}, {s(S_WAVE)}\ns_cmp_ge_u32 {s(S_WAVE)}, {s(S_NT)}\ns_cbranch_scc1 KM_DONE")
    A(f"ds_read_b32 {v(V_EID)}, {v(V_EID)} offset:12")
    so_read(0)
    A(f"ds_read_b32 {v(V_KN)}, {v(V_KN)} offset:12\nds_read_b64 {v(YR, 2)}, {v(V_MT)}")
    so_read(1)
    A("s_waitcnt lgkmcnt(6)")
    ef_load(sm0)
    A("s_waitcnt lgkmcnt(4)")
    for r in range(4):
        xload(r)
    A("s_waitcnt lgkmcnt(0)")
    if sm0:
        sm_issue(0, sm0)
    A(key_ops[0] + "\ns_nop 1\n" + key_ops[1] + "\n" + key_ops[2])
    if sm0:
        A("s_waitcnt lgkmcnt(0)")
        sm_move(0, sm0)
    A("s_waitcnt vmcnt(4)")
    stamp("loop")

    def flush_ops(r):
        ops = [[f"v_add_u32_dpp {v(V_FA)}, {v(V_KK)}, {v(V_ACCL)} row_newbcast:{r} {DPP}"]]
        for j in range(8):
            st = STG + 2 * (j % 4)
            ops.append([f"v_cvt_f64_f32 {v(st, 2)}, {v(ACC + j)}", f"ds_add_f64 {v(V_FA)}, {v(st, 2)} offset:{RS * j}"])
        return ops

    def emit(groups):
        for g in groups:
            for op in ([g] if isinstance(g, str) else g):
                A(op)

    def acc_ops(r, first):
        ops = []
        for j in range(4):
            rr = D + 16 * (j // 2) + (r & ~1)
            o = r & 1
            if first:
                ops.append(f"v_pk_mul_f32 {v(ACC + 2 * j, 2)}, {v(rr, 2)}, {v(TP + 2 * j, 2)} op_sel:[{o},0] op_sel_hi:[{o},1]")
            else:
                ops.append(f"v_pk_fma_f32 {v(ACC + 2 * j, 2)}, {v(rr, 2)}, {v(TP + 2 * j, 2)}, {v(ACC + 2 * j, 2)} op_sel:[{o},0,0] op_sel_hi:[{o},1,1]")
        return ops

    def exp_ops(q):
        return [f"v_exp_f32 {v(E + j)}, {v(D + 16 * (j // 2) + q + j % 2)}" for j in range(4)]

    add_ops = [f"v_pk_add_f32 {v(E + 2 * j, 2)}, {v(E + 2 * j, 2)}, 1.0 op_sel_hi:[1,0]" for j in range(2)]
    rcp_ops = [f"v_rcp_f32 {v(E + j)}, {v(E + j)}" for j in range(4)]

    def mul_ops(q):
        return [f"v_pk_mul_f32 {v(D + 16 * j + q, 2)}, {v(D + 16 * j + q, 2)}, {v(E + 2 * j, 2)}" for j in range(2)]

    GRAB, EFS = opt.get("grab", 5), opt.get("efs", 8)
    prio = opt.get("prio", {-1: 0, 4: 1, 8: 2, 12: 3})
    sm = opt.get("sm", {})
    smbase = {st: sum(sm[q] for q in sm if q < st) for st in sm}
    assert set(sm) <= {4, 8, 12} and all(st >= EFS for st in sm)
    smlim = opt.get("smlim", {})
    S_LIM = {st: S_NT for st in sm}
    for st, reg in zip(smlim, (S_N, S_C1, 1)):
        S_LIM[st] = reg
        A(f"s_min_u32 {s(reg)}, {s(S_NT)}, {smlim[st]}")
    A(".p2align 6")
    loop_start = len(A.lines)
    A("KM_LOOP:")
    endprio = opt.get("endprio")

    def setprio(k):
        A(f"s_setprio {prio[k]}")
        if endprio and endprio[k] != prio[k]:
            A(f"s_cbranch_vccz KM_P{k + 1}\ns_setprio {endprio[k]}\nKM_P{k + 1}:")

    if endprio:
        A(f"s_add_u32 s3, {s(S_NEXT)}, {opt.get('endn', 16)}\ns_cmp_ge_u32 s3, {s(S_NT)}\ns_cselect_b64 vcc, -1, 0")
    if -1 in prio:
        setprio(-1)
    fo = flush_ops(15)
    tm = [f"v_mfma_f32_4x4x4_16b_bf16 {v(D + 16 + 4 * i, 4)}, {v(YR, 2)}, {v(CG + 2 * i, 2)}, 0" for i in range(4)]
    tc = [f"v_cvt_pk_bf16_f32 {v(T + 2 * j + hh)}, {v(D + 16 + 8 * hh + j)}, {v(D + 20 + 8 * hh + j)}" for hh in range(2) for j in range(2)]
    ex = exp_ops(0)
    emit([tm[0], fo[0], tm[1], fo[1], tm[2], fo[2], tm[3], fo[3]])
    A(f"v_mfma_f32_32x32x16_bf16 {v(D, 16)}, {v(EF, 4)}, {v(W, 4)}, 0")
    emit([tc[0], tc[1], fo[4], fo[5], tc[2], tc[3]])
    A(f"v_mfma_f32_32x32x16_bf16 {v(D + 16, 16)}, {v(EF, 4)}, {v(W + 4, 4)}, 0")
    emit([fo[6], fo[7], fo[8], f"v_mov_b32 {v(V_KK)}, {v(V_KN)}", f"s_or_b32 {s(S_MASK)}, {s(S_CMP)}, {s(S_CMP + 1)}",
          ex[0], ex[1], "s_nop 1", ex[2], ex[3], "s_nop 0"] + add_ops)
    for r in range(16):
        tr = T + (2 if r >= 8 else 0)
        m4 = [f"v_mfma_f32_4x4x4_16b_bf16 {v(TP + 4 * h, 4)}, {v(tr, 2)}, {v(X + 4 * (r % 4) + 2 * h, 2)}, 0 cbsz:3 abid:{r % 8}" for h in range(2)]
        if r in prio:
            setprio(r)
        A(f"s_waitcnt vmcnt(3)")
        if r == 15:
            emit([m4[0], key_ops[0], m4[1]])
            xload(r + 4)
            emit([key_ops[1], key_ops[2]])
            side = []
        else:
            trans = rcp_ops if r % 2 == 0 else exp_ops(r + 1)
            side = mul_ops(r) if r % 2 == 0 else add_ops
            emit([m4[0], trans[0], m4[1], trans[1], trans[2], trans[3]])
            if r % 4 == 0 and r > 0:
                A("s_waitcnt lgkmcnt(0)")
            xload(r + 4)
        if r % 4 == 0:
            so_read(r // 4 + 2)
        if r == GRAB:
            grab(V_MT)
        if r == GRAB + 1:
            if r % 4:
                A("s_waitcnt lgkmcnt(0)")
            A(f"v_readfirstlane_b32 {s(S_NEXT)}, {v(V_MT)}")
        if r == GRAB + 2:
            A(f"s_min_u32 {s(S_NEXT)}, {s(S_NEXT)}, {s(S_NT)}")
            tile_addr(S_NEXT, r >= 5)
            tile_reads()
        if r == 5 and GRAB + 2 < 5:
            A(f"v_lshl_add_u32 {v(V_SA)}, {v(V_HALF16)}, 4, {s(S_TMP)}")
        if r - 4 in sm:
            A(f"s_cmp_ge_u32 {s(S_NEXT)}, {s(S_LIM[r - 4])}\ns_cbranch_scc1 KM_NOMV{r}")
            sm_move(smbase[r - 4], sm[r - 4])
            A(f"KM_NOMV{r}:")
        if r == EFS:
            A(f"s_cmp_ge_u32 {s(S_NEXT)}, {s(S_NT)}\ns_cbranch_scc1 KM_NOEF")
            A(f"v_mad_u32_u24 {v(V_EID)}, {v(V_EID)}, 32, {v(V_HALF16)}")
            m = (0xffffffff << sum(sm.values())) & 0xffffffff
            A(f"s_mov_b32 {s(S_TMP2)}, {m}")
            for st in smlim:
                A(f"s_cmp_ge_u32 {s(S_NEXT)}, {s(S_LIM[st])}\ns_cselect_b32 s3, {((1 << sm[st]) - 1) << smbase[st]}, 0\ns_or_b32 {s(S_TMP2)}, {s(S_TMP2)}, s3")
            if opt.get("hackB"):
                B = opt["hackB"]
                A(f"""
                s_lshr_b32 s3, s2, 3
                s_add_u32 s3, s3, {s(S_NEXT)}
                s_and_b32 s3, s3, {B - 1}
                s_cbranch_scc1 KM_NOEF
                """)
                for j in range(B):
                    A(f"""
                    s_add_u32 s3, {s(S_NEXT)}, {j + opt.get("hlead", 0)}
                    s_min_u32 s3, s3, {s(S_NT)}
                    s_lshl_b32 s3, s3, 9
                    v_add_u32 {v(STG + j)}, s3, {v(V_LAE)}
                    ds_read_b32 {v(STG + j)}, {v(STG + j)} offset:{L_LIST + 12}
                    """)
                A(f"s_waitcnt lgkmcnt(0)\ns_mov_b32 exec_lo, {s(S_TMP2)}\ns_mov_b32 exec_hi, {s(S_TMP2)}")
                for j in range(B):
                    A(f"v_mad_u32_u24 {v(STG + j)}, {v(STG + j)}, 32, {v(V_HALF16)}")
                    A(f"buffer_load_dwordx4 {v(EF, 4)}, {v(STG + j)}, {s(S_EF, 4)}, 0 offen")
                A("s_mov_b64 exec, -1\nKM_NOEF:")
            else:
                A(f"""
                s_mov_b32 exec_lo, {s(S_TMP2)}
                s_mov_b32 exec_hi, {s(S_TMP2)}
                buffer_load_dwordx4 {v(EF, 4)}, {v(V_EID)}, {s(S_EF, 4)}, 0 offen
                s_mov_b64 exec, -1
                KM_NOEF:
                """)
        if r in sm:
            A(f"s_cmp_ge_u32 {s(S_NEXT)}, {s(S_LIM[r])}\ns_cbranch_scc1 KM_NOIS{r}")
            sm_issue(smbase[r], sm[r])
            A(f"KM_NOIS{r}:")
        if r == 11 and opt.get("trace"):
            A("s_memrealtime s[90:91]\ns_memtime s[88:89]")
        if r == 13 and opt.get("trace"):
            A(f"s_mov_b32 m0, s1\ns_add_u32 s1, s1, 1\nv_writelane_b32 {v(V_TRC)}, s90, m0\ns_add_u32 m0, m0, 32\ns_nop 0\nv_writelane_b32 {v(V_TRC)}, s88, m0")
        if r == 14 and 12 not in sm:
            A("s_waitcnt lgkmcnt(0)")
        emit(side)
        if r > 0:
            A(f"s_bitcmp1_b32 {s(S_MASK)}, {r - 1}\ns_cbranch_scc1 KM_F{r}")
        emit(acc_ops(r, r == 0))
        if r > 0:
            A(f"KM_R{r}:")
    if 12 in sm:
        A(f"s_cmp_ge_u32 {s(S_NEXT)}, {s(S_NT)}\ns_cbranch_scc1 KM_LAST")
        if -1 in prio and opt.get("lowmove", 1):
            A(f"s_setprio {prio[-1]}")
        A("s_waitcnt lgkmcnt(0)")
        if 12 in smlim:
            A(f"s_cmp_ge_u32 {s(S_NEXT)}, {s(S_LIM[12])}\ns_cbranch_scc1 KM_LOOP")
        sm_move(smbase[12], sm[12])
        A("s_branch KM_LOOP\nKM_LAST:")
    else:
        A(f"s_cmp_lt_u32 {s(S_NEXT)}, {s(S_NT)}\ns_cbranch_scc1 KM_LOOP")
    drop = opt.get("drop", [])
    if drop:
        A.lines[loop_start:] = [ln for ln in A.lines[loop_start:] if not any(d in ln for d in drop)]
    emit(flush_ops(15))
    A("s_branch KM_DONE")
    for r in range(1, 16):
        A(f"KM_F{r}:")
        emit(flush_ops(r - 1))
        emit(acc_ops(r, True))
        A(f"s_branch KM_R{r}")
    A(f"""
    KB_NARROW:
    s_mov_b32 {s(S_WIDE)}, 0
    s_branch KB_ROUND
    KB_NEXT:
    s_lshl_b32 {s(S_TMP)}, 8, {s(S_WIDE)}
    s_add_u32 {s(S_K0)}, {s(S_K0)}, {s(S_TMP)}
    KB_ROUND:
    s_waitcnt vmcnt(0) lgkmcnt(0)
    s_barrier
    v_and_b32 {v(P0)}, 0xff, v0
    v_lshlrev_b32 {v(P0)}, 2, {v(P0)}
    v_mov_b32 {v(P1)}, 0
    v_mov_b32 {v(P2)}, {NSTART}
    ds_write_b32 {v(P0)}, {v(P1)} offset:{L_HIST}
    ds_write2_b32 {v(V_CTRA)}, {v(P2)}, {v(P1)} offset0:0 offset1:1
    """)
    round_consts()
    A("""
    s_waitcnt lgkmcnt(0)
    s_barrier
    s_branch KB_ROUND0
    """)
    WM, A64, AG, AF, OD, OP = 32, 80, 16, 8, 80, 96
    A("KM_DONE:")
    stamp("done")
    A(f"""
    s_setprio 0
    s_cmp_eq_u32 {s(S_MORE)}, 0
    s_cbranch_scc0 KB_NEXT
    s_cmp_ge_u32 {s(S_WAVE)}, 10
    s_cbranch_scc0 KE_MIX
    s_waitcnt lgkmcnt(0)
    s_barrier
    """)
    stamp("bar")
    A(f"""
    s_branch KE_FIN
    KE_MIX:
    v_and_b32 v1, 63, v0
    v_lshlrev_b32 v2, 4, v1
    """)
    for f in range(8):
        A(f"ds_read_b128 {v(WM + 4 * f, 4)}, v2 offset:{L_WM + 1024 * f}")
    A(f"""
    v_bfe_u32 v2, v1, 2, 2
    v_mul_u32_u24 v2, {NS}, v2
    v_and_b32 v3, 3, v1
    v_mul_u32_u24 v3, {RS}, v3
    v_lshrrev_b32 v4, 4, v1
    v_lshlrev_b32 v5, 6, v4
    v_add3_u32 v2, v2, v3, v5
    s_mul_i32 s70, {s(S_WAVE)}, {4 * NS}
    s_add_u32 s70, s70, {L_ACC}
    v_add_u32 v2, s70, v2
    v_and_b32 v3, 15, v1
    v_lshlrev_b32 v3, 4, v3
    v_lshl_add_u32 v3, v4, 17, v3
    s_lshl_b32 s70, {s(S_WAVE)}, 19
    s_lshl_b32 s71, {s(S_BETA)}, 9
    s_add_u32 s70, s70, s71
    v_add_u32 v3, s70, v3
    s_lshr_b32 s72, {s(S_BETA)}, 4
    s_lshl_b32 s72, s72, 9
    s_sub_u32 s72, s72, s71
    s_and_b32 s73, {s(S_BETA)}, 15
    s_cselect_b32 s72, 0x40000000, s72
    v_cmp_le_u32 vcc, {9 * 64 + 48}, v0
    v_add_u32 v4, s72, v3
    s_nop 0
    v_cndmask_b32 v3, v3, v4, vcc
    s_mov_b32 {s(S_SC)}, {fbits(-math.log(2.0) * opt.get('oscale', 1.0))}
    s_mov_b32 {s(S_SC + 1)}, {fbits(-math.log(2.0) * opt.get('oscale', 1.0))}
    s_waitcnt lgkmcnt(0)
    s_barrier
    """)
    stamp("bar")
    for cpar in range(2):
        for hh in range(4):
            A(f"ds_read_b128 {v(A64 + 16 * cpar + 4 * hh, 4)}, v2 offset:{4 * RS * cpar + 16 * hh}")
    for j in range(8):
        A(f"s_waitcnt lgkmcnt({7 - j})")
        A(f"v_cvt_f32_f64 {v(AG + 2 * j)}, {v(A64 + 4 * j, 2)}")
        A(f"v_cvt_f32_f64 {v(AG + 2 * j + 1)}, {v(A64 + 4 * j + 2, 2)}")
    for j in range(8):
        A(f"v_pk_mul_f32 {v(AG + 2 * j, 2)}, {v(AG + 2 * j, 2)}, {s(S_SC, 2)}")
    for j in range(8):
        A(f"v_cvt_pk_bf16_f32 {v(AF + j)}, {v(AG + 2 * j)}, {v(AG + 2 * j + 1)}")
    A("s_nop 1")
    for dt in range(4):
        A(f"v_mfma_f32_16x16x32_bf16 {v(OD + 4 * dt, 4)}, {v(AF, 4)}, {v(WM + 4 * dt, 4)}, 0")
    for dt in range(4):
        A(f"v_mfma_f32_16x16x32_bf16 {v(OD + 4 * dt, 4)}, {v(AF + 4, 4)}, {v(WM + 16 + 4 * dt, 4)}, {v(OD + 4 * dt, 4)}")
    A("s_nop 7")
    for j in range(8):
        A(f"v_cvt_pk_bf16_f32 {v(OP + j)}, {v(OD + 2 * j)}, {v(OD + 2 * j + 1)}")
    ost = opt.get("out_st", "")
    A(f"buffer_store_dwordx4 {v(OP, 4)}, v3, {s(S_OUT, 4)}, 0 offen {ost}")
    A(f"buffer_store_dwordx4 {v(OP + 4, 4)}, v3, {s(S_OUT, 4)}, 0 offen offset:256 {ost}")
    A("KE_FIN:")
    if opt.get("diag"):
        A("""
        s_waitcnt lgkmcnt(0)
        KE_SPIN:
        s_memrealtime s[74:75]
        s_waitcnt lgkmcnt(0)
        s_sub_u32 s74, s74, s76
        s_cmp_lt_u32 s74, 10000
        s_cbranch_scc1 KE_SPIN
        """)
    if opt.get("trace"):
        A(f"s_lshl_b32 s78, s2, 12\ns_add_u32 s78, s78, {130 << 20}\nv_lshl_add_u32 v1, v0, 2, s78\nglobal_store_dword v1, {v(V_TRC)}, {s(S_WS, 2)}")
    if opt.get("prof"):
        A("s_waitcnt vmcnt(0)")
        stamp("fin")
        A("s_waitcnt lgkmcnt(0)")
        A(f"s_lshl_b32 s3, s2, 4\ns_add_u32 s3, s3, {s(S_WAVE)}\ns_lshl_b32 s3, s3, 6\ns_add_u32 s3, s3, {(128 << 20) + (1 << 20)}")
        A("v_mov_b32 v1, s3")
        for i in range(len(pts)):
            A(f"v_mov_b32 v2, {s(SB + 2 * i)}\nglobal_store_dword v1, v2, {s(S_WS, 2)} offset:{4 * i}")
    A("K_END:\ns_endpgm")


def generate(opt):
    A = Asm()
    out = HEADER
    if opt.get("aslist"):
        out += f"; @launch kernel={NAME}_kernel grid=(256,1,1) block=(1024,1,1) lds={LDS_BYTES}\n"
    else:
        out += f"; @launch grid=(256,1,1) block=(1024,1,1) lds={LDS_BYTES}\n"
    out += '.amdgcn_target "amdgcn-amd-amdhsa--gfx950"\n.text\n'
    gen(A, opt)
    out += A.text()
    out += f""".section .rodata,"a"
.p2align 6
.amdhsa_kernel {NAME}_kernel
  .amdhsa_next_free_vgpr {NVGPR}
  .amdhsa_next_free_sgpr 102
  .amdhsa_accum_offset {NVGPR}
  .amdhsa_group_segment_fixed_size 0
  .amdhsa_kernarg_size 88
  .amdhsa_user_sgpr_count 2
  .amdhsa_user_sgpr_kernarg_segment_ptr 1
  .amdhsa_system_sgpr_workgroup_id_x 1
  .amdhsa_float_denorm_mode_32 3
.end_amdhsa_kernel
"""
    return out


if __name__ == "__main__":
    opt = eval("dict(" + (sys.argv[2] if len(sys.argv) > 2 else "") + ")")
    path = sys.argv[1] if len(sys.argv) > 1 else f"cdna_kernels/{NAME}.s"
    open(path, "w").write(generate(opt))
```

```python
import sys, struct, math

NAME = "standalone__tensor_product_equiv_tfn__graph"

HEADER = """; Kernarg layout for this problem (88 bytes, ptrs only, base s[0:1]):
"""

CHUNK = 2500
PSIZE = 2500
RECSTRIDE = 30336
YOFF = 10112
WS_TAB = 256 * RECSTRIDE
SPIN_MAX = 1 << 18

RS = 272
NS = 8 * RS
L_HIST = 0
L_PREF = 1024
L_CTR = 2048
CAP = 3936
L_WM = 2304
L_LIST = L_WM + 8192
L_ACC = L_LIST + (CAP + 64) * 16
LDS_BYTES = L_ACC + 41 * NS
L_STG = L_LIST
L_WF = L_STG + 32768

DPP = "row_mask:0xf bank_mask:0xf"
SDWA = "dst_sel:DWORD dst_unused:UNUSED_PAD src0_sel:DWORD"

NW = 16
V_DBASE, V_DCNT, V_HALF16, V_ACCL, V_LAD, V_LAE, V_LAY = 1, 2, 3, 4, 5, 6, 7
V_ONE, V_CTRA, V_KK, V_KN, V_EID, V_SA, V_FA, V_MT = 8, 9, 10, 11, 12, 13, 14, 15
W = 16
CG = 24
D = 32
X = 64
TP = 80
ACC = 88
STG = 96
SO = 104
E = 112
T = 116
EF = 120
YR = 124
V_TRC, V_JUNK = 126, 127
NVGPR = 128

S_X, S_EF, S_OUT, S_WS = 4, 8, 12, 16
S_BETA, S_WAVE, S_K0, S_WIDE, S_N, S_NT, S_NEXT, S_MASK = 18, 19, 20, 21, 22, 23, 24, 25
S_CMP = 26
S_MORE, S_TMP, S_C0, S_C1 = 28, 29, 30, 31
S_M1, S_M2 = 32, 40
S_ANY2 = 48
S_SC = 50
S_XP = 52
S_TMP2 = 0
S_DBG = 58
S_PM = 60
KA = 32
S_ROT = 3
S_WY = 56
S_GRP = 1
S_ME = 88
SMB = 32

DEFAULT_PTS = ["start", "desc", "rec", "sorted", "loop", "done", "bar", "fin", "b3", "b4"]


def fbits(x):
    return "0x%08x" % struct.unpack("<I", struct.pack("<f", x))[0]


class Asm:
    def __init__(self):
        self.lines = []

    def __call__(self, s):
        for ln in s.strip("\n").split("\n"):
            ln = ln.strip()
            if not ln:
                continue
            if ln.endswith(":") or ln.startswith("."):
                self.lines.append(ln)
            else:
                self.lines.append("    " + ln)

    def text(self):
        return "\n".join(self.lines) + "\n"


def v(a, n=1):
    return f"v{a}" if n == 1 else f"v[{a}:{a+n-1}]"


def s(a, n=1):
    return f"s{a}" if n == 1 else f"s[{a}:{a+n-1}]"


def wave_scan(A, regs):
    steps = ["row_shr:1 " + DPP + " bound_ctrl:0", "row_shr:2 " + DPP + " bound_ctrl:0",
             "row_shr:4 " + DPP + " bound_ctrl:0", "row_shr:8 " + DPP + " bound_ctrl:0",
             "row_bcast:15 row_mask:0xa bank_mask:0xf", "row_bcast:31 row_mask:0xc bank_mask:0xf"]
    for st in steps:
        A("s_nop 1" if len(regs) == 1 else "s_nop 0")
        for r in regs:
            A(f"v_add_u32_dpp {v(r)}, {v(r)}, {v(r)} {st}")


def gen(A, opt):
    name = NAME + "_kernel"
    WT = "sc1"
    P0, P1, P2, P3, P4, P5, P6 = 112, 113, 114, 115, 116, 117, 118
    QD, QS, QY, QH, QR, QT, QP, QZ, QW = 32, 36, 40, 48, 52, 56, 60, 64, 68
    pts = opt.get("pts", DEFAULT_PTS)
    SB = 102 - 2 * len(pts)

    def stamp(nm):
        if opt.get("prof") and nm in pts:
            A(f"s_memrealtime {s(SB + 2 * pts.index(nm), 2)}")
        if opt.get("diag") == nm or (opt.get("diag") and nm == "start"):
            A("s_memrealtime s[76:77]")

    def xtouch(n, base):
        A(f"""
        s_lshr_b32 {s(S_TMP)}, s2, {0 if opt.get("xmall") else 3}
        s_mul_i32 {s(S_TMP)}, {s(S_TMP)}, {n * 128}
        s_add_u32 {s(S_TMP)}, {s(S_TMP)}, {base * 128}
        s_getreg_b32 s3, hwreg(HW_REG_XCC_ID, 0, 4)
        s_and_b32 s3, s3, {3 if opt.get("rot", 1) and not opt.get("xmall") else 0}
        s_mul_i32 s3, s3, {PSIZE * 512}
        s_add_u32 {s(S_TMP)}, {s(S_TMP)}, s3
        v_cmp_gt_u32 vcc, {n}, v0
        v_lshl_add_u32 {v(P5)}, v0, 7, {s(S_TMP)}
        s_and_saveexec_b64 {s(S_PM, 2)}, vcc
        s_cbranch_execz XT_{base}
        buffer_load_dword {v(V_JUNK)}, {v(P5)}, {s(S_XP, 4)}, 0 offen
        XT_{base}:
        s_mov_b64 exec, -1
        """)

    def scan256(cnt, pre, addr, tot):
        A(f"""
        ds_read_b128 {v(cnt, 4)}, {v(addr)} offset:{L_HIST}
        s_waitcnt lgkmcnt(0)
        v_add_u32 {v(pre + 2)}, {v(cnt)}, {v(cnt + 1)}
        v_add_u32 {v(pre + 3)}, {v(pre + 2)}, {v(cnt + 2)}
        v_add_u32 {v(pre)}, {v(pre + 3)}, {v(cnt + 3)}
        v_add_u32 {v(tot)}, {v(pre + 3)}, {v(cnt + 3)}
        """)
        wave_scan(A, [tot])
        A(f"""
        v_sub_u32 {v(pre)}, {v(tot)}, {v(pre)}
        v_add_u32 {v(pre + 1)}, {v(pre)}, {v(cnt)}
        v_add_u32 {v(pre + 2)}, {v(pre)}, {v(pre + 2)}
        v_add_u32 {v(pre + 3)}, {v(pre)}, {v(pre + 3)}
        ds_write_b128 {v(addr)}, {v(pre, 4)} offset:{L_PREF}
        """)

    def round_consts():
        A(f"""
        v_and_b32 {v(P3)}, 15, v0
        s_add_u32 {s(S_TMP)}, {s(S_WIDE)}, 3
        v_lshrrev_b32 {v(P4)}, {s(S_TMP)}, {v(P3)}
        v_lshl_add_u32 {v(P3)}, {v(P4)}, 20, {v(P3)}
        v_add_u32 {v(P3)}, {s(S_K0)}, {v(P3)}
        v_lshrrev_b32 v92, 4, v0
        v_mul_u32_u24 v92, {4 * RECSTRIDE}, v92
        v_add_u32 v93, {RECSTRIDE}, v92
        v_add_u32 v94, {2 * RECSTRIDE}, v92
        v_add_u32 v95, {3 * RECSTRIDE}, v92
        """)

    A(f".globl {name}\n.p2align 8\n.type {name},@function\n{name}:")
    stamp("start")
    A(f"""
    s_cmp_ge_u32 s2, 256
    s_cbranch_scc1 K_END
    s_load_dwordx16 {s(KA, 16)}, s[0:1], 0
    s_load_dwordx2 {s(S_WS, 2)}, s[0:1], 80
    s_load_dwordx2 {s(S_OUT, 2)}, s[0:1], 64
    s_load_dwordx2 {s(S_DBG, 2)}, s[0:1], 72
    v_lshrrev_b32 {v(P0)}, 6, v0
    v_and_b32 {v(P1)}, 63, v0
    v_readfirstlane_b32 {s(S_WAVE)}, {v(P0)}
    s_mul_i32 {s(S_TMP)}, s2, {CHUNK * 4}
    s_mul_i32 {s(S_C1)}, s2, {CHUNK * 8}
    v_lshl_add_u32 {v(P2)}, v0, 4, {s(S_TMP)}
    v_lshl_add_u32 {v(P3)}, v0, 5, {s(S_C1)}
    s_movk_i32 {s(S_C0)}, {CHUNK // 4}
    v_cmp_gt_u32 {s(S_PM, 2)}, {s(S_C0)}, v0
    v_mov_b64 {v(QZ, 2)}, 0
    v_mov_b64 {v(QZ + 2, 2)}, 0
    v_and_b32 {v(P0)}, 0xff, v0
    v_lshlrev_b32 {v(P0)}, 2, {v(P0)}
    ds_write_b32 {v(P0)}, {v(QZ)} offset:{L_HIST}
    s_cmp_ge_u32 {s(S_WAVE)}, 10
    s_cbranch_scc1 KA_AUX0
    s_mov_b64 exec, {s(S_PM, 2)}
    s_waitcnt lgkmcnt(0)
    """)
    stamp("karg")
    A(f"""
    global_load_dwordx4 {v(QD, 4)}, {v(P2)}, {s(KA + 4, 2)}
    s_barrier
    global_load_dwordx4 {v(QS, 4)}, {v(P2)}, {s(KA + 2, 2)}
    global_load_dwordx4 {v(QY, 4)}, {v(P3)}, {s(KA + 6, 2)}
    global_load_dwordx4 {v(QY + 4, 4)}, {v(P3)}, {s(KA + 6, 2)} offset:16
    s_mov_b64 exec, -1
    s_branch KA_JOIN0
    KA_AUX0:
    """)
    if opt.get("tcode"):
        A(f"""
        s_cmp_lt_u32 s2, {opt["tcode"]}
        s_cbranch_scc0 KA_NOCODE
        s_getpc_b64 s[62:63]
        KA_PC:
        v_subrev_u32 {v(P4)}, 640, v0
        v_min_u32 {v(P4)}, (K_END - KA_PC) / 64, {v(P4)}
        v_lshlrev_b32 {v(P4)}, 6, {v(P4)}
        global_load_dword {v(V_JUNK)}, {v(P4)}, s[62:63]
        KA_NOCODE:
        """)
    A(f"""
    s_waitcnt lgkmcnt(0)
    s_cmp_eq_u32 {s(S_WAVE)}, 15
    s_cbranch_scc0 KA_NOTAG
    s_cmp_eq_u32 s2, 0
    s_cbranch_scc0 KA_NOTAG
    s_memrealtime s[62:63]
    s_waitcnt lgkmcnt(0)
    s_lshl_b32 s63, s63, 24
    s_or_b32 s63, s63, 1
    v_mov_b32 {v(QD)}, s63
    v_mov_b32 {v(QD + 1)}, s62
    s_mov_b64 exec, 1
    global_store_dwordx2 {v(QZ)}, {v(QD, 2)}, {s(S_DBG, 2)} {WT}
    s_mov_b64 exec, -1
    KA_NOTAG:
    s_barrier
    """)
    if opt.get("ttlb"):
        sh = opt["ttlb"]
        A(f"""
        s_cmp_eq_u32 {s(S_WAVE)}, 14
        s_cbranch_scc0 KA_JOIN0
        v_min_u32 {v(P4)}, {255 >> sh}, {v(P1)}
        v_mul_u32_u24 {v(P4)}, {RECSTRIDE << sh}, {v(P4)}
        v_add_u32 {v(P4)}, {RECSTRIDE - 128}, {v(P4)}
        global_load_dword {v(V_JUNK)}, {v(P4)}, {s(S_WS, 2)}
        v_lshlrev_b32 {v(P4)}, 19, {v(P1)}
        v_min_u32 {v(P5)}, {20480000 - 4}, {v(P4)}
        global_load_dword {v(V_JUNK)}, {v(P5)}, {s(KA + 8, 2)}
        v_min_u32 {v(P5)}, {5120000 - 4}, {v(P4)}
        global_load_dword {v(V_JUNK)}, {v(P5)}, {s(KA, 2)}
        """)
    A(f"""
    KA_JOIN0:
    s_and_b32 {s(S_BETA)}, s2, 7
    s_lshl_b32 {s(S_BETA)}, {s(S_BETA)}, 5
    s_lshr_b32 s3, s2, 3
    s_add_u32 {s(S_BETA)}, {s(S_BETA)}, s3
    s_sub_u32 {s(S_X)}, {s(KA)}, 512
    s_subb_u32 {s(S_X + 1)}, {s(KA + 1)}, 0
    s_and_b32 {s(S_X + 1)}, {s(S_X + 1)}, 0xffff
    s_or_b32 {s(S_X + 1)}, {s(S_X + 1)}, 0x100000
    s_mov_b32 {s(S_X + 2)}, 64
    s_mov_b32 {s(S_X + 3)}, 0x800000
    s_mov_b32 {s(S_XP)}, {s(KA)}
    s_and_b32 {s(S_XP + 1)}, {s(KA + 1)}, 0xffff
    s_mov_b32 {s(S_XP + 2)}, 5120000
    s_mov_b32 {s(S_XP + 3)}, 0x20000
    s_mov_b32 {s(S_EF)}, {s(KA + 8)}
    s_and_b32 {s(S_EF + 1)}, {s(KA + 9)}, 0xffff
    s_mov_b32 {s(S_EF + 2)}, 20480000
    s_mov_b32 {s(S_EF + 3)}, 0x20000
    s_and_b32 {s(S_OUT + 1)}, {s(S_OUT + 1)}, 0xffff
    s_mov_b32 {s(S_OUT + 2)}, 5120000
    s_mov_b32 {s(S_OUT + 3)}, 0x20000
    s_mov_b32 {s(S_K0)}, 0
    s_mov_b32 {s(S_WIDE)}, 2
    s_lshr_b32 s3, {s(S_BETA)}, 2
    s_lshl_b32 s3, s3, 4
    s_and_b32 {s(S_TMP)}, {s(S_BETA)}, 1
    s_lshl_b32 {s(S_TMP)}, {s(S_TMP)}, 3
    s_add_u32 s3, s3, {s(S_TMP)}
    s_and_b32 {s(S_TMP)}, {s(S_BETA)}, 2
    s_lshl_b32 {s(S_TMP)}, {s(S_TMP)}, 9
    s_add_u32 s3, s3, {s(S_TMP)}
    s_add_u32 s3, s3, {WS_TAB}
    v_lshrrev_b32 {v(P2)}, 4, v0
    v_lshlrev_b32 {v(P2)}, 2, {v(P2)}
    v_and_or_b32 {v(P3)}, v0, 3, {v(P2)}
    v_lshl_add_u32 {v(V_FA)}, {v(P3)}, 11, s3
    v_and_b32 {v(P4)}, 31, {v(P1)}
    v_lshrrev_b32 {v(P5)}, 5, {v(P1)}
    v_lshlrev_b32 {v(V_HALF16)}, 4, {v(P5)}
    v_lshlrev_b32 {v(V_ACCL)}, 3, {v(P4)}
    v_add_u32 {v(V_ACCL)}, {L_ACC}, {v(V_ACCL)}
    v_and_b32 {v(P6)}, 15, v0
    v_add_lshl_u32 {v(V_LAD)}, {v(P6)}, {v(V_HALF16)}, 4
    v_lshrrev_b32 {v(P6)}, 3, {v(P4)}
    v_lshlrev_b32 {v(P6)}, 2, {v(P6)}
    v_and_or_b32 {v(P6)}, {v(P4)}, 3, {v(P6)}
    v_lshlrev_b32 {v(P6)}, 4, {v(P6)}
    v_and_b32 {v(P0)}, 4, {v(P4)}
    v_lshl_add_u32 {v(V_LAE)}, {v(P0)}, 6, {v(P6)}
    v_lshrrev_b32 {v(P6)}, 2, {v(P4)}
    v_and_b32 {v(P0)}, 1, {v(P4)}
    v_lshl_add_u32 {v(P6)}, {v(P0)}, 3, {v(P6)}
    v_add_lshl_u32 {v(V_LAY)}, {v(P6)}, {v(V_HALF16)}, 4
    v_mov_b32 {v(V_ONE)}, 1
    v_mov_b32 {v(V_CTRA)}, {L_CTR}
    s_cmp_ge_u32 {s(S_WAVE)}, 10
    s_cbranch_scc1 KA_AUX1
    s_mov_b64 exec, {s(S_PM, 2)}
    v_lshlrev_b32 {v(P0)}, 2, v0
    v_add_u32 {v(P0)}, 4096, {v(P0)}
    s_movk_i32 {s(S_C1)}, {-PSIZE}
    s_waitcnt vmcnt(3)
    """)
    stamp("dst")
    for k in range(4):
        A(f"""
        v_add_u32 {v(P2)}, {16384 - 9984}, {v(QD + k)}
        v_lshrrev_b32 {v(P2)}, 12, {v(P2)}
        v_and_or_b32 {v(P2)}, {v(P2)}, 4, 2
        v_lshlrev_b32_sdwa {v(QH + k)}, {v(P2)}, {v(QD + k)} {SDWA} src1_sel:BYTE_0
        ds_add_rtn_u32 {v(QR + k)}, {v(QH + k)}, {v(V_ONE)} offset:{L_HIST}
        """)
    A("s_waitcnt lgkmcnt(0)\ns_barrier")
    stamp("b2")
    for k in range(4):
        A(f"""
        v_lshrrev_b32 {v(QD + k)}, 8, {v(QD + k)}
        v_or_b32 {v(P3)}, {k}, {v(P0)}
        v_lshl_or_b32 {v(QD + k)}, {v(QD + k)}, 24, {v(P3)}
        """)
    A("s_barrier")
    stamp("b2b")
    for k in range(4):
        A(f"ds_read_b32 {v(QH + k)}, {v(QH + k)} offset:{L_PREF}")
    for k in range(4):
        A(f"""
        s_waitcnt lgkmcnt({3 - k})
        v_add_lshl_u32 {v(QH + k)}, {v(QH + k)}, {v(QR + k)}, 2
        v_add_u32 {v(QR + k)}, {v(QH + k)}, {v(QH + k)}
        """)
    A("s_waitcnt vmcnt(2)")
    for k in range(4):
        A(f"""
        v_mul_u32_u24 {v(P2)}, {(1 << 24) // PSIZE}, {v(QS + k)}
        v_lshrrev_b32 {v(P2)}, 24, {v(P2)}
        v_mad_i32_i24 {v(QS + k)}, {v(P2)}, {s(S_C1)}, {v(QS + k)}
        v_lshl_or_b32 {v(QS + k)}, {v(P2)}, 18, {v(QS + k)}
        v_lshl_add_u32 {v(QD + k)}, {v(QS + k)}, 12, {v(QD + k)}
        ds_write_b32 {v(QH + k)}, {v(QD + k)} offset:{L_STG}
        """)
    for k in range(4):
        if k % 2 == 0:
            A(f"s_waitcnt vmcnt({1 - k // 2})")
        if k == 2:
            stamp("y")
        A(f"ds_write_b64 {v(QR + k)}, {v(QY + 2 * k, 2)} offset:{L_STG + YOFF}")
    A(f"""
    s_mov_b64 exec, -1
    s_branch KA_JOIN3
    KA_AUX1:
    s_cmp_eq_u32 {s(S_WAVE)}, 15
    s_cbranch_scc1 KA_SCAN
    s_and_b32 s64, {s(S_WAVE)}, 1
    s_lshl_b32 s63, s64, 6
    s_lshl_b32 s65, s64, 1
    s_cmp_lt_u32 {s(S_WAVE)}, 12
    s_cselect_b64 s[66:67], {s(KA + 10, 2)}, {s(KA + 12, 2)}
    s_cselect_b32 s65, s65, s63
    s_cselect_b32 s68, 5, 6
    s_cselect_b32 s69, 31, 3
    s_cselect_b32 s70, 2, 1
    s_cselect_b32 s71, 128, 8
    s_cselect_b32 s72, 0, 128
    s_add_u32 s63, s63, s72
    v_lshrrev_b32 {v(P2)}, s68, {v(P1)}
    v_lshlrev_b32 {v(P2)}, 10, {v(P2)}
    v_and_b32 {v(P3)}, s69, {v(P1)}
    v_lshlrev_b32 {v(P3)}, s70, {v(P3)}
    v_add3_u32 {v(P2)}, {v(P2)}, {v(P3)}, s65
    v_lshrrev_b32 {v(P3)}, 4, {v(P1)}
    v_lshlrev_b32 {v(P3)}, 11, {v(P3)}
    v_and_b32 {v(P4)}, 15, {v(P1)}
    v_lshlrev_b32 {v(P4)}, 2, {v(P4)}
    v_add3_u32 {v(P3)}, {v(P3)}, {v(P4)}, s63
    s_barrier
    s_barrier
    s_cmp_lt_u32 {s(S_WAVE)}, 14
    s_cbranch_scc0 KA_JOIN3
    """)
    for i in range(8):
        A(f"global_load_ushort {v(QY + i)}, {v(P2)}, s[66:67]\nv_add_u32 {v(P2)}, s71, {v(P2)}")
    for i in range(8):
        A(f"global_load_dword {v(QW + i)}, {v(P3)}, {s(KA + 14, 2)} offset:{256 * i}")
    A(f"""
    s_branch KA_JOIN3
    KA_SCAN:
    v_lshlrev_b32 {v(P3)}, 4, {v(P1)}
    s_setprio 3
    s_barrier
    """)
    scan256(QT, QR, P3, P4)
    A(f"""
    s_waitcnt lgkmcnt(0)
    s_barrier
    s_setprio 0
    global_load_dwordx2 {v(QH, 2)}, {v(QZ)}, {s(S_DBG, 2)} {WT}
    """)
    for k in range(4):
        A(f"v_lshl_or_b32 {v(QT + k)}, {v(QT + k)}, 12, {v(QR + k)}")
    NSTART = NW
    A(f"""
    KA_JOIN3:
    v_lshlrev_b32 {v(P2)}, 4, v0
    s_mul_i32 {s(S_TMP)}, s2, {RECSTRIDE}
    v_add_u32 {v(P3)}, {s(S_TMP)}, {v(P2)}
    v_add_u32 {v(P4)}, 16384, {v(P3)}
    v_cmp_gt_u32 vcc, {(YOFF + CHUNK * 8) // 16 - 1024}, v0
    v_and_b32 {v(P0)}, 0xff, v0
    v_lshlrev_b32 {v(P0)}, 2, {v(P0)}
    v_mov_b32 {v(P5)}, {NSTART}
    v_lshlrev_b32 {v(P6)}, 4, {v(P1)}
    s_waitcnt lgkmcnt(0)
    s_barrier
    """)
    stamp("b3")
    A(f"""
    ds_read_b128 {v(QD, 4)}, {v(P2)} offset:{L_STG}
    ds_read_b128 {v(QS, 4)}, {v(P2)} offset:{L_STG + 16384}
    s_waitcnt lgkmcnt(1)
    global_store_dwordx4 {v(P3)}, {v(QD, 4)}, {s(S_WS, 2)} {WT}
    s_and_saveexec_b64 {s(S_PM, 2)}, vcc
    s_cbranch_execz KA_NOST2
    s_waitcnt lgkmcnt(0)
    global_store_dwordx4 {v(P4)}, {v(QS, 4)}, {s(S_WS, 2)} {WT}
    KA_NOST2:
    s_mov_b64 exec, -1
    ds_write_b32 {v(P0)}, {v(QZ)} offset:{L_HIST}
    ds_write2_b32 {v(V_CTRA)}, {v(P5)}, {v(QZ)} offset0:0 offset1:1
    v_add_u32 {v(P3)}, {L_ACC}, {v(P2)}
    v_add_u32 {v(P4)}, {L_ACC + 41 * NS - 16384}, {v(P2)}
    """)
    for i in range(4):
        A(f"ds_write_b128 {v(P3)}, {v(QZ, 4)} offset:{16384 * i}")
    A(f"v_add_u32 {v(P3)}, 65536, {v(P3)}\nds_write_b128 {v(P4)}, {v(QZ, 4)}\nds_write_b128 {v(P3)}, {v(QZ, 4)}")
    assert 5 * 16384 <= 41 * NS <= 6 * 16384
    A(f"""
    s_mov_b32 {s(S_C1)}, {SPIN_MAX}
    s_lshl_b32 s3, s2, 11
    s_add_u32 s3, s3, {WS_TAB}
    v_add_u32 {v(QP)}, s3, {v(P6)}
    s_cmp_lt_u32 {s(S_WAVE)}, 10
    s_cbranch_scc1 KA_JOIN4
    s_cmp_eq_u32 {s(S_WAVE)}, 15
    s_cbranch_scc1 KA_TAG
    s_cmp_eq_u32 {s(S_WAVE)}, 14
    s_cbranch_scc1 KA_JOIN4
    s_cmp_lt_u32 {s(S_WAVE)}, 12
    s_cselect_b32 s62, {fbits(-math.log2(math.e))}, 1.0
    s_mov_b32 s63, 0x05040100
    s_mov_b32 s64, 0x07060302
    s_sub_u32 s65, {s(S_WAVE)}, 10
    s_lshl_b32 s65, s65, 11
    v_add_u32 {v(P3)}, s65, {v(P6)}
    s_waitcnt vmcnt(2)
    """)
    for i in range(8):
        A(f"v_lshlrev_b32 {v(QY + i)}, 16, {v(QY + i)}\nv_mul_f32 {v(QY + i)}, s62, {v(QY + i)}")
    for jj in range(4):
        A(f"v_cvt_pk_bf16_f32 {v(QH + jj)}, {v(QY + 2 * jj)}, {v(QY + 2 * jj + 1)}")
    for jj in range(4):
        A(f"v_perm_b32 {v(QR + jj)}, {v(QW + 2 * jj + 1)}, {v(QW + 2 * jj)}, s63")
        A(f"v_perm_b32 {v(QT + jj)}, {v(QW + 2 * jj + 1)}, {v(QW + 2 * jj)}, s64")
    A(f"""
    ds_write_b128 {v(P2)}, {v(QH, 4)} offset:{L_WF - 10240}
    ds_write_b128 {v(P3)}, {v(QR, 4)} offset:{L_WM}
    ds_write_b128 {v(P3)}, {v(QT, 4)} offset:{L_WM + 1024}
    s_branch KA_JOIN4
    KA_TAG:
    s_waitcnt vmcnt(1)
    KA_TAG1:
    v_cmp_eq_u32 vcc, 0, {v(QH)}
    s_cbranch_vccz KA_GOTTAG
    s_sub_u32 {s(S_C1)}, {s(S_C1)}, 1
    s_cbranch_scc1 K_END
    global_load_dwordx2 {v(QH, 2)}, {v(QZ)}, {s(S_DBG, 2)} {WT}
    s_waitcnt vmcnt(0)
    s_branch KA_TAG1
    KA_GOTTAG:
    v_and_b32 {v(QH)}, 0xff000000, {v(QH)}
    ds_write_b64 {v(V_CTRA)}, {v(QH, 2)} offset:8
    """)
    for k in range(4):
        A(f"v_or_b32 {v(QY + 2 * k)}, {v(QT + k)}, {v(QH)}\nv_mov_b32 {v(QY + 2 * k + 1)}, {v(QH + 1)}")
    A(f"""
    KA_JOIN4:
    s_waitcnt vmcnt(0) lgkmcnt(0)
    s_barrier
    """)
    stamp("b4")
    A(f"""
    s_cmp_eq_u32 {s(S_WAVE)}, 15
    s_cbranch_scc0 KA_PUBD
    global_store_dwordx4 {v(QP)}, {v(QY, 4)}, {s(S_WS, 2)} {WT}
    global_store_dwordx4 {v(QP)}, {v(QY + 4, 4)}, {s(S_WS, 2)} offset:1024 {WT}
    KA_PUBD:
    """)
    w2 = opt.get("w2", 128)
    xtouch(w2, 0)
    A(f"ds_read_b64 {v(QH, 2)}, {v(V_CTRA)} offset:8")
    for f in range(4):
        A(f"ds_read_b128 {v(W + 4 * f, 4)}, {v(P6)} offset:{L_WF + 1024 * f}")
    round_consts()
    A(f"""
    s_waitcnt vmcnt(0) lgkmcnt(0)
    s_barrier
    KA_POLL:
    global_load_dwordx2 {v(QD, 2)}, {v(V_FA)}, {s(S_WS, 2)} {WT}
    s_waitcnt vmcnt(0)
    v_mov_b32 {v(V_DCNT)}, {v(QD)}
    v_and_b32 {v(QD)}, 0xff000000, {v(QD)}
    v_cmp_ne_u64 vcc, {v(QD, 2)}, {v(QH, 2)}
    s_cbranch_vccz KA_READY
    s_mov_b64 exec, vcc
    s_sub_u32 {s(S_C1)}, {s(S_C1)}, 1
    s_cbranch_scc1 K_END
    s_branch KA_POLL
    KA_READY:
    s_mov_b64 exec, -1
    v_and_b32 {v(V_DBASE)}, 0xfff, {v(V_DCNT)}
    v_bfe_u32 {v(V_DCNT)}, {v(V_DCNT)}, 12, 12
    """)
    stamp("desc")
    NC = 4
    REC1, REC2, RK1, RK2, HA1, HA2, PB, SC, CB, YA = 32, 48, 64, 68, 72, 76, 80, 84, 92, 96
    A(f"""
    KB_ROUND0:
    s_cmp_eq_u32 {s(S_WIDE)}, 2
    s_cselect_b32 {s(S_C1)}, 16, 0x7fffffff
    """)
    for c in range(NC):
        A(f"""
        v_sub_u32_dpp {v(RK1 + c)}, {v(V_DCNT)}, {v(P3)} row_newbcast:{c} {DPP}
        v_add_u32_dpp {v(HA1 + c)}, {v(V_DBASE)}, {v(P3)} row_newbcast:{c} {DPP}
        v_cmp_lt_i32 {s(S_M1 + 2 * c, 2)}, 0, {v(RK1 + c)}
        v_lshl_add_u32 {v(HA2 + c)}, {v(HA1 + c)}, 2, {v(CB + c)}
        s_mov_b64 exec, {s(S_M1 + 2 * c, 2)}
        global_load_dword {v(REC1 + 4 * c + 2)}, {v(HA2 + c)}, {s(S_WS, 2)} {WT}
        s_mov_b64 exec, -1
        """)
    for c in range(NC):
        A(f"v_cmp_lt_i32 {s(S_M2 + 2 * c, 2)}, {s(S_C1)}, {v(RK1 + c)}")
    for c in range(NC):
        A(f"v_lshl_add_u32 {v(HA1 + c)}, {v(HA1 + c)}, 3, {v(CB + c)}")
    A(f"""
    s_lshl_b32 {s(S_TMP)}, 8, {s(S_WIDE)}
    s_add_u32 {s(S_TMP)}, {s(S_TMP)}, {s(S_K0)}
    v_cmp_lt_u32 {s(S_CMP, 2)}, {s(S_TMP)}, {v(V_DCNT)}
    s_add_u32 {s(S_WY)}, {s(S_WS)}, {YOFF}
    s_addc_u32 {s(S_WY + 1)}, {s(S_WS + 1)}, 0
    s_or_b64 {s(S_ANY2, 2)}, {s(S_M2, 2)}, {s(S_M2 + 2, 2)}
    s_or_b64 {s(S_ANY2, 2)}, {s(S_ANY2, 2)}, {s(S_M2 + 4, 2)}
    s_or_b64 {s(S_ANY2, 2)}, {s(S_ANY2, 2)}, {s(S_M2 + 6, 2)}
    s_cbranch_scc0 KB_NOSEC_A
    """)
    for c in range(NC):
        A(f"""
        s_mov_b64 exec, {s(S_M2 + 2 * c, 2)}
        s_cbranch_execz KB_SA{c}
        global_load_dword {v(REC2 + 4 * c + 2)}, {v(HA2 + c)}, {s(S_WS, 2)} offset:64 {WT}
        global_load_dwordx2 {v(REC2 + 4 * c, 2)}, {v(HA1 + c)}, {s(S_WY, 2)} offset:128 {WT}
        KB_SA{c}:
        """)

    def tile_addr(tile, sa=True):
        A(f"""
        s_lshl_b32 {s(S_TMP)}, {s(tile)}, 9
        s_add_u32 {s(S_TMP)}, {s(S_TMP)}, {L_LIST}
        v_add_u32 {v(V_EID)}, {s(S_TMP)}, {v(V_LAE)}
        v_add_u32 {v(V_KN)}, {s(S_TMP)}, {v(V_LAD)}
        v_add_u32 {v(V_MT)}, {s(S_TMP)}, {v(V_LAY)}
        """)
        if sa:
            A(f"v_lshl_add_u32 {v(V_SA)}, {v(V_HALF16)}, 4, {s(S_TMP)}")

    ROT = 3 if opt.get("rot", 1) else 0
    A(f"""
    s_mov_b64 exec, -1
    KB_NOSEC_A:
    s_cmp_eq_u64 {s(S_CMP, 2)}, 0
    s_cbranch_scc1 KB_NOMORE
    ds_write_b32 {v(V_CTRA)}, {v(V_ONE)} offset:4
    KB_NOMORE:
    v_lshrrev_b32 {v(PB)}, 4, v0
    v_mul_u32_u24 {v(PB)}, {4 * CHUNK}, {v(PB)}
    v_add_u32 {v(PB + 1)}, {CHUNK}, {v(PB)}
    v_add_u32 {v(PB + 2)}, {2 * CHUNK}, {v(PB)}
    v_add_u32 {v(PB + 3)}, {3 * CHUNK}, {v(PB)}
    s_getreg_b32 {s(S_ROT)}, hwreg(HW_REG_XCC_ID, 0, 4)
    s_and_b32 {s(S_ROT)}, {s(S_ROT)}, {ROT}
    s_lshl_b32 {s(S_ROT)}, {s(S_ROT)}, 8
    v_and_b32 {v(P1)}, 63, v0
    v_lshl_add_u32 {v(P2)}, {v(P1)}, 4, {s(S_ROT)}
    v_and_b32 {v(P2)}, 0x3ff, {v(P2)}
    v_mov_b32 {v(P5)}, 16
    v_mov_b32 {v(P6)}, 0x3f000fff
    v_mov_b32 {v(P3)}, {opt.get("abl_x", 0x1ffe00)}
    """)
    tile_addr(S_WAVE)
    A(f"""
    s_movk_i32 {s(S_C0)}, {NS}
    v_mov_b32 {v(V_KK)}, {40 * NS}
    s_mov_b32 {s(S_TMP2)}, {PSIZE * 512}
    """)

    def yloads(addr):
        for c in range(NC):
            A(f"s_or_b64 exec, {s(S_M1 + 2 * c, 2)}, 1\nglobal_load_dwordx2 {v(REC1 + 4 * c, 2)}, {v(addr + c)}, {s(S_WY, 2)} {WT}")
        A("s_mov_b64 exec, -1")

    ylate = opt.get("ylate", 0)
    if ylate == 0:
        yloads(HA1)
        A("s_waitcnt vmcnt(4)")
    elif ylate == 1:
        A("s_waitcnt vmcnt(0)")
        yloads(HA1)
    else:
        for c in range(NC):
            A(f"v_mov_b32 {v(YA + c)}, {v(HA1 + c)}")
        A("s_waitcnt vmcnt(0)")
    stamp("rec")

    def second(fns, tag):
        A(f"s_cmp_eq_u64 {s(S_ANY2, 2)}, 0\ns_cbranch_scc1 KB_N{tag}")
        for c in range(NC):
            A(f"s_mov_b64 exec, {s(S_M2 + 2 * c, 2)}\ns_cbranch_execz KB_{tag}{c}")
            for fn in fns:
                fn(REC2, RK2, HA2, c)
            A(f"KB_{tag}{c}:")
        A(f"KB_N{tag}:\ns_mov_b64 exec, -1")

    def keyof(rec, rk, ha, c):
        A(f"v_lshlrev_b32_sdwa {v(ha + c)}, 2, {v(rec + 4 * c + 2)} {SDWA} src1_sel:BYTE_3")

    def count(rec, rk, ha, c):
        A(f"ds_add_rtn_u32 {v(rk + c)}, {v(ha + c)}, {v(P5)} offset:{L_HIST}")

    def decode(rec, rk, ha, c):
        idx = rec + 4 * c + 2
        A(f"""
        v_and_b32 {v(idx + 1)}, {v(P6)}, {v(idx)}
        v_lshrrev_b32 {v(P0)}, 30, {v(idx)}
        v_lshrrev_b32 {v(idx)}, 3, {v(idx)}
        v_and_b32 {v(idx)}, {v(P3)}, {v(idx)}
        """)
        if not opt.get("abl_ef"):
            A(f"v_add_u32 {v(idx + 1)}, {v(idx + 1)}, {v(PB + c)}")
        if opt.get("abl_x"):
            A(f"v_add_u32 {v(idx)}, 512, {v(idx)}")
        else:
            A(f"v_mad_u32_u24 {v(idx)}, {v(P0)}, {s(S_TMP2)}, {v(idx)}")

    def prefread(rec, rk, ha, c):
        A(f"ds_read_b32 {v(ha + c)}, {v(ha + c)} offset:{L_PREF}")

    def place(rec, rk, ha, c):
        A(f"""
        v_add_u32 {v(ha + c)}, {v(ha + c)}, {v(rk + c)}
        v_and_b32 {v(P0)}, 0x100, {v(ha + c)}
        v_mad_i32_i24 {v(rec + 4 * c + 2)}, {v(P0)}, -2, {v(rec + 4 * c + 2)}
        """)
        if opt.get("abl_y"):
            A(f"ds_write_b64 {v(ha + c)}, {v(rec + 4 * c + 2, 2)} offset:{L_LIST + 8}")
        else:
            A(f"ds_write_b128 {v(ha + c)}, {v(rec + 4 * c, 4)} offset:{L_LIST}")

    for c in range(NC):
        keyof(REC1, RK1, HA1, c)
    for c in range(NC):
        A(f"s_mov_b64 exec, {s(S_M1 + 2 * c, 2)}")
        count(REC1, RK1, HA1, c)
    second([keyof, count, decode], "H")
    for c in range(NC):
        decode(REC1, RK1, HA1, c)
    A("s_waitcnt lgkmcnt(0)\ns_barrier")
    stamp("b5")
    if ylate == 2:
        yloads(YA)
    A(f"""
    s_cmp_eq_u32 {s(S_WAVE)}, 0
    s_cbranch_scc0 KB_NOSCAN
    s_setprio 3
    """)
    scan256(SC, SC + 4, P2, P4)
    A(f"""
    s_mov_b32 exec_lo, 0
    s_brev_b32 exec_hi, 1
    ds_write_b32 {v(V_CTRA)}, {v(P4)} offset:16
    s_mov_b64 exec, -1
    s_waitcnt lgkmcnt(0)
    s_barrier
    s_setprio 0
    v_readlane_b32 {s(S_N)}, {v(P4)}, 63
    v_lshlrev_b32 {v(P0)}, 2, {v(P1)}
    ds_write_b32 {v(P0)}, {v(SC + 4)} offset:{L_HIST}
    v_mov_b64 {v(SC + 4, 2)}, 0
    v_mov_b32 {v(SC + 6)}, 512
    v_mov_b32 {v(SC + 7)}, {(40 << 24) | 0xfffff}
    s_min_u32 {s(S_N)}, {s(S_N)}, {16 * CAP}
    v_lshl_add_u32 {v(P3)}, {v(P1)}, 4, {s(S_N)}
    ds_write_b128 {v(P3)}, {v(SC + 4, 4)} offset:{L_LIST}
    ds_write_b32 {v(V_CTRA)}, {v(SC + 4)} offset:8
    s_waitcnt vmcnt(0)
    s_branch KB_PLACE
    KB_NOSCAN:
    """)
    if opt.get("efpre"):
        for c in range(NC):
            A(f"""
            v_xor_b32 {v(P0)}, {s(S_ROT)}, {v(HA1 + c)}
            v_cmp_gt_u32 vcc, {4 * opt["efpre"]}, {v(P0)}
            v_mul_u32_u24 {v(P0)}, 32, {v(REC1 + 4 * c + 3)}
            s_and_b64 vcc, vcc, {s(S_M1 + 2 * c, 2)}
            s_or_b64 exec, vcc, 1
            buffer_load_dword {v(V_JUNK)}, {v(P0)}, {s(S_EF, 4)}, 0 offen
            s_mov_b64 exec, -1
            """)
    A("s_barrier\nKB_PLACE:")
    stamp("b6")
    A(f"ds_read2_b32 {v(SC, 2)}, {v(V_CTRA)} offset0:1 offset1:4")
    for c in range(NC):
        A(f"s_mov_b64 exec, {s(S_M1 + 2 * c, 2)}")
        prefread(REC1, RK1, HA1, c)
    second([prefread], "R")
    A(f"""
    s_waitcnt lgkmcnt(0)
    v_readfirstlane_b32 {s(S_N)}, {v(SC + 1)}
    v_readfirstlane_b32 {s(S_MORE)}, {v(SC)}
    s_nop 1
    s_cmp_le_u32 {s(S_N)}, {16 * CAP}
    s_cbranch_scc0 KB_NARROW
    s_add_u32 {s(S_NT)}, {s(S_N)}, 511
    s_lshr_b32 {s(S_NT)}, {s(S_NT)}, 9
    s_waitcnt vmcnt({8 if opt.get("abl_y") else 4 if opt.get("efpre") else 0})
    """)
    for c in range(NC):
        A(f"s_mov_b64 exec, {s(S_M1 + 2 * c, 2)}")
        place(REC1, RK1, HA1, c)
    second([place], "P")

    def progress(reg):
        A(f"s_mov_b64 exec, {s(S_ME, 2)}\nds_write_b32 {v(V_LAD)}, {v(reg)} offset:{L_CTR + 12}\ns_mov_b64 exec, -1")

    early = opt.get("early", 0)
    if early:
        A(f"s_lshl_b64 {s(S_ME, 2)}, 1, {s(S_WAVE)}")
        progress(V_SA)
    A("s_waitcnt lgkmcnt(0)\ns_barrier")
    stamp("sorted")
    if opt.get("trace"):
        A(f"v_mov_b32 {v(V_TRC)}, 0\ns_mov_b32 s1, 0")

    def tile_reads():
        A(f"""
        ds_read_b32 {v(V_EID)}, {v(V_EID)} offset:12
        ds_read_b32 {v(V_KN)}, {v(V_KN)} offset:12
        ds_read_b64 {v(YR, 2)}, {v(V_MT)}
        """)

    def so_read(g):
        for q in range(2):
            o = 16 * (g % 4) + 8 * q + 2
            A(f"ds_read2_b32 {v(SO + 4 * (g % 2) + 2 * q, 2)}, {v(V_SA)} offset0:{o} offset1:{o + 4}")

    def xload(r):
        if r >= 16 and opt.get("xskip", 1):
            A(f"s_cmp_ge_u32 {s(S_NEXT)}, {s(S_NT)}\ns_cselect_b64 exec, 1, -1")
        A(f"buffer_load_dwordx4 {v(X + 4 * (r % 4), 4)}, {v(SO + 4 * ((r // 4) % 2) + r % 4)}, {s(S_X, 4)}, 0 offen")
        if r >= 16 and opt.get("xskip", 1):
            A("s_mov_b64 exec, -1")

    def ef_load(skip=0):
        A(f"v_mad_u32_u24 {v(V_EID)}, {v(V_EID)}, 32, {v(V_HALF16)}")
        m = (0xffffffff << skip) & 0xffffffff
        if skip:
            A(f"s_mov_b32 exec_lo, {m}\ns_mov_b32 exec_hi, {m}")
        A(f"buffer_load_dwordx4 {v(EF, 4)}, {v(V_EID)}, {s(S_EF, 4)}, 0 offen")
        if skip:
            A("s_mov_b64 exec, -1")

    def sm_issue(base, n):
        for j in range(n):
            A(f"v_readlane_b32 {s(SMB + 8 * j)}, {v(V_EID)}, {base + j}")
        if n < 5:
            A(f"s_nop {4 - n}")
        for j in range(n):
            A(f"s_buffer_load_dwordx8 {s(SMB + 8 * j, 8)}, {s(S_EF, 4)}, {s(SMB + 8 * j)}")

    def sm_move(base, n):
        for half in range(2):
            for j in range(n):
                if j == 0:
                    A(f"s_mov_b32 exec_{'hi' if half else 'lo'}, {1 << base}\ns_mov_b32 exec_{'lo' if half else 'hi'}, 0")
                else:
                    A("s_lshl_b64 exec, exec, 1")
                for q in range(2):
                    A(f"v_mov_b64 {v(EF + 2 * q, 2)}, {s(SMB + 8 * j + 4 * half + 2 * q, 2)}")
        A("s_mov_b64 exec, -1")

    def grab(reg):
        A(f"s_mov_b64 exec, 1\nds_add_rtn_u32 {v(reg)}, {v(V_CTRA)}, {v(V_ONE)}\ns_mov_b64 exec, -1")

    key_ops = [f"v_mul_u32_u24_sdwa {v(V_KN)}, {s(S_C0)}, {v(V_KN)} {SDWA} src1_sel:BYTE_3",
               f"v_xor_b32_dpp {v(V_MT)}, {v(V_KN)}, {v(V_KN)} row_shl:1 {DPP} bound_ctrl:0",
               f"v_cmp_ne_u32 {s(S_CMP, 2)}, 0, {v(V_MT)}"]

    sm0 = opt.get("sm0", 0)
    A(f"s_mov_b32 {s(S_NEXT)}, {s(S_WAVE)}\ns_cmp_ge_u32 {s(S_WAVE)}, {s(S_NT)}\ns_cbranch_scc1 KM_DONE")
    A(f"ds_read_b32 {v(V_EID)}, {v(V_EID)} offset:12")
    so_read(0)
    A(f"ds_read_b32 {v(V_KN)}, {v(V_KN)} offset:12\nds_read_b64 {v(YR, 2)}, {v(V_MT)}")
    so_read(1)
    A("s_waitcnt lgkmcnt(6)")
    smy = opt.get("smy")
    if smy:
        masks = [(0xffffffff << (sm0 * n)) & 0xffffffff for n in range(3)]
        A(f"""
        v_mad_u32_u24 {v(V_EID)}, {v(V_EID)}, 32, {v(V_HALF16)}
        s_cmp_ge_u32 {s(S_WAVE)}, {smy[0]}
        s_cselect_b32 s3, {masks[1]}, -1
        s_cmp_ge_u32 {s(S_WAVE)}, {smy[1]}
        s_cselect_b32 s3, {masks[2]}, s3
        s_mov_b32 exec_lo, s3
        s_mov_b32 exec_hi, s3
        buffer_load_dwordx4 {v(EF, 4)}, {v(V_EID)}, {s(S_EF, 4)}, 0 offen
        s_mov_b64 exec, -1
        """)
    else:
        ef_load(sm0)
    A("s_waitcnt lgkmcnt(4)")
    for r in range(4):
        xload(r)
    A("s_waitcnt lgkmcnt(0)")
    A(key_ops[0] + "\ns_nop 1\n" + key_ops[1] + "\n" + key_ops[2])
    for n in range(2 if smy else 1 if sm0 else 0):
        if smy:
            A(f"s_cmp_lt_u32 {s(S_WAVE)}, {smy[n]}\ns_cbranch_scc1 KM_SM0")
        sm_issue(sm0 * n, sm0)
        A("s_waitcnt lgkmcnt(0)")
        sm_move(sm0 * n, sm0)
    A("KM_SM0:")
    A("s_waitcnt vmcnt(4)")
    stamp("loop")

    def flush_ops(r):
        ops = [[f"v_add_u32_dpp {v(V_FA)}, {v(V_KK)}, {v(V_ACCL)} row_newbcast:{r} {DPP}"]]
        for j in range(8):
            st = STG + 2 * (j % 4)
            ops.append([f"v_cvt_f64_f32 {v(st, 2)}, {v(ACC + j)}", f"ds_add_f64 {v(V_FA)}, {v(st, 2)} offset:{RS * j}"])
        return ops

    def emit(groups):
        for g in groups:
            for op in ([g] if isinstance(g, str) else g):
                A(op)

    def acc_ops(r, first):
        ops = []
        for j in range(4):
            rr = D + 16 * (j // 2) + (r & ~1)
            o = r & 1
            if first:
                ops.append(f"v_pk_mul_f32 {v(ACC + 2 * j, 2)}, {v(rr, 2)}, {v(TP + 2 * j, 2)} op_sel:[{o},0] op_sel_hi:[{o},1]")
            else:
                ops.append(f"v_pk_fma_f32 {v(ACC + 2 * j, 2)}, {v(rr, 2)}, {v(TP + 2 * j, 2)}, {v(ACC + 2 * j, 2)} op_sel:[{o},0,0] op_sel_hi:[{o},1,1]")
        return ops

    def exp_ops(q):
        return [f"v_exp_f32 {v(E + j)}, {v(D + 16 * (j // 2) + q + j % 2)}" for j in range(4)]

    add_ops = [f"v_pk_add_f32 {v(E + 2 * j, 2)}, {v(E + 2 * j, 2)}, 1.0 op_sel_hi:[1,0]" for j in range(2)]
    rcp_ops = [f"v_rcp_f32 {v(E + j)}, {v(E + j)}" for j in range(4)]

    def mul_ops(q):
        return [f"v_pk_mul_f32 {v(D + 16 * j + q, 2)}, {v(D + 16 * j + q, 2)}, {v(E + 2 * j, 2)}" for j in range(2)]

    GRAB, EFS = opt.get("grab", 5), opt.get("efs", 8)
    prio = opt.get("prio", {-1: 0, 4: 1, 8: 2, 12: 3})
    sm = opt.get("sm", {})
    smbase = {st: sum(sm[q] for q in sm if q < st) for st in sm}
    assert set(sm) <= {4, 8, 12} and all(st >= EFS for st in sm)
    smlim = opt.get("smlim", {})
    S_LIM = {st: S_NT for st in sm}
    for st, reg in zip(smlim, (S_N, S_C1, 1)):
        S_LIM[st] = reg
        A(f"s_min_u32 {s(reg)}, {s(S_NT)}, {smlim[st]}")
    A(".p2align 6")
    loop_start = len(A.lines)
    A("KM_LOOP:")
    endprio = opt.get("endprio")

    def setprio(k):
        A(f"s_setprio {prio[k]}")
        if endprio and endprio[k] != prio[k]:
            A(f"s_cbranch_vccz KM_P{k + 1}\ns_setprio {endprio[k]}\nKM_P{k + 1}:")

    if endprio:
        A(f"s_add_u32 s3, {s(S_NEXT)}, {opt.get('endn', 16)}\ns_cmp_ge_u32 s3, {s(S_NT)}\ns_cselect_b64 vcc, -1, 0")
    if -1 in prio:
        setprio(-1)
    fo = flush_ops(15)
    tm = [f"v_mfma_f32_4x4x4_16b_bf16 {v(D + 16 + 4 * i, 4)}, {v(YR, 2)}, {v(CG + 2 * i, 2)}, 0" for i in range(4)]
    tc = [f"v_cvt_pk_bf16_f32 {v(T + 2 * j + hh)}, {v(D + 16 + 8 * hh + j)}, {v(D + 20 + 8 * hh + j)}" for hh in range(2) for j in range(2)]
    ex = exp_ops(0)
    emit([tm[0], fo[0], tm[1], fo[1], tm[2], fo[2], tm[3], fo[3]])
    A(f"v_mfma_f32_32x32x16_bf16 {v(D, 16)}, {v(EF, 4)}, {v(W, 4)}, 0")
    emit([tc[0], tc[1], fo[4], fo[5], tc[2], tc[3]])
    A(f"v_mfma_f32_32x32x16_bf16 {v(D + 16, 16)}, {v(EF, 4)}, {v(W + 4, 4)}, 0")
    emit([fo[6], fo[7], fo[8], f"v_mov_b32 {v(V_KK)}, {v(V_KN)}", f"s_or_b32 {s(S_MASK)}, {s(S_CMP)}, {s(S_CMP + 1)}",
          ex[0], ex[1]])
    if early:
        progress(V_SA)
    else:
        A("s_nop 1")
    emit([ex[2], ex[3], "s_nop 0"] + add_ops)
    for r in range(16):
        tr = T + (2 if r >= 8 else 0)
        m4 = [f"v_mfma_f32_4x4x4_16b_bf16 {v(TP + 4 * h, 4)}, {v(tr, 2)}, {v(X + 4 * (r % 4) + 2 * h, 2)}, 0 cbsz:3 abid:{r % 8}" for h in range(2)]
        if r in prio:
            setprio(r)
        A(f"s_waitcnt vmcnt(3)")
        if r == 15:
            emit([m4[0], key_ops[0], m4[1]])
            xload(r + 4)
            emit([key_ops[1], key_ops[2]])
            side = []
        else:
            trans = rcp_ops if r % 2 == 0 else exp_ops(r + 1)
            side = mul_ops(r) if r % 2 == 0 else add_ops
            emit([m4[0], trans[0], m4[1], trans[1], trans[2], trans[3]])
            if r % 4 == 0 and r > 0:
                A("s_waitcnt lgkmcnt(0)")
            xload(r + 4)
        if r % 4 == 0:
            so_read(r // 4 + 2)
        if r == GRAB:
            grab(V_MT)
        if r == GRAB + 1:
            if r % 4:
                A("s_waitcnt lgkmcnt(0)")
            A(f"v_readfirstlane_b32 {s(S_NEXT)}, {v(V_MT)}")
        if r == GRAB + 2:
            A(f"s_min_u32 {s(S_NEXT)}, {s(S_NEXT)}, {s(S_NT)}")
            tile_addr(S_NEXT, r >= 5)
            tile_reads()
        if r == 5 and GRAB + 2 < 5:
            A(f"v_lshl_add_u32 {v(V_SA)}, {v(V_HALF16)}, 4, {s(S_TMP)}")
        if r - 4 in sm:
            A(f"s_cmp_ge_u32 {s(S_NEXT)}, {s(S_LIM[r - 4])}\ns_cbranch_scc1 KM_NOMV{r}")
            sm_move(smbase[r - 4], sm[r - 4])
            A(f"KM_NOMV{r}:")
        if r == EFS:
            A(f"s_cmp_ge_u32 {s(S_NEXT)}, {s(S_NT)}\ns_cbranch_scc1 KM_NOEF")
            A(f"v_mad_u32_u24 {v(V_EID)}, {v(V_EID)}, 32, {v(V_HALF16)}")
            m = (0xffffffff << sum(sm.values())) & 0xffffffff
            A(f"s_mov_b32 {s(S_TMP2)}, {m}")
            for st in smlim:
                A(f"s_cmp_ge_u32 {s(S_NEXT)}, {s(S_LIM[st])}\ns_cselect_b32 s3, {((1 << sm[st]) - 1) << smbase[st]}, 0\ns_or_b32 {s(S_TMP2)}, {s(S_TMP2)}, s3")
            if opt.get("hackB"):
                B = opt["hackB"]
                A(f"""
                s_lshr_b32 s3, s2, 3
                s_add_u32 s3, s3, {s(S_NEXT)}
                s_and_b32 s3, s3, {B - 1}
                s_cbranch_scc1 KM_NOEF
                """)
                for j in range(B):
                    A(f"""
                    s_add_u32 s3, {s(S_NEXT)}, {j + opt.get("hlead", 0)}
                    s_min_u32 s3, s3, {s(S_NT)}
                    s_lshl_b32 s3, s3, 9
                    v_add_u32 {v(STG + j)}, s3, {v(V_LAE)}
                    ds_read_b32 {v(STG + j)}, {v(STG + j)} offset:{L_LIST + 12}
                    """)
                A(f"s_waitcnt lgkmcnt(0)\ns_mov_b32 exec_lo, {s(S_TMP2)}\ns_mov_b32 exec_hi, {s(S_TMP2)}")
                for j in range(B):
                    A(f"v_mad_u32_u24 {v(STG + j)}, {v(STG + j)}, 32, {v(V_HALF16)}")
                    A(f"buffer_load_dwordx4 {v(EF, 4)}, {v(STG + j)}, {s(S_EF, 4)}, 0 offen")
                A("s_mov_b64 exec, -1\nKM_NOEF:")
            else:
                A(f"""
                s_mov_b32 exec_lo, {s(S_TMP2)}
                s_mov_b32 exec_hi, {s(S_TMP2)}
                buffer_load_dwordx4 {v(EF, 4)}, {v(V_EID)}, {s(S_EF, 4)}, 0 offen
                s_mov_b64 exec, -1
                KM_NOEF:
                """)
        if r in sm:
            A(f"s_cmp_ge_u32 {s(S_NEXT)}, {s(S_LIM[r])}\ns_cbranch_scc1 KM_NOIS{r}")
            sm_issue(smbase[r], sm[r])
            A(f"KM_NOIS{r}:")
        if r == 11 and opt.get("trace"):
            A("s_memrealtime s[90:91]\ns_memtime s[88:89]")
        if r == 13 and opt.get("trace"):
            A(f"s_mov_b32 m0, s1\ns_add_u32 s1, s1, 1\nv_writelane_b32 {v(V_TRC)}, s90, m0\ns_add_u32 m0, m0, 32\ns_nop 0\nv_writelane_b32 {v(V_TRC)}, s88, m0")
        if r == 14 and 12 not in sm:
            A("s_waitcnt lgkmcnt(0)")
        emit(side)
        if r > 0:
            A(f"s_bitcmp1_b32 {s(S_MASK)}, {r - 1}\ns_cbranch_scc1 KM_F{r}")
        emit(acc_ops(r, r == 0))
        if r > 0:
            A(f"KM_R{r}:")
    if 12 in sm:
        A(f"s_cmp_ge_u32 {s(S_NEXT)}, {s(S_NT)}\ns_cbranch_scc1 KM_LAST")
        if -1 in prio and opt.get("lowmove", 1):
            A(f"s_setprio {prio[-1]}")
        A("s_waitcnt lgkmcnt(0)")
        if 12 in smlim:
            A(f"s_cmp_ge_u32 {s(S_NEXT)}, {s(S_LIM[12])}\ns_cbranch_scc1 KM_LOOP")
        sm_move(smbase[12], sm[12])
        A("s_branch KM_LOOP\nKM_LAST:")
    else:
        A(f"s_cmp_lt_u32 {s(S_NEXT)}, {s(S_NT)}\ns_cbranch_scc1 KM_LOOP")
    drop = opt.get("drop", [])
    if drop:
        A.lines[loop_start:] = [ln for ln in A.lines[loop_start:] if not any(d in ln for d in drop)]
    emit(flush_ops(15))
    A("s_branch KM_DONE")
    for r in range(1, 16):
        A(f"KM_F{r}:")
        emit(flush_ops(r - 1))
        emit(acc_ops(r, True))
        A(f"s_branch KM_R{r}")
    A(f"""
    KB_NARROW:
    s_mov_b32 {s(S_WIDE)}, 0
    s_branch KB_ROUND
    KB_NEXT:
    s_lshl_b32 {s(S_TMP)}, 8, {s(S_WIDE)}
    s_add_u32 {s(S_K0)}, {s(S_K0)}, {s(S_TMP)}
    KB_ROUND:
    s_waitcnt vmcnt(0) lgkmcnt(0)
    s_barrier
    v_and_b32 {v(P0)}, 0xff, v0
    v_lshlrev_b32 {v(P0)}, 2, {v(P0)}
    v_mov_b32 {v(P1)}, 0
    v_mov_b32 {v(P2)}, {NSTART}
    ds_write_b32 {v(P0)}, {v(P1)} offset:{L_HIST}
    ds_write2_b32 {v(V_CTRA)}, {v(P2)}, {v(P1)} offset0:0 offset1:1
    """)
    round_consts()
    A("""
    s_waitcnt lgkmcnt(0)
    s_barrier
    s_branch KB_ROUND0
    """)
    WM, A64, AG, AF, OD, OP = 32, 80, 16, 8, 80, 96
    A("KM_DONE:")
    stamp("done")
    A(f"""
    s_setprio 0
    s_cmp_eq_u32 {s(S_MORE)}, 0
    s_cbranch_scc0 KB_NEXT
    """)
    if early:
        A(f"v_mov_b32 {v(V_FA)}, -1")
        progress(V_FA)
        A(f"""
        s_mov_b64 exec, 1
        ds_add_rtn_u32 {v(V_MT)}, {v(V_CTRA)}, {v(V_ONE)} offset:8
        s_mov_b64 exec, -1
        s_mov_b32 {s(S_C1)}, {SPIN_MAX * 16}
        s_waitcnt lgkmcnt(0)
        v_readfirstlane_b32 {s(S_GRP)}, {v(V_MT)}
        s_nop 1
        s_cmp_ge_u32 {s(S_GRP)}, 10
        s_cbranch_scc1 KE_FIN
        s_lshl_b32 s70, {s(S_GRP)}, 2
        v_mov_b32 {v(V_KK)}, s70
        ds_read_b32 {v(V_KK)}, {v(V_KK)} offset:{L_HIST + 49 * 4}
        v_and_b32 {v(V_KN)}, 0xff, {v(V_LAD)}
        """)
    else:
        A(f"""
        s_mov_b32 {s(S_GRP)}, {s(S_WAVE)}
        s_cmp_ge_u32 {s(S_WAVE)}, 10
        s_cbranch_scc0 KE_MIX
        s_waitcnt lgkmcnt(0)
        s_barrier
        s_branch KE_FIN
        """)
    A(f"""
    KE_MIX:
    v_and_b32 v1, 63, v0
    v_lshlrev_b32 v2, 4, v1
    """)
    for f in range(8):
        A(f"ds_read_b128 {v(WM + 4 * f, 4)}, v2 offset:{L_WM + 1024 * f}")
    A(f"""
    v_bfe_u32 v2, v1, 2, 2
    v_mul_u32_u24 v2, {NS}, v2
    v_and_b32 v3, 3, v1
    v_mul_u32_u24 v3, {RS}, v3
    v_lshrrev_b32 v4, 4, v1
    v_lshlrev_b32 v5, 6, v4
    v_add3_u32 v2, v2, v3, v5
    s_mul_i32 s70, {s(S_GRP)}, {4 * NS}
    s_add_u32 s70, s70, {L_ACC}
    v_add_u32 v2, s70, v2
    v_and_b32 v3, 15, v1
    v_lshlrev_b32 v3, 4, v3
    v_lshl_add_u32 v3, v4, 17, v3
    s_lshl_b32 s70, {s(S_GRP)}, 19
    s_lshl_b32 s71, {s(S_BETA)}, 9
    s_add_u32 s70, s70, s71
    v_add_u32 v3, s70, v3
    s_lshr_b32 s72, {s(S_BETA)}, 4
    s_lshl_b32 s72, s72, 9
    s_sub_u32 s72, s72, s71
    s_and_b32 s73, {s(S_BETA)}, 15
    s_cselect_b32 s72, 0x40000000, s72
    s_cmp_eq_u32 {s(S_GRP)}, 9
    s_cselect_b32 s72, s72, 0
    v_cmp_le_u32 vcc, 48, v1
    v_add_u32 v4, s72, v3
    s_nop 0
    v_cndmask_b32 v3, v3, v4, vcc
    s_mov_b32 {s(S_SC)}, {fbits(-math.log(2.0) * opt.get('oscale', 1.0))}
    s_mov_b32 {s(S_SC + 1)}, {fbits(-math.log(2.0) * opt.get('oscale', 1.0))}
    s_waitcnt lgkmcnt(0)
    """)
    if early:
        A(f"""
        v_add_u32 {v(V_KK)}, {L_LIST}, {v(V_KK)}
        KE_WAIT:
        ds_read_b32 {v(V_FA)}, {v(V_KN)} offset:{L_CTR + 12}
        s_waitcnt lgkmcnt(0)
        v_cmp_lt_u32 vcc, {v(V_FA)}, {v(V_KK)}
        s_cbranch_vccz KE_GO
        s_sub_u32 {s(S_C1)}, {s(S_C1)}, 1
        s_cbranch_scc1 K_END
        s_sleep {opt.get("esleep", 2)}
        s_branch KE_WAIT
        KE_GO:
        """)
        if opt.get("mixprio") is not None:
            A(f"s_setprio {opt['mixprio']}")
    else:
        A("s_barrier")
    for cpar in range(2):
        for hh in range(4):
            A(f"ds_read_b128 {v(A64 + 16 * cpar + 4 * hh, 4)}, v2 offset:{4 * RS * cpar + 16 * hh}")
    for j in range(8):
        A(f"s_waitcnt lgkmcnt({7 - j})")
        A(f"v_cvt_f32_f64 {v(AG + 2 * j)}, {v(A64 + 4 * j, 2)}")
        A(f"v_cvt_f32_f64 {v(AG + 2 * j + 1)}, {v(A64 + 4 * j + 2, 2)}")
    for j in range(8):
        A(f"v_pk_mul_f32 {v(AG + 2 * j, 2)}, {v(AG + 2 * j, 2)}, {s(S_SC, 2)}")
    for j in range(8):
        A(f"v_cvt_pk_bf16_f32 {v(AF + j)}, {v(AG + 2 * j)}, {v(AG + 2 * j + 1)}")
    A("s_nop 1")
    for dt in range(4):
        A(f"v_mfma_f32_16x16x32_bf16 {v(OD + 4 * dt, 4)}, {v(AF, 4)}, {v(WM + 4 * dt, 4)}, 0")
    for dt in range(4):
        A(f"v_mfma_f32_16x16x32_bf16 {v(OD + 4 * dt, 4)}, {v(AF + 4, 4)}, {v(WM + 16 + 4 * dt, 4)}, {v(OD + 4 * dt, 4)}")
    A("s_nop 7")
    for j in range(8):
        A(f"v_cvt_pk_bf16_f32 {v(OP + j)}, {v(OD + 2 * j)}, {v(OD + 2 * j + 1)}")
    ost = opt.get("out_st", "")
    A(f"buffer_store_dwordx4 {v(OP, 4)}, v3, {s(S_OUT, 4)}, 0 offen {ost}")
    A(f"buffer_store_dwordx4 {v(OP + 4, 4)}, v3, {s(S_OUT, 4)}, 0 offen offset:256 {ost}")
    A("KE_FIN:")
    if opt.get("diag"):
        A("""
        s_waitcnt lgkmcnt(0)
        KE_SPIN:
        s_memrealtime s[74:75]
        s_waitcnt lgkmcnt(0)
        s_sub_u32 s74, s74, s76
        s_cmp_lt_u32 s74, 10000
        s_cbranch_scc1 KE_SPIN
        """)
    if opt.get("trace"):
        A(f"s_lshl_b32 s78, s2, 12\ns_add_u32 s78, s78, {130 << 20}\nv_lshl_add_u32 v1, v0, 2, s78\nglobal_store_dword v1, {v(V_TRC)}, {s(S_WS, 2)}")
    if opt.get("prof"):
        A("s_waitcnt vmcnt(0)")
        stamp("fin")
        A("s_waitcnt lgkmcnt(0)")
        A(f"s_lshl_b32 s3, s2, 4\ns_add_u32 s3, s3, {s(S_WAVE)}\ns_lshl_b32 s3, s3, 6\ns_add_u32 s3, s3, {(128 << 20) + (1 << 20)}")
        A("v_mov_b32 v1, s3")
        for i in range(len(pts)):
            A(f"v_mov_b32 v2, {s(SB + 2 * i)}\nglobal_store_dword v1, v2, {s(S_WS, 2)} offset:{4 * i}")
    A("K_END:\ns_endpgm")


def generate(opt):
    A = Asm()
    out = HEADER
    if opt.get("aslist"):
        out += f"; @launch kernel={NAME}_kernel grid=(256,1,1) block=(1024,1,1) lds={LDS_BYTES}\n"
    else:
        out += f"; @launch grid=(256,1,1) block=(1024,1,1) lds={LDS_BYTES}\n"
    out += '.amdgcn_target "amdgcn-amd-amdhsa--gfx950"\n.text\n'
    gen(A, opt)
    out += A.text()
    out += f""".section .rodata,"a"
.p2align 6
.amdhsa_kernel {NAME}_kernel
  .amdhsa_next_free_vgpr {NVGPR}
  .amdhsa_next_free_sgpr 102
  .amdhsa_accum_offset {NVGPR}
  .amdhsa_group_segment_fixed_size 0
  .amdhsa_kernarg_size 88
  .amdhsa_user_sgpr_count 2
  .amdhsa_user_sgpr_kernarg_segment_ptr 1
  .amdhsa_system_sgpr_workgroup_id_x 1
  .amdhsa_float_denorm_mode_32 3
.end_amdhsa_kernel
"""
    return out


if __name__ == "__main__":
    opt = eval("dict(" + (sys.argv[2] if len(sys.argv) > 2 else "") + ")")
    path = sys.argv[1] if len(sys.argv) > 1 else f"cdna_kernels/{NAME}.s"
    open(path, "w").write(generate(opt))
```

```python
import sys, struct, math

NAME = "standalone__tensor_product_equiv_tfn__graph"

HEADER = """; Kernarg layout for this problem (88 bytes, ptrs only, base s[0:1]):
"""

CHUNK = 2500
PSIZE = 2500
RECSTRIDE = 30336
YOFF = 10112
WS_TAB = 256 * RECSTRIDE
SPIN_MAX = 1 << 18

RS = 272
NS = 8 * RS
L_HIST = 0
L_PREF = 1024
L_CTR = 2048
CAP = 3936
L_WM = 2304
L_LIST = L_WM + 8192
L_ACC = L_LIST + (CAP + 64) * 16
LDS_BYTES = L_ACC + 41 * NS
L_STG = L_LIST
L_WF = L_STG + 32768

DPP = "row_mask:0xf bank_mask:0xf"
SDWA = "dst_sel:DWORD dst_unused:UNUSED_PAD src0_sel:DWORD"

NW = 16
V_DBASE, V_DCNT, V_HALF16, V_ACCL, V_LAD, V_LAE, V_LAY = 1, 2, 3, 4, 5, 6, 7
V_ONE, V_CTRA, V_KK, V_KN, V_EID, V_SA, V_FA, V_MT = 8, 9, 10, 11, 12, 13, 14, 15
W = 16
CG = 24
D = 32
X = 64
TP = 80
ACC = 88
STG = 96
SO = 104
E = 112
T = 116
EF = 120
YR = 124
V_TRC, V_JUNK = 126, 127
NVGPR = 128

S_X, S_EF, S_OUT, S_WS = 4, 8, 12, 16
S_BETA, S_WAVE, S_K0, S_WIDE, S_N, S_NT, S_NEXT, S_MASK = 18, 19, 20, 21, 22, 23, 24, 25
S_CMP = 26
S_MORE, S_TMP, S_C0, S_C1 = 28, 29, 30, 31
S_M1, S_M2 = 32, 40
S_ANY2 = 48
S_SC = 50
S_XP = 52
S_TMP2 = 0
S_DBG = 58
S_PM = 60
KA = 32
S_ROT = 3
S_WY = 56
S_GRP = 1
S_ME = 88
SMB = 32

DEFAULT_PTS = ["start", "desc", "rec", "sorted", "loop", "done", "bar", "fin", "b3", "b4"]


def fbits(x):
    return "0x%08x" % struct.unpack("<I", struct.pack("<f", x))[0]


class Asm:
    def __init__(self):
        self.lines = []

    def __call__(self, s):
        for ln in s.strip("\n").split("\n"):
            ln = ln.strip()
            if not ln:
                continue
            if (ln.endswith(":") and not ln.startswith(";")) or ln.startswith("."):
                self.lines.append(ln)
            else:
                self.lines.append("    " + ln)

    def text(self):
        return "\n".join(self.lines) + "\n"


def v(a, n=1):
    return f"v{a}" if n == 1 else f"v[{a}:{a+n-1}]"


def s(a, n=1):
    return f"s{a}" if n == 1 else f"s[{a}:{a+n-1}]"


def wave_scan(A, regs):
    steps = ["row_shr:1 " + DPP + " bound_ctrl:0", "row_shr:2 " + DPP + " bound_ctrl:0",
             "row_shr:4 " + DPP + " bound_ctrl:0", "row_shr:8 " + DPP + " bound_ctrl:0",
             "row_bcast:15 row_mask:0xa bank_mask:0xf", "row_bcast:31 row_mask:0xc bank_mask:0xf"]
    for st in steps:
        A("s_nop 1" if len(regs) == 1 else "s_nop 0")
        for r in regs:
            A(f"v_add_u32_dpp {v(r)}, {v(r)}, {v(r)} {st}")


def gen(A, opt):
    name = NAME + "_kernel"
    WT = "sc1"
    P0, P1, P2, P3, P4, P5, P6 = 112, 113, 114, 115, 116, 117, 118
    QD, QS, QY, QH, QR, QT, QP, QZ, QW = 32, 36, 40, 48, 52, 56, 60, 64, 68
    pts = opt.get("pts", DEFAULT_PTS)
    SB = 102 - 2 * len(pts)

    def stamp(nm):
        if opt.get("prof") and nm in pts:
            A(f"s_memrealtime {s(SB + 2 * pts.index(nm), 2)}")
        if opt.get("diag") == nm or (opt.get("diag") and nm == "start"):
            A("s_memrealtime s[76:77]")

    def xtouch(n, base):
        A(f"""
        s_lshr_b32 {s(S_TMP)}, s2, {0 if opt.get("xmall") else 3}
        s_mul_i32 {s(S_TMP)}, {s(S_TMP)}, {n * 128}
        s_add_u32 {s(S_TMP)}, {s(S_TMP)}, {base * 128}
        s_getreg_b32 s3, hwreg(HW_REG_XCC_ID, 0, 4)
        s_and_b32 s3, s3, {3 if opt.get("rot", 1) and not opt.get("xmall") else 0}
        s_mul_i32 s3, s3, {PSIZE * 512}
        s_add_u32 {s(S_TMP)}, {s(S_TMP)}, s3
        v_cmp_gt_u32 vcc, {n}, v0
        v_lshl_add_u32 {v(P5)}, v0, 7, {s(S_TMP)}
        s_and_saveexec_b64 {s(S_PM, 2)}, vcc
        s_cbranch_execz XT_{base}
        buffer_load_dword {v(V_JUNK)}, {v(P5)}, {s(S_XP, 4)}, 0 offen
        XT_{base}:
        s_mov_b64 exec, -1
        """)

    def scan256(cnt, pre, addr, tot):
        A(f"""
        ds_read_b128 {v(cnt, 4)}, {v(addr)} offset:{L_HIST}
        s_waitcnt lgkmcnt(0)
        v_add_u32 {v(pre + 2)}, {v(cnt)}, {v(cnt + 1)}
        v_add_u32 {v(pre + 3)}, {v(pre + 2)}, {v(cnt + 2)}
        v_add_u32 {v(pre)}, {v(pre + 3)}, {v(cnt + 3)}
        v_add_u32 {v(tot)}, {v(pre + 3)}, {v(cnt + 3)}
        """)
        wave_scan(A, [tot])
        A(f"""
        v_sub_u32 {v(pre)}, {v(tot)}, {v(pre)}
        v_add_u32 {v(pre + 1)}, {v(pre)}, {v(cnt)}
        v_add_u32 {v(pre + 2)}, {v(pre)}, {v(pre + 2)}
        v_add_u32 {v(pre + 3)}, {v(pre)}, {v(pre + 3)}
        ds_write_b128 {v(addr)}, {v(pre, 4)} offset:{L_PREF}
        """)

    def round_consts():
        A(f"""
        v_and_b32 {v(P3)}, 15, v0
        s_add_u32 {s(S_TMP)}, {s(S_WIDE)}, 3
        v_lshrrev_b32 {v(P4)}, {s(S_TMP)}, {v(P3)}
        v_lshl_add_u32 {v(P3)}, {v(P4)}, 20, {v(P3)}
        v_add_u32 {v(P3)}, {s(S_K0)}, {v(P3)}
        v_lshrrev_b32 v92, 4, v0
        v_mul_u32_u24 v92, {4 * RECSTRIDE}, v92
        v_add_u32 v93, {RECSTRIDE}, v92
        v_add_u32 v94, {2 * RECSTRIDE}, v92
        v_add_u32 v95, {3 * RECSTRIDE}, v92
        """)

    A(f".globl {name}\n.p2align 8\n.type {name},@function\n{name}:")
    stamp("start")
    A(f"""
    s_cmp_ge_u32 s2, 256
    s_cbranch_scc1 K_END
    s_load_dwordx16 {s(KA, 16)}, s[0:1], 0
    s_load_dwordx2 {s(S_WS, 2)}, s[0:1], 80
    s_load_dwordx2 {s(S_OUT, 2)}, s[0:1], 64
    s_load_dwordx2 {s(S_DBG, 2)}, s[0:1], 72
    v_lshrrev_b32 {v(P0)}, 6, v0
    v_and_b32 {v(P1)}, 63, v0
    v_readfirstlane_b32 {s(S_WAVE)}, {v(P0)}
    s_mul_i32 {s(S_TMP)}, s2, {CHUNK * 4}
    s_mul_i32 {s(S_C1)}, s2, {CHUNK * 8}
    v_lshl_add_u32 {v(P2)}, v0, 4, {s(S_TMP)}
    v_lshl_add_u32 {v(P3)}, v0, 5, {s(S_C1)}
    s_movk_i32 {s(S_C0)}, {CHUNK // 4}
    v_cmp_gt_u32 {s(S_PM, 2)}, {s(S_C0)}, v0
    v_mov_b64 {v(QZ, 2)}, 0
    v_mov_b64 {v(QZ + 2, 2)}, 0
    v_and_b32 {v(P0)}, 0xff, v0
    v_lshlrev_b32 {v(P0)}, 2, {v(P0)}
    ds_write_b32 {v(P0)}, {v(QZ)} offset:{L_HIST}
    s_cmp_ge_u32 {s(S_WAVE)}, 10
    s_cbranch_scc1 KA_AUX0
    s_mov_b64 exec, {s(S_PM, 2)}
    s_waitcnt lgkmcnt(0)
    """)
    stamp("karg")
    A(f"""
    global_load_dwordx4 {v(QD, 4)}, {v(P2)}, {s(KA + 4, 2)}
    s_barrier
    global_load_dwordx4 {v(QS, 4)}, {v(P2)}, {s(KA + 2, 2)}
    global_load_dwordx4 {v(QY, 4)}, {v(P3)}, {s(KA + 6, 2)}
    global_load_dwordx4 {v(QY + 4, 4)}, {v(P3)}, {s(KA + 6, 2)} offset:16
    s_mov_b64 exec, -1
    s_branch KA_JOIN0
    KA_AUX0:
    """)
    if opt.get("tcode"):
        A(f"""
        s_cmp_lt_u32 s2, {opt["tcode"]}
        s_cbranch_scc0 KA_NOCODE
        s_getpc_b64 s[62:63]
        KA_PC:
        v_subrev_u32 {v(P4)}, 640, v0
        v_min_u32 {v(P4)}, (K_END - KA_PC) / 64, {v(P4)}
        v_lshlrev_b32 {v(P4)}, 6, {v(P4)}
        global_load_dword {v(V_JUNK)}, {v(P4)}, s[62:63]
        KA_NOCODE:
        """)
    A(f"""
    s_waitcnt lgkmcnt(0)
    s_cmp_eq_u32 {s(S_WAVE)}, 15
    s_cbranch_scc0 KA_NOTAG
    s_cmp_eq_u32 s2, 0
    s_cbranch_scc0 KA_NOTAG
    s_memrealtime s[62:63]
    s_waitcnt lgkmcnt(0)
    s_lshl_b32 s63, s63, 24
    s_or_b32 s63, s63, 1
    v_mov_b32 {v(QD)}, s63
    v_mov_b32 {v(QD + 1)}, s62
    s_mov_b64 exec, 1
    global_store_dwordx2 {v(QZ)}, {v(QD, 2)}, {s(S_DBG, 2)} {WT}
    s_mov_b64 exec, -1
    KA_NOTAG:
    s_barrier
    """)
    if opt.get("ttlb"):
        sh = opt["ttlb"]
        A(f"""
        s_cmp_eq_u32 {s(S_WAVE)}, 14
        s_cbranch_scc0 KA_JOIN0
        v_min_u32 {v(P4)}, {255 >> sh}, {v(P1)}
        v_mul_u32_u24 {v(P4)}, {RECSTRIDE << sh}, {v(P4)}
        v_add_u32 {v(P4)}, {RECSTRIDE - 128}, {v(P4)}
        global_load_dword {v(V_JUNK)}, {v(P4)}, {s(S_WS, 2)}
        v_lshlrev_b32 {v(P4)}, 19, {v(P1)}
        v_min_u32 {v(P5)}, {20480000 - 4}, {v(P4)}
        global_load_dword {v(V_JUNK)}, {v(P5)}, {s(KA + 8, 2)}
        v_min_u32 {v(P5)}, {5120000 - 4}, {v(P4)}
        global_load_dword {v(V_JUNK)}, {v(P5)}, {s(KA, 2)}
        """)
    A(f"""
    KA_JOIN0:
    s_and_b32 {s(S_BETA)}, s2, 7
    s_lshl_b32 {s(S_BETA)}, {s(S_BETA)}, 5
    s_lshr_b32 s3, s2, 3
    s_add_u32 {s(S_BETA)}, {s(S_BETA)}, s3
    s_sub_u32 {s(S_X)}, {s(KA)}, 512
    s_subb_u32 {s(S_X + 1)}, {s(KA + 1)}, 0
    s_and_b32 {s(S_X + 1)}, {s(S_X + 1)}, 0xffff
    s_or_b32 {s(S_X + 1)}, {s(S_X + 1)}, 0x100000
    s_mov_b32 {s(S_X + 2)}, 64
    s_mov_b32 {s(S_X + 3)}, 0x800000
    s_mov_b32 {s(S_XP)}, {s(KA)}
    s_and_b32 {s(S_XP + 1)}, {s(KA + 1)}, 0xffff
    s_mov_b32 {s(S_XP + 2)}, 5120000
    s_mov_b32 {s(S_XP + 3)}, 0x20000
    s_mov_b32 {s(S_EF)}, {s(KA + 8)}
    s_and_b32 {s(S_EF + 1)}, {s(KA + 9)}, 0xffff
    s_mov_b32 {s(S_EF + 2)}, 20480000
    s_mov_b32 {s(S_EF + 3)}, 0x20000
    s_and_b32 {s(S_OUT + 1)}, {s(S_OUT + 1)}, 0xffff
    s_mov_b32 {s(S_OUT + 2)}, 5120000
    s_mov_b32 {s(S_OUT + 3)}, 0x20000
    s_mov_b32 {s(S_K0)}, 0
    s_mov_b32 {s(S_WIDE)}, 2
    s_lshr_b32 s3, {s(S_BETA)}, 2
    s_lshl_b32 s3, s3, 4
    s_and_b32 {s(S_TMP)}, {s(S_BETA)}, 1
    s_lshl_b32 {s(S_TMP)}, {s(S_TMP)}, 3
    s_add_u32 s3, s3, {s(S_TMP)}
    s_and_b32 {s(S_TMP)}, {s(S_BETA)}, 2
    s_lshl_b32 {s(S_TMP)}, {s(S_TMP)}, 9
    s_add_u32 s3, s3, {s(S_TMP)}
    s_add_u32 s3, s3, {WS_TAB}
    v_lshrrev_b32 {v(P2)}, 4, v0
    v_lshlrev_b32 {v(P2)}, 2, {v(P2)}
    v_and_or_b32 {v(P3)}, v0, 3, {v(P2)}
    v_lshl_add_u32 {v(V_FA)}, {v(P3)}, 11, s3
    v_and_b32 {v(P4)}, 31, {v(P1)}
    v_lshrrev_b32 {v(P5)}, 5, {v(P1)}
    v_lshlrev_b32 {v(V_HALF16)}, 4, {v(P5)}
    v_lshlrev_b32 {v(V_ACCL)}, 3, {v(P4)}
    v_add_u32 {v(V_ACCL)}, {L_ACC}, {v(V_ACCL)}
    v_and_b32 {v(P6)}, 15, v0
    v_add_lshl_u32 {v(V_LAD)}, {v(P6)}, {v(V_HALF16)}, 4
    v_lshrrev_b32 {v(P6)}, 3, {v(P4)}
    v_lshlrev_b32 {v(P6)}, 2, {v(P6)}
    v_and_or_b32 {v(P6)}, {v(P4)}, 3, {v(P6)}
    v_lshlrev_b32 {v(P6)}, 4, {v(P6)}
    v_and_b32 {v(P0)}, 4, {v(P4)}
    v_lshl_add_u32 {v(V_LAE)}, {v(P0)}, 6, {v(P6)}
    v_lshrrev_b32 {v(P6)}, 2, {v(P4)}
    v_and_b32 {v(P0)}, 1, {v(P4)}
    v_lshl_add_u32 {v(P6)}, {v(P0)}, 3, {v(P6)}
    v_add_lshl_u32 {v(V_LAY)}, {v(P6)}, {v(V_HALF16)}, 4
    v_mov_b32 {v(V_ONE)}, 1
    v_mov_b32 {v(V_CTRA)}, {L_CTR}
    s_cmp_ge_u32 {s(S_WAVE)}, 10
    s_cbranch_scc1 KA_AUX1
    s_mov_b64 exec, {s(S_PM, 2)}
    v_lshlrev_b32 {v(P0)}, 2, v0
    v_add_u32 {v(P0)}, 4096, {v(P0)}
    s_movk_i32 {s(S_C1)}, {-PSIZE}
    s_waitcnt vmcnt(3)
    """)
    stamp("dst")
    for k in range(4):
        A(f"""
        v_add_u32 {v(P2)}, {16384 - 9984}, {v(QD + k)}
        v_lshrrev_b32 {v(P2)}, 12, {v(P2)}
        v_and_or_b32 {v(P2)}, {v(P2)}, 4, 2
        v_lshlrev_b32_sdwa {v(QH + k)}, {v(P2)}, {v(QD + k)} {SDWA} src1_sel:BYTE_0
        ds_add_rtn_u32 {v(QR + k)}, {v(QH + k)}, {v(V_ONE)} offset:{L_HIST}
        """)
    A("s_waitcnt lgkmcnt(0)\ns_barrier")
    stamp("b2")
    for k in range(4):
        A(f"""
        v_lshrrev_b32 {v(QD + k)}, 8, {v(QD + k)}
        v_or_b32 {v(P3)}, {k}, {v(P0)}
        v_lshl_or_b32 {v(QD + k)}, {v(QD + k)}, 24, {v(P3)}
        """)
    A("s_barrier")
    stamp("b2b")
    for k in range(4):
        A(f"ds_read_b32 {v(QH + k)}, {v(QH + k)} offset:{L_PREF}")
    for k in range(4):
        A(f"""
        s_waitcnt lgkmcnt({3 - k})
        v_add_lshl_u32 {v(QH + k)}, {v(QH + k)}, {v(QR + k)}, 2
        v_add_u32 {v(QR + k)}, {v(QH + k)}, {v(QH + k)}
        """)
    A("s_waitcnt vmcnt(2)")
    for k in range(4):
        A(f"""
        v_mul_u32_u24 {v(P2)}, {(1 << 24) // PSIZE}, {v(QS + k)}
        v_lshrrev_b32 {v(P2)}, 24, {v(P2)}
        v_mad_i32_i24 {v(QS + k)}, {v(P2)}, {s(S_C1)}, {v(QS + k)}
        v_lshl_or_b32 {v(QS + k)}, {v(P2)}, 18, {v(QS + k)}
        v_lshl_add_u32 {v(QD + k)}, {v(QS + k)}, 12, {v(QD + k)}
        ds_write_b32 {v(QH + k)}, {v(QD + k)} offset:{L_STG}
        """)
    for k in range(4):
        if k % 2 == 0:
            A(f"s_waitcnt vmcnt({1 - k // 2})")
        if k == 2:
            stamp("y")
        A(f"ds_write_b64 {v(QR + k)}, {v(QY + 2 * k, 2)} offset:{L_STG + YOFF}")
    A(f"""
    s_mov_b64 exec, -1
    s_branch KA_JOIN3
    KA_AUX1:
    s_cmp_eq_u32 {s(S_WAVE)}, 15
    s_cbranch_scc1 KA_SCAN
    s_and_b32 s64, {s(S_WAVE)}, 1
    s_lshl_b32 s63, s64, 6
    s_lshl_b32 s65, s64, 1
    s_cmp_lt_u32 {s(S_WAVE)}, 12
    s_cselect_b64 s[66:67], {s(KA + 10, 2)}, {s(KA + 12, 2)}
    s_cselect_b32 s65, s65, s63
    s_cselect_b32 s68, 5, 6
    s_cselect_b32 s69, 31, 3
    s_cselect_b32 s70, 2, 1
    s_cselect_b32 s71, 128, 8
    s_cselect_b32 s72, 0, 128
    s_add_u32 s63, s63, s72
    v_lshrrev_b32 {v(P2)}, s68, {v(P1)}
    v_lshlrev_b32 {v(P2)}, 10, {v(P2)}
    v_and_b32 {v(P3)}, s69, {v(P1)}
    v_lshlrev_b32 {v(P3)}, s70, {v(P3)}
    v_add3_u32 {v(P2)}, {v(P2)}, {v(P3)}, s65
    v_lshrrev_b32 {v(P3)}, 4, {v(P1)}
    v_lshlrev_b32 {v(P3)}, 11, {v(P3)}
    v_and_b32 {v(P4)}, 15, {v(P1)}
    v_lshlrev_b32 {v(P4)}, 2, {v(P4)}
    v_add3_u32 {v(P3)}, {v(P3)}, {v(P4)}, s63
    s_barrier
    s_barrier
    s_cmp_lt_u32 {s(S_WAVE)}, 14
    s_cbranch_scc0 KA_JOIN3
    """)
    for i in range(8):
        A(f"global_load_ushort {v(QY + i)}, {v(P2)}, s[66:67]\nv_add_u32 {v(P2)}, s71, {v(P2)}")
    for i in range(8):
        A(f"global_load_dword {v(QW + i)}, {v(P3)}, {s(KA + 14, 2)} offset:{256 * i}")
    A(f"""
    s_branch KA_JOIN3
    KA_SCAN:
    v_lshlrev_b32 {v(P3)}, 4, {v(P1)}
    s_setprio 3
    s_barrier
    """)
    scan256(QT, QR, P3, P4)
    A(f"""
    s_waitcnt lgkmcnt(0)
    s_barrier
    s_setprio 0
    global_load_dwordx2 {v(QH, 2)}, {v(QZ)}, {s(S_DBG, 2)} {WT}
    """)
    for k in range(4):
        A(f"v_lshl_or_b32 {v(QT + k)}, {v(QT + k)}, 12, {v(QR + k)}")
    NSTART = opt.get("nstart", NW)
    A(f"""
    KA_JOIN3:
    v_lshlrev_b32 {v(P2)}, 4, v0
    s_mul_i32 {s(S_TMP)}, s2, {RECSTRIDE}
    v_add_u32 {v(P3)}, {s(S_TMP)}, {v(P2)}
    v_add_u32 {v(P4)}, 16384, {v(P3)}
    v_cmp_gt_u32 vcc, {(YOFF + CHUNK * 8) // 16 - 1024}, v0
    v_and_b32 {v(P0)}, 0xff, v0
    v_lshlrev_b32 {v(P0)}, 2, {v(P0)}
    v_mov_b32 {v(P5)}, {NSTART}
    v_lshlrev_b32 {v(P6)}, 4, {v(P1)}
    s_waitcnt lgkmcnt(0)
    s_barrier
    """)
    stamp("b3")
    A(f"""
    ds_read_b128 {v(QD, 4)}, {v(P2)} offset:{L_STG}
    ds_read_b128 {v(QS, 4)}, {v(P2)} offset:{L_STG + 16384}
    s_waitcnt lgkmcnt(1)
    global_store_dwordx4 {v(P3)}, {v(QD, 4)}, {s(S_WS, 2)} {WT}
    s_and_saveexec_b64 {s(S_PM, 2)}, vcc
    s_cbranch_execz KA_NOST2
    s_waitcnt lgkmcnt(0)
    global_store_dwordx4 {v(P4)}, {v(QS, 4)}, {s(S_WS, 2)} {WT}
    KA_NOST2:
    s_mov_b64 exec, -1
    ds_write_b32 {v(P0)}, {v(QZ)} offset:{L_HIST}
    ds_write2_b32 {v(V_CTRA)}, {v(P5)}, {v(QZ)} offset0:0 offset1:1
    v_add_u32 {v(P3)}, {L_ACC}, {v(P2)}
    v_add_u32 {v(P4)}, {L_ACC + 41 * NS - 16384}, {v(P2)}
    """)
    for i in range(4):
        A(f"ds_write_b128 {v(P3)}, {v(QZ, 4)} offset:{16384 * i}")
    A(f"v_add_u32 {v(P3)}, 65536, {v(P3)}\nds_write_b128 {v(P4)}, {v(QZ, 4)}\nds_write_b128 {v(P3)}, {v(QZ, 4)}")
    assert 5 * 16384 <= 41 * NS <= 6 * 16384
    A(f"""
    s_mov_b32 {s(S_C1)}, {SPIN_MAX}
    s_lshl_b32 s3, s2, 11
    s_add_u32 s3, s3, {WS_TAB}
    v_add_u32 {v(QP)}, s3, {v(P6)}
    s_cmp_lt_u32 {s(S_WAVE)}, 10
    s_cbranch_scc1 KA_JOIN4
    s_cmp_eq_u32 {s(S_WAVE)}, 15
    s_cbranch_scc1 KA_TAG
    s_cmp_eq_u32 {s(S_WAVE)}, 14
    s_cbranch_scc1 KA_JOIN4
    s_cmp_lt_u32 {s(S_WAVE)}, 12
    s_cselect_b32 s62, {fbits(-math.log2(math.e))}, 1.0
    s_mov_b32 s63, 0x05040100
    s_mov_b32 s64, 0x07060302
    s_sub_u32 s65, {s(S_WAVE)}, 10
    s_lshl_b32 s65, s65, 11
    v_add_u32 {v(P3)}, s65, {v(P6)}
    s_waitcnt vmcnt(2)
    """)
    for i in range(8):
        A(f"v_lshlrev_b32 {v(QY + i)}, 16, {v(QY + i)}\nv_mul_f32 {v(QY + i)}, s62, {v(QY + i)}")
    for jj in range(4):
        A(f"v_cvt_pk_bf16_f32 {v(QH + jj)}, {v(QY + 2 * jj)}, {v(QY + 2 * jj + 1)}")
    for jj in range(4):
        A(f"v_perm_b32 {v(QR + jj)}, {v(QW + 2 * jj + 1)}, {v(QW + 2 * jj)}, s63")
        A(f"v_perm_b32 {v(QT + jj)}, {v(QW + 2 * jj + 1)}, {v(QW + 2 * jj)}, s64")
    A(f"""
    ds_write_b128 {v(P2)}, {v(QH, 4)} offset:{L_WF - 10240}
    ds_write_b128 {v(P3)}, {v(QR, 4)} offset:{L_WM}
    ds_write_b128 {v(P3)}, {v(QT, 4)} offset:{L_WM + 1024}
    s_branch KA_JOIN4
    KA_TAG:
    s_waitcnt vmcnt(1)
    KA_TAG1:
    v_cmp_eq_u32 vcc, 0, {v(QH)}
    s_cbranch_vccz KA_GOTTAG
    s_sub_u32 {s(S_C1)}, {s(S_C1)}, 1
    s_cbranch_scc1 K_END
    global_load_dwordx2 {v(QH, 2)}, {v(QZ)}, {s(S_DBG, 2)} {WT}
    s_waitcnt vmcnt(0)
    s_branch KA_TAG1
    KA_GOTTAG:
    v_and_b32 {v(QH)}, 0xff000000, {v(QH)}
    ds_write_b64 {v(V_CTRA)}, {v(QH, 2)} offset:8
    """)
    for k in range(4):
        A(f"v_or_b32 {v(QY + 2 * k)}, {v(QT + k)}, {v(QH)}\nv_mov_b32 {v(QY + 2 * k + 1)}, {v(QH + 1)}")
    A(f"""
    KA_JOIN4:
    s_waitcnt vmcnt(0) lgkmcnt(0)
    s_barrier
    """)
    stamp("b4")
    A(f"""
    s_cmp_eq_u32 {s(S_WAVE)}, 15
    s_cbranch_scc0 KA_PUBD
    global_store_dwordx4 {v(QP)}, {v(QY, 4)}, {s(S_WS, 2)} {WT}
    global_store_dwordx4 {v(QP)}, {v(QY + 4, 4)}, {s(S_WS, 2)} offset:1024 {WT}
    KA_PUBD:
    """)
    w2 = opt.get("w2", 128)
    if w2:
        xtouch(w2, 0)

    def eftouch(n, base, first, tag):
        A(f"""
        s_mul_i32 {s(S_TMP)}, s2, {CHUNK * 32}
        s_add_u32 {s(S_TMP)}, {s(S_TMP)}, {base * 128}
        v_subrev_u32 {v(P5)}, {first}, v0
        v_cmp_gt_u32 vcc, {n}, {v(P5)}
        v_lshl_add_u32 {v(P5)}, {v(P5)}, 7, {s(S_TMP)}
        s_and_saveexec_b64 {s(S_PM, 2)}, vcc
        s_cbranch_execz ET_{tag}
        buffer_load_dword {v(V_JUNK)}, {v(P5)}, {s(S_EF, 4)}, 0 offen
        ET_{tag}:
        s_mov_b64 exec, -1
        """)

    if opt.get("w2e"):
        eftouch(opt["w2e"], 0, 256, "A")
    A(f"ds_read_b64 {v(QH, 2)}, {v(V_CTRA)} offset:8")
    for f in range(4):
        A(f"ds_read_b128 {v(W + 4 * f, 4)}, {v(P6)} offset:{L_WF + 1024 * f}")
    round_consts()
    A(f"""
    s_waitcnt vmcnt(0) lgkmcnt(0)
    s_barrier
    """)
    if opt.get("w2p"):
        n = opt["w2p"]
        A(f"""
        s_mul_i32 {s(S_TMP)}, s2, {CHUNK * 32}
        s_mul_i32 s3, {s(S_WAVE)}, {n * 128}
        s_add_u32 {s(S_TMP)}, {s(S_TMP)}, s3
        s_add_u32 {s(S_TMP)}, {s(S_TMP)}, {opt.get("w2e", 0) * 128}
        v_lshl_add_u32 {v(P5)}, {v(P1)}, 7, {s(S_TMP)}
        global_load_dwordx2 {v(QD, 2)}, {v(V_FA)}, {s(S_WS, 2)} {WT}
        s_barrier
        s_mov_b64 exec, {(1 << n) - 1}
        buffer_load_dword {v(V_JUNK)}, {v(P5)}, {s(S_EF, 4)}, 0 offen
        s_mov_b64 exec, -1
        s_waitcnt vmcnt(1)
        s_branch KA_POLL1
        """)
    A(f"""
    KA_POLL:
    global_load_dwordx2 {v(QD, 2)}, {v(V_FA)}, {s(S_WS, 2)} {WT}
    s_waitcnt vmcnt(0)
    KA_POLL1:
    v_mov_b32 {v(V_DCNT)}, {v(QD)}
    v_and_b32 {v(QD)}, 0xff000000, {v(QD)}
    v_cmp_ne_u64 vcc, {v(QD, 2)}, {v(QH, 2)}
    s_cbranch_vccz KA_READY
    s_mov_b64 exec, vcc
    s_sub_u32 {s(S_C1)}, {s(S_C1)}, 1
    s_cbranch_scc1 K_END
    s_branch KA_POLL
    KA_READY:
    s_mov_b64 exec, -1
    v_and_b32 {v(V_DBASE)}, 0xfff, {v(V_DCNT)}
    v_bfe_u32 {v(V_DCNT)}, {v(V_DCNT)}, 12, 12
    """)
    stamp("desc")
    NC = 4
    REC1, REC2, RK1, RK2, HA1, HA2, PB, SC, CB, YA = 32, 48, 64, 68, 72, 76, 80, 84, 92, 96
    A(f"""
    KB_ROUND0:
    s_cmp_eq_u32 {s(S_WIDE)}, 2
    s_cselect_b32 {s(S_C1)}, 16, 0x7fffffff
    """)
    for c in range(NC):
        A(f"""
        v_sub_u32_dpp {v(RK1 + c)}, {v(V_DCNT)}, {v(P3)} row_newbcast:{c} {DPP}
        v_add_u32_dpp {v(HA1 + c)}, {v(V_DBASE)}, {v(P3)} row_newbcast:{c} {DPP}
        v_cmp_lt_i32 {s(S_M1 + 2 * c, 2)}, 0, {v(RK1 + c)}
        v_lshl_add_u32 {v(HA2 + c)}, {v(HA1 + c)}, 2, {v(CB + c)}
        s_mov_b64 exec, {s(S_M1 + 2 * c, 2)}
        global_load_dword {v(REC1 + 4 * c + 2)}, {v(HA2 + c)}, {s(S_WS, 2)} {WT}
        s_mov_b64 exec, -1
        """)
    for c in range(NC):
        A(f"v_cmp_lt_i32 {s(S_M2 + 2 * c, 2)}, {s(S_C1)}, {v(RK1 + c)}")
    for c in range(NC):
        A(f"v_lshl_add_u32 {v(HA1 + c)}, {v(HA1 + c)}, 3, {v(CB + c)}")
    A(f"""
    s_lshl_b32 {s(S_TMP)}, 8, {s(S_WIDE)}
    s_add_u32 {s(S_TMP)}, {s(S_TMP)}, {s(S_K0)}
    v_cmp_lt_u32 {s(S_CMP, 2)}, {s(S_TMP)}, {v(V_DCNT)}
    s_add_u32 {s(S_WY)}, {s(S_WS)}, {YOFF}
    s_addc_u32 {s(S_WY + 1)}, {s(S_WS + 1)}, 0
    s_or_b64 {s(S_ANY2, 2)}, {s(S_M2, 2)}, {s(S_M2 + 2, 2)}
    s_or_b64 {s(S_ANY2, 2)}, {s(S_ANY2, 2)}, {s(S_M2 + 4, 2)}
    s_or_b64 {s(S_ANY2, 2)}, {s(S_ANY2, 2)}, {s(S_M2 + 6, 2)}
    s_cbranch_scc0 KB_NOSEC_A
    """)
    for c in range(NC):
        A(f"""
        s_mov_b64 exec, {s(S_M2 + 2 * c, 2)}
        s_cbranch_execz KB_SA{c}
        global_load_dword {v(REC2 + 4 * c + 2)}, {v(HA2 + c)}, {s(S_WS, 2)} offset:64 {WT}
        global_load_dwordx2 {v(REC2 + 4 * c, 2)}, {v(HA1 + c)}, {s(S_WY, 2)} offset:128 {WT}
        KB_SA{c}:
        """)

    def tile_addr(tile, sa=True):
        A(f"""
        s_lshl_b32 {s(S_TMP)}, {s(tile)}, 9
        s_add_u32 {s(S_TMP)}, {s(S_TMP)}, {L_LIST}
        v_add_u32 {v(V_EID)}, {s(S_TMP)}, {v(V_LAE)}
        v_add_u32 {v(V_KN)}, {s(S_TMP)}, {v(V_LAD)}
        v_add_u32 {v(V_MT)}, {s(S_TMP)}, {v(V_LAY)}
        """)
        if sa:
            A(f"v_lshl_add_u32 {v(V_SA)}, {v(V_HALF16)}, 4, {s(S_TMP)}")

    ROT = 3 if opt.get("rot", 1) else 0
    A(f"""
    s_mov_b64 exec, -1
    KB_NOSEC_A:
    s_cmp_eq_u64 {s(S_CMP, 2)}, 0
    s_cbranch_scc1 KB_NOMORE
    ds_write_b32 {v(V_CTRA)}, {v(V_ONE)} offset:4
    KB_NOMORE:
    v_lshrrev_b32 {v(PB)}, 4, v0
    v_mul_u32_u24 {v(PB)}, {4 * CHUNK}, {v(PB)}
    v_add_u32 {v(PB + 1)}, {CHUNK}, {v(PB)}
    v_add_u32 {v(PB + 2)}, {2 * CHUNK}, {v(PB)}
    v_add_u32 {v(PB + 3)}, {3 * CHUNK}, {v(PB)}
    s_getreg_b32 {s(S_ROT)}, hwreg(HW_REG_XCC_ID, 0, 4)
    s_and_b32 {s(S_ROT)}, {s(S_ROT)}, {ROT}
    s_lshl_b32 {s(S_ROT)}, {s(S_ROT)}, 8
    v_and_b32 {v(P1)}, 63, v0
    v_lshl_add_u32 {v(P2)}, {v(P1)}, 4, {s(S_ROT)}
    v_and_b32 {v(P2)}, 0x3ff, {v(P2)}
    v_mov_b32 {v(P5)}, 16
    v_mov_b32 {v(P6)}, 0x3f000fff
    v_mov_b32 {v(P3)}, {opt.get("abl_x", 0x1ffe00)}
    """)
    tile_addr(S_WAVE)
    A(f"""
    s_movk_i32 {s(S_C0)}, {NS}
    v_mov_b32 {v(V_KK)}, {40 * NS}
    s_mov_b32 {s(S_TMP2)}, {PSIZE * 512}
    """)

    def yloads(addr):
        for c in range(NC):
            A(f"s_or_b64 exec, {s(S_M1 + 2 * c, 2)}, 1\nglobal_load_dwordx2 {v(REC1 + 4 * c, 2)}, {v(addr + c)}, {s(S_WY, 2)} {WT}")
        A("s_mov_b64 exec, -1")

    ylate = opt.get("ylate", 0)
    if ylate == 0:
        yloads(HA1)
        A("s_waitcnt vmcnt(4)")
    elif ylate == 1:
        A("s_waitcnt vmcnt(0)")
        yloads(HA1)
    else:
        for c in range(NC):
            A(f"v_mov_b32 {v(YA + c)}, {v(HA1 + c)}")
        A("s_waitcnt vmcnt(0)")
    stamp("rec")

    def second(fns, tag):
        A(f"s_cmp_eq_u64 {s(S_ANY2, 2)}, 0\ns_cbranch_scc1 KB_N{tag}")
        for c in range(NC):
            A(f"s_mov_b64 exec, {s(S_M2 + 2 * c, 2)}\ns_cbranch_execz KB_{tag}{c}")
            for fn in fns:
                fn(REC2, RK2, HA2, c)
            A(f"KB_{tag}{c}:")
        A(f"KB_N{tag}:\ns_mov_b64 exec, -1")

    def keyof(rec, rk, ha, c):
        A(f"v_lshlrev_b32_sdwa {v(ha + c)}, 2, {v(rec + 4 * c + 2)} {SDWA} src1_sel:BYTE_3")

    def count(rec, rk, ha, c):
        A(f"ds_add_rtn_u32 {v(rk + c)}, {v(ha + c)}, {v(P5)} offset:{L_HIST}")

    def decode(rec, rk, ha, c):
        idx = rec + 4 * c + 2
        A(f"""
        v_and_b32 {v(idx + 1)}, {v(P6)}, {v(idx)}
        v_lshrrev_b32 {v(P0)}, 30, {v(idx)}
        v_lshrrev_b32 {v(idx)}, 3, {v(idx)}
        v_and_b32 {v(idx)}, {v(P3)}, {v(idx)}
        """)
        if not opt.get("abl_ef"):
            A(f"v_add_u32 {v(idx + 1)}, {v(idx + 1)}, {v(PB + c)}")
        if opt.get("abl_x"):
            A(f"v_add_u32 {v(idx)}, 512, {v(idx)}")
        else:
            A(f"v_mad_u32_u24 {v(idx)}, {v(P0)}, {s(S_TMP2)}, {v(idx)}")

    def prefread(rec, rk, ha, c):
        A(f"ds_read_b32 {v(ha + c)}, {v(ha + c)} offset:{L_PREF}")

    def place(rec, rk, ha, c):
        A(f"""
        v_add_u32 {v(ha + c)}, {v(ha + c)}, {v(rk + c)}
        v_and_b32 {v(P0)}, 0x100, {v(ha + c)}
        v_mad_i32_i24 {v(rec + 4 * c + 2)}, {v(P0)}, -2, {v(rec + 4 * c + 2)}
        """)
        if opt.get("abl_y"):
            A(f"ds_write_b64 {v(ha + c)}, {v(rec + 4 * c + 2, 2)} offset:{L_LIST + 8}")
        else:
            A(f"ds_write_b128 {v(ha + c)}, {v(rec + 4 * c, 4)} offset:{L_LIST}")

    for c in range(NC):
        keyof(REC1, RK1, HA1, c)
    for c in range(NC):
        A(f"s_mov_b64 exec, {s(S_M1 + 2 * c, 2)}")
        count(REC1, RK1, HA1, c)
    second([keyof, count, decode], "H")
    for c in range(NC):
        decode(REC1, RK1, HA1, c)
    A("s_waitcnt lgkmcnt(0)\ns_barrier")
    stamp("b5")
    if ylate == 2:
        yloads(YA)
    A(f"""
    ; wave 0 scans the counters (starting quarter depends on the die, for cache behaviour only)
    s_cmp_eq_u32 {s(S_WAVE)}, 0
    s_cbranch_scc0 KB_NOSCAN
    s_setprio 3
    """)
    scan256(SC, SC + 4, P2, P4)
    A(f"""
    s_mov_b32 exec_lo, 0
    s_brev_b32 exec_hi, 1
    ds_write_b32 {v(V_CTRA)}, {v(P4)} offset:16
    s_mov_b64 exec, -1
    s_waitcnt lgkmcnt(0)
    s_barrier
    s_setprio 0
    v_readlane_b32 {s(S_N)}, {v(P4)}, 63
    v_lshlrev_b32 {v(P0)}, 2, {v(P1)}
    ds_write_b32 {v(P0)}, {v(SC + 4)} offset:{L_HIST}
    v_mov_b64 {v(SC + 4, 2)}, 0
    v_mov_b32 {v(SC + 6)}, 512
    v_mov_b32 {v(SC + 7)}, {(40 << 24) | 0xfffff}
    s_min_u32 {s(S_N)}, {s(S_N)}, {16 * CAP}
    v_lshl_add_u32 {v(P3)}, {v(P1)}, 4, {s(S_N)}
    ds_write_b128 {v(P3)}, {v(SC + 4, 4)} offset:{L_LIST}
    ds_write_b32 {v(V_CTRA)}, {v(SC + 4)} offset:8
    s_waitcnt vmcnt(0)
    s_branch KB_PLACE
    KB_NOSCAN:
    """)
    if opt.get("efpre"):
        for c in range(NC):
            A(f"""
            v_xor_b32 {v(P0)}, {s(S_ROT)}, {v(HA1 + c)}
            v_cmp_gt_u32 vcc, {4 * opt["efpre"]}, {v(P0)}
            v_mul_u32_u24 {v(P0)}, 32, {v(REC1 + 4 * c + 3)}
            s_and_b64 vcc, vcc, {s(S_M1 + 2 * c, 2)}
            s_or_b64 exec, vcc, 1
            buffer_load_dword {v(V_JUNK)}, {v(P0)}, {s(S_EF, 4)}, 0 offen
            s_mov_b64 exec, -1
            """)
    A("s_barrier\nKB_PLACE:")
    stamp("b6")
    A(f"ds_read2_b32 {v(SC, 2)}, {v(V_CTRA)} offset0:1 offset1:4")
    for c in range(NC):
        A(f"s_mov_b64 exec, {s(S_M1 + 2 * c, 2)}")
        prefread(REC1, RK1, HA1, c)
    second([prefread], "R")
    A(f"""
    s_waitcnt lgkmcnt(0)
    v_readfirstlane_b32 {s(S_N)}, {v(SC + 1)}
    v_readfirstlane_b32 {s(S_MORE)}, {v(SC)}
    s_nop 1
    s_cmp_le_u32 {s(S_N)}, {16 * CAP}
    s_cbranch_scc0 KB_NARROW
    s_add_u32 {s(S_NT)}, {s(S_N)}, 511
    s_lshr_b32 {s(S_NT)}, {s(S_NT)}, 9
    s_waitcnt vmcnt({8 if opt.get("abl_y") else 4 if opt.get("efpre") else 0})
    """)
    for c in range(NC):
        A(f"s_mov_b64 exec, {s(S_M1 + 2 * c, 2)}")
        place(REC1, RK1, HA1, c)
    second([place], "P")

    def progress(reg):
        A(f"s_mov_b64 exec, {s(S_ME, 2)}\nds_write_b32 {v(V_LAD)}, {v(reg)} offset:{L_CTR + 12}\ns_mov_b64 exec, -1")

    early = opt.get("early", 0)
    if early:
        A(f"s_lshl_b64 {s(S_ME, 2)}, 1, {s(S_WAVE)}")
        progress(V_SA)
    A("s_waitcnt lgkmcnt(0)\ns_barrier")
    stamp("sorted")
    if opt.get("trace"):
        A(f"v_mov_b32 {v(V_TRC)}, 0\ns_mov_b32 s1, 0")

    def tile_reads():
        A(f"""
        ds_read_b32 {v(V_EID)}, {v(V_EID)} offset:12
        ds_read_b32 {v(V_KN)}, {v(V_KN)} offset:12
        ds_read_b64 {v(YR, 2)}, {v(V_MT)}
        """)

    def so_read(g):
        for q in range(2):
            o = 16 * (g % 4) + 8 * q + 2
            A(f"ds_read2_b32 {v(SO + 4 * (g % 2) + 2 * q, 2)}, {v(V_SA)} offset0:{o} offset1:{o + 4}")

    def xload(r):
        if r >= 16 and opt.get("xskip", 1):
            A(f"s_cmp_ge_u32 {s(S_NEXT)}, {s(S_NT)}\ns_cselect_b64 exec, 1, -1")
        A(f"buffer_load_dwordx4 {v(X + 4 * (r % 4), 4)}, {v(SO + 4 * ((r // 4) % 2) + r % 4)}, {s(S_X, 4)}, 0 offen")
        if r >= 16 and opt.get("xskip", 1):
            A("s_mov_b64 exec, -1")

    def ef_load(skip=0):
        A(f"v_mad_u32_u24 {v(V_EID)}, {v(V_EID)}, 32, {v(V_HALF16)}")
        m = (0xffffffff << skip) & 0xffffffff
        if skip:
            A(f"s_mov_b32 exec_lo, {m}\ns_mov_b32 exec_hi, {m}")
        A(f"buffer_load_dwordx4 {v(EF, 4)}, {v(V_EID)}, {s(S_EF, 4)}, 0 offen")
        if skip:
            A("s_mov_b64 exec, -1")

    def sm_issue(base, n):
        A("; part of the next tile's edge features comes through the scalar cache")
        for j in range(n):
            A(f"v_readlane_b32 {s(SMB + 8 * j)}, {v(V_EID)}, {base + j}")
        if n < 5:
            A(f"s_nop {4 - n}")
        for j in range(n):
            A(f"s_buffer_load_dwordx8 {s(SMB + 8 * j, 8)}, {s(S_EF, 4)}, {s(SMB + 8 * j)}")

    def sm_move(base, n):
        for half in range(2):
            for j in range(n):
                if j == 0:
                    A(f"s_mov_b32 exec_{'hi' if half else 'lo'}, {1 << base}\ns_mov_b32 exec_{'lo' if half else 'hi'}, 0")
                else:
                    A("s_lshl_b64 exec, exec, 1")
                for q in range(2):
                    A(f"v_mov_b64 {v(EF + 2 * q, 2)}, {s(SMB + 8 * j + 4 * half + 2 * q, 2)}")
        A("s_mov_b64 exec, -1")

    def grab(reg):
        A(f"s_mov_b64 exec, 1\nds_add_rtn_u32 {v(reg)}, {v(V_CTRA)}, {v(V_ONE)}\ns_mov_b64 exec, -1")

    key_ops = [f"v_mul_u32_u24_sdwa {v(V_KN)}, {s(S_C0)}, {v(V_KN)} {SDWA} src1_sel:BYTE_3",
               f"v_xor_b32_dpp {v(V_MT)}, {v(V_KN)}, {v(V_KN)} row_shl:1 {DPP} bound_ctrl:0",
               f"v_cmp_ne_u32 {s(S_CMP, 2)}, 0, {v(V_MT)}"]

    sm0 = opt.get("sm0", 0)
    if NSTART < NW:
        A(f"""
        s_cmp_lt_u32 {s(S_WAVE)}, {NSTART}
        s_cbranch_scc1 KM_START
        s_sub_u32 {s(S_TMP2)}, {s(S_WAVE)}, {NSTART}
        s_mul_i32 {s(S_TMP2)}, {s(S_TMP2)}, {opt.get("lstep", 2)}
        s_add_u32 {s(S_TMP2)}, {s(S_TMP2)}, {NSTART + opt.get("lfirst", 1)}
        s_min_u32 {s(S_TMP2)}, {s(S_TMP2)}, {s(S_NT)}
        KM_WAIT:
        ds_read_b32 {v(V_FA)}, {v(V_CTRA)}
        s_waitcnt lgkmcnt(0)
        v_readfirstlane_b32 {s(S_NEXT)}, {v(V_FA)}
        s_nop 1
        s_cmp_ge_u32 {s(S_NEXT)}, {s(S_TMP2)}
        s_cbranch_scc1 KM_JOIN
        s_sleep 4
        s_branch KM_WAIT
        KM_JOIN:
        """)
        grab(V_FA)
        A(f"""
        s_waitcnt lgkmcnt(0)
        v_readfirstlane_b32 {s(S_NEXT)}, {v(V_FA)}
        s_nop 1
        s_cmp_ge_u32 {s(S_NEXT)}, {s(S_NT)}
        s_cbranch_scc1 KM_DONE
        """)
        tile_addr(S_NEXT)
        A("s_branch KM_FIRST\nKM_START:")
    A(f"s_mov_b32 {s(S_NEXT)}, {s(S_WAVE)}\ns_cmp_ge_u32 {s(S_WAVE)}, {s(S_NT)}\ns_cbranch_scc1 KM_DONE\nKM_FIRST:")
    A(f"ds_read_b32 {v(V_EID)}, {v(V_EID)} offset:12")
    so_read(0)
    A(f"ds_read_b32 {v(V_KN)}, {v(V_KN)} offset:12\nds_read_b64 {v(YR, 2)}, {v(V_MT)}")
    so_read(1)
    A("s_waitcnt lgkmcnt(6)")
    smy = opt.get("smy")
    if smy:
        masks = [(0xffffffff << (sm0 * n)) & 0xffffffff for n in range(3)]
        A(f"""
        v_mad_u32_u24 {v(V_EID)}, {v(V_EID)}, 32, {v(V_HALF16)}
        s_cmp_ge_u32 {s(S_WAVE)}, {smy[0]}
        s_cselect_b32 s3, {masks[1]}, -1
        s_cmp_ge_u32 {s(S_WAVE)}, {smy[1]}
        s_cselect_b32 s3, {masks[2]}, s3
        s_mov_b32 exec_lo, s3
        s_mov_b32 exec_hi, s3
        buffer_load_dwordx4 {v(EF, 4)}, {v(V_EID)}, {s(S_EF, 4)}, 0 offen
        s_mov_b64 exec, -1
        """)
    else:
        ef_load(sm0)
    A("s_waitcnt lgkmcnt(4)")
    for r in range(4):
        xload(r)
    A("s_waitcnt lgkmcnt(0)")
    A(key_ops[0] + "\ns_nop 1\n" + key_ops[1] + "\n" + key_ops[2])
    for n in range(2 if smy else 1 if sm0 else 0):
        if smy:
            A(f"s_cmp_lt_u32 {s(S_WAVE)}, {smy[n]}\ns_cbranch_scc1 KM_SM0")
        sm_issue(sm0 * n, sm0)
        A("s_waitcnt lgkmcnt(0)")
        sm_move(sm0 * n, sm0)
    A("KM_SM0:")
    A("s_waitcnt vmcnt(4)")
    stamp("loop")

    def flush_ops(r):
        ops = [[f"v_add_u32_dpp {v(V_FA)}, {v(V_KK)}, {v(V_ACCL)} row_newbcast:{r} {DPP}"]]
        for j in range(8):
            st = STG + 2 * (j % 4)
            ops.append([f"v_cvt_f64_f32 {v(st, 2)}, {v(ACC + j)}", f"ds_add_f64 {v(V_FA)}, {v(st, 2)} offset:{RS * j}"])
        return ops

    def emit(groups):
        for g in groups:
            for op in ([g] if isinstance(g, str) else g):
                A(op)

    def acc_ops(r, first):
        ops = []
        for j in range(4):
            rr = D + 16 * (j // 2) + (r & ~1)
            o = r & 1
            if first:
                ops.append(f"v_pk_mul_f32 {v(ACC + 2 * j, 2)}, {v(rr, 2)}, {v(TP + 2 * j, 2)} op_sel:[{o},0] op_sel_hi:[{o},1]")
            else:
                ops.append(f"v_pk_fma_f32 {v(ACC + 2 * j, 2)}, {v(rr, 2)}, {v(TP + 2 * j, 2)}, {v(ACC + 2 * j, 2)} op_sel:[{o},0,0] op_sel_hi:[{o},1,1]")
        return ops

    def exp_ops(q):
        return [f"v_exp_f32 {v(E + j)}, {v(D + 16 * (j // 2) + q + j % 2)}" for j in range(4)]

    add_ops = [f"v_pk_add_f32 {v(E + 2 * j, 2)}, {v(E + 2 * j, 2)}, 1.0 op_sel_hi:[1,0]" for j in range(2)]
    rcp_ops = [f"v_rcp_f32 {v(E + j)}, {v(E + j)}" for j in range(4)]

    def mul_ops(q):
        return [f"v_pk_mul_f32 {v(D + 16 * j + q, 2)}, {v(D + 16 * j + q, 2)}, {v(E + 2 * j, 2)}" for j in range(2)]

    GRAB, EFS = opt.get("grab", 5), opt.get("efs", 8)
    prio = opt.get("prio", {-1: 0, 4: 1, 8: 2, 12: 3})
    sm = opt.get("sm", {})
    smbase = {st: sum(sm[q] for q in sm if q < st) for st in sm}
    assert set(sm) <= {4, 8, 12} and all(st >= EFS for st in sm)
    smlim = opt.get("smlim", {})
    S_LIM = {st: S_NT for st in sm}
    for st, reg in zip(smlim, (S_N, S_C1, 1)):
        S_LIM[st] = reg
        A(f"s_min_u32 {s(reg)}, {s(S_NT)}, {smlim[st]}")
    A(".p2align 6")
    loop_start = len(A.lines)
    A("KM_LOOP:")
    endprio = opt.get("endprio")

    def setprio(k):
        A(f"s_setprio {prio[k]}")
        if endprio and endprio[k] != prio[k]:
            A(f"s_cbranch_vccz KM_P{k + 1}\ns_setprio {endprio[k]}\nKM_P{k + 1}:")

    if endprio:
        A(f"s_add_u32 s3, {s(S_NEXT)}, {opt.get('endn', 16)}\ns_cmp_ge_u32 s3, {s(S_NT)}\ns_cselect_b64 vcc, -1, 0")
    if -1 in prio:
        setprio(-1)
    fo = flush_ops(15)
    tm = [f"v_mfma_f32_4x4x4_16b_bf16 {v(D + 16 + 4 * i, 4)}, {v(YR, 2)}, {v(CG + 2 * i, 2)}, 0" for i in range(4)]
    tc = [f"v_cvt_pk_bf16_f32 {v(T + 2 * j + hh)}, {v(D + 16 + 8 * hh + j)}, {v(D + 20 + 8 * hh + j)}" for hh in range(2) for j in range(2)]
    ex = exp_ops(0)
    emit([tm[0], fo[0], tm[1], fo[1], tm[2], fo[2], tm[3], fo[3]])
    A(f"v_mfma_f32_32x32x16_bf16 {v(D, 16)}, {v(EF, 4)}, {v(W, 4)}, 0")
    emit([tc[0], tc[1], fo[4], fo[5], tc[2], tc[3]])
    A(f"v_mfma_f32_32x32x16_bf16 {v(D + 16, 16)}, {v(EF, 4)}, {v(W + 4, 4)}, 0")
    emit([fo[6], fo[7], fo[8], f"v_mov_b32 {v(V_KK)}, {v(V_KN)}", f"s_or_b32 {s(S_MASK)}, {s(S_CMP)}, {s(S_CMP + 1)}",
          ex[0], ex[1]])
    if early:
        progress(V_SA)
    else:
        A("s_nop 1")
    emit([ex[2], ex[3], "s_nop 0"] + add_ops)
    for r in range(16):
        tr = T + (2 if r >= 8 else 0)
        m4 = [f"v_mfma_f32_4x4x4_16b_bf16 {v(TP + 4 * h, 4)}, {v(tr, 2)}, {v(X + 4 * (r % 4) + 2 * h, 2)}, 0 cbsz:3 abid:{r % 8}" for h in range(2)]
        A(f"; step {r}")
        if r in prio:
            setprio(r)
        A(f"s_waitcnt vmcnt(3)")
        if r == 15:
            emit([m4[0], key_ops[0], m4[1]])
            xload(r + 4)
            emit([key_ops[1], key_ops[2]])
            side = []
        else:
            trans = rcp_ops if r % 2 == 0 else exp_ops(r + 1)
            side = mul_ops(r) if r % 2 == 0 else add_ops
            emit([m4[0], trans[0], m4[1], trans[1], trans[2], trans[3]])
            if r % 4 == 0 and r > 0:
                A("s_waitcnt lgkmcnt(0)")
            xload(r + 4)
        if r % 4 == 0:
            so_read(r // 4 + 2)
        if r == GRAB:
            grab(V_MT)
        if r == GRAB + 1:
            if r % 4:
                A("s_waitcnt lgkmcnt(0)")
            A(f"v_readfirstlane_b32 {s(S_NEXT)}, {v(V_MT)}")
        if r == GRAB + 2:
            A(f"s_min_u32 {s(S_NEXT)}, {s(S_NEXT)}, {s(S_NT)}")
            tile_addr(S_NEXT, r >= 5)
            tile_reads()
        if r == 5 and GRAB + 2 < 5:
            A(f"v_lshl_add_u32 {v(V_SA)}, {v(V_HALF16)}, 4, {s(S_TMP)}")
        if r - 4 in sm:
            A(f"s_cmp_ge_u32 {s(S_NEXT)}, {s(S_LIM[r - 4])}\ns_cbranch_scc1 KM_NOMV{r}")
            sm_move(smbase[r - 4], sm[r - 4])
            A(f"KM_NOMV{r}:")
        if r == EFS:
            A(f"v_mad_u32_u24 {v(V_EID)}, {v(V_EID)}, 32, {v(V_HALF16)}")
        if r == opt.get("efv", EFS):
            A(f"s_cmp_ge_u32 {s(S_NEXT)}, {s(S_NT)}\ns_cbranch_scc1 KM_NOEF")
            m = (0xffffffff << sum(sm.values())) & 0xffffffff
            A(f"s_mov_b32 {s(S_TMP2)}, {m}")
            for st in smlim:
                A(f"s_cmp_ge_u32 {s(S_NEXT)}, {s(S_LIM[st])}\ns_cselect_b32 s3, {((1 << sm[st]) - 1) << smbase[st]}, 0\ns_or_b32 {s(S_TMP2)}, {s(S_TMP2)}, s3")
            if opt.get("hackB"):
                B = opt["hackB"]
                A(f"""
                s_lshr_b32 s3, s2, 3
                s_add_u32 s3, s3, {s(S_NEXT)}
                s_and_b32 s3, s3, {B - 1}
                s_cbranch_scc1 KM_NOEF
                """)
                for j in range(B):
                    A(f"""
                    s_add_u32 s3, {s(S_NEXT)}, {j + opt.get("hlead", 0)}
                    s_min_u32 s3, s3, {s(S_NT)}
                    s_lshl_b32 s3, s3, 9
                    v_add_u32 {v(STG + j)}, s3, {v(V_LAE)}
                    ds_read_b32 {v(STG + j)}, {v(STG + j)} offset:{L_LIST + 12}
                    """)
                A(f"s_waitcnt lgkmcnt(0)\ns_mov_b32 exec_lo, {s(S_TMP2)}\ns_mov_b32 exec_hi, {s(S_TMP2)}")
                for j in range(B):
                    A(f"v_mad_u32_u24 {v(STG + j)}, {v(STG + j)}, 32, {v(V_HALF16)}")
                    A(f"buffer_load_dwordx4 {v(EF, 4)}, {v(STG + j)}, {s(S_EF, 4)}, 0 offen")
                A("s_mov_b64 exec, -1\nKM_NOEF:")
            else:
                A(f"""
                s_mov_b32 exec_lo, {s(S_TMP2)}
                s_mov_b32 exec_hi, {s(S_TMP2)}
                buffer_load_dwordx4 {v(EF, 4)}, {v(V_EID)}, {s(S_EF, 4)}, 0 offen
                s_mov_b64 exec, -1
                KM_NOEF:
                """)
        if r in sm:
            A(f"s_cmp_ge_u32 {s(S_NEXT)}, {s(S_LIM[r])}\ns_cbranch_scc1 KM_NOIS{r}")
            sm_issue(smbase[r], sm[r])
            A(f"KM_NOIS{r}:")
        if r == 11 and opt.get("trace"):
            A("s_memrealtime s[90:91]\ns_memtime s[88:89]")
        if r == 13 and opt.get("trace"):
            A(f"s_mov_b32 m0, s1\ns_add_u32 s1, s1, 1\nv_writelane_b32 {v(V_TRC)}, s90, m0\ns_add_u32 m0, m0, 32\ns_nop 0\nv_writelane_b32 {v(V_TRC)}, s88, m0")
        if r == 14 and 12 not in sm:
            A("s_waitcnt lgkmcnt(0)")
        emit(side)
        if r > 0:
            A(f"s_bitcmp1_b32 {s(S_MASK)}, {r - 1}\ns_cbranch_scc1 KM_F{r}")
        emit(acc_ops(r, r == 0))
        if r > 0:
            A(f"KM_R{r}:")
    if 12 in sm:
        A(f"s_cmp_ge_u32 {s(S_NEXT)}, {s(S_NT)}\ns_cbranch_scc1 KM_LAST")
        if -1 in prio and opt.get("lowmove", 1):
            A(f"s_setprio {prio[-1]}")
        A("s_waitcnt lgkmcnt(0)")
        if 12 in smlim:
            A(f"s_cmp_ge_u32 {s(S_NEXT)}, {s(S_LIM[12])}\ns_cbranch_scc1 KM_LOOP")
        sm_move(smbase[12], sm[12])
        A("s_branch KM_LOOP\nKM_LAST:")
    else:
        A(f"s_cmp_lt_u32 {s(S_NEXT)}, {s(S_NT)}\ns_cbranch_scc1 KM_LOOP")
    drop = opt.get("drop", [])
    if drop:
        A.lines[loop_start:] = [ln for ln in A.lines[loop_start:] if not any(d in ln for d in drop)]
    emit(flush_ops(15))
    A("s_branch KM_DONE")
    A("; node change before step r: flush the sums and restart them")
    for r in range(1, 16):
        A(f"KM_F{r}:")
        emit(flush_ops(r - 1))
        emit(acc_ops(r, True))
        A(f"s_branch KM_R{r}")
    A(f"""
    KB_NARROW:
    s_mov_b32 {s(S_WIDE)}, 0
    s_branch KB_ROUND
    KB_NEXT:
    s_lshl_b32 {s(S_TMP)}, 8, {s(S_WIDE)}
    s_add_u32 {s(S_K0)}, {s(S_K0)}, {s(S_TMP)}
    KB_ROUND:
    s_waitcnt vmcnt(0) lgkmcnt(0)
    s_barrier
    v_and_b32 {v(P0)}, 0xff, v0
    v_lshlrev_b32 {v(P0)}, 2, {v(P0)}
    v_mov_b32 {v(P1)}, 0
    v_mov_b32 {v(P2)}, {NSTART}
    ds_write_b32 {v(P0)}, {v(P1)} offset:{L_HIST}
    ds_write2_b32 {v(V_CTRA)}, {v(P2)}, {v(P1)} offset0:0 offset1:1
    """)
    round_consts()
    A("""
    s_waitcnt lgkmcnt(0)
    s_barrier
    s_branch KB_ROUND0
    """)
    WM, A64, AG, AF, OD, OP = 32, 80, 16, 8, 80, 96
    A("KM_DONE:")
    stamp("done")
    A(f"""
    s_setprio 0
    s_cmp_eq_u32 {s(S_MORE)}, 0
    s_cbranch_scc0 KB_NEXT
    """)
    if early:
        A(f"v_mov_b32 {v(V_FA)}, -1")
        progress(V_FA)
        A(f"""
        s_mov_b64 exec, 1
        ds_add_rtn_u32 {v(V_MT)}, {v(V_CTRA)}, {v(V_ONE)} offset:8
        s_mov_b64 exec, -1
        s_mov_b32 {s(S_C1)}, {SPIN_MAX * 16}
        s_waitcnt lgkmcnt(0)
        v_readfirstlane_b32 {s(S_GRP)}, {v(V_MT)}
        s_nop 1
        s_cmp_ge_u32 {s(S_GRP)}, 10
        s_cbranch_scc1 KE_FIN
        s_lshl_b32 s70, {s(S_GRP)}, 2
        v_mov_b32 {v(V_KK)}, s70
        ds_read_b32 {v(V_KK)}, {v(V_KK)} offset:{L_HIST + 49 * 4}
        v_and_b32 {v(V_KN)}, 0xff, {v(V_LAD)}
        """)
    else:
        A(f"""
        s_mov_b32 {s(S_GRP)}, {s(S_WAVE)}
        s_cmp_ge_u32 {s(S_WAVE)}, 10
        s_cbranch_scc0 KE_MIX
        s_waitcnt lgkmcnt(0)
        s_barrier
        s_branch KE_FIN
        """)
    A(f"""
    KE_MIX:
    v_and_b32 v1, 63, v0
    v_lshlrev_b32 v2, 4, v1
    """)
    for f in range(8):
        A(f"ds_read_b128 {v(WM + 4 * f, 4)}, v2 offset:{L_WM + 1024 * f}")
    A(f"""
    v_bfe_u32 v2, v1, 2, 2
    v_mul_u32_u24 v2, {NS}, v2
    v_and_b32 v3, 3, v1
    v_mul_u32_u24 v3, {RS}, v3
    v_lshrrev_b32 v4, 4, v1
    v_lshlrev_b32 v5, 6, v4
    v_add3_u32 v2, v2, v3, v5
    s_mul_i32 s70, {s(S_GRP)}, {4 * NS}
    s_add_u32 s70, s70, {L_ACC}
    v_add_u32 v2, s70, v2
    v_and_b32 v3, 15, v1
    v_lshlrev_b32 v3, 4, v3
    v_lshl_add_u32 v3, v4, 17, v3
    s_lshl_b32 s70, {s(S_GRP)}, 19
    s_lshl_b32 s71, {s(S_BETA)}, 9
    s_add_u32 s70, s70, s71
    v_add_u32 v3, s70, v3
    s_lshr_b32 s72, {s(S_BETA)}, 4
    s_lshl_b32 s72, s72, 9
    s_sub_u32 s72, s72, s71
    s_and_b32 s73, {s(S_BETA)}, 15
    s_cselect_b32 s72, 0x40000000, s72
    s_cmp_eq_u32 {s(S_GRP)}, 9
    s_cselect_b32 s72, s72, 0
    v_cmp_le_u32 vcc, 48, v1
    v_add_u32 v4, s72, v3
    s_nop 0
    v_cndmask_b32 v3, v3, v4, vcc
    s_mov_b32 {s(S_SC)}, {fbits(-math.log(2.0) * opt.get('oscale', 1.0))}
    s_mov_b32 {s(S_SC + 1)}, {fbits(-math.log(2.0) * opt.get('oscale', 1.0))}
    s_waitcnt lgkmcnt(0)
    """)
    if early:
        A(f"""
        v_add_u32 {v(V_KK)}, {L_LIST}, {v(V_KK)}
        KE_WAIT:
        ds_read_b32 {v(V_FA)}, {v(V_KN)} offset:{L_CTR + 12}
        s_waitcnt lgkmcnt(0)
        v_cmp_lt_u32 vcc, {v(V_FA)}, {v(V_KK)}
        s_cbranch_vccz KE_GO
        s_sub_u32 {s(S_C1)}, {s(S_C1)}, 1
        s_cbranch_scc1 K_END
        s_sleep {opt.get("esleep", 2)}
        s_branch KE_WAIT
        KE_GO:
        """)
        if opt.get("mixprio") is not None:
            A(f"s_setprio {opt['mixprio']}")
    else:
        A("s_barrier")
    for cpar in range(2):
        for hh in range(4):
            A(f"ds_read_b128 {v(A64 + 16 * cpar + 4 * hh, 4)}, v2 offset:{4 * RS * cpar + 16 * hh}")
    for j in range(8):
        A(f"s_waitcnt lgkmcnt({7 - j})")
        A(f"v_cvt_f32_f64 {v(AG + 2 * j)}, {v(A64 + 4 * j, 2)}")
        A(f"v_cvt_f32_f64 {v(AG + 2 * j + 1)}, {v(A64 + 4 * j + 2, 2)}")
    for j in range(8):
        A(f"v_pk_mul_f32 {v(AG + 2 * j, 2)}, {v(AG + 2 * j, 2)}, {s(S_SC, 2)}")
    for j in range(8):
        A(f"v_cvt_pk_bf16_f32 {v(AF + j)}, {v(AG + 2 * j)}, {v(AG + 2 * j + 1)}")
    A("s_nop 1")
    for dt in range(4):
        A(f"v_mfma_f32_16x16x32_bf16 {v(OD + 4 * dt, 4)}, {v(AF, 4)}, {v(WM + 4 * dt, 4)}, 0")
    for dt in range(4):
        A(f"v_mfma_f32_16x16x32_bf16 {v(OD + 4 * dt, 4)}, {v(AF + 4, 4)}, {v(WM + 16 + 4 * dt, 4)}, {v(OD + 4 * dt, 4)}")
    A("s_nop 7")
    for j in range(8):
        A(f"v_cvt_pk_bf16_f32 {v(OP + j)}, {v(OD + 2 * j)}, {v(OD + 2 * j + 1)}")
    ost = opt.get("out_st", "")
    A(f"buffer_store_dwordx4 {v(OP, 4)}, v3, {s(S_OUT, 4)}, 0 offen {ost}")
    A(f"buffer_store_dwordx4 {v(OP + 4, 4)}, v3, {s(S_OUT, 4)}, 0 offen offset:256 {ost}")
    A("KE_FIN:")
    if opt.get("diag"):
        A("""
        s_waitcnt lgkmcnt(0)
        KE_SPIN:
        s_memrealtime s[74:75]
        s_waitcnt lgkmcnt(0)
        s_sub_u32 s74, s74, s76
        s_cmp_lt_u32 s74, 10000
        s_cbranch_scc1 KE_SPIN
        """)
    if opt.get("trace"):
        A(f"s_lshl_b32 s78, s2, 12\ns_add_u32 s78, s78, {130 << 20}\nv_lshl_add_u32 v1, v0, 2, s78\nglobal_store_dword v1, {v(V_TRC)}, {s(S_WS, 2)}")
    if opt.get("prof"):
        A("s_waitcnt vmcnt(0)")
        stamp("fin")
        A("s_waitcnt lgkmcnt(0)")
        A(f"s_lshl_b32 s3, s2, 4\ns_add_u32 s3, s3, {s(S_WAVE)}\ns_lshl_b32 s3, s3, 6\ns_add_u32 s3, s3, {(128 << 20) + (1 << 20)}")
        A("v_mov_b32 v1, s3")
        for i in range(len(pts)):
            A(f"v_mov_b32 v2, {s(SB + 2 * i)}\nglobal_store_dword v1, v2, {s(S_WS, 2)} offset:{4 * i}")
    A("K_END:\ns_endpgm")


OVERVIEW = """;
;     packed records (phase|node|src|edge, Y) to d_ws, then publishes a tagged table row of (start, count).
"""

BEST = dict(w2=80, efpre=12, ylate=1, sm0=7, tcode=256, out_st="sc1", grab=1, efs=4, efv=7,
            sm={4: 7, 8: 7, 12: 7}, smlim={8: 48, 12: 60})


def generate(opt):
    if opt.get("best"):
        opt = {**BEST, **opt}
    A = Asm()
    out = HEADER
    if opt.get("aslist"):
        out += f"; @launch kernel={NAME}_kernel grid=(256,1,1) block=(1024,1,1) lds={LDS_BYTES}\n"
    else:
        out += f"; @launch grid=(256,1,1) block=(1024,1,1) lds={LDS_BYTES}\n"
    out += OVERVIEW
    out += '.amdgcn_target "amdgcn-amd-amdhsa--gfx950"\n.text\n'
    gen(A, opt)
    out += A.text()
    out += f""".section .rodata,"a"
.p2align 6
.amdhsa_kernel {NAME}_kernel
  .amdhsa_next_free_vgpr {NVGPR}
  .amdhsa_next_free_sgpr 102
  .amdhsa_accum_offset {NVGPR}
  .amdhsa_group_segment_fixed_size 0
  .amdhsa_kernarg_size 88
  .amdhsa_user_sgpr_count 2
  .amdhsa_user_sgpr_kernarg_segment_ptr 1
  .amdhsa_system_sgpr_workgroup_id_x 1
  .amdhsa_float_denorm_mode_32 3
.end_amdhsa_kernel
"""
    return out


if __name__ == "__main__":
    opt = eval("dict(" + (sys.argv[2] if len(sys.argv) > 2 else "") + ")")
    path = sys.argv[1] if len(sys.argv) > 1 else f"cdna_kernels/{NAME}.s"
    open(path, "w").write(generate(opt))
```

```python
import sys, struct, math

NAME = "standalone__tensor_product_equiv_tfn__graph"

HEADER = """; Kernarg layout for this problem (88 bytes, ptrs only, base s[0:1]):
"""

CHUNK = 2500
PSIZE = 2500
RECSTRIDE = 30336
YOFF = 10112
WS_TAB = 256 * RECSTRIDE
SPIN_MAX = 1 << 18

RS = 272
NS = 8 * RS
L_HIST = 0
L_PREF = 1024
L_CTR = 2048
CAP = 3904
L_WM = 2304
L_SRC = L_WM + 8192
L_EID = L_SRC + (CAP + 64) * 4
L_Y = L_EID + (CAP + 64) * 4
L_ACC = L_Y + (CAP + 64) * 8
LDS_BYTES = L_ACC + 41 * NS
L_STG = L_SRC
L_WF = L_STG + 32768

DPP = "row_mask:0xf bank_mask:0xf"
SDWA = "dst_sel:DWORD dst_unused:UNUSED_PAD src0_sel:DWORD"

NW = 16
V_DBASE, V_DCNT, V_HALF16, V_ACCL, V_LAD, V_LAE, V_LAY = 1, 2, 3, 4, 5, 6, 7
V_ONE, V_CTRA, V_KK, V_KN, V_EID, V_SA, V_FA, V_MT = 8, 9, 10, 11, 12, 13, 14, 15
W = 16
CG = 24
D = 32
X = 64
TP = 80
ACC = 88
STG = 96
SO = 104
E = 112
T = 116
EF = 120
YR = 124
V_TRC, V_JUNK = 126, 127
NVGPR = 128

S_X, S_EF, S_OUT, S_WS = 4, 8, 12, 16
S_BETA, S_WAVE, S_K0, S_WIDE, S_N, S_NT, S_NEXT, S_MASK = 18, 19, 20, 21, 22, 23, 24, 25
S_CMP = 26
S_MORE, S_TMP, S_C0, S_C1 = 28, 29, 30, 31
S_M1, S_M2 = 32, 40
S_ANY2 = 48
S_SC = 50
S_XP = 52
S_TMP2 = 0
S_DBG = 58
S_PM = 60
KA = 32
S_ROT = 3
S_WY = 56
S_GRP = 1
S_HM = 90
S_ME = 88
SMB = 32

DEFAULT_PTS = ["start", "desc", "rec", "sorted", "loop", "done", "bar", "fin", "b3", "b4"]


def fbits(x):
    return "0x%08x" % struct.unpack("<I", struct.pack("<f", x))[0]


class Asm:
    def __init__(self):
        self.lines = []

    def __call__(self, s):
        for ln in s.strip("\n").split("\n"):
            ln = ln.strip()
            if not ln:
                continue
            if (ln.endswith(":") and not ln.startswith(";")) or ln.startswith("."):
                self.lines.append(ln)
            else:
                self.lines.append("    " + ln)

    def text(self):
        return "\n".join(self.lines) + "\n"


def v(a, n=1):
    return f"v{a}" if n == 1 else f"v[{a}:{a+n-1}]"


def s(a, n=1):
    return f"s{a}" if n == 1 else f"s[{a}:{a+n-1}]"


def wave_scan(A, regs):
    steps = ["row_shr:1 " + DPP + " bound_ctrl:0", "row_shr:2 " + DPP + " bound_ctrl:0",
             "row_shr:4 " + DPP + " bound_ctrl:0", "row_shr:8 " + DPP + " bound_ctrl:0",
             "row_bcast:15 row_mask:0xa bank_mask:0xf", "row_bcast:31 row_mask:0xc bank_mask:0xf"]
    for st in steps:
        A("s_nop 1" if len(regs) == 1 else "s_nop 0")
        for r in regs:
            A(f"v_add_u32_dpp {v(r)}, {v(r)}, {v(r)} {st}")


def gen(A, opt):
    PSIZE = opt.get("psize", 2500)
    ROTTAB = sum(q << (2 * i) for i, q in enumerate(opt.get("rottab", [0, 1, 2, 3, 0, 1, 2, 3])))
    name = NAME + "_kernel"
    WT = "sc1"
    P0, P1, P2, P3, P4, P5, P6 = 112, 113, 114, 115, 116, 117, 118
    QD, QS, QY, QH, QR, QT, QP, QZ, QW = 32, 36, 40, 48, 52, 56, 60, 64, 68
    pts = opt.get("pts", DEFAULT_PTS)
    SB = 102 - 2 * len(pts)

    def stamp(nm):
        if opt.get("prof") and nm in pts:
            A(f"s_memrealtime {s(SB + 2 * pts.index(nm), 2)}")
        if opt.get("diag") == nm or (opt.get("diag") and nm == "start"):
            A("s_memrealtime s[76:77]")

    def xtouch(n, base):
        A(f"""
        s_lshr_b32 {s(S_TMP)}, s2, {0 if opt.get("xmall") else 3}
        s_mul_i32 {s(S_TMP)}, {s(S_TMP)}, {n * 128}
        s_add_u32 {s(S_TMP)}, {s(S_TMP)}, {base * 128}
        s_getreg_b32 s3, hwreg(HW_REG_XCC_ID, 0, 3)
        s_lshl_b32 s3, s3, 1
        s_lshr_b32 s3, {ROTTAB:#x}, s3
        s_and_b32 s3, s3, 3
        s_mul_i32 s3, s3, {PSIZE * 512}
        s_add_u32 {s(S_TMP)}, {s(S_TMP)}, s3
        v_cmp_gt_u32 vcc, {n}, v0
        v_lshl_add_u32 {v(P5)}, v0, 7, {s(S_TMP)}
        s_and_saveexec_b64 {s(S_PM, 2)}, vcc
        s_cbranch_execz XT_{base}
        buffer_load_dword {v(V_JUNK)}, {v(P5)}, {s(S_XP, 4)}, 0 offen
        XT_{base}:
        s_mov_b64 exec, -1
        """)

    def scan256(cnt, pre, addr, tot):
        A(f"""
        ds_read_b128 {v(cnt, 4)}, {v(addr)} offset:{L_HIST}
        s_waitcnt lgkmcnt(0)
        v_add_u32 {v(pre + 2)}, {v(cnt)}, {v(cnt + 1)}
        v_add_u32 {v(pre + 3)}, {v(pre + 2)}, {v(cnt + 2)}
        v_add_u32 {v(pre)}, {v(pre + 3)}, {v(cnt + 3)}
        v_add_u32 {v(tot)}, {v(pre + 3)}, {v(cnt + 3)}
        """)
        wave_scan(A, [tot])
        A(f"""
        v_sub_u32 {v(pre)}, {v(tot)}, {v(pre)}
        v_add_u32 {v(pre + 1)}, {v(pre)}, {v(cnt)}
        v_add_u32 {v(pre + 2)}, {v(pre)}, {v(pre + 2)}
        v_add_u32 {v(pre + 3)}, {v(pre)}, {v(pre + 3)}
        ds_write_b128 {v(addr)}, {v(pre, 4)} offset:{L_PREF}
        """)

    def round_consts():
        A(f"""
        v_and_b32 {v(P3)}, 15, v0
        s_add_u32 {s(S_TMP)}, {s(S_WIDE)}, 3
        v_lshrrev_b32 {v(P4)}, {s(S_TMP)}, {v(P3)}
        v_lshl_add_u32 {v(P3)}, {v(P4)}, 20, {v(P3)}
        v_add_u32 {v(P3)}, {s(S_K0)}, {v(P3)}
        v_lshrrev_b32 v92, 4, v0
        v_mul_u32_u24 v92, {4 * RECSTRIDE}, v92
        v_add_u32 v93, {RECSTRIDE}, v92
        v_add_u32 v94, {2 * RECSTRIDE}, v92
        v_add_u32 v95, {3 * RECSTRIDE}, v92
        """)

    A(f".globl {name}\n.p2align 8\n.type {name},@function\n{name}:")
    stamp("start")
    A(f"""
    s_cmp_ge_u32 s2, 256
    s_cbranch_scc1 K_END
    s_load_dwordx16 {s(KA, 16)}, s[0:1], 0
    s_load_dwordx2 {s(S_WS, 2)}, s[0:1], 80
    s_load_dwordx2 {s(S_OUT, 2)}, s[0:1], 64
    s_load_dwordx2 {s(S_DBG, 2)}, s[0:1], 72
    v_lshrrev_b32 {v(P0)}, 6, v0
    v_and_b32 {v(P1)}, 63, v0
    v_readfirstlane_b32 {s(S_WAVE)}, {v(P0)}
    s_mul_i32 {s(S_TMP)}, s2, {CHUNK * 4}
    s_mul_i32 {s(S_C1)}, s2, {CHUNK * 8}
    v_lshl_add_u32 {v(P2)}, v0, 4, {s(S_TMP)}
    v_lshl_add_u32 {v(P3)}, v0, 5, {s(S_C1)}
    s_movk_i32 {s(S_C0)}, {CHUNK // 4}
    v_cmp_gt_u32 {s(S_PM, 2)}, {s(S_C0)}, v0
    v_mov_b64 {v(QZ, 2)}, 0
    v_mov_b64 {v(QZ + 2, 2)}, 0
    v_and_b32 {v(P0)}, 0xff, v0
    v_lshlrev_b32 {v(P0)}, 2, {v(P0)}
    ds_write_b32 {v(P0)}, {v(QZ)} offset:{L_HIST}
    s_cmp_ge_u32 {s(S_WAVE)}, 10
    s_cbranch_scc1 KA_AUX0
    s_mov_b64 exec, {s(S_PM, 2)}
    s_waitcnt lgkmcnt(0)
    """)
    stamp("karg")
    A(f"""
    global_load_dwordx4 {v(QD, 4)}, {v(P2)}, {s(KA + 4, 2)}
    s_barrier
    global_load_dwordx4 {v(QS, 4)}, {v(P2)}, {s(KA + 2, 2)}
    global_load_dwordx4 {v(QY, 4)}, {v(P3)}, {s(KA + 6, 2)}
    global_load_dwordx4 {v(QY + 4, 4)}, {v(P3)}, {s(KA + 6, 2)} offset:16
    s_mov_b64 exec, -1
    s_branch KA_JOIN0
    KA_AUX0:
    """)
    if opt.get("tcode"):
        A(f"""
        s_cmp_eq_u32 {s(S_WAVE)}, 10
        s_cbranch_scc0 KA_NOCODE
        s_getpc_b64 s[62:63]
        KA_PC:
        s_lshr_b32 s3, s2, 3
        s_mul_i32 s3, s3, ((K_END - KA_PC) / 128 + 32) / 32
        v_min_u32 {v(P4)}, {opt["tcode"] - 1}, {v(P1)}
        v_add_u32 {v(P4)}, s3, {v(P4)}
        v_min_u32 {v(P4)}, (K_END - KA_PC) / 128, {v(P4)}
        v_lshlrev_b32 {v(P4)}, 7, {v(P4)}
        global_load_dword {v(V_JUNK)}, {v(P4)}, s[62:63]
        KA_NOCODE:
        """)
    A(f"""
    s_waitcnt lgkmcnt(0)
    s_cmp_eq_u32 {s(S_WAVE)}, 15
    s_cbranch_scc0 KA_NOTAG
    s_cmp_eq_u32 s2, 0
    s_cbranch_scc0 KA_NOTAG
    s_memrealtime s[62:63]
    s_waitcnt lgkmcnt(0)
    s_lshl_b32 s63, s63, 24
    s_or_b32 s63, s63, 1
    v_mov_b32 {v(QD)}, s63
    v_mov_b32 {v(QD + 1)}, s62
    s_mov_b64 exec, 1
    global_store_dwordx2 {v(QZ)}, {v(QD, 2)}, {s(S_DBG, 2)} {WT}
    s_mov_b64 exec, -1
    KA_NOTAG:
    s_barrier
    """)
    if opt.get("ttlb"):
        sh = opt["ttlb"]
        A(f"""
        s_cmp_eq_u32 {s(S_WAVE)}, 14
        s_cbranch_scc0 KA_JOIN0
        v_min_u32 {v(P4)}, {255 >> sh}, {v(P1)}
        v_mul_u32_u24 {v(P4)}, {RECSTRIDE << sh}, {v(P4)}
        v_add_u32 {v(P4)}, {RECSTRIDE - 128}, {v(P4)}
        global_load_dword {v(V_JUNK)}, {v(P4)}, {s(S_WS, 2)}
        v_lshlrev_b32 {v(P4)}, 19, {v(P1)}
        v_min_u32 {v(P5)}, {20480000 - 4}, {v(P4)}
        global_load_dword {v(V_JUNK)}, {v(P5)}, {s(KA + 8, 2)}
        v_min_u32 {v(P5)}, {5120000 - 4}, {v(P4)}
        global_load_dword {v(V_JUNK)}, {v(P5)}, {s(KA, 2)}
        """)
    A(f"""
    KA_JOIN0:
    s_and_b32 {s(S_BETA)}, s2, 7
    s_lshl_b32 {s(S_BETA)}, {s(S_BETA)}, 5
    s_lshr_b32 s3, s2, 3
    s_add_u32 {s(S_BETA)}, {s(S_BETA)}, s3
    s_sub_u32 {s(S_X)}, {s(KA)}, 512
    s_subb_u32 {s(S_X + 1)}, {s(KA + 1)}, 0
    s_and_b32 {s(S_X + 1)}, {s(S_X + 1)}, 0xffff
    s_or_b32 {s(S_X + 1)}, {s(S_X + 1)}, 0x100000
    s_mov_b32 {s(S_X + 2)}, 64
    s_mov_b32 {s(S_X + 3)}, 0x800000
    s_mov_b32 {s(S_XP)}, {s(KA)}
    s_and_b32 {s(S_XP + 1)}, {s(KA + 1)}, 0xffff
    s_mov_b32 {s(S_XP + 2)}, 5120000
    s_mov_b32 {s(S_XP + 3)}, 0x20000
    s_mov_b32 {s(S_EF)}, {s(KA + 8)}
    s_and_b32 {s(S_EF + 1)}, {s(KA + 9)}, 0xffff
    s_mov_b32 {s(S_EF + 2)}, 20480000
    s_mov_b32 {s(S_EF + 3)}, 0x20000
    s_and_b32 {s(S_OUT + 1)}, {s(S_OUT + 1)}, 0xffff
    s_mov_b32 {s(S_OUT + 2)}, 5120000
    s_mov_b32 {s(S_OUT + 3)}, 0x20000
    s_mov_b32 {s(S_K0)}, 0
    s_mov_b32 {s(S_WIDE)}, 2
    s_lshr_b32 s3, {s(S_BETA)}, 2
    s_lshl_b32 s3, s3, 4
    s_and_b32 {s(S_TMP)}, {s(S_BETA)}, 1
    s_lshl_b32 {s(S_TMP)}, {s(S_TMP)}, 3
    s_add_u32 s3, s3, {s(S_TMP)}
    s_and_b32 {s(S_TMP)}, {s(S_BETA)}, 2
    s_lshl_b32 {s(S_TMP)}, {s(S_TMP)}, 9
    s_add_u32 s3, s3, {s(S_TMP)}
    s_add_u32 s3, s3, {WS_TAB}
    v_lshrrev_b32 {v(P2)}, 4, v0
    v_lshlrev_b32 {v(P2)}, 2, {v(P2)}
    v_and_or_b32 {v(P3)}, v0, 3, {v(P2)}
    v_lshl_add_u32 {v(V_FA)}, {v(P3)}, 11, s3
    v_and_b32 {v(P4)}, 31, {v(P1)}
    v_lshrrev_b32 {v(P5)}, 5, {v(P1)}
    v_lshlrev_b32 {v(V_HALF16)}, 4, {v(P5)}
    v_lshlrev_b32 {v(V_ACCL)}, 3, {v(P4)}
    v_add_u32 {v(V_ACCL)}, {L_ACC}, {v(V_ACCL)}
    v_and_b32 {v(P6)}, 15, v0
    v_add_lshl_u32 {v(V_LAD)}, {v(P6)}, {v(V_HALF16)}, 2
    v_lshrrev_b32 {v(P6)}, 3, {v(P4)}
    v_lshlrev_b32 {v(P6)}, 2, {v(P6)}
    v_and_or_b32 {v(P6)}, {v(P4)}, 3, {v(P6)}
    v_lshlrev_b32 {v(P6)}, 2, {v(P6)}
    v_and_b32 {v(P0)}, 4, {v(P4)}
    v_lshl_add_u32 {v(V_LAE)}, {v(P0)}, 4, {v(P6)}
    v_lshrrev_b32 {v(P6)}, 2, {v(P4)}
    v_and_b32 {v(P0)}, 1, {v(P4)}
    v_lshl_add_u32 {v(P6)}, {v(P0)}, 3, {v(P6)}
    v_add_lshl_u32 {v(V_LAY)}, {v(P6)}, {v(V_HALF16)}, 2
    v_mov_b32 {v(V_ONE)}, 1
    v_mov_b32 {v(V_CTRA)}, {L_CTR}
    s_cmp_ge_u32 {s(S_WAVE)}, 10
    s_cbranch_scc1 KA_AUX1
    s_mov_b64 exec, {s(S_PM, 2)}
    v_lshlrev_b32 {v(P0)}, 2, v0
    v_add_u32 {v(P0)}, 4096, {v(P0)}
    s_movk_i32 {s(S_C1)}, {-PSIZE}
    s_waitcnt vmcnt(3)
    """)
    stamp("dst")
    for k in range(4):
        A(f"""
        v_add_u32 {v(P2)}, {16384 - 9984}, {v(QD + k)}
        v_lshrrev_b32 {v(P2)}, 12, {v(P2)}
        v_and_or_b32 {v(P2)}, {v(P2)}, 4, 2
        v_lshlrev_b32_sdwa {v(QH + k)}, {v(P2)}, {v(QD + k)} {SDWA} src1_sel:BYTE_0
        ds_add_rtn_u32 {v(QR + k)}, {v(QH + k)}, {v(V_ONE)} offset:{L_HIST}
        """)
    A("s_waitcnt lgkmcnt(0)\ns_barrier")
    stamp("b2")
    for k in range(4):
        A(f"""
        v_lshrrev_b32 {v(QD + k)}, 8, {v(QD + k)}
        v_or_b32 {v(P3)}, {k}, {v(P0)}
        v_lshl_or_b32 {v(QD + k)}, {v(QD + k)}, 24, {v(P3)}
        """)
    A("s_barrier")
    stamp("b2b")
    for k in range(4):
        A(f"ds_read_b32 {v(QH + k)}, {v(QH + k)} offset:{L_PREF}")
    for k in range(4):
        A(f"""
        s_waitcnt lgkmcnt({3 - k})
        v_add_lshl_u32 {v(QH + k)}, {v(QH + k)}, {v(QR + k)}, 2
        v_add_u32 {v(QR + k)}, {v(QH + k)}, {v(QH + k)}
        """)
    A("s_waitcnt vmcnt(2)")
    for k in range(4):
        A(f"""
        v_mul_u32_u24 {v(P2)}, {(1 << 24) // PSIZE}, {v(QS + k)}
        v_lshrrev_b32 {v(P2)}, 24, {v(P2)}
        v_mad_i32_i24 {v(QS + k)}, {v(P2)}, {s(S_C1)}, {v(QS + k)}
        v_lshl_or_b32 {v(QS + k)}, {v(P2)}, 18, {v(QS + k)}
        v_lshl_add_u32 {v(QD + k)}, {v(QS + k)}, 12, {v(QD + k)}
        ds_write_b32 {v(QH + k)}, {v(QD + k)} offset:{L_STG}
        """)
    for k in range(4):
        if k % 2 == 0:
            A(f"s_waitcnt vmcnt({1 - k // 2})")
        if k == 2:
            stamp("y")
        A(f"ds_write_b64 {v(QR + k)}, {v(QY + 2 * k, 2)} offset:{L_STG + YOFF}")
    A(f"""
    s_mov_b64 exec, -1
    s_branch KA_JOIN3
    KA_AUX1:
    s_cmp_eq_u32 {s(S_WAVE)}, 15
    s_cbranch_scc1 KA_SCAN
    s_and_b32 s64, {s(S_WAVE)}, 1
    s_lshl_b32 s63, s64, 6
    s_lshl_b32 s65, s64, 1
    s_cmp_lt_u32 {s(S_WAVE)}, 12
    s_cselect_b64 s[66:67], {s(KA + 10, 2)}, {s(KA + 12, 2)}
    s_cselect_b32 s65, s65, s63
    s_cselect_b32 s68, 5, 6
    s_cselect_b32 s69, 31, 3
    s_cselect_b32 s70, 2, 1
    s_cselect_b32 s71, 128, 8
    s_cselect_b32 s72, 0, 128
    s_add_u32 s63, s63, s72
    v_lshrrev_b32 {v(P2)}, s68, {v(P1)}
    v_lshlrev_b32 {v(P2)}, 10, {v(P2)}
    v_and_b32 {v(P3)}, s69, {v(P1)}
    v_lshlrev_b32 {v(P3)}, s70, {v(P3)}
    v_add3_u32 {v(P2)}, {v(P2)}, {v(P3)}, s65
    v_lshrrev_b32 {v(P3)}, 4, {v(P1)}
    v_lshlrev_b32 {v(P3)}, 11, {v(P3)}
    v_and_b32 {v(P4)}, 15, {v(P1)}
    v_lshlrev_b32 {v(P4)}, 2, {v(P4)}
    v_add3_u32 {v(P3)}, {v(P3)}, {v(P4)}, s63
    s_barrier
    s_barrier
    s_cmp_lt_u32 {s(S_WAVE)}, 14
    s_cbranch_scc0 KA_JOIN3
    """)
    for i in range(8):
        A(f"global_load_ushort {v(QY + i)}, {v(P2)}, s[66:67]\nv_add_u32 {v(P2)}, s71, {v(P2)}")
    for i in range(8):
        A(f"global_load_dword {v(QW + i)}, {v(P3)}, {s(KA + 14, 2)} offset:{256 * i}")
    A(f"""
    s_branch KA_JOIN3
    KA_SCAN:
    v_lshlrev_b32 {v(P3)}, 4, {v(P1)}
    s_setprio 3
    s_barrier
    """)
    scan256(QT, QR, P3, P4)
    A(f"""
    s_waitcnt lgkmcnt(0)
    s_barrier
    s_setprio 0
    global_load_dwordx2 {v(QH, 2)}, {v(QZ)}, {s(S_DBG, 2)} {WT}
    """)
    for k in range(4):
        A(f"v_lshl_or_b32 {v(QT + k)}, {v(QT + k)}, 12, {v(QR + k)}")
    NSTART = opt.get("nstart", NW)
    A(f"""
    KA_JOIN3:
    v_lshlrev_b32 {v(P2)}, 4, v0
    s_mul_i32 {s(S_TMP)}, s2, {RECSTRIDE}
    v_add_u32 {v(P3)}, {s(S_TMP)}, {v(P2)}
    v_add_u32 {v(P4)}, 16384, {v(P3)}
    v_cmp_gt_u32 vcc, {(YOFF + CHUNK * 8) // 16 - 1024}, v0
    v_and_b32 {v(P0)}, 0xff, v0
    v_lshlrev_b32 {v(P0)}, 2, {v(P0)}
    v_mov_b32 {v(P5)}, {NSTART}
    v_lshlrev_b32 {v(P6)}, 4, {v(P1)}
    s_waitcnt lgkmcnt(0)
    s_barrier
    """)
    stamp("b3")
    if opt.get("hacksync"):
        A(f"global_load_dword {v(V_DCNT)}, {v(V_FA)}, {s(S_WS, 2)} {WT}")
    A(f"""
    ds_read_b128 {v(QD, 4)}, {v(P2)} offset:{L_STG}
    ds_read_b128 {v(QS, 4)}, {v(P2)} offset:{L_STG + 16384}
    s_waitcnt lgkmcnt(1)
    global_store_dwordx4 {v(P3)}, {v(QD, 4)}, {s(S_WS, 2)} {WT}
    s_and_saveexec_b64 {s(S_PM, 2)}, vcc
    s_cbranch_execz KA_NOST2
    s_waitcnt lgkmcnt(0)
    global_store_dwordx4 {v(P4)}, {v(QS, 4)}, {s(S_WS, 2)} {WT}
    KA_NOST2:
    s_mov_b64 exec, -1
    ds_write_b32 {v(P0)}, {v(QZ)} offset:{L_HIST}
    ds_write2_b32 {v(V_CTRA)}, {v(P5)}, {v(QZ)} offset0:0 offset1:1
    v_add_u32 {v(P3)}, {L_ACC}, {v(P2)}
    v_add_u32 {v(P4)}, {L_ACC + 41 * NS - 16384}, {v(P2)}
    """)
    for i in range(4):
        A(f"ds_write_b128 {v(P3)}, {v(QZ, 4)} offset:{16384 * i}")
    A(f"v_add_u32 {v(P3)}, 65536, {v(P3)}\nds_write_b128 {v(P4)}, {v(QZ, 4)}\nds_write_b128 {v(P3)}, {v(QZ, 4)}")
    assert 5 * 16384 <= 41 * NS <= 6 * 16384
    A(f"""
    s_mov_b32 {s(S_C1)}, {SPIN_MAX}
    s_lshl_b32 s3, s2, 11
    s_add_u32 s3, s3, {WS_TAB}
    v_add_u32 {v(QP)}, s3, {v(P6)}
    s_cmp_lt_u32 {s(S_WAVE)}, 10
    s_cbranch_scc1 KA_JOIN4
    s_cmp_eq_u32 {s(S_WAVE)}, 15
    s_cbranch_scc1 KA_TAG
    s_cmp_eq_u32 {s(S_WAVE)}, 14
    s_cbranch_scc1 KA_JOIN4
    s_cmp_lt_u32 {s(S_WAVE)}, 12
    s_cselect_b32 s62, {fbits(-math.log2(math.e))}, 1.0
    s_mov_b32 s63, 0x05040100
    s_mov_b32 s64, 0x07060302
    s_sub_u32 s65, {s(S_WAVE)}, 10
    s_lshl_b32 s65, s65, 11
    v_add_u32 {v(P3)}, s65, {v(P6)}
    s_waitcnt vmcnt(2)
    """)
    for i in range(8):
        A(f"v_lshlrev_b32 {v(QY + i)}, 16, {v(QY + i)}\nv_mul_f32 {v(QY + i)}, s62, {v(QY + i)}")
    for jj in range(4):
        A(f"v_cvt_pk_bf16_f32 {v(QH + jj)}, {v(QY + 2 * jj)}, {v(QY + 2 * jj + 1)}")
    for jj in range(4):
        A(f"v_perm_b32 {v(QR + jj)}, {v(QW + 2 * jj + 1)}, {v(QW + 2 * jj)}, s63")
        A(f"v_perm_b32 {v(QT + jj)}, {v(QW + 2 * jj + 1)}, {v(QW + 2 * jj)}, s64")
    A(f"""
    ds_write_b128 {v(P2)}, {v(QH, 4)} offset:{L_WF - 10240}
    ds_write_b128 {v(P3)}, {v(QR, 4)} offset:{L_WM}
    ds_write_b128 {v(P3)}, {v(QT, 4)} offset:{L_WM + 1024}
    s_branch KA_JOIN4
    KA_TAG:
    s_waitcnt vmcnt(1)
    KA_TAG1:
    v_cmp_eq_u32 vcc, 0, {v(QH)}
    s_cbranch_vccz KA_GOTTAG
    s_sub_u32 {s(S_C1)}, {s(S_C1)}, 1
    s_cbranch_scc1 K_END
    global_load_dwordx2 {v(QH, 2)}, {v(QZ)}, {s(S_DBG, 2)} {WT}
    s_waitcnt vmcnt(0)
    s_branch KA_TAG1
    KA_GOTTAG:
    v_and_b32 {v(QH)}, 0xff000000, {v(QH)}
    ds_write_b64 {v(V_CTRA)}, {v(QH, 2)} offset:8
    """)
    for k in range(4):
        A(f"v_or_b32 {v(QY + 2 * k)}, {v(QT + k)}, {v(QH)}\nv_mov_b32 {v(QY + 2 * k + 1)}, {v(QH + 1)}")
    A(f"""
    KA_JOIN4:
    s_waitcnt vmcnt(0) lgkmcnt(0)
    s_barrier
    """)
    stamp("b4")
    A(f"""
    s_cmp_eq_u32 {s(S_WAVE)}, 15
    s_cbranch_scc0 KA_PUBD
    global_store_dwordx4 {v(QP)}, {v(QY, 4)}, {s(S_WS, 2)} {WT}
    global_store_dwordx4 {v(QP)}, {v(QY + 4, 4)}, {s(S_WS, 2)} offset:1024 {WT}
    KA_PUBD:
    """)
    w2 = opt.get("w2", 128)
    if w2:
        xtouch(w2, 0)

    def eftouch(n, base, first, tag):
        A(f"""
        s_mul_i32 {s(S_TMP)}, s2, {CHUNK * 32}
        s_add_u32 {s(S_TMP)}, {s(S_TMP)}, {base * 128}
        v_subrev_u32 {v(P5)}, {first}, v0
        v_cmp_gt_u32 vcc, {n}, {v(P5)}
        v_lshl_add_u32 {v(P5)}, {v(P5)}, 7, {s(S_TMP)}
        s_and_saveexec_b64 {s(S_PM, 2)}, vcc
        s_cbranch_execz ET_{tag}
        buffer_load_dword {v(V_JUNK)}, {v(P5)}, {s(S_EF, 4)}, 0 offen
        ET_{tag}:
        s_mov_b64 exec, -1
        """)

    if opt.get("w2e"):
        eftouch(opt["w2e"], 0, 256, "A")
    A(f"ds_read_b64 {v(QH, 2)}, {v(V_CTRA)} offset:8")
    for f in range(4):
        A(f"ds_read_b128 {v(W + 4 * f, 4)}, {v(P6)} offset:{L_WF + 1024 * f}")
    round_consts()
    if opt.get("hacksync") == 2:
        A("s_waitcnt lgkmcnt(0)\ns_branch KA_READY")
    A(f"""
    s_waitcnt vmcnt(0) lgkmcnt(0)
    s_barrier
    """)
    if opt.get("hacksync"):
        A("s_branch KA_READY")
    if opt.get("w2p"):
        n = opt["w2p"]
        A(f"""
        s_mul_i32 {s(S_TMP)}, s2, {CHUNK * 32}
        s_mul_i32 s3, {s(S_WAVE)}, {n * 128}
        s_add_u32 {s(S_TMP)}, {s(S_TMP)}, s3
        s_add_u32 {s(S_TMP)}, {s(S_TMP)}, {opt.get("w2e", 0) * 128}
        v_lshl_add_u32 {v(P5)}, {v(P1)}, 7, {s(S_TMP)}
        global_load_dwordx2 {v(QD, 2)}, {v(V_FA)}, {s(S_WS, 2)} {WT}
        s_barrier
        s_mov_b64 exec, {(1 << n) - 1}
        buffer_load_dword {v(V_JUNK)}, {v(P5)}, {s(S_EF, 4)}, 0 offen
        s_mov_b64 exec, -1
        s_waitcnt vmcnt(1)
        s_branch KA_POLL1
        """)
    A(f"""
    KA_POLL:
    global_load_dwordx2 {v(QD, 2)}, {v(V_FA)}, {s(S_WS, 2)} {WT}
    s_waitcnt vmcnt(0)
    KA_POLL1:
    v_mov_b32 {v(V_DCNT)}, {v(QD)}
    v_and_b32 {v(QD)}, 0xff000000, {v(QD)}
    v_cmp_ne_u64 vcc, {v(QD, 2)}, {v(QH, 2)}
    s_cbranch_vccz KA_READY
    s_mov_b64 exec, vcc
    s_sub_u32 {s(S_C1)}, {s(S_C1)}, 1
    s_cbranch_scc1 K_END
    s_branch KA_POLL
    KA_READY:
    s_mov_b64 exec, -1
    v_and_b32 {v(V_DBASE)}, 0xfff, {v(V_DCNT)}
    v_bfe_u32 {v(V_DCNT)}, {v(V_DCNT)}, 12, 12
    """)
    stamp("desc")
    NC = 4
    REC1, REC2, RK1, RK2, HA1, HA2, PB, SC, CB, YA = 32, 48, 64, 68, 72, 76, 80, 84, 92, 96
    A(f"""
    KB_ROUND0:
    s_cmp_eq_u32 {s(S_WIDE)}, 2
    s_cselect_b32 {s(S_C1)}, 16, 0x7fffffff
    """)
    for c in range(NC):
        A(f"""
        v_sub_u32_dpp {v(RK1 + c)}, {v(V_DCNT)}, {v(P3)} row_newbcast:{c} {DPP}
        v_add_u32_dpp {v(HA1 + c)}, {v(V_DBASE)}, {v(P3)} row_newbcast:{c} {DPP}
        v_cmp_lt_i32 {s(S_M1 + 2 * c, 2)}, 0, {v(RK1 + c)}
        v_lshl_add_u32 {v(HA2 + c)}, {v(HA1 + c)}, 2, {v(CB + c)}
        s_mov_b64 exec, {s(S_M1 + 2 * c, 2)}
        global_load_dword {v(REC1 + 4 * c + 2)}, {v(HA2 + c)}, {s(S_WS, 2)} {WT}
        s_mov_b64 exec, -1
        """)
    for c in range(NC):
        A(f"v_cmp_lt_i32 {s(S_M2 + 2 * c, 2)}, {s(S_C1)}, {v(RK1 + c)}")
    for c in range(NC):
        A(f"v_lshl_add_u32 {v(HA1 + c)}, {v(HA1 + c)}, 3, {v(CB + c)}")
    A(f"""
    s_lshl_b32 {s(S_TMP)}, 8, {s(S_WIDE)}
    s_add_u32 {s(S_TMP)}, {s(S_TMP)}, {s(S_K0)}
    v_cmp_lt_u32 {s(S_CMP, 2)}, {s(S_TMP)}, {v(V_DCNT)}
    s_add_u32 {s(S_WY)}, {s(S_WS)}, {YOFF}
    s_addc_u32 {s(S_WY + 1)}, {s(S_WS + 1)}, 0
    s_or_b64 {s(S_ANY2, 2)}, {s(S_M2, 2)}, {s(S_M2 + 2, 2)}
    s_or_b64 {s(S_ANY2, 2)}, {s(S_ANY2, 2)}, {s(S_M2 + 4, 2)}
    s_or_b64 {s(S_ANY2, 2)}, {s(S_ANY2, 2)}, {s(S_M2 + 6, 2)}
    s_cbranch_scc0 KB_NOSEC_A
    """)
    for c in range(NC):
        A(f"""
        s_mov_b64 exec, {s(S_M2 + 2 * c, 2)}
        s_cbranch_execz KB_SA{c}
        global_load_dword {v(REC2 + 4 * c + 2)}, {v(HA2 + c)}, {s(S_WS, 2)} offset:64 {WT}
        global_load_dwordx2 {v(REC2 + 4 * c, 2)}, {v(HA1 + c)}, {s(S_WY, 2)} offset:128 {WT}
        KB_SA{c}:
        """)

    def tile_addr(tile, sa=True):
        A(f"""
        s_lshl_b32 {s(S_TMP)}, {s(tile)}, 7
        v_add_u32 {v(V_EID)}, {s(S_TMP)}, {v(V_LAE)}
        v_add_u32 {v(V_KN)}, {s(S_TMP)}, {v(V_LAD)}
        v_add_lshl_u32 {v(V_MT)}, {s(S_TMP)}, {v(V_LAY)}, 1
        """)
        if sa:
            A(f"v_lshl_add_u32 {v(V_SA)}, {v(V_HALF16)}, 2, {s(S_TMP)}")

    ROT = 3 if opt.get("rot", 1) else 0
    A(f"""
    s_mov_b64 exec, -1
    KB_NOSEC_A:
    s_cmp_eq_u64 {s(S_CMP, 2)}, 0
    s_cbranch_scc1 KB_NOMORE
    ds_write_b32 {v(V_CTRA)}, {v(V_ONE)} offset:4
    KB_NOMORE:
    v_lshrrev_b32 {v(PB)}, 4, v0
    v_mul_u32_u24 {v(PB)}, {4 * CHUNK}, {v(PB)}
    v_add_u32 {v(PB + 1)}, {CHUNK}, {v(PB)}
    v_add_u32 {v(PB + 2)}, {2 * CHUNK}, {v(PB)}
    v_add_u32 {v(PB + 3)}, {3 * CHUNK}, {v(PB)}
    s_getreg_b32 {s(S_ROT)}, hwreg(HW_REG_XCC_ID, 0, 3)
    s_lshl_b32 {s(S_ROT)}, {s(S_ROT)}, 1
    s_lshr_b32 {s(S_ROT)}, {ROTTAB:#x}, {s(S_ROT)}
    s_and_b32 {s(S_ROT)}, {s(S_ROT)}, 3
    s_lshl_b32 {s(S_ROT)}, {s(S_ROT)}, 8
    v_and_b32 {v(P1)}, 63, v0
    v_lshl_add_u32 {v(P2)}, {v(P1)}, 4, {s(S_ROT)}
    v_and_b32 {v(P2)}, 0x3ff, {v(P2)}
    v_mov_b32 {v(P5)}, 4
    v_mov_b32 {v(P6)}, 0x3f000fff
    v_mov_b32 {v(P3)}, {opt.get("abl_x", 0x1ffe00)}
    """)
    tile_addr(S_WAVE)
    A(f"""
    s_movk_i32 {s(S_C0)}, {NS}
    v_mov_b32 {v(V_KK)}, {40 * NS}
    s_mov_b32 {s(S_TMP2)}, {PSIZE * 512}
    """)

    def yloads(addr):
        for c in range(NC):
            A(f"s_or_b64 exec, {s(S_M1 + 2 * c, 2)}, 1\nglobal_load_dwordx2 {v(REC1 + 4 * c, 2)}, {v(addr + c)}, {s(S_WY, 2)} {WT}")
        A("s_mov_b64 exec, -1")

    ylate = opt.get("ylate", 0)
    if ylate == 0:
        yloads(HA1)
        A("s_waitcnt vmcnt(4)")
    elif ylate == 1:
        A("s_waitcnt vmcnt(0)")
        yloads(HA1)
    else:
        for c in range(NC):
            A(f"v_mov_b32 {v(YA + c)}, {v(HA1 + c)}")
        A("s_waitcnt vmcnt(0)")
    stamp("rec")

    def second(fns, tag):
        A(f"s_cmp_eq_u64 {s(S_ANY2, 2)}, 0\ns_cbranch_scc1 KB_N{tag}")
        for c in range(NC):
            A(f"s_mov_b64 exec, {s(S_M2 + 2 * c, 2)}\ns_cbranch_execz KB_{tag}{c}")
            for fn in fns:
                fn(REC2, RK2, HA2, c)
            A(f"KB_{tag}{c}:")
        A(f"KB_N{tag}:\ns_mov_b64 exec, -1")

    def keyof(rec, rk, ha, c):
        A(f"v_lshlrev_b32_sdwa {v(ha + c)}, 2, {v(rec + 4 * c + 2)} {SDWA} src1_sel:BYTE_3")

    def count(rec, rk, ha, c):
        A(f"ds_add_rtn_u32 {v(rk + c)}, {v(ha + c)}, {v(P5)} offset:{L_HIST}")

    def decode(rec, rk, ha, c):
        idx = rec + 4 * c + 2
        A(f"""
        v_and_b32 {v(idx + 1)}, {v(P6)}, {v(idx)}
        v_lshrrev_b32 {v(P0)}, 30, {v(idx)}
        v_lshrrev_b32 {v(idx)}, 3, {v(idx)}
        v_and_b32 {v(idx)}, {v(P3)}, {v(idx)}
        """)
        if not opt.get("abl_ef"):
            A(f"v_add_u32 {v(idx + 1)}, {v(idx + 1)}, {v(PB + c)}")
        if opt.get("abl_x"):
            A(f"v_add_u32 {v(idx)}, 512, {v(idx)}")
        else:
            A(f"v_mad_u32_u24 {v(idx)}, {v(P0)}, {s(S_TMP2)}, {v(idx)}")

    def prefread(rec, rk, ha, c):
        A(f"ds_read_b32 {v(ha + c)}, {v(ha + c)} offset:{L_PREF}")

    def place(rec, rk, ha, c):
        A(f"""
        v_add_u32 {v(ha + c)}, {v(ha + c)}, {v(rk + c)}
        v_add_u32 {v(rk + c)}, {v(ha + c)}, {v(ha + c)}
        v_and_b32 {v(P0)}, 64, {v(ha + c)}
        ds_write_b64 {v(rk + c)}, {v(rec + 4 * c, 2)} offset:{L_Y}
        v_mad_i32_i24 {v(rec + 4 * c + 2)}, {v(P0)}, -8, {v(rec + 4 * c + 2)}
        ds_write2st64_b32 {v(ha + c)}, {v(rec + 4 * c + 2)}, {v(rec + 4 * c + 3)} offset0:{L_SRC // 256} offset1:{L_EID // 256}
        """)

    for c in range(NC):
        keyof(REC1, RK1, HA1, c)
    for c in range(NC):
        A(f"s_mov_b64 exec, {s(S_M1 + 2 * c, 2)}")
        count(REC1, RK1, HA1, c)
    second([keyof, count, decode], "H")
    for c in range(NC):
        decode(REC1, RK1, HA1, c)
    A("s_waitcnt lgkmcnt(0)\ns_barrier")
    stamp("b5")
    if ylate == 2:
        yloads(YA)
    A(f"""
    ; wave 0 scans the counters (starting quarter depends on the die, for cache behaviour only)
    s_cmp_eq_u32 {s(S_WAVE)}, 0
    s_cbranch_scc0 KB_NOSCAN
    s_setprio 3
    """)
    scan256(SC, SC + 4, P2, P4)
    A(f"""
    s_mov_b32 exec_lo, 0
    s_brev_b32 exec_hi, 1
    ds_write_b32 {v(V_CTRA)}, {v(P4)} offset:16
    s_mov_b64 exec, -1
    s_waitcnt lgkmcnt(0)
    s_barrier
    s_setprio 0
    v_readlane_b32 {s(S_N)}, {v(P4)}, 63
    v_mov_b64 {v(SC + 4, 2)}, 0
    v_mov_b32 {v(SC + 6)}, 512
    v_mov_b32 {v(SC + 7)}, {(40 << 24) | 0xfffff}
    s_min_u32 {s(S_N)}, {s(S_N)}, {4 * CAP}
    v_lshl_add_u32 {v(P3)}, {v(P1)}, 2, {s(S_N)}
    v_lshlrev_b32 {v(P4)}, 1, {v(P3)}
    ds_write_b64 {v(P4)}, {v(SC + 4, 2)} offset:{L_Y}
    ds_write2st64_b32 {v(P3)}, {v(SC + 6)}, {v(SC + 7)} offset0:{L_SRC // 256} offset1:{L_EID // 256}
    s_waitcnt vmcnt(0)
    s_branch KB_PLACE
    KB_NOSCAN:
    """)
    if opt.get("efpre"):
        for c in range(NC):
            A(f"""
            v_xor_b32 {v(P0)}, {s(S_ROT)}, {v(HA1 + c)}
            v_cmp_gt_u32 vcc, {4 * opt["efpre"]}, {v(P0)}
            v_mul_u32_u24 {v(P0)}, 32, {v(REC1 + 4 * c + 3)}
            s_and_b64 vcc, vcc, {s(S_M1 + 2 * c, 2)}
            s_or_b64 exec, vcc, 1
            buffer_load_dword {v(V_JUNK)}, {v(P0)}, {s(S_EF, 4)}, 0 offen
            s_mov_b64 exec, -1
            """)
    A("s_barrier\nKB_PLACE:")
    stamp("b6")
    A(f"ds_read2_b32 {v(SC, 2)}, {v(V_CTRA)} offset0:1 offset1:4")
    for c in range(NC):
        A(f"s_mov_b64 exec, {s(S_M1 + 2 * c, 2)}")
        prefread(REC1, RK1, HA1, c)
    second([prefread], "R")
    A(f"""
    s_waitcnt lgkmcnt(0)
    v_readfirstlane_b32 {s(S_N)}, {v(SC + 1)}
    v_readfirstlane_b32 {s(S_MORE)}, {v(SC)}
    s_nop 1
    s_cmp_le_u32 {s(S_N)}, {4 * CAP}
    s_cbranch_scc0 KB_NARROW
    s_add_u32 {s(S_NT)}, {s(S_N)}, 127
    s_lshr_b32 {s(S_NT)}, {s(S_NT)}, 7
    s_waitcnt vmcnt({4 if opt.get("efpre") else 0})
    """)
    for c in range(NC):
        A(f"s_mov_b64 exec, {s(S_M1 + 2 * c, 2)}")
        place(REC1, RK1, HA1, c)
    second([place], "P")

    A("s_waitcnt lgkmcnt(0)\ns_barrier")
    stamp("sorted")

    def tile_reads():
        A(f"""
        ds_read_b32 {v(V_EID)}, {v(V_EID)} offset:{L_EID}
        ds_read_b32 {v(V_KN)}, {v(V_KN)} offset:{L_EID}
        ds_read_b64 {v(YR, 2)}, {v(V_MT)} offset:{L_Y}
        """)

    def so_read(g):
        A(f"ds_read_b128 {v(SO + 4 * (g % 2), 4)}, {v(V_SA)} offset:{L_SRC + 16 * (g % 4)}")

    def xload(r):
        A(f"buffer_load_dwordx4 {v(X + 4 * (r % 4), 4)}, {v(SO + 4 * ((r // 4) % 2) + r % 4)}, {s(S_X, 4)}, 0 offen")

    def ef_addr():
        A(f"v_mad_u32_u24 {v(V_EID)}, {v(V_EID)}, 32, {v(V_HALF16)}")

    def ef_load(skip):
        m = (0xffffffff << skip) & 0xffffffff
        if skip:
            A(f"s_mov_b32 exec_lo, {m:#x}\ns_mov_b32 exec_hi, {m:#x}")
        A(f"buffer_load_dwordx4 {v(EF, 4)}, {v(V_EID)}, {s(S_EF, 4)}, 0 offen")
        if skip:
            A("s_mov_b64 exec, -1")

    def sm_issue(base, n):
        A(f"; rows {base}..{base + n - 1} of the next feature tile come through the scalar cache")
        for j in range(n):
            A(f"v_readlane_b32 {s(SMB + 8 * j)}, {v(V_EID)}, {base + j}")
        if n < 5:
            A(f"s_nop {4 - n}")
        for j in range(n):
            A(f"s_buffer_load_dwordx8 {s(SMB + 8 * j, 8)}, {s(S_EF, 4)}, {s(SMB + 8 * j)} {opt.get('smflag', '')}")

    def sm_move(base, n):
        A(f"s_mov_b64 exec, {1 << base:#x}")
        for half in range(2):
            for j in range(n):
                if j or half:
                    A(f"s_lshl_b64 exec, exec, {1 if j else 33 - n}")
                for q in range(2):
                    A(f"v_mov_b64 {v(EF + 2 * q, 2)}, {s(SMB + 8 * j + 4 * half + 2 * q, 2)}")
        A("s_mov_b64 exec, -1")

    def grab(reg):
        A(f"s_mov_b64 exec, 1\nds_add_rtn_u32 {v(reg)}, {v(V_CTRA)}, {v(V_ONE)}\ns_mov_b64 exec, -1")

    key_ops = [f"v_mul_u32_u24_sdwa {v(V_KN)}, {s(S_C0)}, {v(V_KN)} {SDWA} src1_sel:BYTE_3",
               f"v_xor_b32_dpp {v(V_MT)}, {v(V_KN)}, {v(V_KN)} row_shl:1 {DPP} bound_ctrl:0",
               f"v_cmp_ne_u32 {s(S_CMP, 2)}, 0, {v(V_MT)}"]

    sm0 = opt.get("sm0", 0)
    A(f"s_cmp_ge_u32 {s(S_WAVE)}, {s(S_NT)}\ns_cbranch_scc1 KM_DONE")
    A(f"ds_read_b32 {v(V_EID)}, {v(V_EID)} offset:{L_EID}")
    so_read(0)
    A(f"ds_read_b32 {v(V_KN)}, {v(V_KN)} offset:{L_EID}\nds_read_b64 {v(YR, 2)}, {v(V_MT)} offset:{L_Y}")
    so_read(1)
    A("s_waitcnt lgkmcnt(4)")
    ef_addr()
    ef_load(sm0)
    A("s_waitcnt lgkmcnt(3)")
    for r in range(4):
        xload(r)
    A("s_waitcnt lgkmcnt(0)")
    if sm0:
        sm_issue(0, sm0)
    A(key_ops[0] + "\ns_nop 1\n" + key_ops[1] + "\n" + key_ops[2])
    if sm0:
        A("s_waitcnt lgkmcnt(0)")
        sm_move(0, sm0)
    A("s_waitcnt vmcnt(4)")
    stamp("loop")

    def flush_ops(r):
        ops = [[f"v_add_u32_dpp {v(V_FA)}, {v(V_KK)}, {v(V_ACCL)} row_newbcast:{r} {DPP}"]]
        for j in range(8):
            st = STG + 2 * (j % 4)
            ops.append([f"v_cvt_f64_f32 {v(st, 2)}, {v(ACC + j)}", f"ds_add_f64 {v(V_FA)}, {v(st, 2)} offset:{RS * j}"])
        return ops

    def emit(groups):
        for g in groups:
            for op in ([g] if isinstance(g, str) else g):
                A(op)

    def acc_ops(r, first):
        ops = []
        for j in range(4):
            rr = D + 16 * (j // 2) + (r & ~1)
            o = r & 1
            if first:
                ops.append(f"v_pk_mul_f32 {v(ACC + 2 * j, 2)}, {v(rr, 2)}, {v(TP + 2 * j, 2)} op_sel:[{o},0] op_sel_hi:[{o},1]")
            else:
                ops.append(f"v_pk_fma_f32 {v(ACC + 2 * j, 2)}, {v(rr, 2)}, {v(TP + 2 * j, 2)}, {v(ACC + 2 * j, 2)} op_sel:[{o},0,0] op_sel_hi:[{o},1,1]")
        return ops

    def exp_ops(q):
        return [f"v_exp_f32 {v(E + j)}, {v(D + 16 * (j // 2) + q + j % 2)}" for j in range(4)]

    add_ops = [f"v_pk_add_f32 {v(E + 2 * j, 2)}, {v(E + 2 * j, 2)}, 1.0 op_sel_hi:[1,0]" for j in range(2)]
    rcp_ops = [f"v_rcp_f32 {v(E + j)}, {v(E + j)}" for j in range(4)]

    def mul_ops(q):
        return [f"v_pk_mul_f32 {v(D + 16 * j + q, 2)}, {v(D + 16 * j + q, 2)}, {v(E + 2 * j, 2)}" for j in range(2)]

    def pair_ops(q):
        return [add_ops[1],
                f"v_pk_fma_f32 {v(D + 16 + q, 2)}, {v(D + 16 + q, 2)}, {v(E, 2)}, {v(D + 16 + q, 2)}",
                f"v_pk_mul_f32 {v(D + q, 2)}, {v(D + q, 2)}, {v(E + 2, 2)}",
                f"v_pk_fma_f32 {v(E, 2)}, {v(E, 2)}, {v(E + 2, 2)}, {v(E + 2, 2)}"]

    def pair_mul(q):
        return [f"v_pk_mul_f32 {v(D + 16 * j + q, 2)}, {v(D + 16 * j + q, 2)}, {v(E, 2)}" for j in range(2)]

    pair = opt.get("pair", 0)
    prio = opt["prio"]
    EFV = opt["efv"]
    assert EFV <= 11
    bodies = opt["bodies"]
    S_LIMS = (S_N, S_C1)
    for (lim, _), reg in zip(bodies[:-1], S_LIMS):
        A(f"s_min_u32 {s(reg)}, {s(S_NT)}, {lim}")
    lims = list(S_LIMS[:len(bodies) - 1]) + [S_NT]
    tags = [str(k) for k in range(len(bodies))] + ["L"]
    mergew = opt.get("mergew", 0)

    def step(r, tag, sm):
        last = tag == "L"
        base = {st: sum(sm[q] for q in sm if q < st) for st in sm}
        tr = T + (2 if r >= 8 else 0)
        m4 = [f"v_mfma_f32_4x4x4_16b_bf16 {v(TP + 4 * h, 4)}, {v(tr, 2)}, {v(X + 4 * (r % 4) + 2 * h, 2)}, 0 cbsz:3 abid:{r % 8}" for h in range(2)]
        A(f"; step {r}")
        pr = opt.get("lprio", prio) if last else prio
        if r in pr:
            A(f"s_setprio {pr[r]}")
        lw = (r % 4 == 0 and r > 0 and not (last and r == 12)) or r == 2
        vm = min(3, 15 - r) if last else 3
        A(f"s_waitcnt vmcnt({vm})" + (" lgkmcnt(0)" if lw and mergew else ""))
        if r == 15 and last:
            emit([m4[0], m4[1], "s_nop 1"])
            side = []
        elif r == 15:
            emit([m4[0], key_ops[0], m4[1]])
            xload(r + 4)
            emit([key_ops[1], key_ops[2]])
            side = []
        else:
            trans = rcp_ops if r % 2 == 0 else exp_ops(r + 1)
            side = mul_ops(r) if r % 2 == 0 else add_ops
            if pair and r % 2 == 0:
                trans = rcp_ops[:2] + ([exp_ops(r + 2)[2]] if r < 14 else [])
                side = pair_mul(r)
                if last and r == 14:
                    trans.append("s_nop 0")
            elif pair:
                ex3 = exp_ops(r + 1)
                trans = [ex3[3], ex3[0], ex3[1]]
                side = pair_ops(r + 1)
            emit([m4[0], trans[0], m4[1]] + trans[1:])
            if lw and not mergew:
                A("s_waitcnt lgkmcnt(0)")
            if not (last and r >= 12):
                xload(r + 4)
        if r % 4 == 0 and not (last and r >= 8):
            so_read(r // 4 + 2)
        if r == 1:
            grab(V_MT)
        if r == 2:
            A(f"v_readfirstlane_b32 {s(S_NEXT)}, {v(V_MT)}")
        if not last:
            if r == 3:
                tile_addr(S_NEXT, False)
                tile_reads()
            if r == 5:
                A(f"v_lshl_add_u32 {v(V_SA)}, {v(V_HALF16)}, 2, {s(S_TMP)}")
            if r == 4:
                ef_addr()
                A("s_nop 0") if 4 in sm else None
            if r - 4 in sm:
                sm_move(base[r - 4], sm[r - 4])
            if r in sm:
                sm_issue(base[r], sm[r])
            if r == EFV:
                ef_load(sum(sm.values()))
            if r == 14 and 12 not in sm:
                A("s_waitcnt lgkmcnt(0)")
        emit(side)
        if r > 0:
            A(f"s_bitcmp1_b32 {s(S_MASK)}, {r - 1}\ns_cbranch_scc1 KM_F{r}")
        emit(acc_ops(r, r == 0))
        if r > 0:
            A(f"KM_R{r}{'_' + tag if r > 2 else ''}:")

    def dispatch(fmt, fall_first):
        if fall_first:
            A(f"s_cmp_ge_u32 {s(S_NEXT)}, {s(lims[0])}\ns_cbranch_scc1 KM_OTHER")
            return
        for tag, lim in zip(tags, lims):
            A(f"s_cmp_lt_u32 {s(S_NEXT)}, {s(lim)}\ns_cbranch_scc1 {fmt.format(tag)}")
        A(f"s_branch {fmt.format('L')}")

    A(".p2align 6")
    for _ in range(opt.get("shift", 0)):
        A("s_nop 0")
    loop_start = len(A.lines)
    A("KM_LOOP:")
    if -1 in prio:
        A(f"s_setprio {prio[-1]}")
    if pair == 2:
        A(f"v_dot2_f32_bf16 {v(V_FA)}, {v(EF)}, {v(EF)}, 0")
        for j in range(1, 4):
            A(f"v_dot2_f32_bf16 {v(V_FA)}, {v(EF + j)}, {v(EF + j)}, {v(V_FA)}")
        A(f"s_nop 2\nv_cmp_nge_f32 vcc, 4.0, {v(V_FA)}\ns_cbranch_vccnz KM_DONE")
    fo = flush_ops(15)
    tm = [f"v_mfma_f32_4x4x4_16b_bf16 {v(D + 16 + 4 * i, 4)}, {v(YR, 2)}, {v(CG + 2 * i, 2)}, 0" for i in range(4)]
    tc = [f"v_cvt_pk_bf16_f32 {v(T + 2 * j + hh)}, {v(D + 16 + 8 * hh + j)}, {v(D + 20 + 8 * hh + j)}" for hh in range(2) for j in range(2)]
    ex = exp_ops(0)
    emit([tm[0], fo[0], tm[1], fo[1], tm[2], fo[2], tm[3], fo[3]])
    A(f"v_mfma_f32_32x32x16_bf16 {v(D, 16)}, {v(EF, 4)}, {v(W, 4)}, 0")
    emit([tc[0], tc[1], fo[4], fo[5], tc[2], tc[3]])
    A(f"v_mfma_f32_32x32x16_bf16 {v(D + 16, 16)}, {v(EF, 4)}, {v(W + 4, 4)}, 0")
    emit([fo[6], fo[7], fo[8], f"v_mov_b32 {v(V_KK)}, {v(V_KN)}", f"s_or_b32 {s(S_MASK)}, {s(S_CMP)}, {s(S_CMP + 1)}",
          ex[0], ex[1], "s_nop 1", ex[2], ex[3], "s_nop 0"] + (pair_ops(0) if pair else add_ops))
    for r in range(3):
        step(r, "H", {})
    for k, tag in enumerate(tags):
        sm = bodies[k][1] if tag != "L" else {}
        if k and opt.get("balign"):
            A(f".p2align {opt['balign']}")
        A(f"KM_B{tag}:")
        if tag != "L":
            A(f"s_cmp_ge_u32 {s(S_NEXT)}, {s(lims[k])}\ns_cbranch_scc1 KM_B{tags[k + 1]}")
        else:
            A("; final tile of this wave: nothing to prefetch")
        for r in range(3, 16):
            step(r, tag, sm)
        if tag != "L":
            if 12 in sm:
                A("s_waitcnt lgkmcnt(0)")
                sm_move(sum(sm.values()) - sm[12], sm[12])
            A("s_branch KM_LOOP")
    drop = opt.get("drop", [])
    if drop:
        A.lines[loop_start:] = [ln for ln in A.lines[loop_start:] if not any(d in ln for d in drop)]
    emit(flush_ops(15))
    A("s_branch KM_DONE")
    A("; node change before step r: flush the sums and restart them")
    for r in range(1, 16):
        if opt.get("falign"):
            A(f".p2align {opt['falign']}")
        A(f"KM_F{r}:")
        emit(flush_ops(r - 1))
        emit(acc_ops(r, True))
        if r > 2:
            dispatch(f"KM_R{r}_{{}}", False)
        else:
            A(f"s_branch KM_R{r}")
    A(f"""
    KB_NARROW:
    s_mov_b32 {s(S_WIDE)}, 0
    s_branch KB_ROUND
    KB_NEXT:
    s_lshl_b32 {s(S_TMP)}, 8, {s(S_WIDE)}
    s_add_u32 {s(S_K0)}, {s(S_K0)}, {s(S_TMP)}
    KB_ROUND:
    s_waitcnt vmcnt(0) lgkmcnt(0)
    s_barrier
    v_and_b32 {v(P0)}, 0xff, v0
    v_lshlrev_b32 {v(P0)}, 2, {v(P0)}
    v_mov_b32 {v(P1)}, 0
    v_mov_b32 {v(P2)}, {NSTART}
    ds_write_b32 {v(P0)}, {v(P1)} offset:{L_HIST}
    ds_write2_b32 {v(V_CTRA)}, {v(P2)}, {v(P1)} offset0:0 offset1:1
    """)
    round_consts()
    A("""
    s_waitcnt lgkmcnt(0)
    s_barrier
    s_branch KB_ROUND0
    """)
    WM, A64, AG, AF, OD, OP = 32, 80, 16, 8, 80, 96
    A("KM_DONE:")
    stamp("done")
    A(f"""
    s_setprio 0
    s_cmp_eq_u32 {s(S_MORE)}, 0
    s_cbranch_scc0 KB_NEXT
    s_cmp_ge_u32 {s(S_WAVE)}, 10
    s_cbranch_scc0 KE_MIX
    s_waitcnt lgkmcnt(0)
    s_barrier
    s_branch KE_FIN
    KE_MIX:
    v_and_b32 v1, 63, v0
    v_lshlrev_b32 v2, 4, v1
    """)
    for f in range(8):
        A(f"ds_read_b128 {v(WM + 4 * f, 4)}, v2 offset:{L_WM + 1024 * f}")
    A(f"""
    v_bfe_u32 v2, v1, 2, 2
    v_mul_u32_u24 v2, {NS}, v2
    v_and_b32 v3, 3, v1
    v_mul_u32_u24 v3, {RS}, v3
    v_lshrrev_b32 v4, 4, v1
    v_lshlrev_b32 v5, 6, v4
    v_add3_u32 v2, v2, v3, v5
    s_mul_i32 s70, {s(S_WAVE)}, {4 * NS}
    s_add_u32 s70, s70, {L_ACC}
    v_add_u32 v2, s70, v2
    v_and_b32 v3, 15, v1
    v_lshlrev_b32 v3, 4, v3
    v_lshl_add_u32 v3, v4, 17, v3
    s_lshl_b32 s70, {s(S_WAVE)}, 19
    s_lshl_b32 s71, {s(S_BETA)}, 9
    s_add_u32 s70, s70, s71
    v_add_u32 v3, s70, v3
    s_lshr_b32 s72, {s(S_BETA)}, 4
    s_lshl_b32 s72, s72, 9
    s_sub_u32 s72, s72, s71
    s_and_b32 s73, {s(S_BETA)}, 15
    s_cselect_b32 s72, 0x40000000, s72
    s_cmp_eq_u32 {s(S_WAVE)}, 9
    s_cselect_b32 s72, s72, 0
    v_cmp_le_u32 vcc, 48, v1
    v_add_u32 v4, s72, v3
    s_nop 0
    v_cndmask_b32 v3, v3, v4, vcc
    s_mov_b32 {s(S_SC)}, {fbits(-math.log(2.0) * opt.get('oscale', 1.0))}
    s_mov_b32 {s(S_SC + 1)}, {fbits(-math.log(2.0) * opt.get('oscale', 1.0))}
    s_waitcnt lgkmcnt(0)
    """)
    A("s_barrier")
    for cpar in range(2):
        for hh in range(4):
            A(f"ds_read_b128 {v(A64 + 16 * cpar + 4 * hh, 4)}, v2 offset:{4 * RS * cpar + 16 * hh}")
    for j in range(8):
        A(f"s_waitcnt lgkmcnt({7 - j})")
        A(f"v_cvt_f32_f64 {v(AG + 2 * j)}, {v(A64 + 4 * j, 2)}")
        A(f"v_cvt_f32_f64 {v(AG + 2 * j + 1)}, {v(A64 + 4 * j + 2, 2)}")
    for j in range(8):
        A(f"v_pk_mul_f32 {v(AG + 2 * j, 2)}, {v(AG + 2 * j, 2)}, {s(S_SC, 2)}")
    for j in range(8):
        A(f"v_cvt_pk_bf16_f32 {v(AF + j)}, {v(AG + 2 * j)}, {v(AG + 2 * j + 1)}")
    A("s_nop 1")
    for dt in range(4):
        A(f"v_mfma_f32_16x16x32_bf16 {v(OD + 4 * dt, 4)}, {v(AF, 4)}, {v(WM + 4 * dt, 4)}, 0")
    for dt in range(4):
        A(f"v_mfma_f32_16x16x32_bf16 {v(OD + 4 * dt, 4)}, {v(AF + 4, 4)}, {v(WM + 16 + 4 * dt, 4)}, {v(OD + 4 * dt, 4)}")
    A("s_nop 7")
    for j in range(8):
        A(f"v_cvt_pk_bf16_f32 {v(OP + j)}, {v(OD + 2 * j)}, {v(OD + 2 * j + 1)}")
    ost = opt.get("out_st", "")
    A(f"buffer_store_dwordx4 {v(OP, 4)}, v3, {s(S_OUT, 4)}, 0 offen {ost}")
    A(f"buffer_store_dwordx4 {v(OP + 4, 4)}, v3, {s(S_OUT, 4)}, 0 offen offset:256 {ost}")
    A("KE_FIN:")
    if opt.get("diag"):
        A("""
        s_waitcnt lgkmcnt(0)
        KE_SPIN:
        s_memrealtime s[74:75]
        s_waitcnt lgkmcnt(0)
        s_sub_u32 s74, s74, s76
        s_cmp_lt_u32 s74, 10000
        s_cbranch_scc1 KE_SPIN
        """)
    if opt.get("trace"):
        A(f"s_lshl_b32 s78, s2, 12\ns_add_u32 s78, s78, {130 << 20}\nv_lshl_add_u32 v1, v0, 2, s78\nglobal_store_dword v1, {v(V_TRC)}, {s(S_WS, 2)}")
    if opt.get("prof"):
        A("s_waitcnt vmcnt(0)")
        stamp("fin")
        A("s_waitcnt lgkmcnt(0)")
        A(f"s_lshl_b32 s3, s2, 4\ns_add_u32 s3, s3, {s(S_WAVE)}\ns_lshl_b32 s3, s3, 6\ns_add_u32 s3, s3, {(128 << 20) + (1 << 20)}")
        A("v_mov_b32 v1, s3")
        for i in range(len(pts)):
            A(f"v_mov_b32 v2, {s(SB + 2 * i)}\nglobal_store_dword v1, v2, {s(S_WS, 2)} offset:{4 * i}")
    A("K_END:\ns_endpgm")


OVERVIEW = """;
;     packed records (phase|node|src|edge, Y) to d_ws, then publishes a tagged table row of (start, count).
"""

BEST = dict(w2=80, efpre=10, ylate=1, sm0=7, tcode=5, out_st="sc1", efv=11,
            bodies=[(72, {4: 7, 8: 7, 12: 6}), (0, {4: 5})], prio={-1: 2, 3: 3, 7: 0, 11: 1},
            lprio={3: 2, 7: 1, 11: 0})


def generate(opt):
    if opt.get("best"):
        opt = {**BEST, **opt}
    A = Asm()
    out = HEADER
    if opt.get("aslist"):
        out += f"; @launch kernel={NAME}_kernel grid=(256,1,1) block=(1024,1,1) lds={LDS_BYTES}\n"
    else:
        out += f"; @launch grid=(256,1,1) block=(1024,1,1) lds={LDS_BYTES}\n"
    out += OVERVIEW
    out += '.amdgcn_target "amdgcn-amd-amdhsa--gfx950"\n.text\n'
    gen(A, opt)
    out += A.text()
    out += f""".section .rodata,"a"
.p2align 6
.amdhsa_kernel {NAME}_kernel
  .amdhsa_next_free_vgpr {NVGPR}
  .amdhsa_next_free_sgpr 102
  .amdhsa_accum_offset {NVGPR}
  .amdhsa_group_segment_fixed_size 0
  .amdhsa_kernarg_size 88
  .amdhsa_user_sgpr_count 2
  .amdhsa_user_sgpr_kernarg_segment_ptr 1
  .amdhsa_system_sgpr_workgroup_id_x 1
  .amdhsa_float_denorm_mode_32 3
.end_amdhsa_kernel
"""
    return out


if __name__ == "__main__":
    opt = eval("dict(" + (sys.argv[2] if len(sys.argv) > 2 else "") + ")")
    path = sys.argv[1] if len(sys.argv) > 1 else f"cdna_kernels/{NAME}.s"
    open(path, "w").write(generate(opt))
```

```python
import sys, struct, math

NAME = "standalone__tensor_product_equiv_tfn__graph"

HEADER = """; Kernarg layout for this problem (88 bytes, ptrs only, base s[0:1]):
"""

CHUNK = 2500
PSIZE = 2500
RECSTRIDE = 30336
YOFF = 10112
WS_TAB = 256 * RECSTRIDE
SPIN_MAX = 1 << 18

RS = 272
NS = 8 * RS
L_HIST = 0
L_PREF = 1024
L_CTR = 2048
CAP = 3904
L_WM = 2304
L_SRC = L_WM + 8192
L_EID = L_SRC + (CAP + 64) * 4
L_Y = L_EID + (CAP + 64) * 4
L_ACC = L_Y + (CAP + 64) * 8
LDS_BYTES = L_ACC + 41 * NS
L_STG = L_SRC
L_WF = L_STG + 32768

DPP = "row_mask:0xf bank_mask:0xf"
SDWA = "dst_sel:DWORD dst_unused:UNUSED_PAD src0_sel:DWORD"

NW = 16
V_DBASE, V_DCNT, V_HALF16, V_ACCL, V_LAD, V_LAE, V_LAY = 1, 2, 3, 4, 5, 6, 7
V_ONE, V_CTRA, V_KK, V_KN, V_EID, V_SA, V_FA, V_MT = 8, 9, 10, 11, 12, 13, 14, 15
W = 16
CG = 24
D = 32
X = 64
TP = 80
ACC = 88
STG = 96
SO = 104
E = 112
T = 116
EF = 120
YR = 124
V_TRC, V_JUNK = 126, 127
NVGPR = 128

S_X, S_EF, S_OUT, S_WS = 4, 8, 12, 16
S_BETA, S_WAVE, S_K0, S_WIDE, S_N, S_NT, S_NEXT, S_MASK = 18, 19, 20, 21, 22, 23, 24, 25
S_CMP = 26
S_MORE, S_TMP, S_C0, S_C1 = 28, 29, 30, 31
S_M1, S_M2 = 32, 40
S_ANY2 = 48
S_SC = 50
S_XP = 52
S_TMP2 = 0
S_DBG = 58
S_PM = 60
KA = 32
S_ROT = 3
S_WY = 56
S_GRP = 1
S_CC = 88
S_HM = 90
S_ME = 88
SMB = 32

DEFAULT_PTS = ["start", "desc", "rec", "sorted", "loop", "done", "bar", "fin", "b3", "b4"]


def fbits(x):
    return "0x%08x" % struct.unpack("<I", struct.pack("<f", x))[0]


class Asm:
    def __init__(self):
        self.lines = []

    def __call__(self, s):
        for ln in s.strip("\n").split("\n"):
            ln = ln.strip()
            if not ln:
                continue
            if (ln.endswith(":") and not ln.startswith(";")) or ln.startswith("."):
                self.lines.append(ln)
            else:
                self.lines.append("    " + ln)

    def text(self):
        return "\n".join(self.lines) + "\n"


def v(a, n=1):
    return f"v{a}" if n == 1 else f"v[{a}:{a+n-1}]"


def s(a, n=1):
    return f"s{a}" if n == 1 else f"s[{a}:{a+n-1}]"


def wave_scan(A, regs):
    steps = ["row_shr:1 " + DPP + " bound_ctrl:0", "row_shr:2 " + DPP + " bound_ctrl:0",
             "row_shr:4 " + DPP + " bound_ctrl:0", "row_shr:8 " + DPP + " bound_ctrl:0",
             "row_bcast:15 row_mask:0xa bank_mask:0xf", "row_bcast:31 row_mask:0xc bank_mask:0xf"]
    for st in steps:
        A("s_nop 1" if len(regs) == 1 else "s_nop 0")
        for r in regs:
            A(f"v_add_u32_dpp {v(r)}, {v(r)}, {v(r)} {st}")


def gen(A, opt):
    PSIZE = opt.get("psize", 2500)
    ROTTAB = sum(q << (2 * i) for i, q in enumerate(opt.get("rottab", [0, 1, 2, 3, 0, 1, 2, 3])))
    name = NAME + "_kernel"
    WT = "sc1"
    P0, P1, P2, P3, P4, P5, P6 = 112, 113, 114, 115, 116, 117, 118
    QD, QS, QY, QH, QR, QT, QP, QZ, QW = 32, 36, 40, 48, 52, 56, 60, 64, 68
    pts = opt.get("pts", DEFAULT_PTS)
    SB = 102 - 2 * len(pts)

    def stamp(nm):
        if opt.get("prof") and nm in pts:
            A(f"s_memrealtime {s(SB + 2 * pts.index(nm), 2)}")
        if opt.get("diag") == nm or (opt.get("diag") and nm == "start"):
            A("s_memrealtime s[76:77]")

    def xtouch(n, base):
        A(f"""
        s_lshr_b32 {s(S_TMP)}, s2, {0 if opt.get("xmall") else 3}
        s_mul_i32 {s(S_TMP)}, {s(S_TMP)}, {n * 128}
        s_add_u32 {s(S_TMP)}, {s(S_TMP)}, {base * 128}
        s_getreg_b32 s3, hwreg(HW_REG_XCC_ID, 0, 3)
        s_lshl_b32 s3, s3, 1
        s_lshr_b32 s3, {ROTTAB:#x}, s3
        s_and_b32 s3, s3, 3
        s_mul_i32 s3, s3, {PSIZE * 512}
        s_add_u32 {s(S_TMP)}, {s(S_TMP)}, s3
        v_cmp_gt_u32 vcc, {n}, v0
        v_lshl_add_u32 {v(P5)}, v0, 7, {s(S_TMP)}
        s_and_saveexec_b64 {s(S_PM, 2)}, vcc
        s_cbranch_execz XT_{base}
        buffer_load_dword {v(V_JUNK)}, {v(P5)}, {s(S_XP, 4)}, 0 offen
        XT_{base}:
        s_mov_b64 exec, -1
        """)

    def scan256(cnt, pre, addr, tot):
        A(f"""
        ds_read_b128 {v(cnt, 4)}, {v(addr)} offset:{L_HIST}
        s_waitcnt lgkmcnt(0)
        v_add_u32 {v(pre + 2)}, {v(cnt)}, {v(cnt + 1)}
        v_add_u32 {v(pre + 3)}, {v(pre + 2)}, {v(cnt + 2)}
        v_add_u32 {v(pre)}, {v(pre + 3)}, {v(cnt + 3)}
        v_add_u32 {v(tot)}, {v(pre + 3)}, {v(cnt + 3)}
        """)
        wave_scan(A, [tot])
        A(f"""
        v_sub_u32 {v(pre)}, {v(tot)}, {v(pre)}
        v_add_u32 {v(pre + 1)}, {v(pre)}, {v(cnt)}
        v_add_u32 {v(pre + 2)}, {v(pre)}, {v(pre + 2)}
        v_add_u32 {v(pre + 3)}, {v(pre)}, {v(pre + 3)}
        ds_write_b128 {v(addr)}, {v(pre, 4)} offset:{L_PREF}
        """)

    def round_consts():
        A(f"""
        v_and_b32 {v(P3)}, 15, v0
        s_add_u32 {s(S_TMP)}, {s(S_WIDE)}, 3
        v_lshrrev_b32 {v(P4)}, {s(S_TMP)}, {v(P3)}
        v_lshl_add_u32 {v(P3)}, {v(P4)}, 20, {v(P3)}
        v_add_u32 {v(P3)}, {s(S_K0)}, {v(P3)}
        v_lshrrev_b32 v92, 4, v0
        v_mul_u32_u24 v92, {4 * RECSTRIDE}, v92
        v_add_u32 v93, {RECSTRIDE}, v92
        v_add_u32 v94, {2 * RECSTRIDE}, v92
        v_add_u32 v95, {3 * RECSTRIDE}, v92
        """)

    A(f".globl {name}\n.p2align 8\n.type {name},@function\n{name}:")
    stamp("start")
    A(f"""
    s_cmp_ge_u32 s2, 256
    s_cbranch_scc1 K_END
    s_load_dwordx16 {s(KA, 16)}, s[0:1], 0
    s_load_dwordx2 {s(S_WS, 2)}, s[0:1], 80
    s_load_dwordx2 {s(S_OUT, 2)}, s[0:1], 64
    s_load_dwordx2 {s(S_DBG, 2)}, s[0:1], 72
    v_lshrrev_b32 {v(P0)}, 6, v0
    v_and_b32 {v(P1)}, 63, v0
    v_readfirstlane_b32 {s(S_WAVE)}, {v(P0)}
    s_mul_i32 {s(S_TMP)}, s2, {CHUNK * 4}
    s_mul_i32 {s(S_C1)}, s2, {CHUNK * 8}
    v_lshl_add_u32 {v(P2)}, v0, 4, {s(S_TMP)}
    v_lshl_add_u32 {v(P3)}, v0, 5, {s(S_C1)}
    s_movk_i32 {s(S_C0)}, {CHUNK // 4}
    v_cmp_gt_u32 {s(S_PM, 2)}, {s(S_C0)}, v0
    v_mov_b64 {v(QZ, 2)}, 0
    v_mov_b64 {v(QZ + 2, 2)}, 0
    v_and_b32 {v(P0)}, 0xff, v0
    v_lshlrev_b32 {v(P0)}, 2, {v(P0)}
    ds_write_b32 {v(P0)}, {v(QZ)} offset:{L_HIST}
    s_cmp_ge_u32 {s(S_WAVE)}, 10
    s_cbranch_scc1 KA_AUX0
    s_mov_b64 exec, {s(S_PM, 2)}
    s_waitcnt lgkmcnt(0)
    """)
    stamp("karg")
    A(f"""
    global_load_dwordx4 {v(QD, 4)}, {v(P2)}, {s(KA + 4, 2)}
    s_barrier
    global_load_dwordx4 {v(QS, 4)}, {v(P2)}, {s(KA + 2, 2)}
    global_load_dwordx4 {v(QY, 4)}, {v(P3)}, {s(KA + 6, 2)}
    global_load_dwordx4 {v(QY + 4, 4)}, {v(P3)}, {s(KA + 6, 2)} offset:16
    s_mov_b64 exec, -1
    s_branch KA_JOIN0
    KA_AUX0:
    """)
    if opt.get("tcode"):
        A(f"""
        s_cmp_eq_u32 {s(S_WAVE)}, 10
        s_cbranch_scc0 KA_NOCODE
        s_getpc_b64 s[62:63]
        KA_PC:
        s_lshr_b32 s3, s2, 3
        s_mul_i32 s3, s3, ((K_END - KA_PC) / 128 + 32) / 32
        v_min_u32 {v(P4)}, {opt["tcode"] - 1}, {v(P1)}
        v_add_u32 {v(P4)}, s3, {v(P4)}
        v_min_u32 {v(P4)}, (K_END - KA_PC) / 128, {v(P4)}
        v_lshlrev_b32 {v(P4)}, 7, {v(P4)}
        global_load_dword {v(V_JUNK)}, {v(P4)}, s[62:63]
        KA_NOCODE:
        """)
    A(f"""
    s_waitcnt lgkmcnt(0)
    s_cmp_eq_u32 {s(S_WAVE)}, 15
    s_cbranch_scc0 KA_NOTAG
    s_cmp_eq_u32 s2, 0
    s_cbranch_scc0 KA_NOTAG
    s_memrealtime s[62:63]
    s_waitcnt lgkmcnt(0)
    s_lshl_b32 s63, s63, 24
    s_or_b32 s63, s63, 1
    v_mov_b32 {v(QD)}, s63
    v_mov_b32 {v(QD + 1)}, s62
    s_mov_b64 exec, 1
    global_store_dwordx2 {v(QZ)}, {v(QD, 2)}, {s(S_DBG, 2)} {WT}
    s_mov_b64 exec, -1
    KA_NOTAG:
    s_barrier
    """)
    if opt.get("ttlb"):
        sh = opt["ttlb"]
        A(f"""
        s_cmp_eq_u32 {s(S_WAVE)}, 14
        s_cbranch_scc0 KA_JOIN0
        v_min_u32 {v(P4)}, {255 >> sh}, {v(P1)}
        v_mul_u32_u24 {v(P4)}, {RECSTRIDE << sh}, {v(P4)}
        v_add_u32 {v(P4)}, {RECSTRIDE - 128}, {v(P4)}
        global_load_dword {v(V_JUNK)}, {v(P4)}, {s(S_WS, 2)}
        v_lshlrev_b32 {v(P4)}, 19, {v(P1)}
        v_min_u32 {v(P5)}, {20480000 - 4}, {v(P4)}
        global_load_dword {v(V_JUNK)}, {v(P5)}, {s(KA + 8, 2)}
        v_min_u32 {v(P5)}, {5120000 - 4}, {v(P4)}
        global_load_dword {v(V_JUNK)}, {v(P5)}, {s(KA, 2)}
        """)
    A(f"""
    KA_JOIN0:
    s_and_b32 {s(S_BETA)}, s2, 7
    s_lshl_b32 {s(S_BETA)}, {s(S_BETA)}, 5
    s_lshr_b32 s3, s2, 3
    s_add_u32 {s(S_BETA)}, {s(S_BETA)}, s3
    s_sub_u32 {s(S_X)}, {s(KA)}, 512
    s_subb_u32 {s(S_X + 1)}, {s(KA + 1)}, 0
    s_and_b32 {s(S_X + 1)}, {s(S_X + 1)}, 0xffff
    s_or_b32 {s(S_X + 1)}, {s(S_X + 1)}, 0x100000
    s_mov_b32 {s(S_X + 2)}, 64
    s_mov_b32 {s(S_X + 3)}, 0x800000
    s_mov_b32 {s(S_XP)}, {s(KA)}
    s_and_b32 {s(S_XP + 1)}, {s(KA + 1)}, 0xffff
    s_mov_b32 {s(S_XP + 2)}, 5120000
    s_mov_b32 {s(S_XP + 3)}, 0x20000
    s_mov_b32 {s(S_EF)}, {s(KA + 8)}
    s_and_b32 {s(S_EF + 1)}, {s(KA + 9)}, 0xffff
    s_mov_b32 {s(S_EF + 2)}, 20480000
    s_mov_b32 {s(S_EF + 3)}, 0x20000
    s_and_b32 {s(S_OUT + 1)}, {s(S_OUT + 1)}, 0xffff
    s_mov_b32 {s(S_OUT + 2)}, 5120000
    s_mov_b32 {s(S_OUT + 3)}, 0x20000
    s_mov_b32 {s(S_K0)}, 0
    s_mov_b32 {s(S_WIDE)}, 2
    s_lshr_b32 s3, {s(S_BETA)}, 2
    s_lshl_b32 s3, s3, 4
    s_and_b32 {s(S_TMP)}, {s(S_BETA)}, 1
    s_lshl_b32 {s(S_TMP)}, {s(S_TMP)}, 3
    s_add_u32 s3, s3, {s(S_TMP)}
    s_and_b32 {s(S_TMP)}, {s(S_BETA)}, 2
    s_lshl_b32 {s(S_TMP)}, {s(S_TMP)}, 9
    s_add_u32 s3, s3, {s(S_TMP)}
    s_add_u32 s3, s3, {WS_TAB}
    v_lshrrev_b32 {v(P2)}, 4, v0
    v_lshlrev_b32 {v(P2)}, 2, {v(P2)}
    v_and_or_b32 {v(P3)}, v0, 3, {v(P2)}
    v_lshl_add_u32 {v(V_FA)}, {v(P3)}, 11, s3
    v_and_b32 {v(P4)}, 31, {v(P1)}
    v_lshrrev_b32 {v(P5)}, 5, {v(P1)}
    v_lshlrev_b32 {v(V_HALF16)}, 4, {v(P5)}
    v_lshlrev_b32 {v(V_ACCL)}, 3, {v(P4)}
    v_add_u32 {v(V_ACCL)}, {L_ACC}, {v(V_ACCL)}
    v_and_b32 {v(P6)}, 15, v0
    v_add_lshl_u32 {v(V_LAD)}, {v(P6)}, {v(V_HALF16)}, 2
    v_lshrrev_b32 {v(P6)}, 3, {v(P4)}
    v_lshlrev_b32 {v(P6)}, 2, {v(P6)}
    v_and_or_b32 {v(P6)}, {v(P4)}, 3, {v(P6)}
    v_lshlrev_b32 {v(P6)}, 2, {v(P6)}
    v_and_b32 {v(P0)}, 4, {v(P4)}
    v_lshl_add_u32 {v(V_LAE)}, {v(P0)}, 4, {v(P6)}
    v_lshrrev_b32 {v(P6)}, 2, {v(P4)}
    v_and_b32 {v(P0)}, 1, {v(P4)}
    v_lshl_add_u32 {v(P6)}, {v(P0)}, 3, {v(P6)}
    v_add_lshl_u32 {v(V_LAY)}, {v(P6)}, {v(V_HALF16)}, 2
    v_mov_b32 {v(V_ONE)}, 1
    v_mov_b32 {v(V_CTRA)}, {L_CTR}
    s_cmp_ge_u32 {s(S_WAVE)}, 10
    s_cbranch_scc1 KA_AUX1
    s_mov_b64 exec, {s(S_PM, 2)}
    v_lshlrev_b32 {v(P0)}, 2, v0
    v_add_u32 {v(P0)}, 4096, {v(P0)}
    s_movk_i32 {s(S_C1)}, {-PSIZE}
    s_waitcnt vmcnt(3)
    """)
    stamp("dst")
    for k in range(4):
        A(f"""
        v_add_u32 {v(P2)}, {16384 - 9984}, {v(QD + k)}
        v_lshrrev_b32 {v(P2)}, 12, {v(P2)}
        v_and_or_b32 {v(P2)}, {v(P2)}, 4, 2
        v_lshlrev_b32_sdwa {v(QH + k)}, {v(P2)}, {v(QD + k)} {SDWA} src1_sel:BYTE_0
        ds_add_rtn_u32 {v(QR + k)}, {v(QH + k)}, {v(V_ONE)} offset:{L_HIST}
        """)
    A("s_waitcnt lgkmcnt(0)\ns_barrier")
    stamp("b2")
    for k in range(4):
        A(f"""
        v_lshrrev_b32 {v(QD + k)}, 8, {v(QD + k)}
        v_or_b32 {v(P3)}, {k}, {v(P0)}
        v_lshl_or_b32 {v(QD + k)}, {v(QD + k)}, 24, {v(P3)}
        """)
    A("s_barrier")
    stamp("b2b")
    for k in range(4):
        A(f"ds_read_b32 {v(QH + k)}, {v(QH + k)} offset:{L_PREF}")
    for k in range(4):
        A(f"""
        s_waitcnt lgkmcnt({3 - k})
        v_add_lshl_u32 {v(QH + k)}, {v(QH + k)}, {v(QR + k)}, 2
        v_add_u32 {v(QR + k)}, {v(QH + k)}, {v(QH + k)}
        """)
    A("s_waitcnt vmcnt(2)")
    for k in range(4):
        A(f"""
        v_mul_u32_u24 {v(P2)}, {(1 << 24) // PSIZE}, {v(QS + k)}
        v_lshrrev_b32 {v(P2)}, 24, {v(P2)}
        v_mad_i32_i24 {v(QS + k)}, {v(P2)}, {s(S_C1)}, {v(QS + k)}
        v_lshl_or_b32 {v(QS + k)}, {v(P2)}, 18, {v(QS + k)}
        v_lshl_add_u32 {v(QD + k)}, {v(QS + k)}, 12, {v(QD + k)}
        ds_write_b32 {v(QH + k)}, {v(QD + k)} offset:{L_STG}
        """)
    for k in range(4):
        if k % 2 == 0:
            A(f"s_waitcnt vmcnt({1 - k // 2})")
        if k == 2:
            stamp("y")
        A(f"ds_write_b64 {v(QR + k)}, {v(QY + 2 * k, 2)} offset:{L_STG + YOFF}")
    A(f"""
    s_mov_b64 exec, -1
    s_branch KA_JOIN3
    KA_AUX1:
    s_cmp_eq_u32 {s(S_WAVE)}, 15
    s_cbranch_scc1 KA_SCAN
    s_and_b32 s64, {s(S_WAVE)}, 1
    s_lshl_b32 s63, s64, 6
    s_lshl_b32 s65, s64, 1
    s_cmp_lt_u32 {s(S_WAVE)}, 12
    s_cselect_b64 s[66:67], {s(KA + 10, 2)}, {s(KA + 12, 2)}
    s_cselect_b32 s65, s65, s63
    s_cselect_b32 s68, 5, 6
    s_cselect_b32 s69, 31, 3
    s_cselect_b32 s70, 2, 1
    s_cselect_b32 s71, 128, 8
    s_cselect_b32 s72, 0, 128
    s_add_u32 s63, s63, s72
    v_lshrrev_b32 {v(P2)}, s68, {v(P1)}
    v_lshlrev_b32 {v(P2)}, 10, {v(P2)}
    v_and_b32 {v(P3)}, s69, {v(P1)}
    v_lshlrev_b32 {v(P3)}, s70, {v(P3)}
    v_add3_u32 {v(P2)}, {v(P2)}, {v(P3)}, s65
    v_lshrrev_b32 {v(P3)}, 4, {v(P1)}
    v_lshlrev_b32 {v(P3)}, 11, {v(P3)}
    v_and_b32 {v(P4)}, 15, {v(P1)}
    v_lshlrev_b32 {v(P4)}, 2, {v(P4)}
    v_add3_u32 {v(P3)}, {v(P3)}, {v(P4)}, s63
    s_barrier
    s_barrier
    s_cmp_lt_u32 {s(S_WAVE)}, 14
    s_cbranch_scc0 KA_JOIN3
    """)
    for i in range(8):
        A(f"global_load_ushort {v(QY + i)}, {v(P2)}, s[66:67]\nv_add_u32 {v(P2)}, s71, {v(P2)}")
    for i in range(8):
        A(f"global_load_dword {v(QW + i)}, {v(P3)}, {s(KA + 14, 2)} offset:{256 * i}")
    A(f"""
    s_branch KA_JOIN3
    KA_SCAN:
    v_lshlrev_b32 {v(P3)}, 4, {v(P1)}
    s_setprio 3
    s_barrier
    """)
    scan256(QT, QR, P3, P4)
    A(f"""
    s_waitcnt lgkmcnt(0)
    s_barrier
    s_setprio 0
    global_load_dwordx2 {v(QH, 2)}, {v(QZ)}, {s(S_DBG, 2)} {WT}
    """)
    for k in range(4):
        A(f"v_lshl_or_b32 {v(QT + k)}, {v(QT + k)}, 12, {v(QR + k)}")
    NSTART = NW * (64 if opt.get("app") else 1)
    A(f"""
    KA_JOIN3:
    v_lshlrev_b32 {v(P2)}, 4, v0
    s_mul_i32 {s(S_TMP)}, s2, {RECSTRIDE}
    v_add_u32 {v(P3)}, {s(S_TMP)}, {v(P2)}
    v_add_u32 {v(P4)}, 16384, {v(P3)}
    v_cmp_gt_u32 vcc, {(YOFF + CHUNK * 8) // 16 - 1024}, v0
    v_and_b32 {v(P0)}, 0xff, v0
    v_lshlrev_b32 {v(P0)}, 2, {v(P0)}
    v_mov_b32 {v(P5)}, {NSTART}
    v_lshlrev_b32 {v(P6)}, 4, {v(P1)}
    s_waitcnt lgkmcnt(0)
    s_barrier
    """)
    stamp("b3")
    if opt.get("hacksync"):
        A(f"global_load_dword {v(V_DCNT)}, {v(V_FA)}, {s(S_WS, 2)} {WT}")
    A(f"""
    ds_read_b128 {v(QD, 4)}, {v(P2)} offset:{L_STG}
    ds_read_b128 {v(QS, 4)}, {v(P2)} offset:{L_STG + 16384}
    s_waitcnt lgkmcnt(1)
    global_store_dwordx4 {v(P3)}, {v(QD, 4)}, {s(S_WS, 2)} {WT}
    s_and_saveexec_b64 {s(S_PM, 2)}, vcc
    s_cbranch_execz KA_NOST2
    s_waitcnt lgkmcnt(0)
    global_store_dwordx4 {v(P4)}, {v(QS, 4)}, {s(S_WS, 2)} {WT}
    KA_NOST2:
    s_mov_b64 exec, -1
    ds_write_b32 {v(P0)}, {v(QZ)} offset:{L_HIST}
    ds_write2_b32 {v(V_CTRA)}, {v(P5)}, {v(QZ)} offset0:0 offset1:1
    v_add_u32 {v(P3)}, {L_ACC}, {v(P2)}
    v_add_u32 {v(P4)}, {L_ACC + 41 * NS - 16384}, {v(P2)}
    """)
    for i in range(4):
        A(f"ds_write_b128 {v(P3)}, {v(QZ, 4)} offset:{16384 * i}")
    A(f"v_add_u32 {v(P3)}, 65536, {v(P3)}\nds_write_b128 {v(P4)}, {v(QZ, 4)}\nds_write_b128 {v(P3)}, {v(QZ, 4)}")
    assert 5 * 16384 <= 41 * NS <= 6 * 16384
    A(f"""
    s_mov_b32 {s(S_C1)}, {SPIN_MAX}
    s_lshl_b32 s3, s2, 11
    s_add_u32 s3, s3, {WS_TAB}
    v_add_u32 {v(QP)}, s3, {v(P6)}
    s_cmp_lt_u32 {s(S_WAVE)}, 10
    s_cbranch_scc1 KA_JOIN4
    s_cmp_eq_u32 {s(S_WAVE)}, 15
    s_cbranch_scc1 KA_TAG
    s_cmp_eq_u32 {s(S_WAVE)}, 14
    s_cbranch_scc1 KA_JOIN4
    s_cmp_lt_u32 {s(S_WAVE)}, 12
    s_cselect_b32 s62, {fbits(-math.log2(math.e))}, 1.0
    s_mov_b32 s63, 0x05040100
    s_mov_b32 s64, 0x07060302
    s_sub_u32 s65, {s(S_WAVE)}, 10
    s_lshl_b32 s65, s65, 11
    v_add_u32 {v(P3)}, s65, {v(P6)}
    s_waitcnt vmcnt(2)
    """)
    for i in range(8):
        A(f"v_lshlrev_b32 {v(QY + i)}, 16, {v(QY + i)}\nv_mul_f32 {v(QY + i)}, s62, {v(QY + i)}")
    for jj in range(4):
        A(f"v_cvt_pk_bf16_f32 {v(QH + jj)}, {v(QY + 2 * jj)}, {v(QY + 2 * jj + 1)}")
    for jj in range(4):
        A(f"v_perm_b32 {v(QR + jj)}, {v(QW + 2 * jj + 1)}, {v(QW + 2 * jj)}, s63")
        A(f"v_perm_b32 {v(QT + jj)}, {v(QW + 2 * jj + 1)}, {v(QW + 2 * jj)}, s64")
    A(f"""
    ds_write_b128 {v(P2)}, {v(QH, 4)} offset:{L_WF - 10240}
    ds_write_b128 {v(P3)}, {v(QR, 4)} offset:{L_WM}
    ds_write_b128 {v(P3)}, {v(QT, 4)} offset:{L_WM + 1024}
    s_branch KA_JOIN4
    KA_TAG:
    s_waitcnt vmcnt(1)
    KA_TAG1:
    v_cmp_eq_u32 vcc, 0, {v(QH)}
    s_cbranch_vccz KA_GOTTAG
    s_sub_u32 {s(S_C1)}, {s(S_C1)}, 1
    s_cbranch_scc1 K_END
    global_load_dwordx2 {v(QH, 2)}, {v(QZ)}, {s(S_DBG, 2)} {WT}
    s_waitcnt vmcnt(0)
    s_branch KA_TAG1
    KA_GOTTAG:
    v_and_b32 {v(QH)}, 0xff000000, {v(QH)}
    ds_write_b64 {v(V_CTRA)}, {v(QH, 2)} offset:8
    """)
    for k in range(4):
        A(f"v_or_b32 {v(QY + 2 * k)}, {v(QT + k)}, {v(QH)}\nv_mov_b32 {v(QY + 2 * k + 1)}, {v(QH + 1)}")
    A(f"""
    KA_JOIN4:
    s_waitcnt vmcnt(0) lgkmcnt(0)
    s_barrier
    """)
    stamp("b4")
    A(f"""
    s_cmp_eq_u32 {s(S_WAVE)}, 15
    s_cbranch_scc0 KA_PUBD
    global_store_dwordx4 {v(QP)}, {v(QY, 4)}, {s(S_WS, 2)} {WT}
    global_store_dwordx4 {v(QP)}, {v(QY + 4, 4)}, {s(S_WS, 2)} offset:1024 {WT}
    KA_PUBD:
    """)
    w2 = opt.get("w2", 128)
    if w2:
        xtouch(w2, 0)

    def eftouch(n, base, first, tag):
        A(f"""
        s_mul_i32 {s(S_TMP)}, s2, {CHUNK * 32}
        s_add_u32 {s(S_TMP)}, {s(S_TMP)}, {base * 128}
        v_subrev_u32 {v(P5)}, {first}, v0
        v_cmp_gt_u32 vcc, {n}, {v(P5)}
        v_lshl_add_u32 {v(P5)}, {v(P5)}, 7, {s(S_TMP)}
        s_and_saveexec_b64 {s(S_PM, 2)}, vcc
        s_cbranch_execz ET_{tag}
        buffer_load_dword {v(V_JUNK)}, {v(P5)}, {s(S_EF, 4)}, 0 offen
        ET_{tag}:
        s_mov_b64 exec, -1
        """)

    if opt.get("w2e"):
        eftouch(opt["w2e"], 0, 256, "A")
    A(f"ds_read_b64 {v(QH, 2)}, {v(V_CTRA)} offset:8")
    for f in range(4):
        A(f"ds_read_b128 {v(W + 4 * f, 4)}, {v(P6)} offset:{L_WF + 1024 * f}")
    round_consts()
    if opt.get("hacksync") == 2:
        A("s_waitcnt lgkmcnt(0)\ns_branch KA_READY")
    A(f"""
    s_waitcnt vmcnt(0) lgkmcnt(0)
    s_barrier
    """)
    if opt.get("hacksync"):
        A("s_branch KA_READY")
    if opt.get("w2p"):
        n = opt["w2p"]
        A(f"""
        s_mul_i32 {s(S_TMP)}, s2, {CHUNK * 32}
        s_mul_i32 s3, {s(S_WAVE)}, {n * 128}
        s_add_u32 {s(S_TMP)}, {s(S_TMP)}, s3
        s_add_u32 {s(S_TMP)}, {s(S_TMP)}, {opt.get("w2e", 0) * 128}
        v_lshl_add_u32 {v(P5)}, {v(P1)}, 7, {s(S_TMP)}
        global_load_dwordx2 {v(QD, 2)}, {v(V_FA)}, {s(S_WS, 2)} {WT}
        s_barrier
        s_mov_b64 exec, {(1 << n) - 1}
        buffer_load_dword {v(V_JUNK)}, {v(P5)}, {s(S_EF, 4)}, 0 offen
        s_mov_b64 exec, -1
        s_waitcnt vmcnt(1)
        s_branch KA_POLL1
        """)
    A(f"""
    KA_POLL:
    global_load_dwordx2 {v(QD, 2)}, {v(V_FA)}, {s(S_WS, 2)} {WT}
    s_waitcnt vmcnt(0)
    KA_POLL1:
    v_mov_b32 {v(V_DCNT)}, {v(QD)}
    v_and_b32 {v(QD)}, 0xff000000, {v(QD)}
    v_cmp_ne_u64 vcc, {v(QD, 2)}, {v(QH, 2)}
    s_cbranch_vccz KA_READY
    s_mov_b64 exec, vcc
    s_sub_u32 {s(S_C1)}, {s(S_C1)}, 1
    s_cbranch_scc1 K_END
    s_branch KA_POLL
    KA_READY:
    s_mov_b64 exec, -1
    v_and_b32 {v(V_DBASE)}, 0xfff, {v(V_DCNT)}
    v_bfe_u32 {v(V_DCNT)}, {v(V_DCNT)}, 12, 12
    """)
    stamp("desc")
    NC = 4
    REC1, REC2, RK1, RK2, HA1, HA2, PB, SC, CB, YA = 32, 48, 64, 68, 72, 76, 80, 84, 92, 96
    A(f"""
    KB_ROUND0:
    s_cmp_eq_u32 {s(S_WIDE)}, 2
    s_cselect_b32 {s(S_C1)}, 16, 0x7fffffff
    """)
    for c in range(NC):
        A(f"""
        v_sub_u32_dpp {v(RK1 + c)}, {v(V_DCNT)}, {v(P3)} row_newbcast:{c} {DPP}
        v_add_u32_dpp {v(HA1 + c)}, {v(V_DBASE)}, {v(P3)} row_newbcast:{c} {DPP}
        v_cmp_lt_i32 {s(S_M1 + 2 * c, 2)}, 0, {v(RK1 + c)}
        v_lshl_add_u32 {v(HA2 + c)}, {v(HA1 + c)}, 2, {v(CB + c)}
        s_mov_b64 exec, {s(S_M1 + 2 * c, 2)}
        global_load_dword {v(REC1 + 4 * c + 2)}, {v(HA2 + c)}, {s(S_WS, 2)} {WT}
        s_mov_b64 exec, -1
        """)
    for c in range(NC):
        A(f"v_cmp_lt_i32 {s(S_M2 + 2 * c, 2)}, {s(S_C1)}, {v(RK1 + c)}")
    for c in range(NC):
        A(f"v_lshl_add_u32 {v(HA1 + c)}, {v(HA1 + c)}, 3, {v(CB + c)}")
    A(f"""
    s_lshl_b32 {s(S_TMP)}, 8, {s(S_WIDE)}
    s_add_u32 {s(S_TMP)}, {s(S_TMP)}, {s(S_K0)}
    v_cmp_lt_u32 {s(S_CMP, 2)}, {s(S_TMP)}, {v(V_DCNT)}
    s_add_u32 {s(S_WY)}, {s(S_WS)}, {YOFF}
    s_addc_u32 {s(S_WY + 1)}, {s(S_WS + 1)}, 0
    s_or_b64 {s(S_ANY2, 2)}, {s(S_M2, 2)}, {s(S_M2 + 2, 2)}
    s_or_b64 {s(S_ANY2, 2)}, {s(S_ANY2, 2)}, {s(S_M2 + 4, 2)}
    s_or_b64 {s(S_ANY2, 2)}, {s(S_ANY2, 2)}, {s(S_M2 + 6, 2)}
    s_cbranch_scc0 KB_NOSEC_A
    """)
    for c in range(NC):
        A(f"""
        s_mov_b64 exec, {s(S_M2 + 2 * c, 2)}
        s_cbranch_execz KB_SA{c}
        global_load_dword {v(REC2 + 4 * c + 2)}, {v(HA2 + c)}, {s(S_WS, 2)} offset:64 {WT}
        global_load_dwordx2 {v(REC2 + 4 * c, 2)}, {v(HA1 + c)}, {s(S_WY, 2)} offset:128 {WT}
        KB_SA{c}:
        """)

    US = 6 if opt.get("app") else 0

    def tile_addr(tile, sa=True):
        A(f"""
        s_lshl_b32 {s(S_TMP)}, {s(tile)}, {7 if sa else 7 - US}
        v_add_u32 {v(V_EID)}, {s(S_TMP)}, {v(V_LAE)}
        v_add_u32 {v(V_KN)}, {s(S_TMP)}, {v(V_LAD)}
        v_add_lshl_u32 {v(V_MT)}, {s(S_TMP)}, {v(V_LAY)}, 1
        """)
        if sa:
            A(f"v_lshl_add_u32 {v(V_SA)}, {v(V_HALF16)}, 2, {s(S_TMP)}")

    ROT = 3 if opt.get("rot", 1) else 0
    A(f"""
    s_mov_b64 exec, -1
    KB_NOSEC_A:
    s_cmp_eq_u64 {s(S_CMP, 2)}, 0
    s_cbranch_scc1 KB_NOMORE
    ds_write_b32 {v(V_CTRA)}, {v(V_ONE)} offset:4
    KB_NOMORE:
    v_lshrrev_b32 {v(PB)}, 4, v0
    v_mul_u32_u24 {v(PB)}, {4 * CHUNK}, {v(PB)}
    v_add_u32 {v(PB + 1)}, {CHUNK}, {v(PB)}
    v_add_u32 {v(PB + 2)}, {2 * CHUNK}, {v(PB)}
    v_add_u32 {v(PB + 3)}, {3 * CHUNK}, {v(PB)}
    s_getreg_b32 {s(S_ROT)}, hwreg(HW_REG_XCC_ID, 0, 3)
    s_lshl_b32 {s(S_ROT)}, {s(S_ROT)}, 1
    s_lshr_b32 {s(S_ROT)}, {ROTTAB:#x}, {s(S_ROT)}
    s_and_b32 {s(S_ROT)}, {s(S_ROT)}, 3
    s_lshl_b32 {s(S_ROT)}, {s(S_ROT)}, 8
    v_and_b32 {v(P1)}, 63, v0
    v_lshl_add_u32 {v(P2)}, {v(P1)}, 4, {s(S_ROT)}
    v_and_b32 {v(P2)}, 0x3ff, {v(P2)}
    v_mov_b32 {v(P5)}, 4
    v_mov_b32 {v(P6)}, 0x3f000fff
    v_mov_b32 {v(P3)}, {opt.get("abl_x", 0x1ffe00)}
    """)
    tile_addr(S_WAVE)
    A(f"""
    s_movk_i32 {s(S_C0)}, {NS}
    v_mov_b32 {v(V_KK)}, {40 * NS}
    s_mov_b32 {s(S_TMP2)}, {PSIZE * 512}
    """)

    def yloads(addr):
        for c in range(NC):
            A(f"s_or_b64 exec, {s(S_M1 + 2 * c, 2)}, 1\nglobal_load_dwordx2 {v(REC1 + 4 * c, 2)}, {v(addr + c)}, {s(S_WY, 2)} {WT}")
        A("s_mov_b64 exec, -1")

    ylate = opt.get("ylate", 0)
    if ylate == 0:
        yloads(HA1)
        A("s_waitcnt vmcnt(4)")
    elif ylate == 1:
        A("s_waitcnt vmcnt(0)")
        yloads(HA1)
    else:
        for c in range(NC):
            A(f"v_mov_b32 {v(YA + c)}, {v(HA1 + c)}")
        A("s_waitcnt vmcnt(0)")
    stamp("rec")

    def second(fns, tag):
        A(f"s_cmp_eq_u64 {s(S_ANY2, 2)}, 0\ns_cbranch_scc1 KB_N{tag}")
        for c in range(NC):
            A(f"s_mov_b64 exec, {s(S_M2 + 2 * c, 2)}\ns_cbranch_execz KB_{tag}{c}")
            for fn in fns:
                fn(REC2, RK2, HA2, c)
            A(f"KB_{tag}{c}:")
        A(f"KB_N{tag}:\ns_mov_b64 exec, -1")

    def keyof(rec, rk, ha, c):
        A(f"v_lshlrev_b32_sdwa {v(ha + c)}, 2, {v(rec + 4 * c + 2)} {SDWA} src1_sel:BYTE_3")

    def count(rec, rk, ha, c):
        A(f"ds_add_rtn_u32 {v(rk + c)}, {v(ha + c)}, {v(P5)} offset:{L_HIST}")

    def decode(rec, rk, ha, c):
        idx = rec + 4 * c + 2
        A(f"""
        v_and_b32 {v(idx + 1)}, {v(P6)}, {v(idx)}
        v_lshrrev_b32 {v(P0)}, 30, {v(idx)}
        v_lshrrev_b32 {v(idx)}, 3, {v(idx)}
        v_and_b32 {v(idx)}, {v(P3)}, {v(idx)}
        """)
        if not opt.get("abl_ef"):
            A(f"v_add_u32 {v(idx + 1)}, {v(idx + 1)}, {v(PB + c)}")
        if opt.get("abl_x"):
            A(f"v_add_u32 {v(idx)}, 512, {v(idx)}")
        else:
            A(f"v_mad_u32_u24 {v(idx)}, {v(P0)}, {s(S_TMP2)}, {v(idx)}")

    def prefread(rec, rk, ha, c):
        A(f"ds_read_b32 {v(ha + c)}, {v(ha + c)} offset:{L_PREF}")

    def place(rec, rk, ha, c):
        A(f"""
        v_add_u32 {v(ha + c)}, {v(ha + c)}, {v(rk + c)}
        v_add_u32 {v(rk + c)}, {v(ha + c)}, {v(ha + c)}
        v_and_b32 {v(P0)}, 64, {v(ha + c)}
        ds_write_b64 {v(rk + c)}, {v(rec + 4 * c, 2)} offset:{L_Y}
        v_mad_i32_i24 {v(rec + 4 * c + 2)}, {v(P0)}, -8, {v(rec + 4 * c + 2)}
        ds_write2st64_b32 {v(ha + c)}, {v(rec + 4 * c + 2)}, {v(rec + 4 * c + 3)} offset0:{L_SRC // 256} offset1:{L_EID // 256}
        """)

    for c in range(NC):
        keyof(REC1, RK1, HA1, c)
    for c in range(NC):
        A(f"s_mov_b64 exec, {s(S_M1 + 2 * c, 2)}")
        count(REC1, RK1, HA1, c)
    second([keyof, count, decode], "H")
    for c in range(NC):
        decode(REC1, RK1, HA1, c)
    A("s_waitcnt lgkmcnt(0)\ns_barrier")
    stamp("b5")
    if ylate == 2:
        yloads(YA)
    A(f"""
    ; wave 0 scans the counters (starting quarter depends on the die, for cache behaviour only)
    s_cmp_eq_u32 {s(S_WAVE)}, 0
    s_cbranch_scc0 KB_NOSCAN
    s_setprio 3
    """)
    scan256(SC, SC + 4, P2, P4)
    A(f"""
    s_mov_b32 exec_lo, 0
    s_brev_b32 exec_hi, 1
    ds_write_b32 {v(V_CTRA)}, {v(P4)} offset:16
    s_mov_b64 exec, -1
    s_waitcnt lgkmcnt(0)
    s_barrier
    s_setprio 0
    v_readlane_b32 {s(S_N)}, {v(P4)}, 63
    v_mov_b64 {v(SC + 4, 2)}, 0
    v_mov_b32 {v(SC + 6)}, 512
    v_mov_b32 {v(SC + 7)}, {(40 << 24) | 0xfffff}
    s_min_u32 {s(S_N)}, {s(S_N)}, {4 * CAP}
    v_lshl_add_u32 {v(P3)}, {v(P1)}, 2, {s(S_N)}
    v_lshlrev_b32 {v(P4)}, 1, {v(P3)}
    ds_write_b64 {v(P4)}, {v(SC + 4, 2)} offset:{L_Y}
    ds_write2st64_b32 {v(P3)}, {v(SC + 6)}, {v(SC + 7)} offset0:{L_SRC // 256} offset1:{L_EID // 256}
    s_waitcnt vmcnt(0)
    s_branch KB_PLACE
    KB_NOSCAN:
    """)
    if opt.get("efpre"):
        for c in range(NC):
            A(f"""
            v_xor_b32 {v(P0)}, {s(S_ROT)}, {v(HA1 + c)}
            v_cmp_gt_u32 vcc, {4 * opt["efpre"]}, {v(P0)}
            v_mul_u32_u24 {v(P0)}, 32, {v(REC1 + 4 * c + 3)}
            s_and_b64 vcc, vcc, {s(S_M1 + 2 * c, 2)}
            s_or_b64 exec, vcc, 1
            buffer_load_dword {v(V_JUNK)}, {v(P0)}, {s(S_EF, 4)}, 0 offen
            s_mov_b64 exec, -1
            """)
    A("s_barrier\nKB_PLACE:")
    stamp("b6")
    A(f"ds_read2_b32 {v(SC, 2)}, {v(V_CTRA)} offset0:1 offset1:4")
    for c in range(NC):
        A(f"s_mov_b64 exec, {s(S_M1 + 2 * c, 2)}")
        prefread(REC1, RK1, HA1, c)
    second([prefread], "R")
    A(f"""
    s_waitcnt lgkmcnt(0)
    v_readfirstlane_b32 {s(S_N)}, {v(SC + 1)}
    v_readfirstlane_b32 {s(S_MORE)}, {v(SC)}
    s_nop 1
    s_cmp_le_u32 {s(S_N)}, {4 * CAP}
    s_cbranch_scc0 KB_NARROW
    s_add_u32 {s(S_NT)}, {s(S_N)}, 127
    s_lshr_b32 {s(S_NT)}, {s(S_NT)}, 7
    s_waitcnt vmcnt({4 if opt.get("efpre") else 0})
    """)
    for c in range(NC):
        A(f"s_mov_b64 exec, {s(S_M1 + 2 * c, 2)}")
        place(REC1, RK1, HA1, c)
    second([place], "P")

    A("s_waitcnt lgkmcnt(0)\ns_barrier")
    stamp("sorted")

    def tile_reads():
        A(f"""
        ds_read_b32 {v(V_EID)}, {v(V_EID)} offset:{L_EID}
        ds_read_b32 {v(V_KN)}, {v(V_KN)} offset:{L_EID}
        ds_read_b64 {v(YR, 2)}, {v(V_MT)} offset:{L_Y}
        """)

    def so_read(g):
        A(f"ds_read_b128 {v(SO + 4 * (g % 2), 4)}, {v(V_SA)} offset:{L_SRC + 16 * (g % 4)}")

    def xload(r):
        A(f"buffer_load_dwordx4 {v(X + 4 * (r % 4), 4)}, {v(SO + 4 * ((r // 4) % 2) + r % 4)}, {s(S_X, 4)}, 0 offen")

    def ef_addr():
        A(f"v_mad_u32_u24 {v(V_EID)}, {v(V_EID)}, 32, {v(V_HALF16)}")

    def ef_load(skip):
        m = (0xffffffff << skip) & 0xffffffff
        if skip:
            A(f"s_mov_b32 exec_lo, {m:#x}\ns_mov_b32 exec_hi, {m:#x}")
        A(f"buffer_load_dwordx4 {v(EF, 4)}, {v(V_EID)}, {s(S_EF, 4)}, 0 offen")
        if skip:
            A("s_mov_b64 exec, -1")

    def sm_issue(base, n):
        A(f"; rows {base}..{base + n - 1} of the next feature tile come through the scalar cache")
        for j in range(n):
            A(f"v_readlane_b32 {s(SMB + 8 * j)}, {v(V_EID)}, {base + j}")
        if n < 5:
            A(f"s_nop {4 - n}")
        for j in range(n):
            A(f"s_buffer_load_dwordx8 {s(SMB + 8 * j, 8)}, {s(S_EF, 4)}, {s(SMB + 8 * j)} {opt.get('smflag', '')}")

    def sm_move(base, n):
        A(f"s_mov_b64 exec, {1 << base:#x}")
        for half in range(2):
            for j in range(n):
                if j or half:
                    A(f"s_lshl_b64 exec, exec, {1 if j else 33 - n}")
                for q in range(2):
                    A(f"v_mov_b64 {v(EF + 2 * q, 2)}, {s(SMB + 8 * j + 4 * half + 2 * q, 2)}")
        A("s_mov_b64 exec, -1")

    def grab(reg):
        if opt.get("app"):
            A(f"ds_append {v(reg)} offset:{L_CTR}")
            return
        A(f"s_mov_b64 exec, 1\nds_add_rtn_u32 {v(reg)}, {v(V_CTRA)}, {v(V_ONE)}\ns_mov_b64 exec, -1")

    key_ops = [f"v_mul_u32_u24_sdwa {v(V_KN)}, {s(S_C0)}, {v(V_KN)} {SDWA} src1_sel:BYTE_3",
               f"v_xor_b32_dpp {v(V_MT)}, {v(V_KN)}, {v(V_KN)} row_shl:1 {DPP} bound_ctrl:0",
               f"v_cmp_ne_u32 {s(S_CMP, 2)}, 0, {v(V_MT)}"]

    kmov = f"v_mov_b32 {v(V_KK)}, {v(V_KN)}"
    if opt.get("k3"):
        kmov = f"v_mul_u32_u24_sdwa {v(V_KK)}, {s(S_C0)}, {v(V_KN)} {SDWA} src1_sel:BYTE_3"
        key_ops = [key_ops[1], "", f"v_cmp_ne_u32_sdwa {s(S_CMP, 2)}, {v(V_MT)}, 0 src0_sel:BYTE_3 src1_sel:DWORD"]

    sm0 = opt.get("sm0", 0)
    A(f"s_cmp_ge_u32 {s(S_WAVE)}, {s(S_NT)}\ns_cbranch_scc1 KM_DONE")
    A(f"ds_read_b32 {v(V_EID)}, {v(V_EID)} offset:{L_EID}")
    so_read(0)
    A(f"ds_read_b32 {v(V_KN)}, {v(V_KN)} offset:{L_EID}\nds_read_b64 {v(YR, 2)}, {v(V_MT)} offset:{L_Y}")
    so_read(1)
    A("s_waitcnt lgkmcnt(4)")
    ef_addr()
    if opt.get("abl_ef0"):
        A(f"s_cmp_lt_u32 {s(S_WAVE)}, {opt['abl_ef0']}\ns_cbranch_scc1 KM_AB0")
    ef_load(sm0)
    A("KM_AB0:\ns_waitcnt lgkmcnt(3)")
    for r in range(4):
        xload(r)
    A("s_waitcnt lgkmcnt(0)")
    A(key_ops[0] + "\ns_nop 1\n" + key_ops[1] + "\n" + key_ops[2])
    if sm0:
        if opt.get("abl_ef0"):
            A(f"s_cmp_lt_u32 {s(S_WAVE)}, {opt['abl_ef0']}\ns_cbranch_scc1 KM_AB1")
        sm_issue(0, sm0)
        A("s_waitcnt lgkmcnt(0)")
        sm_move(0, sm0)
        A("KM_AB1:")
    A("s_waitcnt vmcnt(4)")
    stamp("loop")

    def flush_ops(r):
        ops = [[f"v_add_u32_dpp {v(V_FA)}, {v(V_KK)}, {v(V_ACCL)} row_newbcast:{r} {DPP}"]]
        for j in range(8):
            st = STG + 2 * (j % 4)
            ops.append([f"v_cvt_f64_f32 {v(st, 2)}, {v(ACC + j)}", f"ds_add_f64 {v(V_FA)}, {v(st, 2)} offset:{RS * j}"])
        return ops

    def emit(groups):
        for g in groups:
            for op in ([g] if isinstance(g, str) else g):
                A(op)

    def acc_ops(r, first):
        ops = []
        for j in range(4):
            rr = D + 16 * (j // 2) + (r & ~1)
            o = r & 1
            if first:
                ops.append(f"v_pk_mul_f32 {v(ACC + 2 * j, 2)}, {v(rr, 2)}, {v(TP + 2 * j, 2)} op_sel:[{o},0] op_sel_hi:[{o},1]")
            else:
                ops.append(f"v_pk_fma_f32 {v(ACC + 2 * j, 2)}, {v(rr, 2)}, {v(TP + 2 * j, 2)}, {v(ACC + 2 * j, 2)} op_sel:[{o},0,0] op_sel_hi:[{o},1,1]")
        return ops

    def exp_ops(q):
        return [f"v_exp_f32 {v(E + j)}, {v(D + 16 * (j // 2) + q + j % 2)}" for j in range(4)]

    add_ops = [f"v_pk_add_f32 {v(E + 2 * j, 2)}, {v(E + 2 * j, 2)}, 1.0 op_sel_hi:[1,0]" for j in range(2)]
    if opt.get("fold"):
        add_ops = [f"v_pk_fma_f32 {v(E + 2 * j, 2)}, {v(E + 2 * j, 2)}, {s(S_CC, 2)}, {s(S_CC, 2)}" for j in range(2)]
        A(f"s_mov_b32 {s(S_CC)}, {fbits(-math.log2(math.e))}\ns_mov_b32 {s(S_CC + 1)}, {fbits(-math.log2(math.e))}")
    rcp_ops = [f"v_rcp_f32 {v(E + j)}, {v(E + j)}" for j in range(4)]

    def mul_ops(q):
        return [f"v_pk_mul_f32 {v(D + 16 * j + q, 2)}, {v(D + 16 * j + q, 2)}, {v(E + 2 * j, 2)}" for j in range(2)]

    def pair_ops(q):
        return [add_ops[1],
                f"v_pk_fma_f32 {v(D + 16 + q, 2)}, {v(D + 16 + q, 2)}, {v(E, 2)}, {v(D + 16 + q, 2)}",
                f"v_pk_mul_f32 {v(D + q, 2)}, {v(D + q, 2)}, {v(E + 2, 2)}",
                f"v_pk_fma_f32 {v(E, 2)}, {v(E, 2)}, {v(E + 2, 2)}, {v(E + 2, 2)}"]

    def pair_mul(q):
        return [f"v_pk_mul_f32 {v(D + 16 * j + q, 2)}, {v(D + 16 * j + q, 2)}, {v(E, 2)}" for j in range(2)]

    pair = opt.get("pair", 0)
    prio = opt["prio"]
    EFV = opt["efv"]
    assert EFV <= 11 or opt.get("exactw")
    bodies = opt["bodies"]
    S_LIMS = (S_N, S_C1)
    if US:
        A(f"s_lshl_b32 {s(S_NT)}, {s(S_NT)}, {US}\ns_mov_b32 m0, 0")
    for (lim, _), reg in zip(bodies[:-1], S_LIMS):
        A(f"s_min_u32 {s(reg)}, {s(S_NT)}, {lim << US}")
    lims = list(S_LIMS[:len(bodies) - 1]) + [S_NT]
    tags = [str(k) for k in range(len(bodies))] + ["L"]
    mergew = opt.get("mergew", 0)
    G = opt.get("grab", 1)
    assert G in (1, 5)

    def step(r, tag, sm):
        last = tag == "L"
        base = {st: sum(sm[q] for q in sm if q < st) for st in sm}
        tr = T + (2 if r >= 8 else 0)
        m4 = [f"v_mfma_f32_4x4x4_16b_bf16 {v(TP + 4 * h, 4)}, {v(tr, 2)}, {v(X + 4 * (r % 4) + 2 * h, 2)}, 0 cbsz:3 abid:{r % 8}" for h in range(2)]
        A(f"; step {r}")
        pr = opt.get("lprio", prio) if last else prio
        if r in pr:
            A(f"s_setprio {pr[r]}")
        lw = (r % 4 == 0 and r > 0 and not (last and r == 12)) or r == G + 1
        vm = min(3, 15 - r) if last else 3
        if opt.get("exactw") and not last and EFV < r <= EFV + 4:
            vm = 4
        if not opt.get("halfw"):
            A(f"s_waitcnt vmcnt({vm})" + (" lgkmcnt(0)" if lw and mergew else ""))
        elif r % 2 == 0:
            A(f"s_waitcnt vmcnt({vm - 1})" + (" lgkmcnt(0)" if lw and mergew else ""))
        if r == 15 and last:
            emit([m4[0], m4[1], "s_nop 1"])
            side = []
        elif r == 15:
            emit([m4[0], key_ops[0], m4[1]])
            xload(r + 4)
            emit([key_ops[1], key_ops[2]])
            side = []
        else:
            trans = rcp_ops if r % 2 == 0 else exp_ops(r + 1)
            side = mul_ops(r) if r % 2 == 0 else add_ops
            if pair and r % 2 == 0:
                trans = rcp_ops[:2] + ([exp_ops(r + 2)[2]] if r < 14 else [])
                side = pair_mul(r)
                if last and r == 14:
                    trans.append("s_nop 0")
            elif pair:
                ex3 = exp_ops(r + 1)
                trans = [ex3[3], ex3[0], ex3[1]]
                side = pair_ops(r + 1)
            ex_ = opt.get("earlyx", 0) if (r % 4 and not (last and r >= 12)) else 0
            if ex_:
                emit([m4[0], trans[0], m4[1]] + trans[1:ex_])
                xload(r + 4)
                emit(trans[ex_:])
            else:
                emit([m4[0], trans[0], m4[1]] + trans[1:])
            if lw and not mergew:
                A("s_waitcnt lgkmcnt(0)")
            if not (last and r >= 12) and not ex_:
                xload(r + 4)
        if r % 4 == 0 and not (last and r >= 8):
            so_read(r // 4 + 2)
        if r == G:
            grab(V_MT)
        if r == G + 1:
            A(f"v_readfirstlane_b32 {s(S_NEXT)}, {v(V_MT)}")
        if not last:
            if r == G + 2:
                tile_addr(S_NEXT, False)
                tile_reads()
            if r == max(5, G + 2):
                A(f"v_lshl_add_u32 {v(V_SA)}, {v(V_HALF16)}, 2, {s(S_TMP)}")
            if r == G + 3:
                ef_addr()
                A("s_nop 0") if r in sm else None
            if r - 4 in sm:
                sm_move(base[r - 4], sm[r - 4])
            if r in sm:
                sm_issue(base[r], sm[r])
            if r == EFV:
                ef_load(sum(sm.values()))
            if r == 14 and 12 not in sm:
                A("s_waitcnt lgkmcnt(0)")
        emit(side)
        if r > 0:
            A(f"s_bitcmp1_b32 {s(S_MASK)}, {r - 1}\ns_cbranch_scc1 KM_F{r}")
        emit(acc_ops(r, r == 0))
        if r > 0:
            A(f"KM_R{r}{'_' + tag if r > G + 1 else ''}:")

    def dispatch(fmt, fall_first):
        if fall_first:
            A(f"s_cmp_ge_u32 {s(S_NEXT)}, {s(lims[0])}\ns_cbranch_scc1 KM_OTHER")
            return
        for tag, lim in zip(tags, lims):
            A(f"s_cmp_lt_u32 {s(S_NEXT)}, {s(lim)}\ns_cbranch_scc1 {fmt.format(tag)}")
        A(f"s_branch {fmt.format('L')}")

    A(".p2align 6")
    for _ in range(opt.get("shift", 0)):
        A("s_nop 0")
    loop_start = len(A.lines)
    A("KM_LOOP:")
    if -1 in prio:
        A(f"s_setprio {prio[-1]}")
    if pair == 2:
        A(f"v_dot2_f32_bf16 {v(V_FA)}, {v(EF)}, {v(EF)}, 0")
        for j in range(1, 4):
            A(f"v_dot2_f32_bf16 {v(V_FA)}, {v(EF + j)}, {v(EF + j)}, {v(V_FA)}")
        A(f"s_nop 2\nv_cmp_nge_f32 vcc, 4.0, {v(V_FA)}\ns_cbranch_vccnz KM_DONE")
    fo = flush_ops(15)
    tm = [f"v_mfma_f32_4x4x4_16b_bf16 {v(D + 16 + 4 * i, 4)}, {v(YR, 2)}, {v(CG + 2 * i, 2)}, 0" for i in range(4)]
    tc = [f"v_cvt_pk_bf16_f32 {v(T + 2 * j + hh)}, {v(D + 16 + 8 * hh + j)}, {v(D + 20 + 8 * hh + j)}" for hh in range(2) for j in range(2)]
    ex = exp_ops(0)
    emit([tm[0], fo[0], tm[1], fo[1], tm[2], fo[2], tm[3], fo[3]])
    if opt.get("exactw") and EFV > 10:
        A(f"s_waitcnt vmcnt({15 - EFV})")
    A(f"v_mfma_f32_32x32x16_bf16 {v(D, 16)}, {v(EF, 4)}, {v(W, 4)}, 0")
    emit([tc[0], tc[1], fo[4], fo[5], tc[2], tc[3]])
    A(f"v_mfma_f32_32x32x16_bf16 {v(D + 16, 16)}, {v(EF, 4)}, {v(W + 4, 4)}, 0")
    emit([fo[6], fo[7], fo[8], kmov, f"s_or_b32 {s(S_MASK)}, {s(S_CMP)}, {s(S_CMP + 1)}",
          ex[0], ex[1], "s_nop 1", ex[2], ex[3], "s_nop 0"] + (pair_ops(0) if pair else add_ops))
    for r in range(G + 2):
        step(r, "H", {})
    for k, tag in enumerate(tags):
        sm = bodies[k][1] if tag != "L" else {}
        if k and opt.get("balign"):
            A(f".p2align {opt['balign']}")
        A(f"KM_B{tag}:")
        if tag != "L":
            A(f"s_cmp_ge_u32 {s(S_NEXT)}, {s(lims[k])}\ns_cbranch_scc1 KM_B{tags[k + 1]}")
        else:
            A("; final tile of this wave: nothing to prefetch")
        for r in range(G + 2, 16):
            step(r, tag, sm)
        if tag != "L":
            if 12 in sm:
                A("s_waitcnt lgkmcnt(0)")
                sm_move(sum(sm[q] for q in sm if q < 12), sm[12])
            if 16 in sm:
                sm_issue(sum(sm[q] for q in sm if q < 16), sm[16])
                A("s_waitcnt lgkmcnt(0)")
                sm_move(sum(sm[q] for q in sm if q < 16), sm[16])
            A("s_branch KM_LOOP")
    drop = opt.get("drop", [])
    if drop:
        A.lines[loop_start:] = [ln for ln in A.lines[loop_start:] if not any(d in ln for d in drop)]
    emit(flush_ops(15))
    A("s_branch KM_DONE")
    A("; node change before step r: flush the sums and restart them")
    for r in range(1, 16):
        if opt.get("falign"):
            A(f".p2align {opt['falign']}")
        A(f"KM_F{r}:")
        emit(flush_ops(r - 1))
        emit(acc_ops(r, True))
        if r > G + 1:
            dispatch(f"KM_R{r}_{{}}", False)
        else:
            A(f"s_branch KM_R{r}")
    A(f"""
    KB_NARROW:
    s_mov_b32 {s(S_WIDE)}, 0
    s_branch KB_ROUND
    KB_NEXT:
    s_lshl_b32 {s(S_TMP)}, 8, {s(S_WIDE)}
    s_add_u32 {s(S_K0)}, {s(S_K0)}, {s(S_TMP)}
    KB_ROUND:
    s_waitcnt vmcnt(0) lgkmcnt(0)
    s_barrier
    v_and_b32 {v(P0)}, 0xff, v0
    v_lshlrev_b32 {v(P0)}, 2, {v(P0)}
    v_mov_b32 {v(P1)}, 0
    v_mov_b32 {v(P2)}, {NSTART}
    ds_write_b32 {v(P0)}, {v(P1)} offset:{L_HIST}
    ds_write2_b32 {v(V_CTRA)}, {v(P2)}, {v(P1)} offset0:0 offset1:1
    """)
    round_consts()
    A("""
    s_waitcnt lgkmcnt(0)
    s_barrier
    s_branch KB_ROUND0
    """)
    WM, A64, AG, AF, OD, OP = 32, 80, 16, 8, 80, 96
    A("KM_DONE:")
    stamp("done")
    A(f"""
    s_setprio 0
    s_cmp_eq_u32 {s(S_MORE)}, 0
    s_cbranch_scc0 KB_NEXT
    s_cmp_ge_u32 {s(S_WAVE)}, 10
    s_cbranch_scc0 KE_MIX
    s_waitcnt lgkmcnt(0)
    s_barrier
    s_branch KE_FIN
    KE_MIX:
    v_and_b32 v1, 63, v0
    v_lshlrev_b32 v2, 4, v1
    """)
    for f in range(8):
        A(f"ds_read_b128 {v(WM + 4 * f, 4)}, v2 offset:{L_WM + 1024 * f}")
    A(f"""
    v_bfe_u32 v2, v1, 2, 2
    v_mul_u32_u24 v2, {NS}, v2
    v_and_b32 v3, 3, v1
    v_mul_u32_u24 v3, {RS}, v3
    v_lshrrev_b32 v4, 4, v1
    v_lshlrev_b32 v5, 6, v4
    v_add3_u32 v2, v2, v3, v5
    s_mul_i32 s70, {s(S_WAVE)}, {4 * NS}
    s_add_u32 s70, s70, {L_ACC}
    v_add_u32 v2, s70, v2
    v_and_b32 v3, 15, v1
    v_lshlrev_b32 v3, 4, v3
    v_lshl_add_u32 v3, v4, 17, v3
    s_lshl_b32 s70, {s(S_WAVE)}, 19
    s_lshl_b32 s71, {s(S_BETA)}, 9
    s_add_u32 s70, s70, s71
    v_add_u32 v3, s70, v3
    s_lshr_b32 s72, {s(S_BETA)}, 4
    s_lshl_b32 s72, s72, 9
    s_sub_u32 s72, s72, s71
    s_and_b32 s73, {s(S_BETA)}, 15
    s_cselect_b32 s72, 0x40000000, s72
    s_cmp_eq_u32 {s(S_WAVE)}, 9
    s_cselect_b32 s72, s72, 0
    v_cmp_le_u32 vcc, 48, v1
    v_add_u32 v4, s72, v3
    s_nop 0
    v_cndmask_b32 v3, v3, v4, vcc
    s_mov_b32 {s(S_SC)}, {fbits(-math.log(2.0) * opt.get('oscale', 1.0))}
    s_mov_b32 {s(S_SC + 1)}, {fbits(-math.log(2.0) * opt.get('oscale', 1.0))}
    s_waitcnt lgkmcnt(0)
    """)
    A("s_barrier")
    for cpar in range(2):
        for hh in range(4):
            A(f"ds_read_b128 {v(A64 + 16 * cpar + 4 * hh, 4)}, v2 offset:{4 * RS * cpar + 16 * hh}")
    def conv(j):
        A(f"s_waitcnt lgkmcnt({7 - j})")
        A(f"v_cvt_f32_f64 {v(AG + 2 * j)}, {v(A64 + 4 * j, 2)}")
        A(f"v_cvt_f32_f64 {v(AG + 2 * j + 1)}, {v(A64 + 4 * j + 2, 2)}")
        if opt.get("fold"):
            A(f"v_cvt_pk_bf16_f32 {v(AF + j)}, {v(AG + 2 * j)}, {v(AG + 2 * j + 1)}")

    def mix(half, dt):
        A(f"v_mfma_f32_16x16x32_bf16 {v(OD + 4 * dt, 4)}, {v(AF + 4 * half, 4)}, {v(WM + 16 * half + 4 * dt, 4)}, {v(OD + 4 * dt, 4) if half else 0}")

    if opt.get("fold") == 2:
        for j in range(5):
            conv(j)
        for dt in range(3):
            mix(0, dt)
            conv(5 + dt)
        mix(0, 3)
        A("s_nop 0")
    else:
        for j in range(8):
            conv(j)
        if not opt.get("fold"):
            for j in range(8):
                A(f"v_pk_mul_f32 {v(AG + 2 * j, 2)}, {v(AG + 2 * j, 2)}, {s(S_SC, 2)}")
            for j in range(8):
                A(f"v_cvt_pk_bf16_f32 {v(AF + j)}, {v(AG + 2 * j)}, {v(AG + 2 * j + 1)}")
        A("s_nop 1")
        for dt in range(4):
            mix(0, dt)
    for dt in range(4):
        mix(1, dt)
    A("s_nop 4")
    for j in range(8):
        A(f"v_cvt_pk_bf16_f32 {v(OP + j)}, {v(OD + 2 * j)}, {v(OD + 2 * j + 1)}")
        if j == 3:
            A(f"buffer_store_dwordx4 {v(OP, 4)}, v3, {s(S_OUT, 4)}, 0 offen {opt.get('out_st', '')}")
    ost = opt.get("out_st", "")
    A(f"buffer_store_dwordx4 {v(OP + 4, 4)}, v3, {s(S_OUT, 4)}, 0 offen offset:256 {ost}")
    A("KE_FIN:")
    if opt.get("diag"):
        A("""
        s_waitcnt lgkmcnt(0)
        KE_SPIN:
        s_memrealtime s[74:75]
        s_waitcnt lgkmcnt(0)
        s_sub_u32 s74, s74, s76
        s_cmp_lt_u32 s74, 10000
        s_cbranch_scc1 KE_SPIN
        """)
    if opt.get("trace"):
        A(f"s_lshl_b32 s78, s2, 12\ns_add_u32 s78, s78, {130 << 20}\nv_lshl_add_u32 v1, v0, 2, s78\nglobal_store_dword v1, {v(V_TRC)}, {s(S_WS, 2)}")
    if opt.get("prof"):
        A("s_waitcnt vmcnt(0)")
        stamp("fin")
        A("s_waitcnt lgkmcnt(0)")
        A(f"s_lshl_b32 s3, s2, 4\ns_add_u32 s3, s3, {s(S_WAVE)}\ns_lshl_b32 s3, s3, 6\ns_add_u32 s3, s3, {(128 << 20) + (1 << 20)}")
        A("v_mov_b32 v1, s3")
        for i in range(len(pts)):
            A(f"v_mov_b32 v2, {s(SB + 2 * i)}\nglobal_store_dword v1, v2, {s(S_WS, 2)} offset:{4 * i}")
    A("K_END:\ns_endpgm")


OVERVIEW = """;
;     packed records (phase|node|src|edge, Y) to d_ws, then publishes a tagged table row of (start, count).
"""

BEST = dict(fold=2, k3=1, exactw=1, w2=80, efpre=12, ylate=1, sm0=7, tcode=5, out_st="sc1", efv=11,
            bodies=[(72, {4: 7, 8: 7, 12: 6}), (0, {4: 5})], prio={-1: 3, 7: 0, 10: 1, 13: 2},
            lprio={3: 1, 7: 0})


def generate(opt):
    if opt.get("best"):
        opt = {**BEST, **opt}
    A = Asm()
    out = HEADER
    if opt.get("aslist"):
        out += f"; @launch kernel={NAME}_kernel grid=(256,1,1) block=(1024,1,1) lds={LDS_BYTES}\n"
    else:
        out += f"; @launch grid=(256,1,1) block=(1024,1,1) lds={LDS_BYTES}\n"
    out += OVERVIEW
    out += '.amdgcn_target "amdgcn-amd-amdhsa--gfx950"\n.text\n'
    gen(A, opt)
    out += A.text()
    out += f""".section .rodata,"a"
.p2align 6
.amdhsa_kernel {NAME}_kernel
  .amdhsa_next_free_vgpr {NVGPR}
  .amdhsa_next_free_sgpr 102
  .amdhsa_accum_offset {NVGPR}
  .amdhsa_group_segment_fixed_size 0
  .amdhsa_kernarg_size 88
  .amdhsa_user_sgpr_count 2
  .amdhsa_user_sgpr_kernarg_segment_ptr 1
  .amdhsa_system_sgpr_workgroup_id_x 1
  .amdhsa_float_denorm_mode_32 3
.end_amdhsa_kernel
"""
    return out


if __name__ == "__main__":
    opt = eval("dict(" + (sys.argv[2] if len(sys.argv) > 2 else "") + ")")
    path = sys.argv[1] if len(sys.argv) > 1 else f"cdna_kernels/{NAME}.s"
    open(path, "w").write(generate(opt))
```
